```python
import torch

def _softmax(x, axis=-1):
    return torch.softmax(x, dim=axis)
def _gelu(x):
    return torch.nn.functional.gelu(x, approximate="tanh")
def _silu(x):
    return torch.nn.functional.silu(x)
def _sigmoid(x):
    return torch.sigmoid(x)
def _layernorm(x, axis=-1, eps=1e-5):
    m = x.mean(dim=axis, keepdim=True)
    v = x.var(dim=axis, keepdim=True, unbiased=False)
    return (x - m) / torch.sqrt(v + eps)
def _scatter_add(tgt, idx, src, axis=0):
    return tgt.clone().index_add_(axis, idx, src)
def _segment_sum(src, seg, n):
    out = torch.zeros((n,) + src.shape[1:], dtype=src.dtype)
    return out.index_add_(0, seg, src)
def _pad(x, pw):
    flat = tuple(v for pair in reversed(pw) for v in pair)
    return torch.nn.functional.pad(x, flat)

kernel_name = 'sequential_preLN__mha_block_cached__swiglu_ffn__decode'

def setup_inputs():

    _w = (lambda a: (lambda t: t.to(torch.bfloat16) if t.is_floating_point() else t)(torch.as_tensor(a)))
    def _A_setup():
        B, Sq, D = 1, 1, 640
        H, Sk, Dh = 32, 16384, 128
        return {
            "x": _w((lambda *s: torch.randn(*s, dtype=torch.bfloat16) * 0.05)(B, Sq, D)),
            "k_cache": _w((lambda *s: torch.randn(*s, dtype=torch.bfloat16) * 3.2)(B, H, Sk, Dh)),
            "v_cache": _w((lambda *s: torch.randn(*s, dtype=torch.bfloat16) * 0.4)(B, H, Sk, Dh)),
            "wq": _w((lambda *s: torch.randn(*s, dtype=torch.bfloat16) * 3.2)(D, H * Dh) * (D ** -0.5)),
            "wo": _w((lambda *s: torch.randn(*s, dtype=torch.bfloat16) * 0.4)(H * Dh, D) * ((H * Dh) ** -0.5)),
        }
    _A_in = _A_setup()

    def _B_setup():
        B, S, D, F = 1, 1, 640, 1728
        return {
            "x": _w((lambda *s: torch.randn(*s, dtype=torch.bfloat16) * 0.05)(B, S, D)),
            "w_gate": _w((lambda *s: torch.randn(*s, dtype=torch.bfloat16) * 0.05)(D, F)),
            "w_up": _w((lambda *s: torch.randn(*s, dtype=torch.bfloat16) * 0.05)(D, F)),
            "w_down": _w((lambda *s: torch.randn(*s, dtype=torch.bfloat16) * 0.05)(F, D)),
        }
    _B_in = _B_setup()

    return {
        "A_x": _A_in["x"],
        "A_k_cache": _A_in["k_cache"],
        "A_v_cache": _A_in["v_cache"],
        "A_wq": _A_in["wq"],
        "A_wo": _A_in["wo"],
        "B_x": _B_in["x"],
        "B_w_gate": _B_in["w_gate"],
        "B_w_up": _B_in["w_up"],
        "B_w_down": _B_in["w_down"],
    }

def reference(A_x, A_k_cache, A_v_cache, A_wq, A_wo, B_x, B_w_gate, B_w_up, B_w_down):
    def _A_ref(x, k_cache, v_cache, wq, wo):
        B, Sq, D = x.shape
        H, Dh = 32, 128
        q = (lambda x, *d: x.permute(*d))((x @ wq).reshape(B, Sq, H, Dh), 0, 2, 1, 3)
        scores = torch.einsum("bhqd,bhkd->bhqk", q, k_cache) * (Dh ** -0.5)
        p = _softmax(scores, axis=-1)
        o = torch.einsum("bhqk,bhkd->bhqd", p, v_cache)
        return (lambda x, *d: x.permute(*d))(o, 0, 2, 1, 3).reshape(B, Sq, H * Dh) @ wo

    def _B_ref(x, w_gate, w_up, w_down):
        g = _silu(x @ w_gate)
        u = x @ w_up
        return (g * u) @ w_down

    x = A_x
    h = x + _A_ref(_layernorm(x, axis=-1), A_k_cache, A_v_cache, A_wq, A_wo)
    h2 = h + _B_ref(_layernorm(h, axis=-1), B_w_gate, B_w_up, B_w_down)
    return h2
```

```python
import re

def _regs(tok, kind):
    tok = tok.strip()
    tok = re.sub(r"^(-|abs\(|neg\()", "", tok).rstrip(")")
    m = re.fullmatch(kind + r"(\d+)", tok)
    if m: return [int(m.group(1))]
    m = re.fullmatch(kind + r"\[(\d+):(\d+)\]", tok)
    if m: return list(range(int(m.group(1)), int(m.group(2)) + 1))
    return []

TRANS = ("v_exp_f32", "v_log_f32", "v_rcp_f32", "v_rsq_f32", "v_sqrt_f32")

class Asm:
    def __init__(self):
        self.lines = []
        self.hist = []
        self.npad = 0
    def raw(self, s):
        self.lines.append(s)
    def label(self, name):
        self.lines.append(name + ":")
    def comment(self, s):
        self.lines.append("  ; " + s)
    def fence(self):
        pass
    def _parse(self, ins):
        ins = ins.split(";")[0].strip()
        parts = ins.split(None, 1)
        op = parts[0]
        rest = parts[1] if len(parts) > 1 else ""
        ops = [o.strip() for o in re.split(r",\s*(?![^\[]*\])", rest)]
        mods = ""
        if ops and ops[-1]:
            sp = ops[-1].split(None, 1)
            ops[-1] = sp[0]
            mods = sp[1] if len(sp) > 1 else ""
        return op, ops, mods
    def info(self, ins):
        op, ops, mods = self._parse(ins)
        d = dict(op=op, vw=set(), vr=set(), sw=set(), sr=set(), valu=False, dpp=False, trans=False, dl=False,
                 perml=False, vmem=False, widestore=set(), rdlane=False, ws=1, srcC=set(), mfma=False)
        def V(t): return set(_regs(t, "v"))
        def S(t):
            if t == "vcc": return {106, 107}
            if t == "exec": return {126, 127}
            return set(_regs(t, "s"))
        if op == "s_nop":
            d["ws"] = int(ops[0], 0) + 1
            return d
        if op.startswith("v_"):
            d["valu"] = True
            base = re.sub(r"_(e32|e64|dpp|sdwa)$", "", op)
            d["base"] = base
            d["dpp"] = op.endswith("_dpp") or "row_" in mods or "quad_perm" in mods
            d["trans"] = base in TRANS
            d["dl"] = base.startswith("v_dot")
            d["mfma"] = base.startswith("v_mfma")
            if base.startswith("v_cmp"):
                d["sw"] = S(ops[0])
                for t in ops[1:]: d["vr"] |= V(t); d["sr"] |= S(t)
            elif base in ("v_readfirstlane_b32", "v_readlane_b32"):
                d["sw"] = S(ops[0]); d["vr"] = V(ops[1]); d["rdlane"] = True
                if len(ops) > 2: d["lanesel"] = S(ops[2])
            elif base.startswith("v_permlane"):
                d["perml"] = True
                d["vw"] = V(ops[0]) | V(ops[1]); d["vr"] = set(d["vw"])
            else:
                d["vw"] = V(ops[0])
                srcs = ops[1:]
                if base in ("v_add_co_u32", "v_addc_co_u32", "v_sub_co_u32"):
                    d["sw"] = S(ops[1]); srcs = ops[2:]
                for t in srcs: d["vr"] |= V(t); d["sr"] |= S(t)
                if base in ("v_fmac_f32", "v_dot2c_f32_bf16", "v_writelane_b32") or d["dpp"]:
                    d["vr"] |= d["vw"]
                if base == "v_dot2c_f32_bf16": d["srcC"] = set(d["vw"]); d["srcAB"] = V(ops[1]) | V(ops[2])
                if base == "v_dot2_f32_bf16": d["srcC"] = V(ops[3]); d["srcAB"] = V(ops[1]) | V(ops[2])
                if base == "v_cndmask_b32" and len(ops) == 3: d["sr"] |= {106, 107}
                if d["dpp"]: d["dppsrc"] = V(ops[1])
        elif op.startswith(("buffer_", "global_")):
            d["vmem"] = True
            allv = set(); alls = set()
            for t in ops: allv |= V(t); alls |= S(t)
            d["sr"] = alls
            if "load" in op:
                d["vw_async"] = V(ops[0]); d["vr"] = allv - V(ops[0]) | (V(ops[1]) if len(ops) > 1 else set())
            else:
                d["vr"] = allv
                if op.endswith(("x3", "x4")):
                    data = V(ops[0]) if op.startswith("buffer_") else V(ops[1])
                    d["widestore"] = data
        elif op.startswith("ds_"):
            allv = set()
            for t in ops: allv |= V(t)
            if "read" in op: d["vw_async"] = V(ops[0]); d["vr"] = V(ops[1])
            else: d["vr"] = allv
            d["ds"] = True
        return d
    def need(self, cur):
        req = 0
        dist = 0
        for p in reversed(self.hist):
            n = 0
            if p["valu"]:
                pw = p["vw"]
                if cur["valu"]:
                    if cur["dpp"] and pw & cur["vr"]: n = max(n, 2)
                    if cur["perml"] and pw & cur["vr"]: n = max(n, 2)
                    if cur["rdlane"] and pw & cur["vr"]: n = max(n, 1)
                    if p["trans"] and not cur["trans"] and pw & (cur["vr"]): n = max(n, 1)
                    if p["trans"] and cur["trans"] and pw & (cur["vr"]): n = max(n, 1)
                    if p["sw"] & cur["sr"]: n = max(n, 2)
                    if p["sw"] & cur.get("lanesel", set()): n = max(n, 4)
                    if cur["mfma"] and pw & cur["vr"]: n = max(n, 2)
                if p["dl"]:
                    same = cur["valu"] and cur.get("base") == p.get("base")
                    if same:
                        if pw & cur.get("srcAB", set()): n = max(n, 3)
                    else:
                        if pw & (cur["vr"] | cur["vw"] | cur.get("vw_async", set())): n = max(n, 3)
                if cur["vmem"] and p["sw"] & cur["sr"]: n = max(n, 5)
            if p["widestore"]:
                if cur["valu"] and p["widestore"] & cur["vw"]: n = max(n, 2)
                elif p["widestore"] & cur.get("vw_async", set()): n = max(n, 1)
            req = max(req, n - dist)
            dist += p["ws"]
            if dist >= 6: break
        return req
    def __call__(self, ins):
        cur = self.info(ins)
        n = self.need(cur)
        if n > 0:
            self.lines.append(f"  s_nop {n-1}")
            self.hist.append(self.info(f"s_nop {n-1}")); self.npad += 1
        self.lines.append("  " + ins)
        self.hist.append(cur)
        if len(self.hist) > 12: self.hist = self.hist[-12:]
    def text(self):
        return "\n".join(self.lines) + "\n"
```

```python
import sys
sys.path.insert(0, "work")
from asmlib import Asm

KN = "sequential_preLN__mha_block_cached__swiglu_ffn__decode_kernel"
HEADER = open("sequential_preLN__mha_block_cached__swiglu_ffn__decode.s.ref").read().split("; Override launch")[0]

WS_QP = 0x000000
WS_OP = 0x040000
WS_ST = 0x080000
WS_YP = 0x090000
WS_FP = 0x0A0000
L_Q = 0
L_SC = 1024
L_PP = L_SC + 32768
L_OL = L_PP + 16384
L_YL = L_OL + 4096
L_H = L_YL + 2048
L_GU = L_H + 2560
L_END = L_GU + 1024
NWO, NFFN, NFIN = 80, 54, 20
SPIN = 20000
LOG2E = 0x3fb8aa3b
SCALE = 0x3db504f3
INV640 = 0x3acccccd
EPS = 0x3727c5ac
FULL = "row_mask:0xf bank_mask:0xf"

def gen(diag=False, wpol="nt", sleep=1):
    a = Asm()
    uid = [0]
    def L(n):
        uid[0] += 1
        return f"L_{n}_{uid[0]}"
    stampn = {}
    def stamp(name):
        if not diag: return
        i = stampn.setdefault(name, len(stampn))
        a("s_memrealtime s[90:91]"); a("s_waitcnt lgkmcnt(0)"); a(f"v_writelane_b32 v250, s90, {i}")
    def dump_stamps():
        if not diag: return
        a("s_add_u32 s90, s38, 0x10000000"); a("s_addc_u32 s91, s39, 0")
        a("s_lshl_b32 s92, s2, 3"); a("s_add_u32 s92, s92, s3"); a("s_lshl_b32 s92, s92, 8")
        a("v_lshlrev_b32 v251, 2, v0"); a("v_add_u32 v251, s92, v251")
        a("global_store_dword v251, v250, s[90:91]")

    def rbf(dst, src):
        a(f"v_cvt_pk_bf16_f32 v{dst}, v{src}, v{src}"); a(f"v_and_b32 v{dst}, 0xffff0000, v{dst}")
    def allred(op, v, t):
        for r in (8, 4, 2, 1):
            a(f"{op}_dpp v{v}, v{v}, v{v} row_ror:{r} {FULL}")
        a(f"v_mov_b32 v{t}, v{v}"); a(f"v_permlane16_swap_b32 v{v}, v{t}"); a(f"{op} v{v}, v{v}, v{t}")
        a(f"v_mov_b32 v{t}, v{v}"); a(f"v_permlane32_swap_b32 v{v}, v{t}"); a(f"{op} v{v}, v{v}, v{t}")
    def red_g8(r, dst):
        for j in range(4): a(f"v_permlane32_swap_b32 v{r[j]}, v{r[j+4]}")
        for j in range(4): a(f"v_add_f32 v{r[j]}, v{r[j]}, v{r[j+4]}")
        a(f"v_permlane16_swap_b32 v{r[0]}, v{r[2]}"); a(f"v_permlane16_swap_b32 v{r[1]}, v{r[3]}")
        a(f"v_add_f32 v{dst}, v{r[0]}, v{r[2]}"); a(f"v_add_f32 v{dst+1}, v{r[1]}, v{r[3]}")
    def red_g4(r, dst):
        a(f"v_permlane32_swap_b32 v{r[0]}, v{r[2]}"); a(f"v_permlane32_swap_b32 v{r[1]}, v{r[3]}")
        a(f"v_add_f32 v{r[0]}, v{r[0]}, v{r[2]}"); a(f"v_add_f32 v{r[1]}, v{r[1]}, v{r[3]}")
        a(f"v_permlane16_swap_b32 v{r[0]}, v{r[1]}")
        a(f"v_add_f32 v{dst}, v{r[0]}, v{r[1]}")
    def guard(regs):
        for r in regs: a(f"v_min_u32 v{r}, -2, v{r}")
    def poll(issue, regs, t, cnt="s60"):
        top, done = L("poll"), L("polled")
        a(f"s_mov_b32 {cnt}, {SPIN}")
        a.label(top)
        issue()
        a("s_waitcnt vmcnt(0)")
        rs = list(regs)
        if len(rs) == 2:
            a(f"v_max_u32 v{t}, v{rs[0]}, v{rs[1]}")
        else:
            a(f"v_max3_u32 v{t}, v{rs[0]}, v{rs[1]}, v{rs[2]}")
            rs = rs[3:]
            while len(rs) >= 2:
                a(f"v_max3_u32 v{t}, v{t}, v{rs[0]}, v{rs[1]}"); rs = rs[2:]
            if rs: a(f"v_max_u32 v{t}, v{t}, v{rs[0]}")
        a(f"v_cmp_eq_u32 vcc, -1, v{t}")
        a(f"s_cbranch_vccz {done}")
        if sleep: a(f"s_sleep {sleep}")
        a(f"s_sub_u32 {cnt}, {cnt}, 1")
        a(f"s_cbranch_scc0 {top}")
        a.label(done)
    def pair_perm(W, spare):
        out = []
        for t in range(0, len(W), 2):
            cols = []
            for j in range(4):
                A_, B_ = W[t][j], W[t + 1][j]
                a(f"v_perm_b32 v{spare}, v{B_}, v{A_}, s70")
                a(f"v_perm_b32 v{B_}, v{B_}, v{A_}, s71")
                cols += [spare, B_]
                spare = A_
            out.append(cols)
        return out
    def ln_stats(x, m, rs, t0, t1):
        a(f"v_add_f32 v{m}, v{x[0]}, v{x[1]}")
        for r in x[2:]: a(f"v_add_f32 v{m}, v{m}, v{r}")
        allred("v_add_f32", m, t0)
        a(f"v_mul_f32 v{m}, {INV640:#x}, v{m}")
        for i, r in enumerate(x):
            a(f"v_sub_f32 v{t0}, v{r}, v{m}")
            if i == 0: a(f"v_mul_f32 v{rs}, v{t0}, v{t0}")
            else: a(f"v_fmac_f32 v{rs}, v{t0}, v{t0}")
        allred("v_add_f32", rs, t0)
        a(f"v_mul_f32 v{rs}, {INV640:#x}, v{rs}")
        rbf(rs, rs); rbf(m, m)
        a(f"v_add_f32 v{rs}, {EPS:#x}, v{rs}"); rbf(rs, rs)
        a(f"v_sqrt_f32 v{rs}, v{rs}"); rbf(rs, rs)
        a(f"v_rcp_f32 v{rs}, v{rs}")

    a.raw(HEADER.rstrip("\n"))
    a.raw(f"; @launch grid=(256,1,1) block=(512,1,1) lds={L_END}")
    a.raw('.amdgcn_target "amdgcn-amd-amdhsa--gfx950"')
    a.raw(".text"); a.raw(f".globl {KN}"); a.raw(".p2align 8"); a.raw(f".type {KN},@function")
    a.label(KN)
    a("s_cmp_ge_u32 s2, 256"); a("s_cbranch_scc1 L_exit")
    a("s_load_dwordx16 s[16:31], s[0:1], 0")
    a("s_load_dwordx8 s[32:39], s[0:1], 64")
    a("v_lshrrev_b32 v1, 6, v0")
    a("v_and_b32 v0, 63, v0")
    a("v_readfirstlane_b32 s3, v1")
    if diag: a("v_mov_b32 v250, 0")
    a("v_lshlrev_b32 v1, 4, v0")
    a("s_lshr_b32 s4, s2, 4")
    a("s_add_u32 s5, s2, s4"); a("s_and_b32 s5, s5, 7")
    a("s_and_b32 s6, s2, 8"); a("s_or_b32 s5, s5, s6")
    a("s_mov_b32 s70, 0x05040100"); a("s_mov_b32 s71, 0x07060302")
    a("s_cmp_ge_u32 s3, 4"); a("s_cbranch_scc1 L_helper")

    W0 = 128
    def load_weights():
        nw, ffn, done = L("nw"), L("ffnw"), L("wdone")
        a(f"s_cmp_ge_u32 s2, {NWO}"); a(f"s_cbranch_scc1 {ffn}")
        a("s_mov_b32 s44, s24"); a("s_mov_b32 s45, s25"); a(f"s_mov_b32 s46, {4096*1280}"); a("s_mov_b32 s47, 0x20000")
        a("s_and_b32 s50, s2, 7"); a("s_lshl_b32 s50, s50, 3"); a("s_add_u32 s50, s50, s3"); a(f"s_mul_i32 s50, s50, {64*1280}")
        a("s_lshr_b32 s51, s2, 3"); a("s_lshl_b32 s51, s51, 7"); a("s_add_u32 s50, s50, s51")
        a("v_lshrrev_b32 v2, 3, v0"); a(f"v_mul_u32_u24 v2, {8*1280}, v2"); a("v_and_b32 v3, 7, v0"); a("v_lshl_add_u32 v2, v3, 4, v2")
        for t in range(8):
            if t == 4: a(f"s_add_u32 s50, s50, {4*1280}")
            a(f"buffer_load_dwordx4 v[{W0+4*t}:{W0+4*t+3}], v2, s[44:47], s50 offen offset:{(t%4)*1280} {wpol}")
        a(f"s_branch {done}")
        a.label(ffn)
        a(f"s_cmp_ge_u32 s2, {NWO+NFFN}"); a(f"s_cbranch_scc1 {done}")
        a("s_cmp_lt_u32 s3, 4"); a("s_cselect_b32 s44, s28, s30"); a("s_cselect_b32 s45, s29, s31")
        a(f"s_mov_b32 s46, {640*3456}"); a("s_mov_b32 s47, 0x20000")
        a(f"s_sub_u32 s52, s2, {NWO}")
        a("s_and_b32 s50, s3, 3"); a(f"s_mul_i32 s50, s50, {160*3456}"); a("s_lshl_b32 s51, s52, 6"); a("s_add_u32 s50, s50, s51")
        a("v_lshrrev_b32 v2, 2, v0"); a(f"v_mul_u32_u24 v2, {10*3456}, v2"); a("v_and_b32 v3, 3, v0"); a("v_lshl_add_u32 v2, v3, 4, v2")
        for t in range(10):
            if t and t % 2 == 0: a(f"s_add_u32 s50, s50, {2*3456}")
            a(f"buffer_load_dwordx4 v[{W0+4*t}:{W0+4*t+3}], v2, s[44:47], s50 offen offset:{(t%2)*3456} {wpol}")
        a("s_cmp_ge_u32 s3, 5"); a(f"s_cbranch_scc1 {done}")
        a("s_mov_b32 s44, s32"); a("s_mov_b32 s45, s33"); a(f"s_mov_b32 s46, {1728*1280}")
        a(f"s_mul_i32 s50, s52, {32*1280}"); a("s_lshl_b32 s51, s3, 8"); a("s_add_u32 s50, s50, s51")
        a("v_lshrrev_b32 v2, 4, v0"); a(f"v_mul_u32_u24 v2, {8*1280}, v2"); a("v_and_b32 v3, 15, v0"); a("v_lshl_add_u32 v2, v3, 4, v2")
        for t in range(8):
            if t == 4: a(f"s_add_u32 s50, s50, {4*1280}")
            a(f"buffer_load_dwordx4 v[{W0+40+4*t}:{W0+40+4*t+3}], v2, s[44:47], s50 offen offset:{(t%4)*1280} {wpol}")
        a("v_lshrrev_b32 v2, 4, v0"); a("v_lshlrev_b32 v2, 2, v2"); a("v_lshl_add_u32 v2, v3, 4, v2"); a("v_add_u32 v2, s51, v2")
        a("global_load_dword v200, v2, s[16:17]")
        a.label(done)

    R0 = 64
    def slot(i): return R0 + 4 * (i % 16)
    def issue_chunk(ck):
        for i in range(4):
            s = slot(4 * ck + i)
            a(f"buffer_load_dwordx4 v[{s}:{s+3}], v1, s[8:11], s12 offen offset:{1024*i} nt")
        a("s_add_u32 s12, s12, 0x4000")
    a("s_lshl_b32 s13, s4, 23"); a("s_lshl_b32 s14, s5, 18"); a("s_add_u32 s13, s13, s14")
    a("s_lshl_b32 s14, s3, 12"); a("s_add_u32 s13, s13, s14")
    a("s_mov_b32 s12, s13")
    a("s_mov_b32 s10, 0x8000000"); a("s_mov_b32 s11, 0x20000")
    a("s_waitcnt lgkmcnt(0)")
    a("s_mov_b32 s8, s18"); a("s_mov_b32 s9, s19")
    stamp("start")
    for ck in range(4): issue_chunk(ck)
    load_weights()
    a("s_lshl_b32 s14, s3, 12"); a(f"s_add_u32 s14, s14, {L_SC}")
    a("v_lshlrev_b32 v20, 2, v0"); a("v_add_u32 v20, s14, v20")
    a("v_and_b32 v21, 15, v0"); a("v_lshlrev_b32 v21, 4, v21")
    a("s_mov_b32 s15, 1")
    a("s_mov_b32 s40, s18"); a("s_mov_b32 s41, s19"); a("s_add_u32 s42, s13, 0x400000"); a("s_mov_b32 s43, 0x8000000")
    a("s_mov_b32 s7, 0")
    a("s_barrier")
    a("s_barrier")
    stamp("q_ready")
    def switch_point():
        a("s_cmp_eq_u32 s6, 3")
        a("s_cselect_b32 s8, s40, s8"); a("s_cselect_b32 s9, s41, s9")
        a("s_cselect_b32 s12, s42, s12"); a("s_cselect_b32 s10, s43, s10")
    a.label("L_khead")
    a(f"ds_read_b128 v[4:7], v21 offset:{L_Q}")
    a("s_mov_b32 s6, 0")
    a("s_waitcnt lgkmcnt(0)")
    a.label("L_kiter")
    for k in range(4):
        a("s_waitcnt vmcnt(4)")
        if k < 2:
            sk = L("skipissue")
            a("s_cmp_lg_u32 s15, 0"); a(f"s_cbranch_scc1 {sk}")
            issue_chunk(k + 2)
            a.label(sk)
        else:
            if k == 2: switch_point()
            issue_chunk(k + 2)
        for j in range(4):
            for i in range(4):
                s = slot(4 * k + i)
                a(f"v_dot2_f32_bf16 v{8+i}, v{s+j}, v{4+j}, " + ("0" if j == 0 else f"v{8+i}"))
        a("v_add_f32_dpp v12, v8, v8 row_ror:8 row_mask:0xf bank_mask:0x3")
        a("s_nop 0")
        a("v_add_f32_dpp v13, v10, v10 row_ror:8 row_mask:0xf bank_mask:0x3")
        a("v_add_f32_dpp v12, v9, v9 row_ror:8 row_mask:0xf bank_mask:0xc")
        a("v_add_f32_dpp v13, v11, v11 row_ror:8 row_mask:0xf bank_mask:0xc")
        a("v_add_f32_dpp v14, v12, v12 row_half_mirror row_mask:0xf bank_mask:0x5")
        a("v_add_f32_dpp v14, v13, v13 row_half_mirror row_mask:0xf bank_mask:0xa")
        a(f"ds_write_b32 v20, v14 offset:{256*k}")
    a("s_mov_b32 s15, 0")
    a("v_add_u32 v20, 0x400, v20")
    a("s_add_u32 s6, s6, 1"); a("s_cmp_lt_u32 s6, 4"); a("s_cbranch_scc1 L_kiter")
    a("v_add_u32 v20, 0x3000, v20"); a("v_add_u32 v21, 0x100, v21")
    a("s_mov_b32 s40, s20"); a("s_mov_b32 s41, s21"); a("s_mov_b32 s42, s13")
    a("s_waitcnt lgkmcnt(0)")
    a("s_barrier")
    stamp("k_done")
    a("s_add_u32 s7, s7, 1"); a("s_cmp_lt_u32 s7, 2"); a("s_cbranch_scc1 L_khead")
    a("s_lshl_b32 s14, s3, 11"); a(f"s_add_u32 s14, s14, {L_PP}")
    a("v_lshlrev_b32 v20, 3, v0"); a("v_add_u32 v20, s14, v20")
    a("s_lshl_b32 s14, s3, 9"); a(f"s_add_u32 s14, s14, {L_OL}")
    a("v_and_b32 v21, 15, v0"); a("v_lshlrev_b32 v21, 5, v21"); a("v_lshrrev_b32 v22, 4, v0"); a("v_lshl_add_u32 v21, v22, 3, v21")
    a("v_add_u32 v21, s14, v21")
    a("s_add_u32 s42, s13, 0x400000")
    a("s_mov_b32 s7, 0")
    a.label("L_vhead")
    for j in range(8): a(f"v_mov_b32 v{24+j}, 0")
    a("s_mov_b32 s6, 0")
    a.label("L_viter")
    a("ds_read_b64 v[32:33], v20")
    for k in range(4):
        a("s_waitcnt vmcnt(4)")
        if k == 2: switch_point()
        issue_chunk(k + 2)
        if k == 0: a("s_waitcnt lgkmcnt(0)")
        for i in range(4):
            s = slot(4 * k + i)
            c = ((i & 1) << 3) | ((i >> 1) << 2) | k
            for j in range(4):
                a(f"v_dot2c_f32_bf16_dpp v{24+2*j}, v32, v{s+j} row_newbcast:{c} {FULL}")
                a(f"v_dot2c_f32_bf16_dpp v{25+2*j}, v33, v{s+j} row_newbcast:{c} {FULL}")
    a("v_add_u32 v20, 0x200, v20")
    a("s_add_u32 s6, s6, 1"); a("s_cmp_lt_u32 s6, 4"); a("s_cbranch_scc1 L_viter")
    red_g8(list(range(24, 32)), 34)
    a("ds_write_b64 v21, v[34:35]")
    a("v_add_u32 v20, 0x1800, v20"); a("v_add_u32 v21, 0x800, v21")
    a("s_mov_b32 s43, 0")
    a("s_waitcnt lgkmcnt(0)")
    stamp("v_done")
    a("s_barrier")
    a("s_add_u32 s7, s7, 1"); a("s_cmp_lt_u32 s7, 2"); a("s_cbranch_scc1 L_vhead")
    a("s_branch L_tail")

    a.label("L_helper")
    a("s_sub_u32 s7, s3, 4")
    a("s_and_b32 s6, s2, 15")
    a("v_lshrrev_b32 v2, 3, v0")
    a("v_and_b32 v3, 7, v0")
    a("v_mul_u32_u24 v4, 5, v2")
    a("s_mul_i32 s8, s6, 40"); a("v_add_u32 v4, s8, v4")
    a("v_lshlrev_b32 v5, 13, v4"); a("v_lshl_add_u32 v5, v3, 4, v5")
    a("v_lshlrev_b32 v4, 1, v4")
    a("v_lshlrev_b32 v6, 2, v0")
    a("s_lshl_b32 s9, s4, 9"); a("s_lshl_b32 s10, s7, 7"); a("s_add_u32 s9, s9, s10")
    for r in range(8, 12): a(f"v_mov_b32 v{r}, -1")
    a("s_lshl_b32 s11, s2, 10"); a("v_add_u32 v7, s11, v1")
    a("s_waitcnt lgkmcnt(0)")
    stamp("start")
    a(f"s_add_u32 s72, s38, {WS_OP}"); a("s_addc_u32 s73, s39, 0")
    a(f"s_add_u32 s74, s38, {WS_ST}"); a("s_addc_u32 s75, s39, 0")
    a(f"s_add_u32 s76, s38, {WS_YP}"); a("s_addc_u32 s77, s39, 0")
    a(f"s_add_u32 s78, s38, {WS_FP}"); a("s_addc_u32 s79, s39, 0")
    noclr = L("noclr")
    a("s_cmp_lg_u32 s7, 3"); a(f"s_cbranch_scc1 {noclr}")
    a("global_store_dwordx4 v7, v[8:11], s[38:39] sc1")
    a("global_store_dwordx4 v7, v[8:11], s[72:73] sc1")
    a("v_lshrrev_b32 v12, 1, v0"); a("v_lshlrev_b32 v12, 9, v12"); a("v_and_b32 v13, 1, v0"); a("v_lshl_add_u32 v12, v13, 4, v12")
    a("s_lshl_b32 s12, s4, 10"); a("s_lshl_b32 s13, s6, 5"); a("s_add_u32 s12, s12, s13"); a("v_add_u32 v12, s12, v12")
    a("s_mov_b64 exec, 15")
    a("global_store_dwordx4 v12, v[8:11], s[74:75] sc1")
    a("s_mov_b64 exec, -1")
    cf, cd = L("clrffn"), L("clrdone")
    a(f"s_cmp_ge_u32 s2, {NWO}"); a(f"s_cbranch_scc1 {cf}")
    a("s_and_b32 s12, s2, 7"); a("s_mul_i32 s12, s12, 2560"); a("s_lshr_b32 s13, s2, 3"); a("s_lshl_b32 s13, s13, 8"); a("s_add_u32 s12, s12, s13")
    a("v_add_u32 v12, s12, v6")
    a("global_store_dword v12, v8, s[76:77] sc1")
    a(f"s_branch {cd}")
    a.label(cf)
    a(f"s_cmp_ge_u32 s2, {NWO+NFFN}"); a(f"s_cbranch_scc1 {cd}")
    a(f"s_sub_u32 s12, s2, {NWO}"); a("s_mul_i32 s12, s12, 2560")
    a("v_lshlrev_b32 v12, 3, v0"); a("v_add_u32 v12, s12, v12")
    for i in range(5): a(f"global_store_dwordx2 v12, v[8:9], s[78:79] offset:{512*i} sc1")
    a.label(cd)
    a("s_waitcnt vmcnt(0)")
    a("v_mov_b32 v12, s2"); a("v_mov_b32 v13, 1")
    a("s_mov_b64 exec, 1")
    a("global_store_byte v12, v13, s[36:37] sc1")
    a("s_mov_b64 exec, -1")
    a.label(noclr)
    for i in range(5): a(f"global_load_dword v{16+i}, v6, s[16:17] offset:{256*i}")
    for t in range(5): a(f"global_load_ushort v{21+t}, v4, s[16:17] offset:{2*t}")
    a("s_mov_b32 s44, s22"); a("s_mov_b32 s45, s23"); a(f"s_mov_b32 s46, {640*8192}"); a("s_mov_b32 s47, 0x20000")
    for t in range(5):
        a(f"buffer_load_dwordx4 v[{64+4*t}:{64+4*t+3}], v5, s[44:47], s9 offen {wpol}")
        if t < 4: a("s_add_u32 s9, s9, 0x2000")
    a("s_waitcnt vmcnt(5)")
    for i in range(5):
        a(f"v_and_b32 v{30+2*i+1}, 0xffff0000, v{16+i}"); a(f"v_lshlrev_b32 v{30+2*i}, 16, v{16+i}")
    ln_stats(list(range(30, 40)), 26, 27, 28, 29)
    for t in range(5):
        a(f"v_lshlrev_b32 v{21+t}, 16, v{21+t}"); a(f"v_sub_f32 v{21+t}, v{21+t}, v26"); rbf(21 + t, 21 + t)
        a(f"v_mul_f32 v{21+t}, v{21+t}, v27")
        a(f"v_cvt_pk_bf16_f32 v{30+t}, v{21+t}, 0"); a(f"v_cvt_pk_bf16_f32 v{35+t}, 0, v{21+t}")
    for j in range(8): a(f"v_mov_b32 v{40+j}, 0")
    for t in range(5):
        a(f"s_waitcnt vmcnt({4-t})")
        for j in range(4):
            a(f"v_dot2c_f32_bf16 v{40+2*j}, v{30+t}, v{64+4*t+j}"); a(f"v_dot2c_f32_bf16 v{41+2*j}, v{35+t}, v{64+4*t+j}")
    red_g8(list(range(40, 48)), 48)
    a(f"v_add_f32_dpp v48, v48, v48 row_ror:8 {FULL}"); a(f"v_add_f32_dpp v49, v49, v49 row_ror:8 {FULL}")
    guard([48, 49])
    a("v_lshrrev_b32 v12, 4, v0"); a("v_lshlrev_b32 v12, 3, v12"); a("v_lshl_add_u32 v12, v3, 5, v12")
    a("s_lshl_b32 s12, s7, 8"); a("s_add_u32 s12, s12, s11"); a("v_add_u32 v12, s12, v12")
    a("s_barrier")
    a("s_mov_b32 s12, 0x00ff00ff"); a("s_mov_b32 s13, 0x00ff00ff"); a("s_mov_b64 exec, s[12:13]")
    a("global_store_dwordx2 v12, v[48:49], s[38:39] sc1")
    a("s_mov_b64 exec, -1")
    stamp("qp_pub")
    def flags_poll(voff, regs, wide):
        top, done = L("fl"), L("fld")
        a(f"s_mov_b32 s60, {SPIN}")
        a.label(top)
        if wide: a(f"global_load_dwordx4 v[{regs[0]}:{regs[3]}], v{voff}, s[36:37] sc1")
        else: a(f"global_load_dword v{regs[0]}, v{voff}, s[36:37] sc1")
        a("s_waitcnt vmcnt(0)")
        if wide:
            a(f"v_and_b32 v{regs[0]}, v{regs[0]}, v{regs[1]}"); a(f"v_and_b32 v{regs[2]}, v{regs[2]}, v{regs[3]}"); a(f"v_and_b32 v{regs[0]}, v{regs[0]}, v{regs[2]}")
        a(f"v_cmp_ne_u32 vcc, 0x01010101, v{regs[0]}")
        a(f"s_cbranch_vccz {done}")
        if sleep: a(f"s_sleep {sleep}")
        a("s_sub_u32 s60, s60, 1"); a(f"s_cbranch_scc0 {top}")
        a.label(done)
    a("s_lshl_b32 s12, s4, 4"); a("v_mov_b32 v12, s12")
    flags_poll(12, [16, 17, 18, 19], True)
    stamp("flags16")
    a("v_lshrrev_b32 v12, 4, v0"); a("v_lshlrev_b32 v12, 12, v12"); a("v_and_b32 v13, 15, v0"); a("v_lshl_add_u32 v12, v13, 4, v12")
    a("s_lshl_b32 s12, s4, 14"); a("s_lshl_b32 s13, s7, 8"); a("s_add_u32 s12, s12, s13"); a("v_add_u32 v12, s12, v12")
    def iq():
        for u in range(4): a(f"global_load_dwordx4 v[{16+4*u}:{19+4*u}], v12, s[38:39] offset:{1024*u} sc1")
    poll(iq, range(16, 32), 14)
    for j in range(4):
        a(f"v_add_f32 v{16+j}, v{16+j}, v{20+j}"); a(f"v_add_f32 v{24+j}, v{24+j}, v{28+j}")
    for j in range(4): a(f"v_add_f32 v{16+j}, v{16+j}, v{24+j}")
    red_g4([16, 17, 18, 19], 20)
    a("v_cvt_pk_bf16_f32 v20, v20, v20")
    a("v_lshrrev_b32 v12, 4, v0"); a("v_lshl_add_u32 v12, v13, 2, v12"); a("v_lshlrev_b32 v12, 1, v12")
    a("s_lshl_b32 s12, s7, 7"); a("v_add_u32 v12, s12, v12")
    a(f"ds_write_b16 v12, v20 offset:{L_Q}")
    a("s_waitcnt lgkmcnt(0)")
    a("s_barrier")
    stamp("q_ready")
    load_weights()
    flags_poll(6, [16], False)
    a("v_and_b32 v20, 3, v0"); a("v_lshlrev_b32 v20, 8, v20"); a("v_and_b32 v21, 60, v0"); a("v_lshl_add_u32 v20, v21, 2, v20")
    a("s_lshl_b32 s12, s7, 12"); a(f"s_add_u32 s12, s12, {L_SC}"); a("v_add_u32 v20, s12, v20")
    a("s_lshl_b32 s12, s7, 11"); a(f"s_add_u32 s12, s12, {L_PP}"); a("v_lshlrev_b32 v21, 3, v0"); a("v_add_u32 v21, s12, v21")
    a("s_lshl_b32 s12, s4, 10"); a("v_lshlrev_b32 v22, 3, v0"); a("v_add_u32 v22, s12, v22")
    a("s_lshl_b32 s13, s6, 2"); a("s_add_u32 s13, s13, s7"); a("s_lshl_b32 s13, s13, 3"); a("s_add_u32 s12, s12, s13"); a("v_mov_b32 v23, s12")
    a(f"s_mov_b32 s14, {LOG2E:#x}")
    a("s_mov_b32 s8, 0")
    a("s_barrier")
    a.label("L_stats")
    for i in range(4): a(f"ds_read_b128 v[{32+4*i}:{35+4*i}], v20 offset:{1024*i}")
    a("s_waitcnt lgkmcnt(0)")
    for i in range(4):
        b = 32 + 4 * i
        a(f"v_add_f32 v{b}, v{b}, v{b+1}"); a(f"v_add_f32 v{b+2}, v{b+2}, v{b+3}"); a(f"v_add_f32 v{24+i}, v{b}, v{b+2}")
        rbf(24 + i, 24 + i); a(f"v_mul_f32 v{24+i}, {SCALE:#x}, v{24+i}"); rbf(24 + i, 24 + i)
    a("v_max3_f32 v28, v24, v25, v26"); a("v_max_f32 v28, v28, v27")
    allred("v_max_f32", 28, 30)
    for i in range(4):
        a(f"v_sub_f32 v{32+i}, v{24+i}, v28"); a(f"v_mul_f32 v{32+i}, s14, v{32+i}"); a(f"v_exp_f32 v{32+i}, v{32+i}")
    a("v_add_f32 v32, v32, v33"); a("v_add_f32 v34, v34, v35"); a("v_add_f32 v29, v32, v34")
    allred("v_add_f32", 29, 30)
    guard([28, 29])
    a("s_mov_b64 exec, 1")
    a("global_store_dwordx2 v23, v[28:29], s[74:75] sc1")
    a("s_mov_b64 exec, -1")
    poll(lambda: a("global_load_dwordx2 v[32:33], v22, s[74:75] sc1"), [32, 33], 30)
    a("v_mov_b32 v28, v32")
    allred("v_max_f32", 28, 30)
    a("v_sub_f32 v32, v32, v28"); a("v_mul_f32 v32, s14, v32"); a("v_exp_f32 v32, v32"); a("v_mul_f32 v29, v32, v33")
    allred("v_add_f32", 29, 30)
    a("v_rcp_f32 v29, v29")
    for i in range(4):
        a(f"v_sub_f32 v{24+i}, v{24+i}, v28"); a(f"v_mul_f32 v{24+i}, s14, v{24+i}"); a(f"v_exp_f32 v{24+i}, v{24+i}")
    for i in range(4):
        a(f"v_mul_f32 v{24+i}, v{24+i}, v29")
        a(f"v_cvt_pk_bf16_f32 v{32+2*i}, v{24+i}, 0"); a(f"v_cvt_pk_bf16_f32 v{33+2*i}, 0, v{24+i}")
        a(f"ds_write_b64 v21, v[{32+2*i}:{33+2*i}] offset:{512*i}")
    a("v_add_u32 v20, 0x4000, v20"); a("v_add_u32 v21, 0x2000, v21"); a("v_add_u32 v22, 0x200, v22"); a("v_add_u32 v23, 0x200, v23")
    a("s_waitcnt lgkmcnt(0)")
    stamp("p_ready")
    a("s_barrier")
    a("s_add_u32 s8, s8, 1"); a("s_cmp_lt_u32 s8, 2"); a("s_cbranch_scc1 L_stats")
    a("v_lshlrev_b32 v20, 3, v0"); a("v_add_u32 v21, s11, v20")
    a("s_mov_b32 s8, 0")
    a.label("L_opub")
    a("s_cmp_lg_u32 s7, 0"); a("s_cbranch_scc1 L_opub_skip")
    for w in range(4): a(f"ds_read_b64 v[{24+2*w}:{25+2*w}], v20 offset:{L_OL+512*w}")
    a("s_waitcnt lgkmcnt(0)")
    a("v_add_f32 v24, v24, v26"); a("v_add_f32 v25, v25, v27"); a("v_add_f32 v28, v28, v30"); a("v_add_f32 v29, v29, v31")
    a("v_add_f32 v24, v24, v28"); a("v_add_f32 v25, v25, v29")
    guard([24, 25])
    a("global_store_dwordx2 v21, v[24:25], s[72:73] sc1")
    a("v_add_u32 v20, 0x800, v20"); a("v_add_u32 v21, 0x200, v21")
    a.label("L_opub_skip")
    a("s_cmp_lg_u32 s8, 0"); a("s_cbranch_scc1 L_tail")
    a("s_mov_b32 s8, 1")
    a("s_barrier")
    a("s_branch L_opub")

    a.label("L_tail")
    stamp("tail")
    a(f"s_cmp_ge_u32 s2, {NWO+NFFN}"); a("s_cbranch_scc1 L_fin")
    a(f"s_add_u32 s76, s38, {WS_YP}"); a("s_addc_u32 s77, s39, 0")
    a(f"s_cmp_ge_u32 s2, {NWO}"); a("s_cbranch_scc1 L_ffn")
    a(f"s_add_u32 s72, s38, {WS_OP}"); a("s_addc_u32 s73, s39, 0")
    a("s_and_b32 s50, s2, 7"); a("s_lshl_b32 s12, s50, 1"); a("s_lshr_b32 s13, s3, 2"); a("s_add_u32 s12, s12, s13"); a("s_lshl_b32 s12, s12, 14")
    a("s_and_b32 s13, s3, 3"); a("s_lshl_b32 s13, s13, 8"); a("s_add_u32 s12, s12, s13")
    a("v_and_b32 v3, 7, v0"); a("v_lshlrev_b32 v2, 11, v3"); a("v_lshrrev_b32 v4, 3, v0"); a("v_lshl_add_u32 v2, v4, 5, v2"); a("v_add_u32 v2, s12, v2")
    a("s_waitcnt vmcnt(0)")
    PW = pair_perm([[W0 + 4 * t + j for j in range(4)] for t in range(8)], 201)
    a("v_lshrrev_b32 v5, 4, v0"); a("v_lshlrev_b32 v5, 3, v5"); a("v_lshl_add_u32 v5, v3, 5, v5")
    a("s_lshl_b32 s13, s3, 8"); a("v_add_u32 v5, s13, v5")
    a("v_lshlrev_b32 v6, 2, v0")
    a("s_mul_i32 s12, s50, 2560"); a("s_lshr_b32 s13, s2, 3"); a("s_lshl_b32 s13, s13, 8"); a("s_add_u32 s12, s12, s13"); a("v_add_u32 v7, s12, v6")
    for j in range(8): a(f"v_mov_b32 v{40+j}, 0")
    def io():
        a("global_load_dwordx4 v[16:19], v2, s[72:73] sc1"); a("global_load_dwordx4 v[20:23], v2, s[72:73] offset:16 sc1")
        a("global_load_dwordx4 v[24:27], v2, s[72:73] offset:1024 sc1"); a("global_load_dwordx4 v[28:31], v2, s[72:73] offset:1040 sc1")
    poll(io, range(16, 32), 14)
    stamp("e1")
    for j in range(8): a(f"v_add_f32 v{16+j}, v{16+j}, v{24+j}")
    for pat in ("quad_perm:[1,0,3,2]", "quad_perm:[2,3,0,1]", "row_half_mirror"):
        for j in range(8): a(f"v_add_f32_dpp v{16+j}, v{16+j}, v{16+j} {pat} {FULL}")
    for i in range(4): a(f"v_cvt_pk_bf16_f32 v{32+i}, v{16+2*i}, v{17+2*i}")
    for i in range(4):
        for j in range(8): a(f"v_dot2c_f32_bf16 v{40+j}, v{32+i}, v{PW[i][j]}")
    red_g8(list(range(40, 48)), 48)
    a(f"v_add_f32_dpp v48, v48, v48 row_ror:8 {FULL}"); a(f"v_add_f32_dpp v49, v49, v49 row_ror:8 {FULL}")
    a(f"ds_write_b64 v5, v[48:49] offset:{L_YL}")
    a("s_waitcnt lgkmcnt(0)")
    a("s_barrier")
    a("s_cmp_lg_u32 s3, 0"); a("s_cbranch_scc1 L_fin")
    a(f"v_add_u32 v6, {L_YL}, v6")
    for w in range(4): a(f"ds_read2st64_b32 v[{16+2*w}:{17+2*w}], v6 offset0:{2*w} offset1:{2*w+1}")
    a("s_waitcnt lgkmcnt(0)")
    for j in range(4): a(f"v_add_f32 v{16+j}, v{16+j}, v{20+j}")
    a("v_add_f32 v16, v16, v18"); a("v_add_f32 v17, v17, v19"); a("v_add_f32 v16, v16, v17")
    guard([16])
    a("global_store_dword v7, v16, s[76:77] sc1")
    stamp("y_pub")
    a("s_branch L_fin")

    a.label("L_ffn")
    a(f"s_add_u32 s78, s38, {WS_FP}"); a("s_addc_u32 s79, s39, 0")
    a(f"s_sub_u32 s52, s2, {NWO}")
    a("s_waitcnt vmcnt(0)")
    PG = pair_perm([[W0 + 4 * t + j for j in range(4)] for t in range(10)], 201)
    PD = pair_perm([[W0 + 40 + 4 * t + j for j in range(4)] for t in range(8)], 202)
    a("v_lshrrev_b32 v2, 4, v0"); a("v_and_b32 v3, 15, v0")
    a("s_lshl_b32 s12, s3, 9")
    a("v_mul_u32_u24 v4, 5120, v2"); a("v_lshl_add_u32 v4, v3, 5, v4"); a("v_add_u32 v4, s12, v4")
    a("v_lshlrev_b32 v5, 3, v2"); a("v_lshl_add_u32 v5, v3, 5, v5"); a("v_add_u32 v5, s12, v5")
    a("v_mul_u32_u24 v6, 40, v0")
    a("v_lshrrev_b32 v7, 2, v0"); a("v_mul_u32_u24 v7, 40, v7"); a("s_and_b32 s13, s3, 3"); a("s_mul_i32 s13, s13, 640"); a("v_add_u32 v7, s13, v7")
    a("v_and_b32 v8, 3, v0"); a("v_lshlrev_b32 v8, 5, v8"); a("v_lshl_add_u32 v8, v2, 3, v8"); a("s_lshl_b32 s13, s3, 7"); a("v_add_u32 v8, s13, v8")
    a("v_and_b32 v9, 7, v0"); a("v_lshl_add_u32 v9, v2, 3, v9"); a("v_lshlrev_b32 v9, 2, v9"); a(f"v_add_u32 v9, {L_GU}, v9")
    a("s_mul_i32 s13, s52, 2560"); a("v_add_u32 v10, s13, v5")
    for j in range(8): a(f"v_mov_b32 v{40+j}, 0"); a(f"v_mov_b32 v{52+j}, 0")
    a(f"s_mov_b32 s14, {LOG2E:#x}")
    a("s_cmp_ge_u32 s3, 5"); a("s_cbranch_scc1 L_h_wait")
    a("v_and_b32 v13, 0xffff0000, v200"); a("v_lshlrev_b32 v12, 16, v200")
    def iy():
        a("global_load_dwordx4 v[16:19], v4, s[76:77] sc1"); a("global_load_dwordx4 v[20:23], v4, s[76:77] offset:16 sc1")
        a("global_load_dwordx4 v[24:27], v4, s[76:77] offset:2560 sc1"); a("global_load_dwordx4 v[28:31], v4, s[76:77] offset:2576 sc1")
    poll(iy, range(16, 32), 14)
    stamp("e2")
    for j in range(8): a(f"v_add_f32 v{16+j}, v{16+j}, v{24+j}")
    red_g8(list(range(16, 24)), 24)
    rbf(24, 24); rbf(25, 25)
    a("v_add_f32 v24, v24, v12"); a("v_add_f32 v25, v25, v13")
    rbf(24, 24); rbf(25, 25)
    a(f"ds_write_b64 v5, v[24:25] offset:{L_H}")
    a("s_waitcnt lgkmcnt(0)")
    a.label("L_h_wait")
    a("s_barrier")
    for i in range(5): a(f"ds_read_b64 v[{16+2*i}:{17+2*i}], v6 offset:{L_H+8*i}")
    for i in range(5): a(f"ds_read_b64 v[{26+2*i}:{27+2*i}], v7 offset:{L_H+8*i}")
    a("s_waitcnt lgkmcnt(5)")
    ln_stats(list(range(16, 26)), 36, 37, 38, 39)
    a("s_waitcnt lgkmcnt(0)")
    for t in range(10): a(f"v_sub_f32 v{26+t}, v{26+t}, v36")
    for i in range(5): a(f"v_cvt_pk_bf16_f32 v{16+i}, v{26+2*i}, v{27+2*i}")
    for i in range(5): a(f"v_lshlrev_b32 v{26+2*i}, 16, v{16+i}"); a(f"v_and_b32 v{27+2*i}, 0xffff0000, v{16+i}")
    for t in range(10): a(f"v_mul_f32 v{26+t}, v{26+t}, v37")
    for i in range(5): a(f"v_cvt_pk_bf16_f32 v{16+i}, v{26+2*i}, v{27+2*i}")
    for i in range(5):
        for j in range(8): a(f"v_dot2c_f32_bf16 v{40+j}, v{16+i}, v{PG[i][j]}")
    red_g8(list(range(40, 48)), 48)
    for r in (8, 4):
        a(f"v_add_f32_dpp v48, v48, v48 row_ror:{r} {FULL}"); a(f"v_add_f32_dpp v49, v49, v49 row_ror:{r} {FULL}")
    a(f"ds_write_b64 v8, v[48:49] offset:{L_GU}")
    a("s_waitcnt lgkmcnt(0)")
    a("s_barrier")
    stamp("gu")
    a("s_cmp_ge_u32 s3, 5"); a("s_cbranch_scc1 L_final")
    for w in range(4): a(f"ds_read2_b32 v[{16+2*w}:{17+2*w}], v9 offset0:{64*w} offset1:{64*w+32}")
    a("s_waitcnt lgkmcnt(0)")
    a("v_add_f32 v16, v16, v17"); a("v_add_f32 v18, v18, v19"); a("v_add_f32 v20, v20, v21"); a("v_add_f32 v22, v22, v23")
    a("v_add_f32 v16, v16, v18"); a("v_add_f32 v20, v20, v22")
    rbf(16, 16); rbf(20, 20)
    a("v_mul_f32 v17, s14, v16"); a("v_exp_f32 v17, -v17"); a("v_add_f32 v17, 1.0, v17"); a("v_rcp_f32 v17, v17")
    a("v_mul_f32 v16, v16, v17"); rbf(16, 16)
    a("v_mul_f32 v16, v16, v20")
    a(f"v_mov_b32_dpp v17, v16 quad_perm:[1,0,3,2] {FULL}")
    a("v_cvt_pk_bf16_f32 v16, v16, v17")
    for i in range(4):
        for j in range(8): a(f"v_dot2c_f32_bf16_dpp v{52+j}, v16, v{PD[i][j]} row_newbcast:{2*i} {FULL}")
    red_g8(list(range(52, 60)), 60)
    guard([60, 61])
    a("global_store_dwordx2 v10, v[60:61], s[78:79] sc1")
    stamp("f_pub")
    a("s_branch L_fin")
    a.label("L_final")
    a("s_cmp_lg_u32 s3, 5"); a("s_cbranch_scc1 L_fin")
    a(f"s_cmp_ge_u32 s52, {NFIN}"); a("s_cbranch_scc1 L_fin")
    a("s_mov_b32 s44, s78"); a("s_mov_b32 s45, s79"); a(f"s_mov_b32 s46, {NFFN*2560}"); a("s_mov_b32 s47, 0x20000")
    a("v_lshrrev_b32 v4, 3, v0"); a("v_mul_u32_u24 v4, 2560, v4"); a("v_and_b32 v5, 7, v0"); a("v_lshl_add_u32 v4, v5, 4, v4")
    a("s_lshl_b32 s12, s52, 7"); a("v_add_u32 v4, s12, v4")
    a("v_lshl_add_u32 v5, v5, 2, v2"); a("s_lshl_b32 s12, s52, 5"); a("v_add_u32 v5, s12, v5")
    a("v_lshlrev_b32 v6, 2, v5"); a("v_lshlrev_b32 v5, 1, v5")
    a(f"ds_read_b32 v7, v6 offset:{L_H}")
    for i in range(1, 7): a(f"s_mov_b32 s{80+i}, {8*2560*i}")
    def i3():
        for i in range(7):
            a(f"buffer_load_dwordx4 v[{16+4*i}:{19+4*i}], v4, s[44:47], " + ("0" if i == 0 else f"s{80+i}") + " offen sc1")
    poll(i3, range(16, 44), 14)
    stamp("e3")
    for j in range(4):
        a(f"v_add_f32 v{16+j}, v{16+j}, v{20+j}"); a(f"v_add_f32 v{24+j}, v{24+j}, v{28+j}"); a(f"v_add_f32 v{32+j}, v{32+j}, v{36+j}")
    for j in range(4):
        a(f"v_add_f32 v{16+j}, v{16+j}, v{24+j}"); a(f"v_add_f32 v{32+j}, v{32+j}, v{40+j}")
    for j in range(4): a(f"v_add_f32 v{16+j}, v{16+j}, v{32+j}")
    red_g4([16, 17, 18, 19], 20)
    a(f"v_add_f32_dpp v20, v20, v20 row_ror:8 {FULL}")
    rbf(20, 20)
    a("s_waitcnt lgkmcnt(0)")
    a("v_add_f32 v20, v20, v7")
    a("v_cvt_pk_bf16_f32 v20, v20, v20")
    a("s_mov_b32 s12, 0x00ff00ff"); a("s_mov_b32 s13, 0x00ff00ff"); a("s_mov_b64 exec, s[12:13]")
    a("global_store_short v5, v20, s[34:35]")
    a("s_mov_b64 exec, -1")
    stamp("out")
    a.label("L_fin")
    dump_stamps()
    a.label("L_exit")
    a("s_endpgm")
    nv = 256 if diag else 208
    a.raw('.section .rodata,"a"'); a.raw(".p2align 6"); a.raw(f".amdhsa_kernel {KN}")
    a.raw(f"  .amdhsa_next_free_vgpr {nv}"); a.raw("  .amdhsa_next_free_sgpr 96"); a.raw(f"  .amdhsa_accum_offset {nv}")
    a.raw("  .amdhsa_group_segment_fixed_size 0"); a.raw("  .amdhsa_kernarg_size 96"); a.raw("  .amdhsa_user_sgpr_count 2")
    a.raw("  .amdhsa_user_sgpr_kernarg_segment_ptr 1"); a.raw("  .amdhsa_system_sgpr_workgroup_id_x 1")
    a.raw("  .amdhsa_float_denorm_mode_32 3")
    a.raw(".end_amdhsa_kernel")
    return a.text(), stampn

if __name__ == "__main__":
    out = sys.argv[1] if len(sys.argv) > 1 else "sequential_preLN__mha_block_cached__swiglu_ffn__decode.s"
    kw = eval("dict(%s)" % sys.argv[2]) if len(sys.argv) > 2 else {}
    t, st = gen(**kw)
    open(out, "w").write(t)
    print("wrote", out, len(t.splitlines()), "lines", st)
```

```python
import sys
sys.path.insert(0, "work")
from asmlib import Asm

KN = "sequential_preLN__mha_block_cached__swiglu_ffn__decode_kernel"
HEADER = open("sequential_preLN__mha_block_cached__swiglu_ffn__decode.s.ref").read().split("; Override launch")[0]

MB = 4352
MB_Q = 0
MB_ST = 512
MB_O = 1024
WS_EP = 0x110000
WS_YP = 0x120000
WS_FP = 0x130000
L_FL = 0
L_Q = 256
L_QS = 768
L_SC = 2048
L_PP = L_SC + 32768
L_OL = L_PP + 16384
L_YL = L_OL + 4096
L_H = L_YL + 2048
L_GU = L_H + 2560
L_END = L_GU + 1024
NWO, NFFN, NFIN = 80, 54, 20
NWAVE = 12
SPIN = 20000
LSPIN = 2000000
LOG2E = 0x3fb8aa3b
SCALE = 0x3db504f3
INV640 = 0x3acccccd
EPS = 0x3727c5ac
FULL = "row_mask:0xf bank_mask:0xf"

def gen(diag=False, wpol="nt", sleep=1, wpace=2, prio=3, now=False, ssleep=4, bs=False, DS=(4, 6, 8), GR=2, rolemix=True, mode0=1, hprio=2, stag45=True, last=(0, 0, 0, 3), pairx=False, noclear=False):
    a = Asm()
    uid = [0]
    def L(n):
        uid[0] += 1
        return f"L_{n}_{uid[0]}"
    stampn = {}
    SV = 166
    def stamp(name):
        if not diag: return
        i = stampn.setdefault(name, len(stampn))
        a("s_memrealtime s[90:91]"); a("s_waitcnt lgkmcnt(0)"); a(f"v_writelane_b32 v{SV}, s90, {i}")
    def prog():
        if not diag: return
        a("s_memrealtime s[90:91]"); a("s_waitcnt lgkmcnt(0)"); a("s_mov_b32 m0, s94"); a("s_nop 0"); a(f"v_writelane_b32 v{SV}, s90, m0"); a("s_add_u32 s94, s94, 1")
    def dump_stamps():
        if not diag: return
        a("s_add_u32 s90, s38, 0x10000000"); a("s_addc_u32 s91, s39, 0")
        a(f"s_mul_i32 s92, s2, {NWAVE}"); a("s_add_u32 s92, s92, s93"); a("s_lshl_b32 s92, s92, 8")
        a(f"v_lshlrev_b32 v{SV+1}, 2, v0"); a(f"v_add_u32 v{SV+1}, s92, v{SV+1}")
        a(f"global_store_dword v{SV+1}, v{SV}, s[90:91]")

    def rbf(dst, src):
        a(f"v_cvt_pk_bf16_f32 v{dst}, v{src}, v{src}"); a(f"v_and_b32 v{dst}, 0xffff0000, v{dst}")
    def rowred(op, v):
        for r in (8, 4, 2, 1):
            a(f"{op}_dpp v{v}, v{v}, v{v} row_ror:{r} {FULL}")
    def allred(op, v, t):
        rowred(op, v)
        a(f"v_mov_b32 v{t}, v{v}"); a(f"v_permlane16_swap_b32 v{v}, v{t}"); a(f"{op} v{v}, v{v}, v{t}")
        a(f"v_mov_b32 v{t}, v{v}"); a(f"v_permlane32_swap_b32 v{v}, v{t}"); a(f"{op} v{v}, v{v}, v{t}")
    def red_g8(r, dst):
        for j in range(4): a(f"v_permlane32_swap_b32 v{r[j]}, v{r[j+4]}")
        for j in range(4): a(f"v_add_f32 v{r[j]}, v{r[j]}, v{r[j+4]}")
        a(f"v_permlane16_swap_b32 v{r[0]}, v{r[2]}"); a(f"v_permlane16_swap_b32 v{r[1]}, v{r[3]}")
        a(f"v_add_f32 v{dst}, v{r[0]}, v{r[2]}"); a(f"v_add_f32 v{dst+1}, v{r[1]}, v{r[3]}")
    def red_g4(r, dst):
        a(f"v_permlane32_swap_b32 v{r[0]}, v{r[2]}"); a(f"v_permlane32_swap_b32 v{r[1]}, v{r[3]}")
        a(f"v_add_f32 v{r[0]}, v{r[0]}, v{r[2]}"); a(f"v_add_f32 v{r[1]}, v{r[1]}, v{r[3]}")
        a(f"v_permlane16_swap_b32 v{r[0]}, v{r[1]}")
        a(f"v_add_f32 v{dst}, v{r[0]}, v{r[1]}")
    def guard(regs):
        for r in regs: a(f"v_min_u32 v{r}, -2, v{r}")
    def poll(issue, regs, t, cnt="s60", sleep=sleep):
        top, done = L("poll"), L("polled")
        a(f"s_mov_b32 {cnt}, {SPIN}")
        a.label(top)
        issue()
        a("s_waitcnt vmcnt(0)")
        rs = list(regs)
        if len(rs) == 2:
            a(f"v_max_u32 v{t}, v{rs[0]}, v{rs[1]}")
        else:
            a(f"v_max3_u32 v{t}, v{rs[0]}, v{rs[1]}, v{rs[2]}")
            rs = rs[3:]
            while len(rs) >= 2:
                a(f"v_max3_u32 v{t}, v{t}, v{rs[0]}, v{rs[1]}"); rs = rs[2:]
            if rs: a(f"v_max_u32 v{t}, v{t}, v{rs[0]}")
        a(f"v_cmp_eq_u32 vcc, -1, v{t}")
        a(f"s_cbranch_vccz {done}")
        if sleep: a(f"s_sleep {sleep}")
        a(f"s_sub_u32 {cnt}, {cnt}, 1")
        a(f"s_cbranch_scc0 {top}")
        a.label(done)
    def lds_wait(vaddr, off, val, t, slp):
        top, done = L("lw"), L("lwd")
        a(f"s_mov_b32 s60, {LSPIN}")
        a.label(top)
        a(f"ds_read_b32 v{t}, v{vaddr} offset:{off}")
        a("s_waitcnt lgkmcnt(0)")
        a(f"v_cmp_ne_u32 vcc, {val}, v{t}")
        a(f"s_cbranch_vccz {done}")
        a(f"s_sleep {slp}")
        a("s_sub_u32 s60, s60, 1"); a(f"s_cbranch_scc0 {top}")
        a.label(done)
    def lds_signal(vaddr, off, one):
        a("s_waitcnt lgkmcnt(0)")
        a("s_mov_b64 exec, 1"); a(f"ds_add_u32 v{vaddr}, v{one} offset:{off}"); a("s_mov_b64 exec, -1")
    def pair_perm(W, spare):
        out = []
        for t in range(0, len(W), 2):
            cols = []
            for j in range(4):
                A_, B_ = W[t][j], W[t + 1][j]
                a(f"v_perm_b32 v{spare}, v{B_}, v{A_}, s70")
                a(f"v_perm_b32 v{B_}, v{B_}, v{A_}, s71")
                cols += [spare, B_]
                spare = A_
            out.append(cols)
        return out
    def ln_stats(x, m, rs, t0, t1):
        a(f"v_add_f32 v{m}, v{x[0]}, v{x[1]}")
        for r in x[2:]: a(f"v_add_f32 v{m}, v{m}, v{r}")
        allred("v_add_f32", m, t0)
        a(f"v_mul_f32 v{m}, {INV640:#x}, v{m}")
        for i, r in enumerate(x):
            a(f"v_sub_f32 v{t0}, v{r}, v{m}")
            if i == 0: a(f"v_mul_f32 v{rs}, v{t0}, v{t0}")
            else: a(f"v_fmac_f32 v{rs}, v{t0}, v{t0}")
        allred("v_add_f32", rs, t0)
        a(f"v_mul_f32 v{rs}, {INV640:#x}, v{rs}")
        rbf(rs, rs); rbf(m, m)
        a(f"v_add_f32 v{rs}, {EPS:#x}, v{rs}"); rbf(rs, rs)
        a(f"v_sqrt_f32 v{rs}, v{rs}"); rbf(rs, rs)
        a(f"v_rcp_f32 v{rs}, v{rs}")

    a.raw(HEADER.rstrip("\n"))
    a.raw(f"; @launch grid=(256,1,1) block=({64*NWAVE},1,1) lds={L_END}")
    a.raw('.amdgcn_target "amdgcn-amd-amdhsa--gfx950"')
    a.raw(".text"); a.raw(f".globl {KN}"); a.raw(".p2align 8"); a.raw(f".type {KN},@function")
    a.label(KN)
    a("s_cmp_ge_u32 s2, 256"); a("s_cbranch_scc1 L_exit")
    a("s_load_dwordx16 s[16:31], s[0:1], 0")
    a("s_load_dwordx8 s[32:39], s[0:1], 64")
    a("v_lshrrev_b32 v1, 6, v0")
    a("v_and_b32 v0, 63, v0")
    a("v_readfirstlane_b32 s3, v1")
    if diag: a(f"v_mov_b32 v{SV}, 0")
    a("v_lshlrev_b32 v1, 4, v0")
    a("s_lshr_b32 s4, s2, 4")
    if diag: a("s_mov_b32 s93, s3"); a("s_mov_b32 s94, 32")
    a("s_cmp_ge_u32 s3, 4"); a("s_cbranch_scc1 L_helper")

    R0 = 36
    ring = [8]
    def slot(ck, i): return R0 + 16 * (ck % ring[0]) + 4 * i
    def issue_chunk(ck, pacer=None):
        for i in range(4):
            if pacer and i % GR == 0: pacer(i)
            s = slot(ck, i)
            a(f"buffer_load_dwordx4 v[{s}:{s+3}], v1, s[8:11], s12 offen offset:{1024*i} nt")
        a("s_add_u32 s12, s12, 0x4000")
    a("s_add_u32 s5, s2, s4"); a("s_and_b32 s5, s5, 7")
    a("s_and_b32 s6, s2, 8"); a("s_or_b32 s5, s5, s6")
    a("s_lshl_b32 s13, s4, 23"); a("s_lshl_b32 s14, s5, 18"); a("s_add_u32 s13, s13, s14")
    a("s_lshl_b32 s14, s3, 12"); a("s_add_u32 s13, s13, s14")
    a("s_mov_b32 s12, s13")
    a("s_mov_b32 s10, 0x8000000"); a("s_mov_b32 s11, 0x20000")
    a("s_waitcnt lgkmcnt(0)")
    a("s_mov_b32 s8, s18"); a("s_mov_b32 s9, s19")
    stamp("start")
    if bs: a("s_barrier")
    issue_chunk(0)
    a(f"s_add_u32 s14, s14, {L_SC}")
    a("v_lshlrev_b32 v20, 2, v0"); a("v_add_u32 v20, s14, v20")
    a("v_and_b32 v21, 15, v0"); a("v_lshlrev_b32 v21, 4, v21")
    a("v_mov_b32 v22, 0"); a("v_mov_b32 v23, 1")
    stamp("s_issued")
    if not bs: a("s_barrier")
    for ck in range(1, 7):
        issue_chunk(ck, lambda i: a(f"s_waitcnt vmcnt({DS[mode0]-GR})"))
    stamp("s_filled")
    a(f"s_mov_b32 s15, {mode0}")
    a("s_mov_b32 s40, s18"); a("s_mov_b32 s41, s19"); a("s_add_u32 s42, s13, 0x400000"); a("s_mov_b32 s43, 0x8000000")
    lds_wait(22, L_FL + 4, 4, 8, 1)
    stamp("q_ready")
    def pace(i):
        go = L("go")
        if i == 0: a("s_waitcnt vmcnt(24)")
        a("s_cmp_ge_u32 s15, 3"); a(f"s_cbranch_scc1 {go}")
        a(f"s_waitcnt vmcnt({DS[2]-GR})")
        a("s_cmp_ge_u32 s15, 2"); a(f"s_cbranch_scc1 {go}")
        a(f"s_waitcnt vmcnt({DS[1]-GR})")
        a("s_cmp_ge_u32 s15, 1"); a(f"s_cbranch_scc1 {go}")
        a(f"s_waitcnt vmcnt({DS[0]-GR})")
        a.label(go)
    def switch_point():
        a("s_cmp_eq_u32 s6, 1")
        a("s_cselect_b32 s8, s40, s8"); a("s_cselect_b32 s9, s41, s9")
        a("s_cselect_b32 s12, s42, s12"); a("s_cselect_b32 s10, s43, s10")
    def proc_k(ck, q, off):
        for j in range(4):
            for i in range(4):
                a(f"v_dot2_f32_bf16 v{8+i}, v{slot(ck,i)+j}, v{q+j}, " + ("0" if j == 0 else f"v{8+i}"))
        a("v_add_f32_dpp v12, v8, v8 row_ror:8 row_mask:0xf bank_mask:0x3")
        a("s_nop 0")
        a("v_add_f32_dpp v13, v10, v10 row_ror:8 row_mask:0xf bank_mask:0x3")
        a("v_add_f32_dpp v12, v9, v9 row_ror:8 row_mask:0xf bank_mask:0xc")
        a("v_add_f32_dpp v13, v11, v11 row_ror:8 row_mask:0xf bank_mask:0xc")
        a("v_add_f32_dpp v14, v12, v12 row_half_mirror row_mask:0xf bank_mask:0x5")
        a("v_add_f32_dpp v14, v13, v13 row_half_mirror row_mask:0xf bank_mask:0xa")
        a(f"ds_write_b32 v20, v14 offset:{off}")
    a("s_mov_b32 s7, 0")
    a.label("L_khead")
    a(f"ds_read_b128 v[4:7], v21 offset:{L_Q}")
    a("s_mov_b32 s6, 0")
    a.label("L_kiter")
    for k in range(8):
        if k == 1: switch_point()
        issue_chunk(k + 7, pace)
        if k == 0: a("s_waitcnt lgkmcnt(0)")
        proc_k(k, 4, 256 * k)
        if k % 4 == 3: prog()
    a("v_add_u32 v20, 0x800, v20")
    a("s_add_u32 s6, s6, 1"); a("s_cmp_lt_u32 s6, 2"); a("s_cbranch_scc1 L_kiter")
    lds_signal(22, L_FL + 8, 23)
    stamp("k_done")
    a("v_add_u32 v20, 0x3000, v20"); a("v_add_u32 v21, 0x100, v21"); a("v_mov_b32 v22, 4")
    a("s_mov_b32 s40, s20"); a("s_mov_b32 s41, s21"); a("s_mov_b32 s42, s13")
    a("s_add_u32 s7, s7, 1"); a("s_cmp_lt_u32 s7, 2"); a("s_cbranch_scc1 L_khead")
    a("s_lshl_b32 s14, s3, 11"); a(f"s_add_u32 s14, s14, {L_PP}")
    a("v_lshlrev_b32 v20, 3, v0"); a("v_add_u32 v20, s14, v20")
    a("s_lshl_b32 s14, s3, 9"); a(f"s_add_u32 s14, s14, {L_OL}")
    a("v_and_b32 v21, 15, v0"); a("v_lshlrev_b32 v21, 5, v21"); a("v_lshrrev_b32 v8, 4, v0"); a("v_lshl_add_u32 v21, v8, 3, v21")
    a("v_add_u32 v21, s14, v21")
    a("v_mov_b32 v22, 0")
    a("s_add_u32 s42, s13, 0x400000")
    a("s_mov_b32 s7, 0")
    a(f"s_mov_b32 s44, {last[0] | last[1] << 8 | last[2] << 16 | last[3] << 24:#x}")
    a.label("L_vhead")
    lds_wait(22, L_FL + 16, 1, 8, 1)
    stamp("p_wait")
    for j in range(8): a(f"v_mov_b32 v{24+j}, 0")
    a("s_mov_b32 s6, 0")
    a.label("L_viter")
    a("ds_read_b64 v[32:33], v20"); a("ds_read_b64 v[34:35], v20 offset:512")
    a("s_and_b32 s45, s44, 0xff"); a("s_max_u32 s15, s15, s45"); a("s_lshr_b32 s44, s44, 8")
    for k in range(8):
        if k == 1: switch_point()
        issue_chunk(k + 7, pace)
        if k == 0: a("s_waitcnt lgkmcnt(0)")
        pr = 32 + 2 * (k // 4)
        for i in range(4):
            s = slot(k, i)
            c = ((i & 1) << 3) | ((i >> 1) << 2) | (k % 4)
            for j in range(4):
                a(f"v_dot2c_f32_bf16_dpp v{24+2*j}, v{pr}, v{s+j} row_newbcast:{c} {FULL}")
                a(f"v_dot2c_f32_bf16_dpp v{25+2*j}, v{pr+1}, v{s+j} row_newbcast:{c} {FULL}")
        if k % 4 == 3: prog()
    a("v_add_u32 v20, 0x400, v20")
    a("s_add_u32 s6, s6, 1"); a("s_cmp_lt_u32 s6, 2"); a("s_cbranch_scc1 L_viter")
    red_g8(list(range(24, 32)), 34)
    a("ds_write_b64 v21, v[34:35]")
    a("s_cmp_lg_u32 s7, 0"); a("s_cbranch_scc1 L_vend")
    stamp("va_done")
    a("v_add_u32 v20, 0x1800, v20"); a("v_add_u32 v21, 0x800, v21"); a("v_mov_b32 v22, 4")
    a("s_mov_b32 s43, 0"); a("s_mov_b32 s7, 1")
    a("s_branch L_vhead")
    a.label("L_vend")
    a("s_waitcnt lgkmcnt(0)")
    stamp("v_done")
    a("s_barrier")
    a("s_branch L_fin")

    def ffn_index(d):
        a(f"s_sub_u32 {d}, s67, {NWO}")
        if pairx:
            a(f"s_and_b32 s64, {d}, 7"); a("s_lshl_b32 s64, s64, 1"); a(f"s_bfe_u32 s65, {d}, 0x10003"); a("s_add_u32 s64, s64, s65")
            a(f"s_and_b32 s65, {d}, 0x30"); a("s_add_u32 s64, s64, s65")
            a(f"s_cmp_lt_u32 {d}, 48"); a(f"s_cselect_b32 {d}, s64, {d}")
    W0 = 64
    def load_weights(wpace=wpace, down=True):
        if now: return
        ffn, done = L("ffnw"), L("wdone")
        cnt = [0]
        def ld(idx, off):
            if wpace and cnt[0] >= wpace: a(f"s_waitcnt vmcnt({wpace-1})")
            cnt[0] += 1
            a(f"buffer_load_dwordx4 v[{W0+4*idx}:{W0+4*idx+3}], v2, s[44:47], s50 offen offset:{off} {wpol}")
        a(f"s_cmp_ge_u32 s67, {NWO}"); a(f"s_cbranch_scc1 {ffn}")
        a("s_mov_b32 s44, s24"); a("s_mov_b32 s45, s25"); a(f"s_mov_b32 s46, {4096*1280}"); a("s_mov_b32 s47, 0x20000")
        a("s_and_b32 s50, s67, 7"); a("s_lshl_b32 s50, s50, 3"); a("s_add_u32 s50, s50, s3"); a(f"s_mul_i32 s50, s50, {64*1280}")
        a("s_lshr_b32 s51, s67, 3"); a("s_lshl_b32 s51, s51, 7"); a("s_add_u32 s50, s50, s51")
        a("v_lshrrev_b32 v2, 3, v0"); a(f"v_mul_u32_u24 v2, {8*1280}, v2"); a("v_and_b32 v3, 7, v0"); a("v_lshl_add_u32 v2, v3, 4, v2")
        for t in range(8):
            if t == 4: a(f"s_add_u32 s50, s50, {4*1280}")
            ld(t, (t % 4) * 1280)
        a(f"s_branch {done}")
        a.label(ffn)
        cnt[0] = 0
        a(f"s_cmp_ge_u32 s67, {NWO+NFFN}"); a(f"s_cbranch_scc1 {done}")
        a("s_cmp_lt_u32 s3, 4"); a("s_cselect_b32 s44, s28, s30"); a("s_cselect_b32 s45, s29, s31")
        a(f"s_mov_b32 s46, {640*3456}"); a("s_mov_b32 s47, 0x20000")
        ffn_index("s52")
        a("s_and_b32 s50, s3, 3"); a(f"s_mul_i32 s50, s50, {160*3456}"); a("s_lshl_b32 s51, s52, 6"); a("s_add_u32 s50, s50, s51")
        a("v_lshrrev_b32 v2, 2, v0"); a(f"v_mul_u32_u24 v2, {10*3456}, v2"); a("v_and_b32 v3, 3, v0"); a("v_lshl_add_u32 v2, v3, 4, v2")
        for t in range(10):
            if t and t % 2 == 0: a(f"s_add_u32 s50, s50, {2*3456}")
            ld(t, (t % 2) * 3456)
        if not down:
            a.label(done); return
        a("s_cmp_ge_u32 s3, 5"); a(f"s_cbranch_scc1 {done}")
        a("s_mov_b32 s44, s32"); a("s_mov_b32 s45, s33"); a(f"s_mov_b32 s46, {1728*1280}")
        a(f"s_mul_i32 s50, s52, {32*1280}"); a("s_lshl_b32 s51, s3, 8"); a("s_add_u32 s50, s50, s51")
        a("v_lshrrev_b32 v2, 4, v0"); a(f"v_mul_u32_u24 v2, {8*1280}, v2"); a("v_and_b32 v3, 15, v0"); a("v_lshl_add_u32 v2, v3, 4, v2")
        for t in range(8):
            if t == 4: a(f"s_add_u32 s50, s50, {4*1280}")
            ld(10 + t, (t % 4) * 1280)
        a.label(done)

    a.label("L_helper")
    a("s_sub_u32 s3, s3, 4")
    a("s_and_b32 s6, s2, 15")
    a("v_lshlrev_b32 v6, 2, v0")
    a("v_mov_b32 v14, 0"); a("v_mov_b32 v15, 1")
    a("s_mov_b32 s70, 0x05040100"); a("s_mov_b32 s71, 0x07060302")
    if rolemix:
        a("s_mul_i32 s67, s4, 3"); a("s_add_u32 s67, s67, s6"); a("s_and_b32 s67, s67, 15"); a("s_lshl_b32 s67, s67, 4"); a("s_add_u32 s67, s67, s4")
    else:
        a("s_mov_b32 s67, s2")
    a("s_cmp_ge_u32 s3, 4"); a("s_cbranch_scc1 L_helper2")
    if prio: a(f"s_setprio {prio}")
    a("v_lshrrev_b32 v2, 3, v0")
    a("v_and_b32 v3, 7, v0")
    a("v_mul_u32_u24 v4, 5, v2")
    a("s_lshr_b32 s8, s6, 2"); a("s_lshl_b32 s8, s8, 2"); a("s_add_u32 s8, s8, s3"); a("s_mul_i32 s8, s8, 40")
    a("v_add_u32 v4, s8, v4")
    a("v_lshlrev_b32 v5, 13, v4"); a("v_lshl_add_u32 v5, v3, 4, v5")
    a("v_lshlrev_b32 v4, 1, v4")
    a("s_lshl_b32 s9, s4, 9"); a("s_and_b32 s10, s6, 3"); a("s_lshl_b32 s10, s10, 7"); a("s_add_u32 s9, s9, s10")
    a(f"s_mov_b32 s46, {640*8192}"); a("s_mov_b32 s47, 0x20000")
    a("s_waitcnt lgkmcnt(0)")
    stamp("start")
    a(f"s_add_u32 s74, s38, {WS_EP}"); a("s_addc_u32 s75, s39, 0")
    a("s_load_dword s15, s[74:75], 0")
    a("global_load_dwordx4 v[16:19], v1, s[16:17]"); a("global_load_dword v20, v6, s[16:17] offset:1024")
    for t in range(5): a(f"global_load_ushort v{21+t}, v4, s[16:17] offset:{2*t}")
    a("s_mov_b32 s44, s22"); a("s_mov_b32 s45, s23")
    for t in range(5):
        a(f"buffer_load_dwordx4 v[{64+4*t}:{64+4*t+3}], v5, s[44:47], s9 offen {wpol}")
        if t < 4: a("s_add_u32 s9, s9, 0x2000")
    a("s_barrier")
    a("v_lshlrev_b32 v12, 2, v2"); a("v_lshl_add_u32 v12, v3, 5, v12")
    a("s_lshl_b32 s12, s3, 8"); a("v_add_u32 v12, s12, v12")
    a("s_mov_b32 s62, 0xff00ff00"); a("s_mov_b32 s63, 0xff00ff00")
    stamp("h_issued")
    a("s_waitcnt vmcnt(5)")
    stamp("h_x")
    for i in range(5):
        a(f"v_and_b32 v{30+2*i+1}, 0xffff0000, v{16+i}"); a(f"v_lshlrev_b32 v{30+2*i}, 16, v{16+i}")
    ln_stats(list(range(30, 40)), 26, 27, 28, 29)
    for t in range(5):
        a(f"v_lshlrev_b32 v{21+t}, 16, v{21+t}"); a(f"v_sub_f32 v{21+t}, v{21+t}, v26"); rbf(21 + t, 21 + t)
        a(f"v_mul_f32 v{21+t}, v{21+t}, v27")
        a(f"v_cvt_pk_bf16_f32 v{30+t}, v{21+t}, 0"); a(f"v_cvt_pk_bf16_f32 v{35+t}, 0, v{21+t}")
    for j in range(8): a(f"v_mov_b32 v{40+j}, 0")
    stamp("h_ln")
    for t in range(5):
        a(f"s_waitcnt vmcnt({4-t})")
        for j in range(4):
            a(f"v_dot2c_f32_bf16 v{40+2*j}, v{30+t}, v{64+4*t+j}"); a(f"v_dot2c_f32_bf16 v{41+2*j}, v{35+t}, v{64+4*t+j}")
    red_g8(list(range(40, 48)), 48)
    a(f"v_add_f32_dpp v48, v48, v48 row_ror:8 {FULL}"); a(f"v_add_f32_dpp v49, v49, v49 row_ror:8 {FULL}")
    a("v_cndmask_b32 v48, v48, v49, s[62:63]")
    a(f"ds_write_b32 v12, v48 offset:{L_QS}")
    a("s_waitcnt lgkmcnt(0)")
    a("s_add_u32 s15, s15, 1")
    a("s_mov_b64 exec, 1"); a(f"ds_add_rtn_u32 v13, v14, v15 offset:{L_FL}"); a("s_mov_b64 exec, -1")
    a("v_lshrrev_b32 v10, 5, v0"); a(f"v_mul_u32_u24 v12, {8*MB}, v10"); a("v_and_b32 v11, 31, v0"); a("v_lshl_add_u32 v12, v11, 4, v12")
    a("s_lshl_b32 s12, s4, 4"); a("s_add_u32 s12, s12, s3"); a(f"s_mul_i32 s12, s12, {MB}"); a("v_add_u32 v12, s12, v12")
    a(f"v_add_u32 v9, {4*MB}, v12")
    a("s_waitcnt lgkmcnt(0)")
    a("v_readfirstlane_b32 s12, v13")
    stamp("h_dots")
    a("s_cmp_lg_u32 s12, 3"); a("s_cbranch_scc1 L_qnopub")
    a(f"v_add_u32 v16, {L_QS}, v6")
    a("ds_read2st64_b32 v[18:19], v16 offset0:0 offset1:1"); a("ds_read2st64_b32 v[20:21], v16 offset0:2 offset1:3")
    a(f"s_mul_i32 s12, s2, {MB}"); a("v_lshlrev_b32 v17, 3, v0"); a("v_add_u32 v17, s12, v17")
    a("s_waitcnt lgkmcnt(0)")
    a("v_add_f32 v18, v18, v19"); a("v_add_f32 v20, v20, v21"); a("v_add_f32 v18, v18, v20"); a("v_mov_b32 v19, s15")
    a("global_store_dwordx2 v17, v[18:19], s[38:39] sc1")
    stamp("qp_pub")
    a.label("L_qnopub")
    a(f"s_mov_b32 s60, {SPIN}")
    a.label("L_qpoll")
    a("global_load_dwordx4 v[24:27], v12, s[38:39] sc1"); a("global_load_dwordx4 v[28:31], v9, s[38:39] sc1")
    a("s_waitcnt vmcnt(0)")
    for r in (25, 27, 29, 31): a(f"v_xor_b32 v{r}, s15, v{r}")
    a("v_or3_b32 v25, v25, v27, v29"); a("v_or_b32 v25, v25, v31")
    a("v_cmp_ne_u32 vcc, 0, v25")
    a("s_cbranch_vccz L_qpolled")
    if sleep: a(f"s_sleep {sleep}")
    a("s_sub_u32 s60, s60, 1"); a("s_cbranch_scc0 L_qpoll")
    a.label("L_qpolled")
    stamp("q_got")
    a("v_add_f32 v24, v24, v28"); a("v_add_f32 v26, v26, v30")
    a("v_permlane32_swap_b32 v24, v26")
    a("v_add_f32 v24, v24, v26")
    a("v_cvt_pk_bf16_f32 v24, v24, v24")
    a("v_lshl_add_u32 v12, v11, 1, v10"); a("v_lshlrev_b32 v12, 1, v12")
    a("s_lshl_b32 s12, s3, 7"); a("v_add_u32 v12, s12, v12")
    a(f"ds_write_b16 v12, v24 offset:{L_Q}")
    lds_signal(14, L_FL + 4, 15)
    a(f"s_setprio {hprio}")
    a("s_branch L_weights")

    a.label("L_helper2")
    a(f"s_setprio {hprio}")
    a("s_cmp_lg_u32 s3, 4"); a("s_cbranch_scc1 L_noinit")
    a(f"ds_write_b32 v6, v14 offset:{L_FL}")
    a.label("L_noinit")
    a("s_waitcnt lgkmcnt(0)")
    stamp("start")
    a(f"s_add_u32 s74, s38, {WS_EP}"); a("s_addc_u32 s75, s39, 0")
    a("s_load_dword s15, s[74:75], 0")
    a("s_cmp_lg_u32 s3, 6"); a("s_cbranch_scc1 L_clrdone")
    if noclear: a("s_branch L_clrdone")
    for r in range(8, 12): a(f"v_mov_b32 v{r}, -1")
    a(f"s_mul_i32 s11, s2, {MB}"); a("v_add_u32 v7, s11, v1")
    a(f"global_store_dwordx4 v7, v[8:11], s[38:39] offset:{MB_O} sc1")
    a(f"s_cmp_ge_u32 s67, {NWO}"); a("s_cbranch_scc1 L_clrffn")
    a("s_and_b32 s12, s67, 7"); a("s_mul_i32 s12, s12, 2560"); a("s_lshr_b32 s13, s67, 3"); a("s_lshl_b32 s13, s13, 8"); a("s_add_u32 s12, s12, s13")
    a(f"s_add_u32 s12, s12, {WS_YP}"); a("v_add_u32 v12, s12, v6")
    a("global_store_dword v12, v8, s[38:39] sc1")
    a("s_branch L_clrdone")
    a.label("L_clrffn")
    a(f"s_cmp_ge_u32 s67, {NWO+NFFN}"); a("s_cbranch_scc1 L_clrdone")
    ffn_index("s12"); a("s_mul_i32 s12, s12, 2560"); a(f"s_add_u32 s12, s12, {WS_FP}")
    a("v_add_u32 v12, s12, v1")
    a("global_store_dwordx4 v12, v[8:11], s[38:39] sc1"); a("global_store_dwordx4 v12, v[8:11], s[38:39] offset:1024 sc1")
    a("s_mov_b32 exec_hi, 0")
    a("global_store_dwordx4 v12, v[8:11], s[38:39] offset:2048 sc1")
    a("s_mov_b64 exec, -1")
    a.label("L_clrdone")
    a("s_barrier")
    lds_wait(14, L_FL + 4, 4, 8, 8)
    a("s_add_u32 s15, s15, 1")
    a("s_cmp_ge_u32 s3, 6"); a("s_cbranch_scc1 L_statw")
    if stag45: lds_wait(14, L_FL + 8, 4, 8, 16)
    a("s_branch L_weights")
    a.label("L_statw")
    a("s_sub_u32 s7, s3, 6")
    a("s_lshl_b32 s12, s7, 2"); a("v_mov_b32 v13, s12")
    a("v_and_b32 v20, 3, v0"); a("v_lshlrev_b32 v20, 8, v20"); a("v_and_b32 v21, 60, v0"); a("v_lshl_add_u32 v20, v21, 2, v20")
    a("s_lshl_b32 s12, s7, 14"); a(f"s_add_u32 s12, s12, {L_SC}"); a("v_add_u32 v20, s12, v20")
    a("s_lshl_b32 s12, s7, 13"); a(f"s_add_u32 s12, s12, {L_PP}"); a("v_lshlrev_b32 v21, 3, v0"); a("v_add_u32 v21, s12, v21")
    a(f"s_mul_i32 s12, s4, {16*MB}"); a("s_lshl_b32 s13, s7, 7"); a("s_add_u32 s12, s12, s13")
    a("v_and_b32 v22, 15, v0"); a(f"v_mul_u32_u24 v22, {MB}, v22"); a("v_add_u32 v22, s12, v22")
    a(f"s_mul_i32 s13, s6, {MB}"); a("s_add_u32 s12, s12, s13"); a("v_mov_b32 v23, s12")
    a(f"s_mov_b32 s14, {LOG2E:#x}")
    lds_wait(13, L_FL + 8, 4, 8, 4)
    for i in range(16): a(f"ds_read_b128 v[{64+4*i}:{67+4*i}], v20 offset:{1024*i}")
    S = list(range(32, 48))
    for i in range(16):
        b = 64 + 4 * i
        a(f"s_waitcnt lgkmcnt({min(15-i, 15)})")
        a(f"v_add_f32 v{b}, v{b}, v{b+1}"); a(f"v_add_f32 v{b+2}, v{b+2}, v{b+3}"); a(f"v_add_f32 v{S[i]}, v{b}, v{b+2}")
        rbf(S[i], S[i]); a(f"v_mul_f32 v{S[i]}, {SCALE:#x}, v{S[i]}"); rbf(S[i], S[i])
    a(f"v_max_f32 v28, v{S[0]}, v{S[1]}")
    for i in range(2, 16, 2): a(f"v_max3_f32 v28, v28, v{S[i]}, v{S[i+1]}")
    allred("v_max_f32", 28, 30)
    for i in range(16):
        a(f"v_sub_f32 v{64+i}, v{S[i]}, v28"); a(f"v_mul_f32 v{64+i}, s14, v{64+i}"); a(f"v_exp_f32 v{64+i}, v{64+i}")
    for st in (8, 4, 2):
        for i in range(st): a(f"v_add_f32 v{64+i}, v{64+i}, v{64+i+st}")
    a("v_add_f32 v29, v64, v65")
    allred("v_add_f32", 29, 30)
    a("v_mov_b32 v24, v28"); a("v_mov_b32 v25, s15"); a("v_mov_b32 v26, v29"); a("v_mov_b32 v27, s15")
    a("s_waitcnt vmcnt(0)")
    a("s_mov_b64 exec, 1")
    a(f"global_store_dwordx4 v23, v[24:27], s[38:39] offset:{MB_ST} sc1")
    a("s_mov_b64 exec, -1")
    stamp("st_pub")
    a(f"s_mov_b32 s60, {SPIN}")
    a.label("L_stpoll")
    a(f"global_load_dwordx4 v[16:19], v22, s[38:39] offset:{MB_ST} sc1")
    a("s_waitcnt vmcnt(0)")
    a("v_xor_b32 v17, s15, v17"); a("v_xor_b32 v19, s15, v19"); a("v_or_b32 v17, v17, v19")
    a("v_cmp_ne_u32 vcc, 0, v17")
    a("s_cbranch_vccz L_stpolled")
    a(f"s_sleep {ssleep}")
    a("s_sub_u32 s60, s60, 1"); a("s_cbranch_scc0 L_stpoll")
    a.label("L_stpolled")
    a("v_mov_b32 v24, v16"); a("v_mov_b32 v25, v18")
    a("v_mov_b32 v28, v24")
    rowred("v_max_f32", 28)
    a("v_sub_f32 v24, v24, v28"); a("v_mul_f32 v24, s14, v24"); a("v_exp_f32 v24, v24"); a("v_mul_f32 v29, v24, v25")
    rowred("v_add_f32", 29)
    a("v_rcp_f32 v29, v29")
    for i in range(16):
        a(f"v_sub_f32 v{S[i]}, v{S[i]}, v28"); a(f"v_mul_f32 v{S[i]}, s14, v{S[i]}"); a(f"v_exp_f32 v{S[i]}, v{S[i]}")
    for i in range(16):
        a(f"v_mul_f32 v{S[i]}, v{S[i]}, v29")
        a(f"v_cvt_pk_bf16_f32 v{64+2*i}, v{S[i]}, 0"); a(f"v_cvt_pk_bf16_f32 v{65+2*i}, 0, v{S[i]}")
        a(f"ds_write_b64 v21, v[{64+2*i}:{65+2*i}] offset:{512*i}")
    lds_signal(13, L_FL + 16, 15)
    stamp("p_ready")
    a("s_cmp_lg_u32 s3, 7"); a("s_cbranch_scc1 L_weights")
    a(f"s_cmp_ge_u32 s67, {NWO+NFFN}"); a("s_cbranch_scc1 L_weights")
    a(f"v_mul_u32_u24 v16, {MB}, v0")
    for i in range(1, 4): a(f"v_add_u32 v{16+i}, {64*MB*i:#x}, v16")
    a(f"s_mov_b32 s60, {SPIN}")
    a.label("L_marks")
    for i in range(4):
        a(f"global_load_dword v{20+i}, v{16+i}, s[38:39] offset:{MB_ST+4} sc1")
        a("s_waitcnt vmcnt(0)")
    for i in range(4): a(f"v_xor_b32 v{20+i}, s15, v{20+i}")
    a("v_or3_b32 v20, v20, v21, v22"); a("v_or_b32 v20, v20, v23")
    a("v_cmp_ne_u32 vcc, 0, v20")
    a("s_cbranch_vccz L_weights")
    a("s_sleep 32")
    a("s_sub_u32 s60, s60, 1"); a("s_cbranch_scc0 L_marks")

    a.label("L_weights")
    load_weights()
    a.label("L_weights_done")
    a(f"s_add_u32 s76, s38, {WS_YP}"); a("s_addc_u32 s77, s39, 0")
    a(f"s_add_u32 s78, s38, {WS_FP}"); a("s_addc_u32 s79, s39, 0")
    def opub():
        for w in range(4): a(f"ds_read_b128 v[{140+4*w}:{143+4*w}], v138 offset:{L_OL+512*w}")
        a("s_waitcnt lgkmcnt(0)")
        for j in range(4): a(f"v_add_f32 v{140+j}, v{140+j}, v{144+j}"); a(f"v_add_f32 v{148+j}, v{148+j}, v{152+j}")
        for j in range(4): a(f"v_add_f32 v{140+j}, v{140+j}, v{148+j}")
        guard([140, 141, 142, 143])
        a(f"global_store_dwordx4 v139, v[140:143], s[38:39] offset:{MB_O} sc1")
    a("v_lshrrev_b32 v138, 5, v0"); a("v_mul_u32_u24 v138, 1536, v138"); a("v_add_u32 v138, v138, v1")
    a(f"s_mul_i32 s11, s2, {MB}"); a("v_add_u32 v139, s11, v1")
    a("s_waitcnt vmcnt(0)")
    stamp("w_done")
    def b5():
        sk = L("nopubB")
        a("s_barrier")
        a("s_cmp_lg_u32 s3, 7"); a(f"s_cbranch_scc1 {sk}")
        opub()
        a.label(sk)
        stamp("tail")
    a(f"s_cmp_lt_u32 s67, {NWO}"); a("s_cbranch_scc1 L_wo")
    a(f"s_cmp_lt_u32 s67, {NWO+NFFN}"); a("s_cbranch_scc1 L_ffn")
    b5()
    a("s_branch L_fin")

    a.label("L_wo")
    a("s_and_b32 s50, s67, 7"); a("s_lshl_b32 s12, s50, 1"); a("s_lshr_b32 s13, s3, 2"); a("s_add_u32 s12, s12, s13"); a(f"s_mul_i32 s12, s12, {16*MB}")
    a("s_and_b32 s13, s3, 3"); a("s_xor_b32 s13, s13, 0"); a("s_lshl_b32 s13, s13, 8"); a("s_add_u32 s12, s12, s13")
    a("v_and_b32 v3, 7, v0"); a(f"v_mul_u32_u24 v2, {2*MB}, v3"); a("v_lshrrev_b32 v4, 3, v0"); a("v_lshl_add_u32 v2, v4, 5, v2"); a("v_add_u32 v2, s12, v2")
    a(f"v_add_u32 v8, {MB}, v2")
    PW = pair_perm([[W0 + 4 * t + j for j in range(4)] for t in range(8)], 136)
    a("v_lshrrev_b32 v5, 4, v0"); a("v_lshlrev_b32 v5, 3, v5"); a("v_lshl_add_u32 v5, v3, 5, v5")
    a("s_lshl_b32 s13, s3, 8"); a("v_add_u32 v5, s13, v5")
    a("s_mul_i32 s12, s50, 2560"); a("s_lshr_b32 s13, s67, 3"); a("s_lshl_b32 s13, s13, 8"); a("s_add_u32 s12, s12, s13"); a("v_add_u32 v7, s12, v6")
    a(f"v_add_u32 v6, {L_YL}, v6")
    for j in range(8): a(f"v_mov_b32 v{40+j}, 0")
    b5()
    def io():
        a(f"global_load_dwordx4 v[16:19], v2, s[38:39] offset:{MB_O} sc1"); a(f"global_load_dwordx4 v[20:23], v2, s[38:39] offset:{MB_O+16} sc1")
        a(f"global_load_dwordx4 v[24:27], v8, s[38:39] offset:{MB_O} sc1"); a(f"global_load_dwordx4 v[28:31], v8, s[38:39] offset:{MB_O+16} sc1")
    poll(io, range(16, 32), 14)
    stamp("e1")
    for j in range(8): a(f"v_add_f32 v{16+j}, v{16+j}, v{24+j}")
    for pat in ("quad_perm:[1,0,3,2]", "quad_perm:[2,3,0,1]", "row_half_mirror"):
        for j in range(8): a(f"v_add_f32_dpp v{16+j}, v{16+j}, v{16+j} {pat} {FULL}")
    for i in range(4): a(f"v_cvt_pk_bf16_f32 v{32+i}, v{16+2*i}, v{17+2*i}")
    for i in range(4):
        for j in range(8): a(f"v_dot2c_f32_bf16 v{40+j}, v{32+i}, v{PW[i][j]}")
    red_g8(list(range(40, 48)), 48)
    a(f"v_add_f32_dpp v48, v48, v48 row_ror:8 {FULL}"); a(f"v_add_f32_dpp v49, v49, v49 row_ror:8 {FULL}")
    a(f"ds_write_b64 v5, v[48:49] offset:{L_YL}")
    a("s_waitcnt lgkmcnt(0)")
    a("s_barrier")
    a("s_cmp_lg_u32 s3, 0"); a("s_cbranch_scc1 L_fin")
    for w in range(4): a(f"ds_read2st64_b32 v[{16+2*w}:{17+2*w}], v6 offset0:{2*w} offset1:{2*w+1}")
    a("s_waitcnt lgkmcnt(0)")
    for j in range(4): a(f"v_add_f32 v{16+j}, v{16+j}, v{20+j}")
    a("v_add_f32 v16, v16, v18"); a("v_add_f32 v17, v17, v19"); a("v_add_f32 v16, v16, v17")
    guard([16])
    a("global_store_dword v7, v16, s[76:77] sc1")
    stamp("y_pub")
    a("s_branch L_fin")

    a.label("L_ffn")
    ffn_index("s52")
    a("v_lshrrev_b32 v2, 4, v0"); a("v_and_b32 v3, 15, v0")
    a("s_min_u32 s12, s3, 4"); a("s_lshl_b32 s12, s12, 8")
    a("v_lshlrev_b32 v4, 2, v2"); a("v_lshl_add_u32 v4, v3, 4, v4"); a("v_add_u32 v4, s12, v4")
    a("global_load_dword v11, v4, s[16:17]")
    PG = pair_perm([[W0 + 4 * t + j for j in range(4)] for t in range(10)], 136)
    PD = pair_perm([[W0 + 40 + 4 * t + j for j in range(4)] for t in range(8)], 137)
    a("s_lshl_b32 s12, s3, 9")
    a("v_mul_u32_u24 v4, 5120, v2"); a("v_lshl_add_u32 v4, v3, 5, v4"); a("v_add_u32 v4, s12, v4")
    a("v_lshlrev_b32 v5, 3, v2"); a("v_lshl_add_u32 v5, v3, 5, v5"); a("v_add_u32 v5, s12, v5")
    a("v_mul_u32_u24 v6, 40, v0")
    a("v_lshrrev_b32 v7, 2, v0"); a("v_mul_u32_u24 v7, 40, v7"); a("s_and_b32 s13, s3, 3"); a("s_mul_i32 s13, s13, 640"); a("v_add_u32 v7, s13, v7")
    a("v_and_b32 v8, 3, v0"); a("v_lshlrev_b32 v8, 5, v8"); a("v_lshl_add_u32 v8, v2, 3, v8"); a("s_lshl_b32 s13, s3, 7"); a("v_add_u32 v8, s13, v8")
    a("v_and_b32 v9, 7, v0"); a("v_lshl_add_u32 v9, v2, 3, v9"); a("v_lshlrev_b32 v9, 2, v9"); a(f"v_add_u32 v9, {L_GU}, v9")
    a("s_mul_i32 s13, s52, 2560"); a("v_add_u32 v10, s13, v5")
    for j in range(8): a(f"v_mov_b32 v{40+j}, 0"); a(f"v_mov_b32 v{52+j}, 0")
    a(f"s_mov_b32 s14, {LOG2E:#x}")
    a("s_waitcnt vmcnt(0)")
    a("v_and_b32 v13, 0xffff0000, v11"); a("v_lshlrev_b32 v12, 16, v11")
    b5()
    a("s_cmp_ge_u32 s3, 5"); a("s_cbranch_scc1 L_h_wait")
    def iy():
        a("global_load_dwordx4 v[16:19], v4, s[76:77] sc1"); a("global_load_dwordx4 v[20:23], v4, s[76:77] offset:16 sc1")
        a("global_load_dwordx4 v[24:27], v4, s[76:77] offset:2560 sc1"); a("global_load_dwordx4 v[28:31], v4, s[76:77] offset:2576 sc1")
    poll(iy, range(16, 32), 14)
    stamp("e2")
    for j in range(8): a(f"v_add_f32 v{16+j}, v{16+j}, v{24+j}")
    red_g8(list(range(16, 24)), 24)
    rbf(24, 24); rbf(25, 25)
    a("v_add_f32 v24, v24, v12"); a("v_add_f32 v25, v25, v13")
    rbf(24, 24); rbf(25, 25)
    a(f"ds_write_b64 v5, v[24:25] offset:{L_H}")
    a("s_waitcnt lgkmcnt(0)")
    a.label("L_h_wait")
    a("s_barrier")
    for i in range(5): a(f"ds_read_b64 v[{16+2*i}:{17+2*i}], v6 offset:{L_H+8*i}")
    for i in range(5): a(f"ds_read_b64 v[{26+2*i}:{27+2*i}], v7 offset:{L_H+8*i}")
    a("s_waitcnt lgkmcnt(5)")
    ln_stats(list(range(16, 26)), 36, 37, 38, 39)
    a("s_waitcnt lgkmcnt(0)")
    for t in range(10): a(f"v_sub_f32 v{26+t}, v{26+t}, v36")
    for i in range(5): a(f"v_cvt_pk_bf16_f32 v{16+i}, v{26+2*i}, v{27+2*i}")
    for i in range(5): a(f"v_lshlrev_b32 v{26+2*i}, 16, v{16+i}"); a(f"v_and_b32 v{27+2*i}, 0xffff0000, v{16+i}")
    for t in range(10): a(f"v_mul_f32 v{26+t}, v{26+t}, v37")
    for i in range(5): a(f"v_cvt_pk_bf16_f32 v{16+i}, v{26+2*i}, v{27+2*i}")
    for i in range(5):
        for j in range(8): a(f"v_dot2c_f32_bf16 v{40+j}, v{16+i}, v{PG[i][j]}")
    red_g8(list(range(40, 48)), 48)
    for r in (8, 4):
        a(f"v_add_f32_dpp v48, v48, v48 row_ror:{r} {FULL}"); a(f"v_add_f32_dpp v49, v49, v49 row_ror:{r} {FULL}")
    a(f"ds_write_b64 v8, v[48:49] offset:{L_GU}")
    a("s_waitcnt lgkmcnt(0)")
    a("s_barrier")
    stamp("gu")
    a("s_cmp_ge_u32 s3, 5"); a("s_cbranch_scc1 L_final")
    for w in range(4): a(f"ds_read2_b32 v[{16+2*w}:{17+2*w}], v9 offset0:{64*w} offset1:{64*w+32}")
    a("s_waitcnt lgkmcnt(0)")
    a("v_add_f32 v16, v16, v17"); a("v_add_f32 v18, v18, v19"); a("v_add_f32 v20, v20, v21"); a("v_add_f32 v22, v22, v23")
    a("v_add_f32 v16, v16, v18"); a("v_add_f32 v20, v20, v22")
    rbf(16, 16); rbf(20, 20)
    a("v_mul_f32 v17, s14, v16"); a("v_exp_f32 v17, -v17"); a("v_add_f32 v17, 1.0, v17"); a("v_rcp_f32 v17, v17")
    a("v_mul_f32 v16, v16, v17"); rbf(16, 16)
    a("v_mul_f32 v16, v16, v20")
    a(f"v_mov_b32_dpp v17, v16 quad_perm:[1,0,3,2] {FULL}")
    a("v_cvt_pk_bf16_f32 v16, v16, v17")
    for i in range(4):
        for j in range(8): a(f"v_dot2c_f32_bf16_dpp v{52+j}, v16, v{PD[i][j]} row_newbcast:{2*i} {FULL}")
    red_g8(list(range(52, 60)), 60)
    guard([60, 61])
    a("global_store_dwordx2 v10, v[60:61], s[78:79] sc1")
    stamp("f_pub")
    a("s_branch L_fin")
    a.label("L_final")
    a("s_cmp_lg_u32 s3, 5"); a("s_cbranch_scc1 L_fin")
    a(f"s_cmp_ge_u32 s52, {NFIN}"); a("s_cbranch_scc1 L_fin")
    a("s_mov_b32 s44, s78"); a("s_mov_b32 s45, s79"); a(f"s_mov_b32 s46, {NFFN*2560}"); a("s_mov_b32 s47, 0x20000")
    a("v_lshrrev_b32 v4, 3, v0"); a("v_mul_u32_u24 v4, 2560, v4"); a("v_and_b32 v5, 7, v0"); a("v_lshl_add_u32 v4, v5, 4, v4")
    a("s_lshl_b32 s12, s52, 7"); a("v_add_u32 v4, s12, v4")
    a("v_lshl_add_u32 v5, v5, 2, v2"); a("s_lshl_b32 s12, s52, 5"); a("v_add_u32 v5, s12, v5")
    a("v_lshlrev_b32 v6, 2, v5"); a("v_lshlrev_b32 v5, 1, v5")
    a(f"ds_read_b32 v7, v6 offset:{L_H}")
    for i in range(1, 7): a(f"s_mov_b32 s{80+i}, {8*2560*i}")
    def i3():
        for i in range(7):
            a(f"buffer_load_dwordx4 v[{16+4*i}:{19+4*i}], v4, s[44:47], " + ("0" if i == 0 else f"s{80+i}") + " offen sc1")
    poll(i3, range(16, 44), 14)
    stamp("e3")
    for j in range(4):
        a(f"v_add_f32 v{16+j}, v{16+j}, v{20+j}"); a(f"v_add_f32 v{24+j}, v{24+j}, v{28+j}"); a(f"v_add_f32 v{32+j}, v{32+j}, v{36+j}")
    for j in range(4):
        a(f"v_add_f32 v{16+j}, v{16+j}, v{24+j}"); a(f"v_add_f32 v{32+j}, v{32+j}, v{40+j}")
    for j in range(4): a(f"v_add_f32 v{16+j}, v{16+j}, v{32+j}")
    red_g4([16, 17, 18, 19], 20)
    a(f"v_add_f32_dpp v20, v20, v20 row_ror:8 {FULL}")
    rbf(20, 20)
    a("s_waitcnt lgkmcnt(0)")
    a("v_add_f32 v20, v20, v7")
    a("v_cvt_pk_bf16_f32 v20, v20, v20")
    a("s_mov_b32 s12, 0x00ff00ff"); a("s_mov_b32 s13, 0x00ff00ff"); a("s_mov_b64 exec, s[12:13]")
    a("global_store_short v5, v20, s[34:35]")
    a("s_cmp_lg_u32 s52, 0"); a("s_cbranch_scc1 L_noep")
    a("s_mov_b64 exec, 1")
    a(f"v_mov_b32 v5, {WS_EP:#x}"); a("v_mov_b32 v6, s15")
    a("global_store_dword v5, v6, s[38:39]")
    a.label("L_noep")
    a("s_mov_b64 exec, -1")
    stamp("out")
    a.label("L_fin")
    dump_stamps()
    a.label("L_exit")
    a("s_endpgm")
    nv = 168
    a.raw('.section .rodata,"a"'); a.raw(".p2align 6"); a.raw(f".amdhsa_kernel {KN}")
    a.raw(f"  .amdhsa_next_free_vgpr {nv}"); a.raw("  .amdhsa_next_free_sgpr 96"); a.raw(f"  .amdhsa_accum_offset {nv}")
    a.raw("  .amdhsa_group_segment_fixed_size 0"); a.raw("  .amdhsa_kernarg_size 96"); a.raw("  .amdhsa_user_sgpr_count 2")
    a.raw("  .amdhsa_user_sgpr_kernarg_segment_ptr 1"); a.raw("  .amdhsa_system_sgpr_workgroup_id_x 1")
    a.raw("  .amdhsa_float_denorm_mode_32 3")
    a.raw(".end_amdhsa_kernel")
    return a.text(), stampn

if __name__ == "__main__":
    out = sys.argv[1] if len(sys.argv) > 1 else "sequential_preLN__mha_block_cached__swiglu_ffn__decode.s"
    kw = eval("dict(%s)" % sys.argv[2]) if len(sys.argv) > 2 else {}
    t, st = gen(**kw)
    open(out, "w").write(t)
    print("wrote", out, len(t.splitlines()), "lines", st)
```

```python
import sys
sys.path.insert(0, "work")
from asmlib import Asm

KN = "sequential_preLN__mha_block_cached__swiglu_ffn__decode_kernel"
HEADER = open("sequential_preLN__mha_block_cached__swiglu_ffn__decode.s.ref").read().split("; Override launch")[0]

MB = 4352
MB_Q = 0
MB_ST = 512
MB_O = 1024
WS_EP = 0x110000
WS_YP = 0x120000
WS_FP = 0x130000
L_FL = 0
L_Q = 256
L_QS = 768
L_SC = 2048
L_PP = L_SC + 32768
L_OL = L_PP + 16384
L_YL = L_OL + 4096
L_H = L_YL + 2048
L_GU = L_H + 2560
L_END = L_GU + 1024
NWO, NFFN, NFIN = 80, 54, 20
NWAVE = 12
SPIN = 20000
LSPIN = 2000000
LOG2E = 0x3fb8aa3b
SCALE = 0x3db504f3
INV640 = 0x3acccccd
EPS = 0x3727c5ac
FULL = "row_mask:0xf bank_mask:0xf"

def gen(diag=False, wpol="nt", sleep=1, wpace=2, prio=3, now=False, ssleep=4, bs=False, DS=(4, 6, 8), GR=2, rolemix=True, mode0=1, hprio=2, stag45=True, last=(0, 0, 0, 3), pairx=False, noclear=False, dbl=0):
    a = Asm()
    uid = [0]
    def L(n):
        uid[0] += 1
        return f"L_{n}_{uid[0]}"
    stampn = {}
    SV = 166
    def stamp(name):
        if not diag: return
        i = stampn.setdefault(name, len(stampn))
        a("s_memrealtime s[90:91]"); a("s_waitcnt lgkmcnt(0)"); a(f"v_writelane_b32 v{SV}, s90, {i}")
    def prog():
        if not diag: return
        a("s_memrealtime s[90:91]"); a("s_waitcnt lgkmcnt(0)"); a("s_mov_b32 m0, s94"); a("s_nop 0"); a(f"v_writelane_b32 v{SV}, s90, m0"); a("s_add_u32 s94, s94, 1")
    def dump_stamps():
        if not diag: return
        a("s_add_u32 s90, s38, 0x10000000"); a("s_addc_u32 s91, s39, 0")
        a(f"s_mul_i32 s92, s2, {NWAVE}"); a("s_add_u32 s92, s92, s93"); a("s_lshl_b32 s92, s92, 8")
        a(f"v_lshlrev_b32 v{SV+1}, 2, v0"); a(f"v_add_u32 v{SV+1}, s92, v{SV+1}")
        a(f"global_store_dword v{SV+1}, v{SV}, s[90:91]")

    def rbf(dst, src):
        a(f"v_cvt_pk_bf16_f32 v{dst}, v{src}, v{src}"); a(f"v_and_b32 v{dst}, 0xffff0000, v{dst}")
    def rowred(op, v):
        for r in (8, 4, 2, 1):
            a(f"{op}_dpp v{v}, v{v}, v{v} row_ror:{r} {FULL}")
    def allred(op, v, t):
        rowred(op, v)
        a(f"v_mov_b32 v{t}, v{v}"); a(f"v_permlane16_swap_b32 v{v}, v{t}"); a(f"{op} v{v}, v{v}, v{t}")
        a(f"v_mov_b32 v{t}, v{v}"); a(f"v_permlane32_swap_b32 v{v}, v{t}"); a(f"{op} v{v}, v{v}, v{t}")
    def red_g8(r, dst):
        for j in range(4): a(f"v_permlane32_swap_b32 v{r[j]}, v{r[j+4]}")
        for j in range(4): a(f"v_add_f32 v{r[j]}, v{r[j]}, v{r[j+4]}")
        a(f"v_permlane16_swap_b32 v{r[0]}, v{r[2]}"); a(f"v_permlane16_swap_b32 v{r[1]}, v{r[3]}")
        a(f"v_add_f32 v{dst}, v{r[0]}, v{r[2]}"); a(f"v_add_f32 v{dst+1}, v{r[1]}, v{r[3]}")
    def red_g4(r, dst):
        a(f"v_permlane32_swap_b32 v{r[0]}, v{r[2]}"); a(f"v_permlane32_swap_b32 v{r[1]}, v{r[3]}")
        a(f"v_add_f32 v{r[0]}, v{r[0]}, v{r[2]}"); a(f"v_add_f32 v{r[1]}, v{r[1]}, v{r[3]}")
        a(f"v_permlane16_swap_b32 v{r[0]}, v{r[1]}")
        a(f"v_add_f32 v{dst}, v{r[0]}, v{r[1]}")
    def guard(regs):
        for r in regs: a(f"v_min_u32 v{r}, -2, v{r}")
    def poll(issue, regs, t, cnt="s60", sleep=sleep):
        top, done = L("poll"), L("polled")
        a(f"s_mov_b32 {cnt}, {SPIN}")
        a.label(top)
        issue()
        a("s_waitcnt vmcnt(0)")
        rs = list(regs)
        if len(rs) == 2:
            a(f"v_max_u32 v{t}, v{rs[0]}, v{rs[1]}")
        else:
            a(f"v_max3_u32 v{t}, v{rs[0]}, v{rs[1]}, v{rs[2]}")
            rs = rs[3:]
            while len(rs) >= 2:
                a(f"v_max3_u32 v{t}, v{t}, v{rs[0]}, v{rs[1]}"); rs = rs[2:]
            if rs: a(f"v_max_u32 v{t}, v{t}, v{rs[0]}")
        a(f"v_cmp_eq_u32 vcc, -1, v{t}")
        a(f"s_cbranch_vccz {done}")
        if sleep: a(f"s_sleep {sleep}")
        a(f"s_sub_u32 {cnt}, {cnt}, 1")
        a(f"s_cbranch_scc0 {top}")
        a.label(done)
    def lds_wait(vaddr, off, val, t, slp):
        top, done = L("lw"), L("lwd")
        a(f"s_mov_b32 s60, {LSPIN}")
        a.label(top)
        a(f"ds_read_b32 v{t}, v{vaddr} offset:{off}")
        a("s_waitcnt lgkmcnt(0)")
        a(f"v_cmp_ne_u32 vcc, {val}, v{t}")
        a(f"s_cbranch_vccz {done}")
        a(f"s_sleep {slp}")
        a("s_sub_u32 s60, s60, 1"); a(f"s_cbranch_scc0 {top}")
        a.label(done)
    def lds_signal(vaddr, off, one):
        a("s_waitcnt lgkmcnt(0)")
        a("s_mov_b64 exec, 1"); a(f"ds_add_u32 v{vaddr}, v{one} offset:{off}"); a("s_mov_b64 exec, -1")
    def pair_perm(W, spare):
        out = []
        for t in range(0, len(W), 2):
            cols = []
            for j in range(4):
                A_, B_ = W[t][j], W[t + 1][j]
                a(f"v_perm_b32 v{spare}, v{B_}, v{A_}, s70")
                a(f"v_perm_b32 v{B_}, v{B_}, v{A_}, s71")
                cols += [spare, B_]
                spare = A_
            out.append(cols)
        return out
    def ln_stats(x, m, rs, t0, t1):
        a(f"v_add_f32 v{m}, v{x[0]}, v{x[1]}")
        for r in x[2:]: a(f"v_add_f32 v{m}, v{m}, v{r}")
        allred("v_add_f32", m, t0)
        a(f"v_mul_f32 v{m}, {INV640:#x}, v{m}")
        for i, r in enumerate(x):
            a(f"v_sub_f32 v{t0}, v{r}, v{m}")
            if i == 0: a(f"v_mul_f32 v{rs}, v{t0}, v{t0}")
            else: a(f"v_fmac_f32 v{rs}, v{t0}, v{t0}")
        allred("v_add_f32", rs, t0)
        a(f"v_mul_f32 v{rs}, {INV640:#x}, v{rs}")
        rbf(rs, rs); rbf(m, m)
        a(f"v_add_f32 v{rs}, {EPS:#x}, v{rs}"); rbf(rs, rs)
        a(f"v_sqrt_f32 v{rs}, v{rs}"); rbf(rs, rs)
        a(f"v_rcp_f32 v{rs}, v{rs}")

    a.raw(HEADER.rstrip("\n"))
    a.raw(f"; @launch grid=(256,1,1) block=({64*NWAVE},1,1) lds={L_END}")
    a.raw('.amdgcn_target "amdgcn-amd-amdhsa--gfx950"')
    a.raw(".text"); a.raw(f".globl {KN}"); a.raw(".p2align 8"); a.raw(f".type {KN},@function")
    a.label(KN)
    a("s_cmp_ge_u32 s2, 256"); a("s_cbranch_scc1 L_exit")
    if dbl: a("s_memrealtime s[88:89]")
    a("s_load_dwordx16 s[16:31], s[0:1], 0")
    a("s_load_dwordx8 s[32:39], s[0:1], 64")
    a("v_lshrrev_b32 v1, 6, v0")
    a("v_and_b32 v0, 63, v0")
    a("v_readfirstlane_b32 s3, v1")
    if diag: a(f"v_mov_b32 v{SV}, 0")
    a("v_lshlrev_b32 v1, 4, v0")
    a("s_lshr_b32 s4, s2, 4")
    if diag: a("s_mov_b32 s93, s3"); a("s_mov_b32 s94, 32")
    a("s_cmp_ge_u32 s3, 4"); a("s_cbranch_scc1 L_helper")

    R0 = 36
    ring = [8]
    def slot(ck, i): return R0 + 16 * (ck % ring[0]) + 4 * i
    def issue_chunk(ck, pacer=None):
        for i in range(4):
            if pacer and i % GR == 0: pacer(i)
            s = slot(ck, i)
            a(f"buffer_load_dwordx4 v[{s}:{s+3}], v1, s[8:11], s12 offen offset:{1024*i} nt")
        a("s_add_u32 s12, s12, 0x4000")
    a("s_add_u32 s5, s2, s4"); a("s_and_b32 s5, s5, 7")
    a("s_and_b32 s6, s2, 8"); a("s_or_b32 s5, s5, s6")
    a("s_lshl_b32 s13, s4, 23"); a("s_lshl_b32 s14, s5, 18"); a("s_add_u32 s13, s13, s14")
    a("s_lshl_b32 s14, s3, 12"); a("s_add_u32 s13, s13, s14")
    a("s_mov_b32 s12, s13")
    a("s_mov_b32 s10, 0x8000000"); a("s_mov_b32 s11, 0x20000")
    a("s_waitcnt lgkmcnt(0)")
    a("s_mov_b32 s8, s18"); a("s_mov_b32 s9, s19")
    stamp("start")
    if bs: a("s_barrier")
    issue_chunk(0)
    a(f"s_add_u32 s14, s14, {L_SC}")
    a("v_lshlrev_b32 v20, 2, v0"); a("v_add_u32 v20, s14, v20")
    a("v_and_b32 v21, 15, v0"); a("v_lshlrev_b32 v21, 4, v21")
    a("v_mov_b32 v22, 0"); a("v_mov_b32 v23, 1")
    stamp("s_issued")
    if not bs: a("s_barrier")
    for ck in range(1, 7):
        issue_chunk(ck, lambda i: a(f"s_waitcnt vmcnt({DS[mode0]-GR})"))
    stamp("s_filled")
    a(f"s_mov_b32 s15, {mode0}")
    a("s_mov_b32 s40, s18"); a("s_mov_b32 s41, s19"); a("s_add_u32 s42, s13, 0x400000"); a("s_mov_b32 s43, 0x8000000")
    lds_wait(22, L_FL + 4, 4, 8, 1)
    stamp("q_ready")
    def pace(i):
        go = L("go")
        if i == 0: a("s_waitcnt vmcnt(24)")
        a("s_cmp_ge_u32 s15, 3"); a(f"s_cbranch_scc1 {go}")
        a(f"s_waitcnt vmcnt({DS[2]-GR})")
        a("s_cmp_ge_u32 s15, 2"); a(f"s_cbranch_scc1 {go}")
        a(f"s_waitcnt vmcnt({DS[1]-GR})")
        a("s_cmp_ge_u32 s15, 1"); a(f"s_cbranch_scc1 {go}")
        a(f"s_waitcnt vmcnt({DS[0]-GR})")
        a.label(go)
    def switch_point():
        a("s_cmp_eq_u32 s6, 1")
        a("s_cselect_b32 s8, s40, s8"); a("s_cselect_b32 s9, s41, s9")
        a("s_cselect_b32 s12, s42, s12"); a("s_cselect_b32 s10, s43, s10")
    def proc_k(ck, q, off):
        for j in range(4):
            for i in range(4):
                a(f"v_dot2_f32_bf16 v{8+i}, v{slot(ck,i)+j}, v{q+j}, " + ("0" if j == 0 else f"v{8+i}"))
        a("v_add_f32_dpp v12, v8, v8 row_ror:8 row_mask:0xf bank_mask:0x3")
        a("s_nop 0")
        a("v_add_f32_dpp v13, v10, v10 row_ror:8 row_mask:0xf bank_mask:0x3")
        a("v_add_f32_dpp v12, v9, v9 row_ror:8 row_mask:0xf bank_mask:0xc")
        a("v_add_f32_dpp v13, v11, v11 row_ror:8 row_mask:0xf bank_mask:0xc")
        a("v_add_f32_dpp v14, v12, v12 row_half_mirror row_mask:0xf bank_mask:0x5")
        a("v_add_f32_dpp v14, v13, v13 row_half_mirror row_mask:0xf bank_mask:0xa")
        a(f"ds_write_b32 v20, v14 offset:{off}")
    a("s_mov_b32 s7, 0")
    a.label("L_khead")
    a(f"ds_read_b128 v[4:7], v21 offset:{L_Q}")
    a("s_mov_b32 s6, 0")
    a.label("L_kiter")
    for k in range(8):
        if k == 1: switch_point()
        issue_chunk(k + 7, pace)
        if k == 0: a("s_waitcnt lgkmcnt(0)")
        proc_k(k, 4, 256 * k)
        if k % 4 == 3: prog()
    a("v_add_u32 v20, 0x800, v20")
    a("s_add_u32 s6, s6, 1"); a("s_cmp_lt_u32 s6, 2"); a("s_cbranch_scc1 L_kiter")
    lds_signal(22, L_FL + 8, 23)
    stamp("k_done")
    a("v_add_u32 v20, 0x3000, v20"); a("v_add_u32 v21, 0x100, v21"); a("v_mov_b32 v22, 4")
    a("s_mov_b32 s40, s20"); a("s_mov_b32 s41, s21"); a("s_mov_b32 s42, s13")
    a("s_add_u32 s7, s7, 1"); a("s_cmp_lt_u32 s7, 2"); a("s_cbranch_scc1 L_khead")
    a("s_lshl_b32 s14, s3, 11"); a(f"s_add_u32 s14, s14, {L_PP}")
    a("v_lshlrev_b32 v20, 3, v0"); a("v_add_u32 v20, s14, v20")
    a("s_lshl_b32 s14, s3, 9"); a(f"s_add_u32 s14, s14, {L_OL}")
    a("v_and_b32 v21, 15, v0"); a("v_lshlrev_b32 v21, 5, v21"); a("v_lshrrev_b32 v8, 4, v0"); a("v_lshl_add_u32 v21, v8, 3, v21")
    a("v_add_u32 v21, s14, v21")
    a("v_mov_b32 v22, 0")
    a("s_add_u32 s42, s13, 0x400000")
    a("s_mov_b32 s7, 0")
    a(f"s_mov_b32 s44, {last[0] | last[1] << 8 | last[2] << 16 | last[3] << 24:#x}")
    a.label("L_vhead")
    lds_wait(22, L_FL + 16, 1, 8, 1)
    stamp("p_wait")
    for j in range(8): a(f"v_mov_b32 v{24+j}, 0")
    a("s_mov_b32 s6, 0")
    a.label("L_viter")
    a("ds_read_b64 v[32:33], v20"); a("ds_read_b64 v[34:35], v20 offset:512")
    a("s_and_b32 s45, s44, 0xff"); a("s_max_u32 s15, s15, s45"); a("s_lshr_b32 s44, s44, 8")
    for k in range(8):
        if k == 1: switch_point()
        issue_chunk(k + 7, pace)
        if k == 0: a("s_waitcnt lgkmcnt(0)")
        pr = 32 + 2 * (k // 4)
        for i in range(4):
            s = slot(k, i)
            c = ((i & 1) << 3) | ((i >> 1) << 2) | (k % 4)
            for j in range(4):
                a(f"v_dot2c_f32_bf16_dpp v{24+2*j}, v{pr}, v{s+j} row_newbcast:{c} {FULL}")
                a(f"v_dot2c_f32_bf16_dpp v{25+2*j}, v{pr+1}, v{s+j} row_newbcast:{c} {FULL}")
        if k % 4 == 3: prog()
    a("v_add_u32 v20, 0x400, v20")
    a("s_add_u32 s6, s6, 1"); a("s_cmp_lt_u32 s6, 2"); a("s_cbranch_scc1 L_viter")
    red_g8(list(range(24, 32)), 34)
    a("ds_write_b64 v21, v[34:35]")
    a("s_cmp_lg_u32 s7, 0"); a("s_cbranch_scc1 L_vend")
    stamp("va_done")
    a("v_add_u32 v20, 0x1800, v20"); a("v_add_u32 v21, 0x800, v21"); a("v_mov_b32 v22, 4")
    a("s_mov_b32 s43, 0"); a("s_mov_b32 s7, 1")
    a("s_branch L_vhead")
    a.label("L_vend")
    a("s_waitcnt lgkmcnt(0)")
    stamp("v_done")
    a("s_barrier")
    a("s_branch L_fin")

    def ffn_index(d):
        a(f"s_sub_u32 {d}, s67, {NWO}")
        if pairx:
            a(f"s_and_b32 s64, {d}, 7"); a("s_lshl_b32 s64, s64, 1"); a(f"s_bfe_u32 s65, {d}, 0x10003"); a("s_add_u32 s64, s64, s65")
            a(f"s_and_b32 s65, {d}, 0x30"); a("s_add_u32 s64, s64, s65")
            a(f"s_cmp_lt_u32 {d}, 48"); a(f"s_cselect_b32 {d}, s64, {d}")
    W0 = 64
    def load_weights(wpace=wpace, down=True):
        if now: return
        ffn, done = L("ffnw"), L("wdone")
        cnt = [0]
        def ld(idx, off):
            if wpace and cnt[0] >= wpace: a(f"s_waitcnt vmcnt({wpace-1})")
            cnt[0] += 1
            a(f"buffer_load_dwordx4 v[{W0+4*idx}:{W0+4*idx+3}], v2, s[44:47], s50 offen offset:{off} {wpol}")
        a(f"s_cmp_ge_u32 s67, {NWO}"); a(f"s_cbranch_scc1 {ffn}")
        a("s_mov_b32 s44, s24"); a("s_mov_b32 s45, s25"); a(f"s_mov_b32 s46, {4096*1280}"); a("s_mov_b32 s47, 0x20000")
        a("s_and_b32 s50, s67, 7"); a("s_lshl_b32 s50, s50, 3"); a("s_add_u32 s50, s50, s3"); a(f"s_mul_i32 s50, s50, {64*1280}")
        a("s_lshr_b32 s51, s67, 3"); a("s_lshl_b32 s51, s51, 7"); a("s_add_u32 s50, s50, s51")
        a("v_lshrrev_b32 v2, 3, v0"); a(f"v_mul_u32_u24 v2, {8*1280}, v2"); a("v_and_b32 v3, 7, v0"); a("v_lshl_add_u32 v2, v3, 4, v2")
        for t in range(8):
            if t == 4: a(f"s_add_u32 s50, s50, {4*1280}")
            ld(t, (t % 4) * 1280)
        a(f"s_branch {done}")
        a.label(ffn)
        cnt[0] = 0
        a(f"s_cmp_ge_u32 s67, {NWO+NFFN}"); a(f"s_cbranch_scc1 {done}")
        a("s_cmp_lt_u32 s3, 4"); a("s_cselect_b32 s44, s28, s30"); a("s_cselect_b32 s45, s29, s31")
        a(f"s_mov_b32 s46, {640*3456}"); a("s_mov_b32 s47, 0x20000")
        ffn_index("s52")
        a("s_and_b32 s50, s3, 3"); a(f"s_mul_i32 s50, s50, {160*3456}"); a("s_lshl_b32 s51, s52, 6"); a("s_add_u32 s50, s50, s51")
        a("v_lshrrev_b32 v2, 2, v0"); a(f"v_mul_u32_u24 v2, {10*3456}, v2"); a("v_and_b32 v3, 3, v0"); a("v_lshl_add_u32 v2, v3, 4, v2")
        for t in range(10):
            if t and t % 2 == 0: a(f"s_add_u32 s50, s50, {2*3456}")
            ld(t, (t % 2) * 3456)
        if not down:
            a.label(done); return
        a("s_cmp_ge_u32 s3, 5"); a(f"s_cbranch_scc1 {done}")
        a("s_mov_b32 s44, s32"); a("s_mov_b32 s45, s33"); a(f"s_mov_b32 s46, {1728*1280}")
        a(f"s_mul_i32 s50, s52, {32*1280}"); a("s_lshl_b32 s51, s3, 8"); a("s_add_u32 s50, s50, s51")
        a("v_lshrrev_b32 v2, 4, v0"); a(f"v_mul_u32_u24 v2, {8*1280}, v2"); a("v_and_b32 v3, 15, v0"); a("v_lshl_add_u32 v2, v3, 4, v2")
        for t in range(8):
            if t == 4: a(f"s_add_u32 s50, s50, {4*1280}")
            ld(10 + t, (t % 4) * 1280)
        a.label(done)

    a.label("L_helper")
    a("s_sub_u32 s3, s3, 4")
    a("s_and_b32 s6, s2, 15")
    a("v_lshlrev_b32 v6, 2, v0")
    a("v_mov_b32 v14, 0"); a("v_mov_b32 v15, 1")
    a("s_mov_b32 s70, 0x05040100"); a("s_mov_b32 s71, 0x07060302")
    if rolemix:
        a("s_mul_i32 s67, s4, 3"); a("s_add_u32 s67, s67, s6"); a("s_and_b32 s67, s67, 15"); a("s_lshl_b32 s67, s67, 4"); a("s_add_u32 s67, s67, s4")
    else:
        a("s_mov_b32 s67, s2")
    a("s_cmp_ge_u32 s3, 4"); a("s_cbranch_scc1 L_helper2")
    if prio: a(f"s_setprio {prio}")
    a("v_lshrrev_b32 v2, 3, v0")
    a("v_and_b32 v3, 7, v0")
    a("v_mul_u32_u24 v4, 5, v2")
    a("s_lshr_b32 s8, s6, 2"); a("s_lshl_b32 s8, s8, 2"); a("s_add_u32 s8, s8, s3"); a("s_mul_i32 s8, s8, 40")
    a("v_add_u32 v4, s8, v4")
    a("v_lshlrev_b32 v5, 13, v4"); a("v_lshl_add_u32 v5, v3, 4, v5")
    a("v_lshlrev_b32 v4, 1, v4")
    a("s_lshl_b32 s9, s4, 9"); a("s_and_b32 s10, s6, 3"); a("s_lshl_b32 s10, s10, 7"); a("s_add_u32 s9, s9, s10")
    a(f"s_mov_b32 s46, {640*8192}"); a("s_mov_b32 s47, 0x20000")
    a("s_waitcnt lgkmcnt(0)")
    stamp("start")
    a(f"s_add_u32 s74, s38, {WS_EP}"); a("s_addc_u32 s75, s39, 0")
    a("s_load_dword s15, s[74:75], 0")
    a("global_load_dwordx4 v[16:19], v1, s[16:17]"); a("global_load_dword v20, v6, s[16:17] offset:1024")
    for t in range(5): a(f"global_load_ushort v{21+t}, v4, s[16:17] offset:{2*t}")
    a("s_mov_b32 s44, s22"); a("s_mov_b32 s45, s23")
    for t in range(5):
        a(f"buffer_load_dwordx4 v[{64+4*t}:{64+4*t+3}], v5, s[44:47], s9 offen {wpol}")
        if t < 4: a("s_add_u32 s9, s9, 0x2000")
    a("s_barrier")
    a("v_lshlrev_b32 v12, 2, v2"); a("v_lshl_add_u32 v12, v3, 5, v12")
    a("s_lshl_b32 s12, s3, 8"); a("v_add_u32 v12, s12, v12")
    a("s_mov_b32 s62, 0xff00ff00"); a("s_mov_b32 s63, 0xff00ff00")
    stamp("h_issued")
    a("s_waitcnt vmcnt(5)")
    stamp("h_x")
    for i in range(5):
        a(f"v_and_b32 v{30+2*i+1}, 0xffff0000, v{16+i}"); a(f"v_lshlrev_b32 v{30+2*i}, 16, v{16+i}")
    ln_stats(list(range(30, 40)), 26, 27, 28, 29)
    for t in range(5):
        a(f"v_lshlrev_b32 v{21+t}, 16, v{21+t}"); a(f"v_sub_f32 v{21+t}, v{21+t}, v26"); rbf(21 + t, 21 + t)
        a(f"v_mul_f32 v{21+t}, v{21+t}, v27")
        a(f"v_cvt_pk_bf16_f32 v{30+t}, v{21+t}, 0"); a(f"v_cvt_pk_bf16_f32 v{35+t}, 0, v{21+t}")
    for j in range(8): a(f"v_mov_b32 v{40+j}, 0")
    stamp("h_ln")
    for t in range(5):
        a(f"s_waitcnt vmcnt({4-t})")
        for j in range(4):
            a(f"v_dot2c_f32_bf16 v{40+2*j}, v{30+t}, v{64+4*t+j}"); a(f"v_dot2c_f32_bf16 v{41+2*j}, v{35+t}, v{64+4*t+j}")
    red_g8(list(range(40, 48)), 48)
    a(f"v_add_f32_dpp v48, v48, v48 row_ror:8 {FULL}"); a(f"v_add_f32_dpp v49, v49, v49 row_ror:8 {FULL}")
    a("v_cndmask_b32 v48, v48, v49, s[62:63]")
    a(f"ds_write_b32 v12, v48 offset:{L_QS}")
    a("s_waitcnt lgkmcnt(0)")
    a("s_add_u32 s15, s15, 1")
    a("s_mov_b64 exec, 1"); a(f"ds_add_rtn_u32 v13, v14, v15 offset:{L_FL}"); a("s_mov_b64 exec, -1")
    a("v_lshrrev_b32 v10, 5, v0"); a(f"v_mul_u32_u24 v12, {8*MB}, v10"); a("v_and_b32 v11, 31, v0"); a("v_lshl_add_u32 v12, v11, 4, v12")
    a("s_lshl_b32 s12, s4, 4"); a("s_add_u32 s12, s12, s3"); a(f"s_mul_i32 s12, s12, {MB}"); a("v_add_u32 v12, s12, v12")
    a(f"v_add_u32 v9, {4*MB}, v12")
    a("s_waitcnt lgkmcnt(0)")
    a("v_readfirstlane_b32 s12, v13")
    stamp("h_dots")
    a("s_cmp_lg_u32 s12, 3"); a("s_cbranch_scc1 L_qnopub")
    a(f"v_add_u32 v16, {L_QS}, v6")
    a("ds_read2st64_b32 v[18:19], v16 offset0:0 offset1:1"); a("ds_read2st64_b32 v[20:21], v16 offset0:2 offset1:3")
    a(f"s_mul_i32 s12, s2, {MB}"); a("v_lshlrev_b32 v17, 3, v0"); a("v_add_u32 v17, s12, v17")
    a("s_waitcnt lgkmcnt(0)")
    a("v_add_f32 v18, v18, v19"); a("v_add_f32 v20, v20, v21"); a("v_add_f32 v18, v18, v20"); a("v_mov_b32 v19, s15")
    a("global_store_dwordx2 v17, v[18:19], s[38:39] sc1")
    stamp("qp_pub")
    a.label("L_qnopub")
    a(f"s_mov_b32 s60, {SPIN}")
    a.label("L_qpoll")
    a("global_load_dwordx4 v[24:27], v12, s[38:39] sc1"); a("global_load_dwordx4 v[28:31], v9, s[38:39] sc1")
    a("s_waitcnt vmcnt(0)")
    for r in (25, 27, 29, 31): a(f"v_xor_b32 v{r}, s15, v{r}")
    a("v_or3_b32 v25, v25, v27, v29"); a("v_or_b32 v25, v25, v31")
    a("v_cmp_ne_u32 vcc, 0, v25")
    a("s_cbranch_vccz L_qpolled")
    if sleep: a(f"s_sleep {sleep}")
    a("s_sub_u32 s60, s60, 1"); a("s_cbranch_scc0 L_qpoll")
    a.label("L_qpolled")
    stamp("q_got")
    a("v_add_f32 v24, v24, v28"); a("v_add_f32 v26, v26, v30")
    a("v_permlane32_swap_b32 v24, v26")
    a("v_add_f32 v24, v24, v26")
    a("v_cvt_pk_bf16_f32 v24, v24, v24")
    a("v_lshl_add_u32 v12, v11, 1, v10"); a("v_lshlrev_b32 v12, 1, v12")
    a("s_lshl_b32 s12, s3, 7"); a("v_add_u32 v12, s12, v12")
    a(f"ds_write_b16 v12, v24 offset:{L_Q}")
    lds_signal(14, L_FL + 4, 15)
    a(f"s_setprio {hprio}")
    a("s_branch L_weights")

    a.label("L_helper2")
    a(f"s_setprio {hprio}")
    a("s_cmp_lg_u32 s3, 4"); a("s_cbranch_scc1 L_noinit")
    a(f"ds_write_b32 v6, v14 offset:{L_FL}")
    a.label("L_noinit")
    a("s_waitcnt lgkmcnt(0)")
    stamp("start")
    a(f"s_add_u32 s74, s38, {WS_EP}"); a("s_addc_u32 s75, s39, 0")
    a("s_load_dword s15, s[74:75], 0")
    a("s_cmp_lg_u32 s3, 6"); a("s_cbranch_scc1 L_clrdone")
    if noclear: a("s_branch L_clrdone")
    for r in range(8, 12): a(f"v_mov_b32 v{r}, -1")
    a(f"s_mul_i32 s11, s2, {MB}"); a("v_add_u32 v7, s11, v1")
    a(f"global_store_dwordx4 v7, v[8:11], s[38:39] offset:{MB_O} sc1")
    a(f"s_cmp_ge_u32 s67, {NWO}"); a("s_cbranch_scc1 L_clrffn")
    a("s_and_b32 s12, s67, 7"); a("s_mul_i32 s12, s12, 2560"); a("s_lshr_b32 s13, s67, 3"); a("s_lshl_b32 s13, s13, 8"); a("s_add_u32 s12, s12, s13")
    a(f"s_add_u32 s12, s12, {WS_YP}"); a("v_add_u32 v12, s12, v6")
    a("global_store_dword v12, v8, s[38:39] sc1")
    a("s_branch L_clrdone")
    a.label("L_clrffn")
    a(f"s_cmp_ge_u32 s67, {NWO+NFFN}"); a("s_cbranch_scc1 L_clrdone")
    ffn_index("s12"); a("s_mul_i32 s12, s12, 2560"); a(f"s_add_u32 s12, s12, {WS_FP}")
    a("v_add_u32 v12, s12, v1")
    a("global_store_dwordx4 v12, v[8:11], s[38:39] sc1"); a("global_store_dwordx4 v12, v[8:11], s[38:39] offset:1024 sc1")
    a("s_mov_b32 exec_hi, 0")
    a("global_store_dwordx4 v12, v[8:11], s[38:39] offset:2048 sc1")
    a("s_mov_b64 exec, -1")
    a.label("L_clrdone")
    a("s_barrier")
    lds_wait(14, L_FL + 4, 4, 8, 8)
    a("s_add_u32 s15, s15, 1")
    a("s_cmp_ge_u32 s3, 6"); a("s_cbranch_scc1 L_statw")
    if stag45: lds_wait(14, L_FL + 8, 4, 8, 16)
    a("s_branch L_weights")
    a.label("L_statw")
    a("s_sub_u32 s7, s3, 6")
    a("s_lshl_b32 s12, s7, 2"); a("v_mov_b32 v13, s12")
    a("v_and_b32 v20, 3, v0"); a("v_lshlrev_b32 v20, 8, v20"); a("v_and_b32 v21, 60, v0"); a("v_lshl_add_u32 v20, v21, 2, v20")
    a("s_lshl_b32 s12, s7, 14"); a(f"s_add_u32 s12, s12, {L_SC}"); a("v_add_u32 v20, s12, v20")
    a("s_lshl_b32 s12, s7, 13"); a(f"s_add_u32 s12, s12, {L_PP}"); a("v_lshlrev_b32 v21, 3, v0"); a("v_add_u32 v21, s12, v21")
    a(f"s_mul_i32 s12, s4, {16*MB}"); a("s_lshl_b32 s13, s7, 7"); a("s_add_u32 s12, s12, s13")
    a("v_and_b32 v22, 15, v0"); a(f"v_mul_u32_u24 v22, {MB}, v22"); a("v_add_u32 v22, s12, v22")
    a(f"s_mul_i32 s13, s6, {MB}"); a("s_add_u32 s12, s12, s13"); a("v_mov_b32 v23, s12")
    a(f"s_mov_b32 s14, {LOG2E:#x}")
    lds_wait(13, L_FL + 8, 4, 8, 4)
    for i in range(16): a(f"ds_read_b128 v[{64+4*i}:{67+4*i}], v20 offset:{1024*i}")
    S = list(range(32, 48))
    for i in range(16):
        b = 64 + 4 * i
        a(f"s_waitcnt lgkmcnt({min(15-i, 15)})")
        a(f"v_add_f32 v{b}, v{b}, v{b+1}"); a(f"v_add_f32 v{b+2}, v{b+2}, v{b+3}"); a(f"v_add_f32 v{S[i]}, v{b}, v{b+2}")
        rbf(S[i], S[i]); a(f"v_mul_f32 v{S[i]}, {SCALE:#x}, v{S[i]}"); rbf(S[i], S[i])
    a(f"v_max_f32 v28, v{S[0]}, v{S[1]}")
    for i in range(2, 16, 2): a(f"v_max3_f32 v28, v28, v{S[i]}, v{S[i+1]}")
    allred("v_max_f32", 28, 30)
    for i in range(16):
        a(f"v_sub_f32 v{64+i}, v{S[i]}, v28"); a(f"v_mul_f32 v{64+i}, s14, v{64+i}"); a(f"v_exp_f32 v{64+i}, v{64+i}")
    for st in (8, 4, 2):
        for i in range(st): a(f"v_add_f32 v{64+i}, v{64+i}, v{64+i+st}")
    a("v_add_f32 v29, v64, v65")
    allred("v_add_f32", 29, 30)
    a("v_mov_b32 v24, v28"); a("v_mov_b32 v25, s15"); a("v_mov_b32 v26, v29"); a("v_mov_b32 v27, s15")
    a("s_waitcnt vmcnt(0)")
    a("s_mov_b64 exec, 1")
    a(f"global_store_dwordx4 v23, v[24:27], s[38:39] offset:{MB_ST} sc1")
    a("s_mov_b64 exec, -1")
    stamp("st_pub")
    a(f"s_mov_b32 s60, {SPIN}")
    a.label("L_stpoll")
    a(f"global_load_dwordx4 v[16:19], v22, s[38:39] offset:{MB_ST} sc1")
    a("s_waitcnt vmcnt(0)")
    a("v_xor_b32 v17, s15, v17"); a("v_xor_b32 v19, s15, v19"); a("v_or_b32 v17, v17, v19")
    a("v_cmp_ne_u32 vcc, 0, v17")
    a("s_cbranch_vccz L_stpolled")
    a(f"s_sleep {ssleep}")
    a("s_sub_u32 s60, s60, 1"); a("s_cbranch_scc0 L_stpoll")
    a.label("L_stpolled")
    a("v_mov_b32 v24, v16"); a("v_mov_b32 v25, v18")
    a("v_mov_b32 v28, v24")
    rowred("v_max_f32", 28)
    a("v_sub_f32 v24, v24, v28"); a("v_mul_f32 v24, s14, v24"); a("v_exp_f32 v24, v24"); a("v_mul_f32 v29, v24, v25")
    rowred("v_add_f32", 29)
    a("v_rcp_f32 v29, v29")
    for i in range(16):
        a(f"v_sub_f32 v{S[i]}, v{S[i]}, v28"); a(f"v_mul_f32 v{S[i]}, s14, v{S[i]}"); a(f"v_exp_f32 v{S[i]}, v{S[i]}")
    for i in range(16):
        a(f"v_mul_f32 v{S[i]}, v{S[i]}, v29")
        a(f"v_cvt_pk_bf16_f32 v{64+2*i}, v{S[i]}, 0"); a(f"v_cvt_pk_bf16_f32 v{65+2*i}, 0, v{S[i]}")
        a(f"ds_write_b64 v21, v[{64+2*i}:{65+2*i}] offset:{512*i}")
    lds_signal(13, L_FL + 16, 15)
    stamp("p_ready")
    a("s_cmp_lg_u32 s3, 7"); a("s_cbranch_scc1 L_weights")
    a(f"s_cmp_ge_u32 s67, {NWO+NFFN}"); a("s_cbranch_scc1 L_weights")
    a(f"v_mul_u32_u24 v16, {MB}, v0")
    for i in range(1, 4): a(f"v_add_u32 v{16+i}, {64*MB*i:#x}, v16")
    a(f"s_mov_b32 s60, {SPIN}")
    a.label("L_marks")
    for i in range(4):
        a(f"global_load_dword v{20+i}, v{16+i}, s[38:39] offset:{MB_ST+4} sc1")
        a("s_waitcnt vmcnt(0)")
    for i in range(4): a(f"v_xor_b32 v{20+i}, s15, v{20+i}")
    a("v_or3_b32 v20, v20, v21, v22"); a("v_or_b32 v20, v20, v23")
    a("v_cmp_ne_u32 vcc, 0, v20")
    a("s_cbranch_vccz L_weights")
    a("s_sleep 32")
    a("s_sub_u32 s60, s60, 1"); a("s_cbranch_scc0 L_marks")

    a.label("L_weights")
    load_weights()
    a.label("L_weights_done")
    a(f"s_add_u32 s76, s38, {WS_YP}"); a("s_addc_u32 s77, s39, 0")
    a(f"s_add_u32 s78, s38, {WS_FP}"); a("s_addc_u32 s79, s39, 0")
    def opub():
        for w in range(4): a(f"ds_read_b128 v[{140+4*w}:{143+4*w}], v138 offset:{L_OL+512*w}")
        a("s_waitcnt lgkmcnt(0)")
        for j in range(4): a(f"v_add_f32 v{140+j}, v{140+j}, v{144+j}"); a(f"v_add_f32 v{148+j}, v{148+j}, v{152+j}")
        for j in range(4): a(f"v_add_f32 v{140+j}, v{140+j}, v{148+j}")
        guard([140, 141, 142, 143])
        a(f"global_store_dwordx4 v139, v[140:143], s[38:39] offset:{MB_O} sc1")
    a("v_lshrrev_b32 v138, 5, v0"); a("v_mul_u32_u24 v138, 1536, v138"); a("v_add_u32 v138, v138, v1")
    a(f"s_mul_i32 s11, s2, {MB}"); a("v_add_u32 v139, s11, v1")
    a("s_waitcnt vmcnt(0)")
    stamp("w_done")
    def b5():
        sk = L("nopubB")
        a("s_barrier")
        a("s_cmp_lg_u32 s3, 7"); a(f"s_cbranch_scc1 {sk}")
        opub()
        a.label(sk)
        stamp("tail")
    a(f"s_cmp_lt_u32 s67, {NWO}"); a("s_cbranch_scc1 L_wo")
    a(f"s_cmp_lt_u32 s67, {NWO+NFFN}"); a("s_cbranch_scc1 L_ffn")
    b5()
    a("s_branch L_fin")

    a.label("L_wo")
    a("s_and_b32 s50, s67, 7"); a("s_lshl_b32 s12, s50, 1"); a("s_lshr_b32 s13, s3, 2"); a("s_add_u32 s12, s12, s13"); a(f"s_mul_i32 s12, s12, {16*MB}")
    a("s_and_b32 s13, s3, 3"); a("s_xor_b32 s13, s13, 0"); a("s_lshl_b32 s13, s13, 8"); a("s_add_u32 s12, s12, s13")
    a("v_and_b32 v3, 7, v0"); a(f"v_mul_u32_u24 v2, {2*MB}, v3"); a("v_lshrrev_b32 v4, 3, v0"); a("v_lshl_add_u32 v2, v4, 5, v2"); a("v_add_u32 v2, s12, v2")
    a(f"v_add_u32 v8, {MB}, v2")
    PW = pair_perm([[W0 + 4 * t + j for j in range(4)] for t in range(8)], 136)
    a("v_lshrrev_b32 v5, 4, v0"); a("v_lshlrev_b32 v5, 3, v5"); a("v_lshl_add_u32 v5, v3, 5, v5")
    a("s_lshl_b32 s13, s3, 8"); a("v_add_u32 v5, s13, v5")
    a("s_mul_i32 s12, s50, 2560"); a("s_lshr_b32 s13, s67, 3"); a("s_lshl_b32 s13, s13, 8"); a("s_add_u32 s12, s12, s13"); a("v_add_u32 v7, s12, v6")
    a(f"v_add_u32 v6, {L_YL}, v6")
    for j in range(8): a(f"v_mov_b32 v{40+j}, 0")
    b5()
    def io():
        a(f"global_load_dwordx4 v[16:19], v2, s[38:39] offset:{MB_O} sc1"); a(f"global_load_dwordx4 v[20:23], v2, s[38:39] offset:{MB_O+16} sc1")
        a(f"global_load_dwordx4 v[24:27], v8, s[38:39] offset:{MB_O} sc1"); a(f"global_load_dwordx4 v[28:31], v8, s[38:39] offset:{MB_O+16} sc1")
    poll(io, range(16, 32), 14)
    stamp("e1")
    for j in range(8): a(f"v_add_f32 v{16+j}, v{16+j}, v{24+j}")
    for pat in ("quad_perm:[1,0,3,2]", "quad_perm:[2,3,0,1]", "row_half_mirror"):
        for j in range(8): a(f"v_add_f32_dpp v{16+j}, v{16+j}, v{16+j} {pat} {FULL}")
    for i in range(4): a(f"v_cvt_pk_bf16_f32 v{32+i}, v{16+2*i}, v{17+2*i}")
    for i in range(4):
        for j in range(8): a(f"v_dot2c_f32_bf16 v{40+j}, v{32+i}, v{PW[i][j]}")
    red_g8(list(range(40, 48)), 48)
    a(f"v_add_f32_dpp v48, v48, v48 row_ror:8 {FULL}"); a(f"v_add_f32_dpp v49, v49, v49 row_ror:8 {FULL}")
    a(f"ds_write_b64 v5, v[48:49] offset:{L_YL}")
    a("s_waitcnt lgkmcnt(0)")
    a("s_barrier")
    a("s_cmp_lg_u32 s3, 0"); a("s_cbranch_scc1 L_fin")
    for w in range(4): a(f"ds_read2st64_b32 v[{16+2*w}:{17+2*w}], v6 offset0:{2*w} offset1:{2*w+1}")
    a("s_waitcnt lgkmcnt(0)")
    for j in range(4): a(f"v_add_f32 v{16+j}, v{16+j}, v{20+j}")
    a("v_add_f32 v16, v16, v18"); a("v_add_f32 v17, v17, v19"); a("v_add_f32 v16, v16, v17")
    guard([16])
    a("global_store_dword v7, v16, s[76:77] sc1")
    stamp("y_pub")
    a("s_branch L_fin")

    a.label("L_ffn")
    ffn_index("s52")
    a("v_lshrrev_b32 v2, 4, v0"); a("v_and_b32 v3, 15, v0")
    a("s_min_u32 s12, s3, 4"); a("s_lshl_b32 s12, s12, 8")
    a("v_lshlrev_b32 v4, 2, v2"); a("v_lshl_add_u32 v4, v3, 4, v4"); a("v_add_u32 v4, s12, v4")
    a("global_load_dword v11, v4, s[16:17]")
    PG = pair_perm([[W0 + 4 * t + j for j in range(4)] for t in range(10)], 136)
    PD = pair_perm([[W0 + 40 + 4 * t + j for j in range(4)] for t in range(8)], 137)
    a("s_lshl_b32 s12, s3, 9")
    a("v_mul_u32_u24 v4, 5120, v2"); a("v_lshl_add_u32 v4, v3, 5, v4"); a("v_add_u32 v4, s12, v4")
    a("v_lshlrev_b32 v5, 3, v2"); a("v_lshl_add_u32 v5, v3, 5, v5"); a("v_add_u32 v5, s12, v5")
    a("v_mul_u32_u24 v6, 40, v0")
    a("v_lshrrev_b32 v7, 2, v0"); a("v_mul_u32_u24 v7, 40, v7"); a("s_and_b32 s13, s3, 3"); a("s_mul_i32 s13, s13, 640"); a("v_add_u32 v7, s13, v7")
    a("v_and_b32 v8, 3, v0"); a("v_lshlrev_b32 v8, 5, v8"); a("v_lshl_add_u32 v8, v2, 3, v8"); a("s_lshl_b32 s13, s3, 7"); a("v_add_u32 v8, s13, v8")
    a("v_and_b32 v9, 7, v0"); a("v_lshl_add_u32 v9, v2, 3, v9"); a("v_lshlrev_b32 v9, 2, v9"); a(f"v_add_u32 v9, {L_GU}, v9")
    a("s_mul_i32 s13, s52, 2560"); a("v_add_u32 v10, s13, v5")
    for j in range(8): a(f"v_mov_b32 v{40+j}, 0"); a(f"v_mov_b32 v{52+j}, 0")
    a(f"s_mov_b32 s14, {LOG2E:#x}")
    a("s_waitcnt vmcnt(0)")
    a("v_and_b32 v13, 0xffff0000, v11"); a("v_lshlrev_b32 v12, 16, v11")
    b5()
    a("s_cmp_ge_u32 s3, 5"); a("s_cbranch_scc1 L_h_wait")
    def iy():
        a("global_load_dwordx4 v[16:19], v4, s[76:77] sc1"); a("global_load_dwordx4 v[20:23], v4, s[76:77] offset:16 sc1")
        a("global_load_dwordx4 v[24:27], v4, s[76:77] offset:2560 sc1"); a("global_load_dwordx4 v[28:31], v4, s[76:77] offset:2576 sc1")
    poll(iy, range(16, 32), 14)
    stamp("e2")
    for j in range(8): a(f"v_add_f32 v{16+j}, v{16+j}, v{24+j}")
    red_g8(list(range(16, 24)), 24)
    rbf(24, 24); rbf(25, 25)
    a("v_add_f32 v24, v24, v12"); a("v_add_f32 v25, v25, v13")
    rbf(24, 24); rbf(25, 25)
    a(f"ds_write_b64 v5, v[24:25] offset:{L_H}")
    a("s_waitcnt lgkmcnt(0)")
    a.label("L_h_wait")
    a("s_barrier")
    for i in range(5): a(f"ds_read_b64 v[{16+2*i}:{17+2*i}], v6 offset:{L_H+8*i}")
    for i in range(5): a(f"ds_read_b64 v[{26+2*i}:{27+2*i}], v7 offset:{L_H+8*i}")
    a("s_waitcnt lgkmcnt(5)")
    ln_stats(list(range(16, 26)), 36, 37, 38, 39)
    a("s_waitcnt lgkmcnt(0)")
    for t in range(10): a(f"v_sub_f32 v{26+t}, v{26+t}, v36")
    for i in range(5): a(f"v_cvt_pk_bf16_f32 v{16+i}, v{26+2*i}, v{27+2*i}")
    for i in range(5): a(f"v_lshlrev_b32 v{26+2*i}, 16, v{16+i}"); a(f"v_and_b32 v{27+2*i}, 0xffff0000, v{16+i}")
    for t in range(10): a(f"v_mul_f32 v{26+t}, v{26+t}, v37")
    for i in range(5): a(f"v_cvt_pk_bf16_f32 v{16+i}, v{26+2*i}, v{27+2*i}")
    for i in range(5):
        for j in range(8): a(f"v_dot2c_f32_bf16 v{40+j}, v{16+i}, v{PG[i][j]}")
    red_g8(list(range(40, 48)), 48)
    for r in (8, 4):
        a(f"v_add_f32_dpp v48, v48, v48 row_ror:{r} {FULL}"); a(f"v_add_f32_dpp v49, v49, v49 row_ror:{r} {FULL}")
    a(f"ds_write_b64 v8, v[48:49] offset:{L_GU}")
    a("s_waitcnt lgkmcnt(0)")
    a("s_barrier")
    stamp("gu")
    a("s_cmp_ge_u32 s3, 5"); a("s_cbranch_scc1 L_final")
    for w in range(4): a(f"ds_read2_b32 v[{16+2*w}:{17+2*w}], v9 offset0:{64*w} offset1:{64*w+32}")
    a("s_waitcnt lgkmcnt(0)")
    a("v_add_f32 v16, v16, v17"); a("v_add_f32 v18, v18, v19"); a("v_add_f32 v20, v20, v21"); a("v_add_f32 v22, v22, v23")
    a("v_add_f32 v16, v16, v18"); a("v_add_f32 v20, v20, v22")
    rbf(16, 16); rbf(20, 20)
    a("v_mul_f32 v17, s14, v16"); a("v_exp_f32 v17, -v17"); a("v_add_f32 v17, 1.0, v17"); a("v_rcp_f32 v17, v17")
    a("v_mul_f32 v16, v16, v17"); rbf(16, 16)
    a("v_mul_f32 v16, v16, v20")
    a(f"v_mov_b32_dpp v17, v16 quad_perm:[1,0,3,2] {FULL}")
    a("v_cvt_pk_bf16_f32 v16, v16, v17")
    for i in range(4):
        for j in range(8): a(f"v_dot2c_f32_bf16_dpp v{52+j}, v16, v{PD[i][j]} row_newbcast:{2*i} {FULL}")
    red_g8(list(range(52, 60)), 60)
    guard([60, 61])
    a("global_store_dwordx2 v10, v[60:61], s[78:79] sc1")
    stamp("f_pub")
    a("s_branch L_fin")
    a.label("L_final")
    a("s_cmp_lg_u32 s3, 5"); a("s_cbranch_scc1 L_fin")
    a(f"s_cmp_ge_u32 s52, {NFIN}"); a("s_cbranch_scc1 L_fin")
    a("s_mov_b32 s44, s78"); a("s_mov_b32 s45, s79"); a(f"s_mov_b32 s46, {NFFN*2560}"); a("s_mov_b32 s47, 0x20000")
    a("v_lshrrev_b32 v4, 3, v0"); a("v_mul_u32_u24 v4, 2560, v4"); a("v_and_b32 v5, 7, v0"); a("v_lshl_add_u32 v4, v5, 4, v4")
    a("s_lshl_b32 s12, s52, 7"); a("v_add_u32 v4, s12, v4")
    a("v_lshl_add_u32 v5, v5, 2, v2"); a("s_lshl_b32 s12, s52, 5"); a("v_add_u32 v5, s12, v5")
    a("v_lshlrev_b32 v6, 2, v5"); a("v_lshlrev_b32 v5, 1, v5")
    a(f"ds_read_b32 v7, v6 offset:{L_H}")
    for i in range(1, 7): a(f"s_mov_b32 s{80+i}, {8*2560*i}")
    def i3():
        for i in range(7):
            a(f"buffer_load_dwordx4 v[{16+4*i}:{19+4*i}], v4, s[44:47], " + ("0" if i == 0 else f"s{80+i}") + " offen sc1")
    poll(i3, range(16, 44), 14)
    stamp("e3")
    for j in range(4):
        a(f"v_add_f32 v{16+j}, v{16+j}, v{20+j}"); a(f"v_add_f32 v{24+j}, v{24+j}, v{28+j}"); a(f"v_add_f32 v{32+j}, v{32+j}, v{36+j}")
    for j in range(4):
        a(f"v_add_f32 v{16+j}, v{16+j}, v{24+j}"); a(f"v_add_f32 v{32+j}, v{32+j}, v{40+j}")
    for j in range(4): a(f"v_add_f32 v{16+j}, v{16+j}, v{32+j}")
    red_g4([16, 17, 18, 19], 20)
    a(f"v_add_f32_dpp v20, v20, v20 row_ror:8 {FULL}")
    rbf(20, 20)
    a("s_waitcnt lgkmcnt(0)")
    a("v_add_f32 v20, v20, v7")
    a("v_cvt_pk_bf16_f32 v20, v20, v20")
    a("s_mov_b32 s12, 0x00ff00ff"); a("s_mov_b32 s13, 0x00ff00ff"); a("s_mov_b64 exec, s[12:13]")
    a("global_store_short v5, v20, s[34:35]")
    a("s_cmp_lg_u32 s52, 0"); a("s_cbranch_scc1 L_noep")
    a("s_mov_b64 exec, 1")
    a(f"v_mov_b32 v5, {WS_EP:#x}"); a("v_mov_b32 v6, s15")
    a("global_store_dword v5, v6, s[38:39]")
    if dbl:
        a("s_memrealtime s[90:91]"); a("s_waitcnt lgkmcnt(0)")
        a("s_sub_u32 s92, s90, s88"); a(f"s_mul_i32 s92, s92, {dbl}"); a("s_add_u32 s92, s92, s90"); a("s_mov_b32 s60, 100000")
        a.label("L_dbl")
        a("s_memrealtime s[90:91]"); a("s_waitcnt lgkmcnt(0)"); a("s_sub_u32 s93, s90, s92"); a("s_cmp_ge_i32 s93, 0"); a("s_cbranch_scc1 L_noep")
        a("s_sub_u32 s60, s60, 1"); a("s_cbranch_scc0 L_dbl")
    a.label("L_noep")
    a("s_mov_b64 exec, -1")
    stamp("out")
    a.label("L_fin")
    dump_stamps()
    a.label("L_exit")
    a("s_endpgm")
    nv = 168
    a.raw('.section .rodata,"a"'); a.raw(".p2align 6"); a.raw(f".amdhsa_kernel {KN}")
    a.raw(f"  .amdhsa_next_free_vgpr {nv}"); a.raw("  .amdhsa_next_free_sgpr 96"); a.raw(f"  .amdhsa_accum_offset {nv}")
    a.raw("  .amdhsa_group_segment_fixed_size 0"); a.raw("  .amdhsa_kernarg_size 96"); a.raw("  .amdhsa_user_sgpr_count 2")
    a.raw("  .amdhsa_user_sgpr_kernarg_segment_ptr 1"); a.raw("  .amdhsa_system_sgpr_workgroup_id_x 1")
    a.raw("  .amdhsa_float_denorm_mode_32 3")
    a.raw(".end_amdhsa_kernel")
    return a.text(), stampn

if __name__ == "__main__":
    out = sys.argv[1] if len(sys.argv) > 1 else "sequential_preLN__mha_block_cached__swiglu_ffn__decode.s"
    kw = eval("dict(%s)" % sys.argv[2]) if len(sys.argv) > 2 else {}
    t, st = gen(**kw)
    open(out, "w").write(t)
    print("wrote", out, len(t.splitlines()), "lines", st)
```

```python
import sys
sys.path.insert(0, "work")
from asmlib import Asm

KN = "sequential_preLN__mha_block_cached__swiglu_ffn__decode_kernel"
HEADER = open("sequential_preLN__mha_block_cached__swiglu_ffn__decode.s.ref").read().split("; Override launch")[0]

MB = 4352
MB_Q = 0
MB_ST = 512
MB_O = 1024
WS_EP = 0x110000
WS_YP = 0x120000
WS_FP = 0x130000
L_FL = 0
L_Q = 256
L_QS = 768
L_SC = 2048
L_PP = L_SC + 32768
L_OL = L_PP + 16384
L_YL = L_OL + 4096
L_H = L_YL + 2048
L_GU = L_H + 2560
L_ST = L_GU + 1024
L_END = L_ST + 64
NWO, NFFN, NFIN = 160, 54, 20
NWAVE = 12
SPIN = 20000
LSPIN = 2000000
LOG2E = 0x3fb8aa3b
SCALE = 0x3db504f3
INV640 = 0x3acccccd
EPS = 0x3727c5ac
FULL = "row_mask:0xf bank_mask:0xf"

def gen(diag=False, wpol="nt", sleep=1, wpace=2, prio=3, now=False, ssleep=4, bs=False, DS=(5, 6, 8), GR=2, rolemix=True, modes=(1, 1, 2), F=8, epace=2, masked=True, lastit=3, hprio=2, pairx=False, noclear=False, dbl=0, kvpol='nt', warm=True, pdepth=1, pfirst=3, psleep=0, fine=True, hint=None, hs=64, hk=3, tlb=False):
    a = Asm()
    uid = [0]
    def L(n):
        uid[0] += 1
        return f"L_{n}_{uid[0]}"
    stampn = {}
    SV = 166
    def stamp(name):
        if not diag: return
        if diag == 1 and name not in ("start", "v_done", "out"): return
        if diag == 2 and name not in ("start", "v_done", "tail", "e1", "y_pub", "e2", "gu", "f_pub", "e3", "out", "x1", "x2", "x3", "x4"): return
        i = stampn.setdefault(name, len(stampn))
        sk = L("st"); a(f"s_cbranch_execz {sk}")
        a("s_memrealtime s[90:91]"); a("s_waitcnt lgkmcnt(0)"); a(f"v_writelane_b32 v{SV}, s90, {i}")
        a.label(sk)
    def prog():
        if diag != 3: return
        a("s_memrealtime s[90:91]"); a("s_waitcnt lgkmcnt(0)"); a("s_mov_b32 m0, s94"); a("s_nop 0"); a(f"v_writelane_b32 v{SV}, s90, m0"); a("s_add_u32 s94, s94, 1")
    def dump_stamps():
        if not diag: return
        a("s_add_u32 s90, s38, 0x10000000"); a("s_addc_u32 s91, s39, 0")
        a(f"s_mul_i32 s92, s2, {NWAVE}"); a("s_add_u32 s92, s92, s93"); a("s_lshl_b32 s92, s92, 8")
        a(f"v_lshlrev_b32 v{SV+1}, 2, v0"); a(f"v_add_u32 v{SV+1}, s92, v{SV+1}")
        a(f"global_store_dword v{SV+1}, v{SV}, s[90:91]")

    class live:
        def __enter__(self_):
            self_.l = L("live")
            if warm: a(f"s_cbranch_execz {self_.l}")
        def __exit__(self_, *x):
            if warm: a.label(self_.l)
    def rbf(dst, src):
        a(f"v_cvt_pk_bf16_f32 v{dst}, v{src}, v{src}"); a(f"v_and_b32 v{dst}, 0xffff0000, v{dst}")
    def rowred(op, v):
        for r in (8, 4, 2, 1):
            a(f"{op}_dpp v{v}, v{v}, v{v} row_ror:{r} {FULL}")
    def allred(op, v, t):
        rowred(op, v)
        a(f"v_mov_b32 v{t}, v{v}"); a(f"v_permlane16_swap_b32 v{v}, v{t}"); a(f"{op} v{v}, v{v}, v{t}")
        a(f"v_mov_b32 v{t}, v{v}"); a(f"v_permlane32_swap_b32 v{v}, v{t}"); a(f"{op} v{v}, v{v}, v{t}")
    def red_g8(r, dst):
        for j in range(4): a(f"v_permlane32_swap_b32 v{r[j]}, v{r[j+4]}")
        for j in range(4): a(f"v_add_f32 v{r[j]}, v{r[j]}, v{r[j+4]}")
        a(f"v_permlane16_swap_b32 v{r[0]}, v{r[2]}"); a(f"v_permlane16_swap_b32 v{r[1]}, v{r[3]}")
        a(f"v_add_f32 v{dst}, v{r[0]}, v{r[2]}"); a(f"v_add_f32 v{dst+1}, v{r[1]}, v{r[3]}")
    def red_g4(r, dst):
        a(f"v_permlane32_swap_b32 v{r[0]}, v{r[2]}"); a(f"v_permlane32_swap_b32 v{r[1]}, v{r[3]}")
        a(f"v_add_f32 v{r[0]}, v{r[0]}, v{r[2]}"); a(f"v_add_f32 v{r[1]}, v{r[1]}, v{r[3]}")
        a(f"v_permlane16_swap_b32 v{r[0]}, v{r[1]}")
        a(f"v_add_f32 v{dst}, v{r[0]}, v{r[1]}")
    def guard(regs):
        for r in regs: a(f"v_min_u32 v{r}, -2, v{r}")
    def poll(issue, regs, t, cnt="s60", sleep=sleep):
        top, done = L("poll"), L("polled")
        a(f"s_mov_b32 {cnt}, {SPIN}")
        a.label(top)
        issue()
        a("s_waitcnt vmcnt(0)")
        rs = list(regs)
        if len(rs) == 2:
            a(f"v_max_u32 v{t}, v{rs[0]}, v{rs[1]}")
        else:
            a(f"v_max3_u32 v{t}, v{rs[0]}, v{rs[1]}, v{rs[2]}")
            rs = rs[3:]
            while len(rs) >= 2:
                a(f"v_max3_u32 v{t}, v{t}, v{rs[0]}, v{rs[1]}"); rs = rs[2:]
            if rs: a(f"v_max_u32 v{t}, v{t}, v{rs[0]}")
        a(f"v_cmp_eq_u32 vcc, -1, v{t}")
        a(f"s_cbranch_vccz {done}")
        if sleep: a(f"s_sleep {sleep}")
        a(f"s_sub_u32 {cnt}, {cnt}, 1")
        a(f"s_cbranch_scc0 {top}")
        a.label(done)
    def umax(t, rs):
        rs = list(rs)
        a(f"v_max3_u32 v{t}, v{rs[0]}, v{rs[1]}, v{rs[2]}")
        rs = rs[3:]
        while len(rs) >= 2:
            a(f"v_max3_u32 v{t}, v{t}, v{rs[0]}, v{rs[1]}"); rs = rs[2:]
        if rs: a(f"v_max_u32 v{t}, v{t}, v{rs[0]}")
    def mpoll(groups, t, sm):
        if not masked:
            def allissue():
                for g, _ in groups: g()
            poll(allissue, [r for _, rs in groups for r in rs], t)
            return
        top, done = L("mpoll"), L("mpolled")
        a(f"s_mov_b32 s60, {SPIN}")
        for g, _ in groups: g()
        a.label(top)
        a("s_waitcnt vmcnt(0)")
        for i, (_, rs) in enumerate(groups): umax(t + i, rs)
        for i in range(len(groups)): a(f"v_cmp_eq_u32 s[{sm+2*i}:{sm+2*i+1}], -1, v{t+i}")
        a(f"s_or_b64 s[58:59], s[{sm}:{sm+1}], s[{sm+2}:{sm+3}]")
        for i in range(2, len(groups)): a(f"s_or_b64 s[58:59], s[58:59], s[{sm+2*i}:{sm+2*i+1}]")
        a(f"s_cbranch_scc0 {done}")
        if sleep: a(f"s_sleep {sleep}")
        for i, (g, _) in enumerate(groups):
            sk = L("mskip")
            a(f"s_mov_b64 exec, s[{sm+2*i}:{sm+2*i+1}]")
            a(f"s_cbranch_execz {sk}")
            g()
            a.label(sk)
        a("s_mov_b64 exec, -1")
        a("s_sub_u32 s60, s60, 1")
        a(f"s_cbranch_scc0 {top}")
        a("s_waitcnt vmcnt(0)")
        a.label(done)
    def spoll(groups, sums, outs, t, first=0):
        top, done = L("spoll"), L("spolled")
        a(f"s_mov_b32 s60, {SPIN}")
        if first: a(f"s_sleep {first}")
        for g, _ in groups: g()
        a.label(top)
        a("s_waitcnt vmcnt(0)")
        sums()
        umax(t, outs)
        a(f"v_cmp_eq_u32 vcc, -1, v{t}")
        a(f"s_cbranch_vccz {done}")
        if psleep: a(f"s_sleep {psleep}")
        if fine:
            for g, rs in groups:
                sk = L("gsk")
                umax(t, rs)
                a(f"v_cmp_eq_u32 vcc, -1, v{t}")
                a(f"s_cbranch_vccz {sk}")
                a("s_mov_b64 exec, vcc")
                g()
                a("s_mov_b64 exec, -1")
                a.label(sk)
        else:
            a("s_mov_b64 exec, vcc")
            for g, _ in groups: g()
            a("s_mov_b64 exec, -1")
        a("s_sub_u32 s60, s60, 1")
        a(f"s_cbranch_scc0 {top}")
        a("s_waitcnt vmcnt(0)")
        a.label(done)
    def lds_wait(vaddr, off, val, t, slp):
        top, done = L("lw"), L("lwd")
        a(f"s_mov_b32 s60, {LSPIN}")
        a.label(top)
        a(f"ds_read_b32 v{t}, v{vaddr} offset:{off}")
        a("s_waitcnt lgkmcnt(0)")
        a(f"v_cmp_ne_u32 vcc, {val}, v{t}")
        a(f"s_cbranch_vccz {done}")
        a(f"s_sleep {slp}")
        a("s_sub_u32 s60, s60, 1"); a(f"s_cbranch_scc0 {top}")
        a.label(done)
    def lds_signal(vaddr, off, one):
        a("s_waitcnt lgkmcnt(0)")
        a("s_mov_b64 exec, 1"); a(f"ds_add_u32 v{vaddr}, v{one} offset:{off}"); a("s_mov_b64 exec, -1")
    def pair_perm(W, spare):
        out = []
        for t in range(0, len(W), 2):
            cols = []
            for j in range(4):
                A_, B_ = W[t][j], W[t + 1][j]
                a(f"v_perm_b32 v{spare}, v{B_}, v{A_}, s70")
                a(f"v_perm_b32 v{B_}, v{B_}, v{A_}, s71")
                cols += [spare, B_]
                spare = A_
            out.append(cols)
        return out
    def ln_stats(x, m, rs, t0, t1):
        a(f"v_add_f32 v{m}, v{x[0]}, v{x[1]}")
        for r in x[2:]: a(f"v_add_f32 v{m}, v{m}, v{r}")
        allred("v_add_f32", m, t0)
        a(f"v_mul_f32 v{m}, {INV640:#x}, v{m}")
        for i, r in enumerate(x):
            a(f"v_sub_f32 v{t0}, v{r}, v{m}")
            if i == 0: a(f"v_mul_f32 v{rs}, v{t0}, v{t0}")
            else: a(f"v_fmac_f32 v{rs}, v{t0}, v{t0}")
        allred("v_add_f32", rs, t0)
        a(f"v_mul_f32 v{rs}, {INV640:#x}, v{rs}")
        rbf(rs, rs); rbf(m, m)
        a(f"v_add_f32 v{rs}, {EPS:#x}, v{rs}"); rbf(rs, rs)
        a(f"v_sqrt_f32 v{rs}, v{rs}"); rbf(rs, rs)
        a(f"v_rcp_f32 v{rs}, v{rs}")

    a.raw(HEADER.rstrip("\n"))
    a.raw(f"; @launch grid=(256,1,1) block=({64*NWAVE},1,1) lds={L_END}")
    a.raw('.amdgcn_target "amdgcn-amd-amdhsa--gfx950"')
    a.raw(".text"); a.raw(f".globl {KN}"); a.raw(".p2align 8"); a.raw(f".type {KN},@function")
    a.label(KN)
    a("s_cmp_ge_u32 s2, 256"); a("s_cbranch_scc1 L_exit")
    if dbl: a("s_memrealtime s[88:89]")
    a("s_load_dwordx16 s[16:31], s[0:1], 0")
    a("s_load_dwordx8 s[32:39], s[0:1], 64")
    a("v_lshrrev_b32 v1, 6, v0")
    a("v_and_b32 v0, 63, v0")
    a("v_readfirstlane_b32 s3, v1")
    if diag: a(f"v_mov_b32 v{SV}, 0")
    a("v_lshlrev_b32 v1, 4, v0")
    a("s_lshr_b32 s4, s2, 4")
    if diag: a("s_mov_b32 s93, s3"); a("s_mov_b32 s94, 32")
    if rolemix:
        a("s_mul_i32 s67, s4, 3"); a("s_add_u32 s67, s67, s2"); a("s_and_b32 s67, s67, 15"); a("s_lshl_b32 s67, s67, 4"); a("s_add_u32 s67, s67, s4")
    else:
        a("s_mov_b32 s67, s2")
    a("s_cmp_ge_u32 s3, 4"); a("s_cbranch_scc1 L_helper")

    R0 = 36
    ring = [8]
    def slot(ck, i): return R0 + 16 * (ck % ring[0]) + 4 * i
    def issue_chunk(ck, pacer=None):
        for i in range(4):
            if pacer and i % GR == 0: pacer(i)
            s = slot(ck, i)
            a(f"buffer_load_dwordx4 v[{s}:{s+3}], v1, s[8:11], s12 offen offset:{1024*i} {kvpol}")
        a("s_add_u32 s12, s12, 0x4000")
    a("s_add_u32 s5, s2, s4"); a("s_and_b32 s5, s5, 7")
    a("s_and_b32 s6, s2, 8"); a("s_or_b32 s5, s5, s6")
    a("s_lshl_b32 s13, s4, 23"); a("s_lshl_b32 s14, s5, 18"); a("s_add_u32 s13, s13, s14")
    a("s_lshl_b32 s14, s3, 12"); a("s_add_u32 s13, s13, s14")
    a("s_mov_b32 s12, s13")
    a("s_mov_b32 s10, 0x8000000"); a("s_mov_b32 s11, 0x20000")
    a("s_waitcnt lgkmcnt(0)")
    a("s_mov_b32 s8, s18"); a("s_mov_b32 s9, s19")
    stamp("start")
    if bs: a("s_barrier")
    issue_chunk(0)
    a(f"s_add_u32 s14, s14, {L_SC}")
    a("v_lshlrev_b32 v20, 2, v0"); a("v_add_u32 v20, s14, v20")
    a("v_and_b32 v21, 15, v0"); a("v_lshlrev_b32 v21, 4, v21")
    a("v_mov_b32 v22, 0"); a("v_mov_b32 v23, 1")
    stamp("s_issued")
    if not bs: a("s_barrier")
    a(f"s_mov_b32 s15, {modes[0]}")
    a(f"s_cmp_lt_u32 s67, {NWO+NFFN}"); a(f"s_cselect_b32 s15, {modes[2]}, s15")
    a(f"s_cmp_lt_u32 s67, {NWO}"); a(f"s_cselect_b32 s15, {modes[1]}, s15")
    a("s_mov_b32 s46, s15"); a("s_mov_b32 s47, 4"); a("v_mov_b32 v3, 0")
    def hint_read():
        if hint is not None: a(f"ds_read_b32 v2, v3 offset:{L_FL+28}")
    def hint_apply():
        if hint is None: return
        a("v_readfirstlane_b32 s45, v2")
        a("s_lshr_b32 s48, s45, 8"); a("s_and_b32 s45, s45, 3")
        a("s_cmp_lt_u32 s47, s48"); a("s_cselect_b32 s15, s45, s46")
        a("s_add_u32 s47, s47, 1")
    def hint_mark(off):
        if hint is None: return
        sk = L("hm")
        a("s_cmp_lg_u32 s6, 0"); a(f"s_cbranch_scc1 {sk}")
        a("s_mov_b64 exec, 1"); a(f"ds_add_u32 v22, v23 offset:{off}"); a("s_mov_b64 exec, -1")
        a.label(sk)
    def pace(i):
        go = L("go")
        a(f"s_waitcnt vmcnt({DS[2]-GR})")
        if DS[1] != DS[2] or DS[0] != DS[2]:
            a("s_cmp_ge_u32 s15, 2"); a(f"s_cbranch_scc1 {go}")
            a(f"s_waitcnt vmcnt({DS[1]-GR})")
            if DS[0] != DS[1]:
                a("s_cmp_ge_u32 s15, 1"); a(f"s_cbranch_scc1 {go}")
                a(f"s_waitcnt vmcnt({DS[0]-GR})")
            a.label(go)
    assert DS[2] <= 8
    for ck in range(1, F):
        issue_chunk(ck, lambda i: a(f"s_waitcnt vmcnt({DS[1]-GR})"))
    stamp("s_filled")
    lds_wait(22, L_FL + 4, 4, 8, 1)
    a(f"ds_read_b128 v[4:7], v21 offset:{L_Q}")
    a(f"ds_read_b128 v[16:19], v21 offset:{L_Q+256}")
    a("s_waitcnt lgkmcnt(0)")
    stamp("q_ready")
    def switch_point():
        a("s_cmp_eq_u32 s6, 3")
        a("s_cselect_b32 s8, s40, s8"); a("s_cselect_b32 s9, s41, s9")
        a("s_cselect_b32 s12, s42, s12"); a("s_cselect_b32 s10, s43, s10")
    def proc_k(ck, q, off):
        for j in range(4):
            for i in range(4):
                a(f"v_dot2_f32_bf16 v{8+i}, v{slot(ck,i)+j}, v{q+j}, " + ("0" if j == 0 else f"v{8+i}"))
        a("v_add_f32_dpp v12, v8, v8 row_ror:8 row_mask:0xf bank_mask:0x3")
        a("s_nop 0")
        a("v_add_f32_dpp v13, v10, v10 row_ror:8 row_mask:0xf bank_mask:0x3")
        a("v_add_f32_dpp v12, v9, v9 row_ror:8 row_mask:0xf bank_mask:0xc")
        a("v_add_f32_dpp v13, v11, v11 row_ror:8 row_mask:0xf bank_mask:0xc")
        a("v_add_f32_dpp v14, v12, v12 row_half_mirror row_mask:0xf bank_mask:0x5")
        a("v_add_f32_dpp v14, v13, v13 row_half_mirror row_mask:0xf bank_mask:0xa")
        a(f"ds_write_b32 v20, v14 offset:{off}")
    n = F
    since = 9
    burst = 0
    for k in range(16):
        if n - ring[0] < k and n < 18 and (n - k <= 2 or since >= 2 or burst < 2):
            if n == 16: a("s_add_u32 s12, s13, 0x400000")
            issue_chunk(n, pace); n += 1; since = 0; burst += 1
        assert k <= n - 3
        proc_k(k, 4, 256 * k)
        since += 1
        if k % 4 == 3: prog()
    assert n == 18, n
    lds_signal(22, L_FL + 8, 23)
    stamp("ka_done")
    ring[0] = 4
    a("s_mov_b32 s40, s20"); a("s_mov_b32 s41, s21"); a("s_mov_b32 s42, s13"); a("s_mov_b32 s43, 0x8000000")
    a("s_mov_b32 s6, 0")
    a.label("L_kiter")
    hint_read()
    for k in range(4):
        if k == 2: switch_point()
        issue_chunk(k + 2, pace)
        if k == 0 and hint is not None: a("s_waitcnt lgkmcnt(0)"); hint_apply()
        proc_k(k, 16, 0x4000 + 256 * k)
        if k == hk: hint_mark(L_FL + 32)
    prog()
    a("v_add_u32 v20, 0x400, v20")
    a("s_add_u32 s6, s6, 1"); a("s_cmp_lt_u32 s6, 4"); a("s_cbranch_scc1 L_kiter")
    lds_signal(22, L_FL + 12, 23)
    stamp("k_done")
    a("s_lshl_b32 s14, s3, 11"); a(f"s_add_u32 s14, s14, {L_PP}")
    a("v_lshlrev_b32 v20, 3, v0"); a("v_add_u32 v20, s14, v20")
    a("s_lshl_b32 s14, s3, 9"); a(f"s_add_u32 s14, s14, {L_OL}")
    a("v_and_b32 v21, 15, v0"); a("v_lshlrev_b32 v21, 5, v21"); a("v_lshrrev_b32 v8, 4, v0"); a("v_lshl_add_u32 v21, v8, 3, v21")
    a("v_add_u32 v21, s14, v21")
    a("s_add_u32 s42, s13, 0x400000")
    a("s_mov_b32 s7, 0"); a("s_mov_b32 s44, 99")
    a.label("L_vhead")
    lds_wait(22, L_FL + 16, 1, 8, 1)
    stamp("p_wait")
    for j in range(8): a(f"v_mov_b32 v{24+j}, 0")
    a("s_mov_b32 s6, 0")
    a.label("L_viter")
    a("ds_read_b64 v[32:33], v20")
    hint_read()
    a("s_cmp_ge_u32 s6, s44"); a("s_cselect_b32 s15, 2, s15")
    for k in range(4):
        if k == 2: switch_point()
        issue_chunk(k + 2, pace)
        if k == 0:
            a("s_waitcnt lgkmcnt(0)")
            hint_apply()
            if hint is not None: a("s_cmp_ge_u32 s6, s44"); a("s_cselect_b32 s15, 2, s15")
        for i in range(4):
            s = slot(k, i)
            c = ((i & 1) << 3) | ((i >> 1) << 2) | k
            for j in range(4):
                a(f"v_dot2c_f32_bf16_dpp v{24+2*j}, v32, v{s+j} row_newbcast:{c} {FULL}")
                a(f"v_dot2c_f32_bf16_dpp v{25+2*j}, v33, v{s+j} row_newbcast:{c} {FULL}")
        if k == hk: hint_mark(L_FL + 36)
    prog()
    a("v_add_u32 v20, 0x200, v20")
    a("s_add_u32 s6, s6, 1"); a("s_cmp_lt_u32 s6, 4"); a("s_cbranch_scc1 L_viter")
    red_g8(list(range(24, 32)), 34)
    a("ds_write_b64 v21, v[34:35]")
    a("s_cmp_lg_u32 s7, 0"); a("s_cbranch_scc1 L_vend")
    lds_signal(22, L_FL + 24, 23)
    stamp("va_done")
    a("v_add_u32 v20, 0x1800, v20"); a("v_add_u32 v21, 0x800, v21"); a("v_mov_b32 v22, 4")
    a("s_mov_b32 s43, 0"); a("s_mov_b32 s7, 1"); a(f"s_mov_b32 s44, {lastit}")
    a("s_branch L_vhead")
    a.label("L_vend")
    a("s_waitcnt lgkmcnt(0)")
    stamp("v_done")
    a("s_barrier")
    a("s_branch L_fin")

    def ffn_index(d):
        a(f"s_sub_u32 {d}, s67, {NWO}")
        if pairx:
            a(f"s_and_b32 s64, {d}, 7"); a("s_lshl_b32 s64, s64, 1"); a(f"s_bfe_u32 s65, {d}, 0x10003"); a("s_add_u32 s64, s64, s65")
            a(f"s_and_b32 s65, {d}, 0x30"); a("s_add_u32 s64, s64, s65")
            a(f"s_cmp_lt_u32 {d}, 48"); a(f"s_cselect_b32 {d}, s64, {d}")
    W0 = 64
    def load_weights(wpace=wpace, down=True):
        if now: return
        ffn, done = L("ffnw"), L("wdone")
        cnt = [0]
        def ld(idx, off):
            if wpace and cnt[0] >= wpace: a(f"s_waitcnt vmcnt({wpace-1})")
            cnt[0] += 1
            a(f"buffer_load_dwordx4 v[{W0+4*idx}:{W0+4*idx+3}], v2, s[44:47], s50 offen offset:{off} {wpol}")
        a(f"s_cmp_ge_u32 s67, {NWO}"); a(f"s_cbranch_scc1 {ffn}")
        a("s_mov_b32 s44, s24"); a("s_mov_b32 s45, s25"); a(f"s_mov_b32 s46, {4096*1280}"); a("s_mov_b32 s47, 0x20000")
        a("s_and_b32 s50, s67, 15"); a("s_lshl_b32 s50, s50, 3"); a("s_add_u32 s50, s50, s3"); a(f"s_mul_i32 s50, s50, {32*1280}")
        a("s_lshr_b32 s51, s67, 4"); a("s_lshl_b32 s51, s51, 7"); a("s_add_u32 s50, s50, s51")
        a("v_lshrrev_b32 v2, 3, v0"); a(f"v_mul_u32_u24 v2, {4*1280}, v2"); a("v_and_b32 v3, 7, v0"); a("v_lshl_add_u32 v2, v3, 4, v2")
        for t in range(4): ld(t, t * 1280)
        a(f"s_branch {done}")
        a.label(ffn)
        cnt[0] = 0
        a(f"s_cmp_ge_u32 s67, {NWO+NFFN}"); a(f"s_cbranch_scc1 {done}")
        a("s_cmp_lt_u32 s3, 4"); a("s_cselect_b32 s44, s28, s30"); a("s_cselect_b32 s45, s29, s31")
        a(f"s_mov_b32 s46, {640*3456}"); a("s_mov_b32 s47, 0x20000")
        ffn_index("s52")
        a("s_and_b32 s50, s3, 3"); a(f"s_mul_i32 s50, s50, {160*3456}"); a("s_lshl_b32 s51, s52, 6"); a("s_add_u32 s50, s50, s51")
        a("v_lshrrev_b32 v2, 2, v0"); a(f"v_mul_u32_u24 v2, {10*3456}, v2"); a("v_and_b32 v3, 3, v0"); a("v_lshl_add_u32 v2, v3, 4, v2")
        for t in range(10):
            if t and t % 2 == 0: a(f"s_add_u32 s50, s50, {2*3456}")
            ld(t, (t % 2) * 3456)
        if not down:
            a.label(done); return
        a("s_cmp_ge_u32 s3, 5"); a(f"s_cbranch_scc1 {done}")
        a("s_mov_b32 s44, s32"); a("s_mov_b32 s45, s33"); a(f"s_mov_b32 s46, {1728*1280}")
        a(f"s_mul_i32 s50, s52, {32*1280}"); a("s_lshl_b32 s51, s3, 8"); a("s_add_u32 s50, s50, s51")
        a("v_lshrrev_b32 v2, 4, v0"); a(f"v_mul_u32_u24 v2, {8*1280}, v2"); a("v_and_b32 v3, 15, v0"); a("v_lshl_add_u32 v2, v3, 4, v2")
        for t in range(8):
            if t == 4: a(f"s_add_u32 s50, s50, {4*1280}")
            ld(10 + t, (t % 4) * 1280)
        a.label(done)

    a.label("L_helper")
    a("s_sub_u32 s3, s3, 4")
    a("s_and_b32 s6, s2, 15")
    a("v_lshlrev_b32 v6, 2, v0")
    a("v_mov_b32 v14, 0"); a("v_mov_b32 v15, 1")
    a("s_mov_b32 s70, 0x05040100"); a("s_mov_b32 s71, 0x07060302")
    a("s_cmp_ge_u32 s3, 4"); a("s_cbranch_scc1 L_helper2")
    if prio: a(f"s_setprio {prio}")
    a("v_lshrrev_b32 v2, 3, v0")
    a("v_and_b32 v3, 7, v0")
    a("v_mul_u32_u24 v4, 5, v2")
    a("s_lshr_b32 s8, s6, 2"); a("s_lshl_b32 s8, s8, 2"); a("s_add_u32 s8, s8, s3"); a("s_mul_i32 s8, s8, 40")
    a("v_add_u32 v4, s8, v4")
    a("v_lshlrev_b32 v5, 13, v4"); a("v_lshl_add_u32 v5, v3, 4, v5")
    a("v_lshlrev_b32 v4, 1, v4")
    a("s_lshl_b32 s9, s4, 9"); a("s_and_b32 s10, s6, 3"); a("s_lshl_b32 s10, s10, 7"); a("s_add_u32 s9, s9, s10")
    a(f"s_mov_b32 s46, {640*8192}"); a("s_mov_b32 s47, 0x20000")
    a("s_waitcnt lgkmcnt(0)")
    stamp("start")
    a(f"s_add_u32 s74, s38, {WS_EP}"); a("s_addc_u32 s75, s39, 0")
    a("s_load_dword s15, s[74:75], 0")
    a("global_load_dwordx4 v[16:19], v1, s[16:17]"); a("global_load_dword v20, v6, s[16:17] offset:1024")
    for t in range(5): a(f"global_load_ushort v{21+t}, v4, s[16:17] offset:{2*t}")
    a("s_mov_b32 s44, s22"); a("s_mov_b32 s45, s23")
    for t in range(5):
        a(f"buffer_load_dwordx4 v[{64+4*t}:{64+4*t+3}], v5, s[44:47], s9 offen {wpol}")
        if t < 4: a("s_add_u32 s9, s9, 0x2000")
    a("s_barrier")
    a("v_lshlrev_b32 v12, 2, v2"); a("v_lshl_add_u32 v12, v3, 5, v12")
    a("s_lshl_b32 s12, s3, 8"); a("v_add_u32 v12, s12, v12")
    a("s_mov_b32 s62, 0xff00ff00"); a("s_mov_b32 s63, 0xff00ff00")
    stamp("h_issued")
    a("s_waitcnt vmcnt(5)")
    stamp("h_x")
    for i in range(5):
        a(f"v_and_b32 v{30+2*i+1}, 0xffff0000, v{16+i}"); a(f"v_lshlrev_b32 v{30+2*i}, 16, v{16+i}")
    ln_stats(list(range(30, 40)), 26, 27, 28, 29)
    for t in range(5):
        a(f"v_lshlrev_b32 v{21+t}, 16, v{21+t}"); a(f"v_sub_f32 v{21+t}, v{21+t}, v26"); rbf(21 + t, 21 + t)
        a(f"v_mul_f32 v{21+t}, v{21+t}, v27")
        a(f"v_cvt_pk_bf16_f32 v{30+t}, v{21+t}, 0"); a(f"v_cvt_pk_bf16_f32 v{35+t}, 0, v{21+t}")
    for j in range(8): a(f"v_mov_b32 v{40+j}, 0")
    stamp("h_ln")
    for t in range(5):
        a(f"s_waitcnt vmcnt({4-t})")
        for j in range(4):
            a(f"v_dot2c_f32_bf16 v{40+2*j}, v{30+t}, v{64+4*t+j}"); a(f"v_dot2c_f32_bf16 v{41+2*j}, v{35+t}, v{64+4*t+j}")
    red_g8(list(range(40, 48)), 48)
    a(f"v_add_f32_dpp v48, v48, v48 row_ror:8 {FULL}"); a(f"v_add_f32_dpp v49, v49, v49 row_ror:8 {FULL}")
    a("v_cndmask_b32 v48, v48, v49, s[62:63]")
    a(f"ds_write_b32 v12, v48 offset:{L_QS}")
    a("s_waitcnt lgkmcnt(0)")
    a("s_add_u32 s15, s15, 1")
    a("s_mov_b64 exec, 1"); a(f"ds_add_rtn_u32 v13, v14, v15 offset:{L_FL}"); a("s_mov_b64 exec, -1")
    a("v_lshrrev_b32 v10, 5, v0"); a(f"v_mul_u32_u24 v12, {8*MB}, v10"); a("v_and_b32 v11, 31, v0"); a("v_lshl_add_u32 v12, v11, 4, v12")
    a("s_lshl_b32 s12, s4, 4"); a("s_add_u32 s12, s12, s3"); a(f"s_mul_i32 s12, s12, {MB}"); a("v_add_u32 v12, s12, v12")
    a(f"v_add_u32 v9, {4*MB}, v12")
    a("s_waitcnt lgkmcnt(0)")
    a("v_readfirstlane_b32 s12, v13")
    stamp("h_dots")
    a("s_cmp_lg_u32 s12, 3"); a("s_cbranch_scc1 L_qnopub")
    a(f"v_add_u32 v16, {L_QS}, v6")
    a("ds_read2st64_b32 v[18:19], v16 offset0:0 offset1:1"); a("ds_read2st64_b32 v[20:21], v16 offset0:2 offset1:3")
    a(f"s_mul_i32 s12, s2, {MB}"); a("v_lshlrev_b32 v17, 3, v0"); a("v_add_u32 v17, s12, v17")
    a("s_waitcnt lgkmcnt(0)")
    a("v_add_f32 v18, v18, v19"); a("v_add_f32 v20, v20, v21"); a("v_add_f32 v18, v18, v20"); a("v_mov_b32 v19, s15")
    a("global_store_dwordx2 v17, v[18:19], s[38:39] sc1")
    stamp("qp_pub")
    a.label("L_qnopub")
    a(f"s_mov_b32 s60, {SPIN}")
    a.label("L_qpoll")
    a("global_load_dwordx4 v[24:27], v12, s[38:39] sc1"); a("global_load_dwordx4 v[28:31], v9, s[38:39] sc1")
    a("s_waitcnt vmcnt(0)")
    for r in (25, 27, 29, 31): a(f"v_xor_b32 v{r}, s15, v{r}")
    a("v_or3_b32 v25, v25, v27, v29"); a("v_or_b32 v25, v25, v31")
    a("v_cmp_ne_u32 vcc, 0, v25")
    a("s_cbranch_vccz L_qpolled")
    if sleep: a(f"s_sleep {sleep}")
    a("s_sub_u32 s60, s60, 1"); a("s_cbranch_scc0 L_qpoll")
    a.label("L_qpolled")
    stamp("q_got")
    a("v_add_f32 v24, v24, v28"); a("v_add_f32 v26, v26, v30")
    a("v_permlane32_swap_b32 v24, v26")
    a("v_add_f32 v24, v24, v26")
    a("v_cvt_pk_bf16_f32 v24, v24, v24")
    a("v_lshl_add_u32 v12, v11, 1, v10"); a("v_lshlrev_b32 v12, 1, v12")
    a("s_lshl_b32 s12, s3, 7"); a("v_add_u32 v12, s12, v12")
    a(f"ds_write_b16 v12, v24 offset:{L_Q}")
    lds_signal(14, L_FL + 4, 15)
    a(f"s_setprio {hprio}")
    a("s_branch L_weights")

    a.label("L_helper2")
    a(f"s_setprio {hprio}")
    a("s_cmp_lg_u32 s3, 4"); a("s_cbranch_scc1 L_noinit")
    a(f"ds_write_b32 v6, v14 offset:{L_FL}")
    a.label("L_noinit")
    a("s_waitcnt lgkmcnt(0)")
    stamp("start")
    a(f"s_add_u32 s74, s38, {WS_EP}"); a("s_addc_u32 s75, s39, 0")
    a("s_load_dword s15, s[74:75], 0")
    a("s_cmp_lg_u32 s3, 6"); a("s_cbranch_scc1 L_clrdone")
    if noclear: a("s_branch L_clrdone")
    for r in range(8, 12): a(f"v_mov_b32 v{r}, -1")
    a(f"s_mul_i32 s11, s2, {MB}"); a("v_add_u32 v7, s11, v1")
    a(f"global_store_dwordx4 v7, v[8:11], s[38:39] offset:{MB_O} sc1")
    a(f"s_cmp_ge_u32 s67, {NWO}"); a("s_cbranch_scc1 L_clrffn")
    a("s_and_b32 s12, s67, 15"); a("s_mul_i32 s12, s12, 2560"); a("s_lshr_b32 s13, s67, 4"); a("s_lshl_b32 s13, s13, 8"); a("s_add_u32 s12, s12, s13")
    a(f"s_add_u32 s12, s12, {WS_YP}"); a("v_add_u32 v12, s12, v6")
    a("global_store_dword v12, v8, s[38:39] sc1")
    a("s_branch L_clrdone")
    a.label("L_clrffn")
    a(f"s_cmp_ge_u32 s67, {NWO+NFFN}"); a("s_cbranch_scc1 L_clrdone")
    ffn_index("s12"); a("s_mul_i32 s12, s12, 2560"); a(f"s_add_u32 s12, s12, {WS_FP}")
    a("v_add_u32 v12, s12, v1")
    a("global_store_dwordx4 v12, v[8:11], s[38:39] sc1"); a("global_store_dwordx4 v12, v[8:11], s[38:39] offset:1024 sc1")
    a("s_mov_b32 exec_hi, 0")
    a("global_store_dwordx4 v12, v[8:11], s[38:39] offset:2048 sc1")
    a("s_mov_b64 exec, -1")
    a.label("L_clrdone")
    a("s_barrier")
    load_weights(epace)
    if tlb:
        a("s_cmp_lg_u32 s3, 5"); a("s_cbranch_scc1 L_notlb")
        a("s_add_u32 s12, s2, s4"); a("s_and_b32 s12, s12, 7"); a("s_and_b32 s13, s2, 8"); a("s_or_b32 s12, s12, s13")
        a("s_lshl_b32 s13, s4, 23"); a("s_lshl_b32 s12, s12, 18"); a("s_add_u32 s12, s12, s13")
        a("v_mov_b32 v16, s12"); a("v_add_u32 v17, 0x400000, v16")
        a("s_mov_b64 exec, 1")
        a("global_load_dword v18, v17, s[18:19] nt"); a("global_load_dword v19, v16, s[20:21] nt"); a("global_load_dword v20, v17, s[20:21] nt")
        a("s_mov_b64 exec, -1")
        a.label("L_notlb")
    a("s_waitcnt lgkmcnt(0)")
    a("s_add_u32 s15, s15, 1")
    a("s_cmp_lt_u32 s3, 6"); a("s_cbranch_scc1 L_weights_done")
    a("s_sub_u32 s7, s3, 6")
    a("s_lshl_b32 s12, s7, 2"); a("v_mov_b32 v13, s12")
    a("v_and_b32 v20, 3, v0"); a("v_lshlrev_b32 v20, 8, v20"); a("v_and_b32 v21, 60, v0"); a("v_lshl_add_u32 v20, v21, 2, v20")
    a("s_lshl_b32 s12, s7, 14"); a(f"s_add_u32 s12, s12, {L_SC}"); a("v_add_u32 v20, s12, v20")
    a("s_lshl_b32 s12, s7, 13"); a(f"s_add_u32 s12, s12, {L_PP}"); a("v_lshlrev_b32 v21, 3, v0"); a("v_add_u32 v21, s12, v21")
    a(f"s_mul_i32 s12, s4, {16*MB}"); a("s_lshl_b32 s13, s7, 7"); a("s_add_u32 s12, s12, s13")
    a("v_and_b32 v22, 15, v0"); a(f"v_mul_u32_u24 v22, {MB}, v22"); a("v_add_u32 v22, s12, v22")
    a(f"s_mul_i32 s13, s6, {MB}"); a("s_add_u32 s12, s12, s13"); a("v_mov_b32 v23, s12")
    a(f"s_mov_b32 s14, {LOG2E:#x}")
    lds_wait(13, L_FL + 8, 4, 8, 4)
    S = list(range(32, 48))
    for i in range(16):
        if i % 8 == 0:
            for u in range(8): a(f"ds_read_b128 v[{104+4*u}:{107+4*u}], v20 offset:{1024*(i+u)}")
        b = 104 + 4 * (i % 8)
        a(f"s_waitcnt lgkmcnt({7-i%8})")
        a(f"v_add_f32 v{b}, v{b}, v{b+1}"); a(f"v_add_f32 v{b+2}, v{b+2}, v{b+3}"); a(f"v_add_f32 v{S[i]}, v{b}, v{b+2}")
        rbf(S[i], S[i]); a(f"v_mul_f32 v{S[i]}, {SCALE:#x}, v{S[i]}"); rbf(S[i], S[i])
    a(f"v_max_f32 v28, v{S[0]}, v{S[1]}")
    for i in range(2, 16, 2): a(f"v_max3_f32 v28, v28, v{S[i]}, v{S[i+1]}")
    allred("v_max_f32", 28, 30)
    for i in range(16):
        a(f"v_sub_f32 v{104+i}, v{S[i]}, v28"); a(f"v_mul_f32 v{104+i}, s14, v{104+i}"); a(f"v_exp_f32 v{104+i}, v{104+i}")
    for st in (8, 4, 2):
        for i in range(st): a(f"v_add_f32 v{104+i}, v{104+i}, v{104+i+st}")
    a("v_add_f32 v29, v104, v105")
    allred("v_add_f32", 29, 30)
    a("v_mov_b32 v24, v28"); a("v_mov_b32 v25, s15"); a("v_mov_b32 v26, v29"); a("v_mov_b32 v27, s15")
    a("s_waitcnt vmcnt(0)")
    a("s_mov_b64 exec, 1")
    a(f"global_store_dwordx4 v23, v[24:27], s[38:39] offset:{MB_ST} sc1")
    a("s_mov_b64 exec, -1")
    stamp("st_pub")
    a(f"s_mov_b32 s60, {SPIN}")
    a.label("L_stpoll")
    a(f"global_load_dwordx4 v[16:19], v22, s[38:39] offset:{MB_ST} sc1")
    a("s_waitcnt vmcnt(0)")
    a("v_xor_b32 v17, s15, v17"); a("v_xor_b32 v19, s15, v19"); a("v_or_b32 v17, v17, v19")
    a("v_cmp_ne_u32 vcc, 0, v17")
    a("s_cbranch_vccz L_stpolled")
    a(f"s_sleep {ssleep}")
    a("s_sub_u32 s60, s60, 1"); a("s_cbranch_scc0 L_stpoll")
    a.label("L_stpolled")
    a("v_mov_b32 v24, v16"); a("v_mov_b32 v25, v18")
    a("v_mov_b32 v28, v24")
    rowred("v_max_f32", 28)
    a("v_sub_f32 v24, v24, v28"); a("v_mul_f32 v24, s14, v24"); a("v_exp_f32 v24, v24"); a("v_mul_f32 v29, v24, v25")
    rowred("v_add_f32", 29)
    a("v_rcp_f32 v29, v29")
    for i in range(16):
        a(f"v_sub_f32 v{S[i]}, v{S[i]}, v28"); a(f"v_mul_f32 v{S[i]}, s14, v{S[i]}"); a(f"v_exp_f32 v{S[i]}, v{S[i]}")
    for i in range(16):
        a(f"v_mul_f32 v{S[i]}, v{S[i]}, v29")
        a(f"v_cvt_pk_bf16_f32 v{104+2*i}, v{S[i]}, 0"); a(f"v_cvt_pk_bf16_f32 v{105+2*i}, 0, v{S[i]}")
        a(f"ds_write_b64 v21, v[{104+2*i}:{105+2*i}] offset:{512*i}")
    lds_signal(13, L_FL + 16, 15)
    stamp("p_ready")
    a("s_cmp_lg_u32 s3, 7"); a("s_cbranch_scc1 L_weights_done")
    a(f"s_cmp_ge_u32 s67, {NWO+NFFN}"); a("s_cbranch_scc1 L_weights_done")
    a(f"s_cmp_lt_u32 s67, {NWO}"); a("s_cbranch_scc1 L_weights_done")
    a(f"v_mul_u32_u24 v16, {MB}, v0")
    for i in range(1, 4): a(f"v_add_u32 v{16+i}, {64*MB*i:#x}, v16")
    a(f"s_mov_b32 s60, {SPIN}")
    a.label("L_marks")
    for i in range(4):
        a(f"global_load_dword v{20+i}, v{16+i}, s[38:39] offset:{MB_ST+4} sc1")
        a("s_waitcnt vmcnt(0)")
    for i in range(4): a(f"v_xor_b32 v{20+i}, s15, v{20+i}")
    a("v_or3_b32 v20, v20, v21, v22"); a("v_or_b32 v20, v20, v23")
    a("v_cmp_ne_u32 vcc, 0, v20")
    a("s_cbranch_vccz L_weights_done")
    a("s_sleep 32")
    a("s_sub_u32 s60, s60, 1"); a("s_cbranch_scc0 L_marks")
    a("s_branch L_weights_done")

    a.label("L_weights")
    load_weights()
    a.label("L_weights_done")
    a(f"s_add_u32 s76, s38, {WS_YP}"); a("s_addc_u32 s77, s39, 0")
    a(f"s_add_u32 s78, s38, {WS_FP}"); a("s_addc_u32 s79, s39, 0")
    def osum(head, d):
        for w in range(4): a(f"ds_read_b64 v[{142+2*w}:{143+2*w}], v138 offset:{L_OL+2048*head+512*w}")
        a("s_waitcnt lgkmcnt(0)")
        a("v_pk_add_f32 v[142:143], v[142:143], v[144:145]"); a("v_pk_add_f32 v[146:147], v[146:147], v[148:149]")
        a(f"v_pk_add_f32 v[{d}:{d+1}], v[142:143], v[146:147]")
        guard([d, d + 1])
    def opub():
        with live(): a(f"global_store_dwordx2 v139, v[140:141], s[38:39] offset:{MB_O} sc1")
        osum(1, 142)
        with live(): a(f"global_store_dwordx2 v139, v[142:143], s[38:39] offset:{MB_O+512} sc1")
    a("v_lshlrev_b32 v138, 3, v0")
    a(f"s_mul_i32 s11, s2, {MB}"); a("v_add_u32 v139, s11, v138")
    if hint is not None:
        a("s_cmp_lg_u32 s3, 5"); a("s_cbranch_scc1 L_nohint")
        a("v_mul_u32_u24 v16, 37, v0"); a("v_add_u32 v16, s2, v16"); a("v_and_b32 v16, 255, v16"); a(f"v_mul_u32_u24 v16, {MB}, v16")
        for h in range(2):
            if hint[h] is None: continue
            nb0, kb, nt0, kt = hint[h]
            lds_wait(14, L_FL + 32 + 4 * h, 4, 8, 4)
            if hs == 32: a("s_mov_b32 exec_hi, 0")
            a(f"global_load_dword v17, v16, s[38:39] offset:{MB_ST+4+128*h} sc1")
            a("s_waitcnt vmcnt(0)")
            a("v_cmp_eq_u32 vcc, s15, v17")
            if hs == 32: a("s_mov_b64 exec, -1")
            a("s_bcnt1_i32_b64 s12, vcc")
            if hs == 32: a("s_lshl_b32 s12, s12, 1")
            if diag: a(f"v_writelane_b32 v{SV}, s12, {60+h}")
            it0 = (6 if hk >= 2 else 5) + 4 * h
            a("s_mov_b32 s13, 0")
            a(f"s_sub_i32 s61, s12, {nb0}"); a(f"s_mul_i32 s61, s61, {kb}"); a("s_ashr_i32 s61, s61, 4")
            a(f"s_add_u32 s62, s61, {it0}"); a("s_lshl_b32 s62, s62, 8"); a("s_or_b32 s62, s62, 2")
            a("s_cmp_gt_i32 s61, 0"); a("s_cselect_b32 s13, s62, s13")
            a(f"s_sub_i32 s61, {nt0}, s12"); a(f"s_mul_i32 s61, s61, {kt}"); a("s_ashr_i32 s61, s61, 4")
            a(f"s_add_u32 s62, s61, {it0}"); a("s_lshl_b32 s62, s62, 8")
            a("s_cmp_gt_i32 s61, 0"); a("s_cselect_b32 s13, s62, s13")
            a(f"s_sub_u32 s61, s67, {NWO}"); a(f"s_cmp_lt_u32 s61, {NFFN}"); a("s_cselect_b32 s13, 0, s13")
            a("v_mov_b32 v17, s13")
            a(f"ds_write_b32 v14, v17 offset:{L_FL+28}")
        a.label("L_nohint")
    a("s_cmp_lg_u32 s3, 7"); a("s_cbranch_scc1 L_noA")
    lds_wait(14, L_FL + 24, 4, 8, 8)
    osum(0, 140)
    a("s_setprio 3")
    a.label("L_noA")
    a("s_waitcnt vmcnt(0)")
    stamp("w_done")
    def b5():
        sk = L("nopubB")
        with live(): a("s_barrier")
        a("s_cmp_lg_u32 s3, 7"); a(f"s_cbranch_scc1 {sk}")
        opub()
        with live(): a(f"s_setprio {hprio}")
        a.label(sk)
        stamp("tail")
    ffn_index("s52")
    if warm:
        a("s_mov_b64 exec, 0")
        a(f"s_cmp_lt_u32 s67, {NWO}"); a("s_cbranch_scc1 L_wo_go")
        a(f"s_cmp_lt_u32 s67, {NWO+NFFN}"); a("s_cbranch_scc1 L_ffn_go")
        a("s_branch L_none_go")
        a.label("L_warmed")
        a("s_mov_b64 exec, -1")
    a(f"s_cmp_lt_u32 s67, {NWO}"); a("s_cbranch_scc1 L_wo")
    a(f"s_cmp_lt_u32 s67, {NWO+NFFN}"); a("s_cbranch_scc1 L_ffn")
    a.label("L_none_go")
    b5()
    a("s_branch L_tend")

    a.label("L_wo")
    a("s_and_b32 s50, s67, 15"); a(f"s_mul_i32 s12, s50, {16*MB}"); a("s_lshl_b32 s13, s3, 7"); a("s_add_u32 s12, s12, s13")
    a("v_and_b32 v3, 7, v0"); a(f"v_mul_u32_u24 v2, {2*MB}, v3"); a("v_lshrrev_b32 v4, 3, v0"); a("v_lshl_add_u32 v2, v4, 4, v2"); a("v_add_u32 v2, s12, v2")
    a(f"v_add_u32 v8, {MB}, v2")
    PW = pair_perm([[W0 + 4 * t + j for j in range(4)] for t in range(4)], 136)
    a("v_lshrrev_b32 v5, 4, v0"); a("v_lshlrev_b32 v5, 3, v5"); a("v_lshl_add_u32 v5, v3, 5, v5")
    a("s_lshl_b32 s13, s3, 8"); a("v_add_u32 v5, s13, v5")
    a("s_mul_i32 s12, s50, 2560"); a("s_lshr_b32 s13, s67, 4"); a("s_lshl_b32 s13, s13, 8"); a("s_add_u32 s12, s12, s13"); a("v_add_u32 v7, s12, v6")
    a(f"v_add_u32 v6, {L_YL}, v6")
    for j in range(8): a(f"v_mov_b32 v{40+j}, 0")
    a.label("L_wo_go")
    b5()
    def io(v, d): return (lambda: a(f"global_load_dwordx4 v[{d}:{d+3}], v{v}, s[38:39] offset:{MB_O} sc1"), range(d, d + 4))
    def so():
        for j in range(4): a(f"v_add_f32 v{16+j}, v{24+j}, v{28+j}")
    with live(): spoll([io(2, 24), io(8, 28)], so, range(16, 20), 14, first=pfirst)
    stamp("e1")
    for pat in ("quad_perm:[1,0,3,2]", "quad_perm:[2,3,0,1]", "row_half_mirror"):
        for j in range(4): a(f"v_add_f32_dpp v{16+j}, v{16+j}, v{16+j} {pat} {FULL}")
    for i in range(2): a(f"v_cvt_pk_bf16_f32 v{32+i}, v{16+2*i}, v{17+2*i}")
    for i in range(2):
        for j in range(8): a(f"v_dot2c_f32_bf16 v{40+j}, v{32+i}, v{PW[i][j]}")
    red_g8(list(range(40, 48)), 48)
    a(f"v_add_f32_dpp v48, v48, v48 row_ror:8 {FULL}"); a(f"v_add_f32_dpp v49, v49, v49 row_ror:8 {FULL}")
    a(f"ds_write_b64 v5, v[48:49] offset:{L_YL}")
    a("s_waitcnt lgkmcnt(0)")
    with live(): a("s_barrier")
    a("s_cmp_lg_u32 s3, 0"); a("s_cbranch_scc1 L_tend")
    for w in range(4): a(f"ds_read2st64_b32 v[{16+2*w}:{17+2*w}], v6 offset0:{2*w} offset1:{2*w+1}")
    a("s_waitcnt lgkmcnt(0)")
    a("v_pk_add_f32 v[16:17], v[16:17], v[18:19]"); a("v_pk_add_f32 v[20:21], v[20:21], v[22:23]"); a("v_pk_add_f32 v[16:17], v[16:17], v[20:21]")
    a("v_add_f32 v16, v16, v17")
    guard([16])
    with live(): a("global_store_dword v7, v16, s[76:77] sc1")
    stamp("y_pub")
    a("s_branch L_tend")

    a.label("L_ffn")
    a("v_lshrrev_b32 v2, 4, v0"); a("v_and_b32 v3, 15, v0")
    a("s_min_u32 s12, s3, 4"); a("s_lshl_b32 s12, s12, 8")
    a("v_lshrrev_b32 v5, 1, v2"); a("v_lshlrev_b32 v5, 7, v5"); a("v_lshl_add_u32 v5, v3, 3, v5")
    a("v_and_b32 v4, 1, v2"); a("v_lshl_add_u32 v5, v4, 2, v5"); a("v_add_u32 v5, s12, v5")
    a("global_load_dword v11, v5, s[16:17]")
    PG = pair_perm([[W0 + 4 * t + j for j in range(4)] for t in range(10)], 136)
    PD = pair_perm([[W0 + 40 + 4 * t + j for j in range(4)] for t in range(8)], 137)
    a("s_lshl_b32 s12, s3, 9")
    a("v_mul_u32_u24 v4, 10240, v2"); a("v_lshl_add_u32 v4, v3, 4, v4"); a("v_add_u32 v4, s12, v4")
    a("v_add_u32 v62, 5120, v4")
    a("v_lshlrev_b32 v5, 1, v5")
    a("s_lshl_b32 s13, s3, 3"); a("v_mov_b32 v6, s13"); a("v_mov_b32 v63, 0")
    a("v_lshrrev_b32 v7, 2, v0"); a("v_mul_u32_u24 v7, 40, v7"); a("s_and_b32 s13, s3, 3"); a("s_mul_i32 s13, s13, 640"); a("v_add_u32 v7, s13, v7")
    a("v_and_b32 v8, 3, v0"); a("v_lshlrev_b32 v8, 5, v8"); a("v_lshl_add_u32 v8, v2, 3, v8"); a("s_lshl_b32 s13, s3, 7"); a("v_add_u32 v8, s13, v8")
    a("v_and_b32 v9, 7, v0"); a("v_lshl_add_u32 v9, v2, 3, v9"); a("v_lshlrev_b32 v9, 2, v9"); a(f"v_add_u32 v9, {L_GU}, v9")
    a("s_mul_i32 s13, s52, 2560"); a("s_add_u32 s13, s13, s12"); a("v_lshlrev_b32 v10, 3, v0"); a("v_add_u32 v10, s13, v10")
    for j in range(8): a(f"v_mov_b32 v{52+j}, 0")
    a(f"s_mov_b32 s14, {LOG2E:#x}")
    a("s_waitcnt vmcnt(0)")
    a("v_and_b32 v13, 0xffff0000, v11"); a("v_lshlrev_b32 v12, 16, v11")
    a.label("L_ffn_go")
    b5()
    a("s_cmp_ge_u32 s3, 5"); a("s_cbranch_scc1 L_h_wait")
    YI = [140, 148, 156, 24]
    HV = 40
    def iy(u):
        v, o = (4, 62)[u // 2], 2560 * (u % 2)
        return (lambda: (a(f"global_load_dwordx4 v[{YI[u]}:{YI[u]+3}], v{v}, s[76:77] offset:{o} sc1"),
                         a(f"global_load_dwordx4 v[{YI[u]+4}:{YI[u]+7}], v{v}, s[76:77] offset:{o+256} sc1")), range(YI[u], YI[u] + 8))
    def sy():
        for j in range(0, 8, 2):
            a(f"v_pk_add_f32 v[{16+j}:{17+j}], v[{YI[0]+j}:{YI[0]+j+1}], v[{YI[1]+j}:{YI[1]+j+1}]")
            a(f"v_pk_add_f32 v[{32+j}:{33+j}], v[{YI[2]+j}:{YI[2]+j+1}], v[{YI[3]+j}:{YI[3]+j+1}]")
        for j in range(0, 8, 2): a(f"v_pk_add_f32 v[{16+j}:{17+j}], v[{16+j}:{17+j}], v[{32+j}:{33+j}]")
    with live(): spoll([iy(u) for u in range(4)], sy, range(16, 24), 14, first=pfirst)
    stamp("e2")
    red_g8(list(range(16, 24)), 32)
    a("v_cvt_pk_bf16_f32 v34, v32, v33"); a("v_lshlrev_b32 v32, 16, v34"); a("v_and_b32 v33, 0xffff0000, v34")
    a("v_pk_add_f32 v[32:33], v[32:33], v[12:13]")
    a("v_cvt_pk_bf16_f32 v34, v32, v33"); a("v_lshlrev_b32 v32, 16, v34"); a("v_and_b32 v33, 0xffff0000, v34")
    a(f"ds_write_b64 v5, v[32:33] offset:{L_H}")
    a("v_readfirstlane_b32 s12, v32")
    a("v_subrev_f32 v34, s12, v32"); a("v_subrev_f32 v35, s12, v33")
    a("v_add_f32 v36, v34, v35"); a("v_mul_f32 v37, v34, v34"); a("v_fmac_f32 v37, v35, v35")
    for r in (8, 4, 2, 1):
        a(f"v_add_f32_dpp v36, v36, v36 row_ror:{r} {FULL}"); a(f"v_add_f32_dpp v37, v37, v37 row_ror:{r} {FULL}")
    a("v_permlane16_swap_b32 v36, v37")
    a("v_add_f32 v36, v36, v37")
    a("v_mov_b32 v37, v36"); a("v_permlane32_swap_b32 v36, v37"); a("v_add_f32 v36, v36, v37")
    a("v_mov_b32 v37, v36"); a("v_permlane16_swap_b32 v36, v37")
    a("v_mul_f32 v38, 0x3c000000, v36")
    a("v_fma_f32 v39, -v38, v36, v37"); a("v_add_f32 v38, s12, v38")
    a(f"ds_write_b64 v6, v[38:39] offset:{L_ST}")
    a("s_waitcnt lgkmcnt(0)")
    a.label("L_h_wait")
    with live(): a("s_barrier")
    a(f"ds_read_b128 v[32:35], v63 offset:{L_ST}"); a(f"ds_read_b128 v[36:39], v63 offset:{L_ST+16}"); a(f"ds_read_b64 v[22:23], v63 offset:{L_ST+32}")
    for i in range(5): a(f"ds_read_b64 v[{HV+2*i}:{HV+1+2*i}], v7 offset:{L_H+8*i}")
    a("s_waitcnt lgkmcnt(5)")
    a("v_pk_add_f32 v[50:51], v[32:33], v[34:35]"); a("v_pk_add_f32 v[60:61], v[36:37], v[38:39]")
    a("v_pk_add_f32 v[50:51], v[50:51], v[22:23]"); a("v_pk_add_f32 v[50:51], v[50:51], v[60:61]")
    a("v_mul_f32 v50, 0x3e4ccccd, v50")
    for i, r in enumerate((32, 34, 36, 38, 22)): a(f"v_sub_f32 v{r}, v{r}, v50")
    a("v_mul_f32 v60, v32, v32")
    for r in (34, 36, 38, 22): a(f"v_fmac_f32 v60, v{r}, v{r}")
    a("v_fmac_f32 v51, 0x43000000, v60")
    a(f"v_mul_f32 v51, {INV640:#x}, v51")
    a("v_cvt_pk_bf16_f32 v60, v50, v51"); a("v_lshlrev_b32 v50, 16, v60"); a("v_and_b32 v51, 0xffff0000, v60")
    a(f"v_add_f32 v51, {EPS:#x}, v51"); rbf(51, 51)
    a("v_sqrt_f32 v51, v51"); rbf(51, 51)
    a("v_rcp_f32 v51, v51")
    a("s_waitcnt lgkmcnt(0)")
    for i in range(5): a(f"v_pk_add_f32 v[{HV+2*i}:{HV+1+2*i}], v[{HV+2*i}:{HV+1+2*i}], v[50:51] op_sel_hi:[1,0] neg_lo:[0,1] neg_hi:[0,1]")
    for i in range(5): a(f"v_cvt_pk_bf16_f32 v{16+i}, v{HV+2*i}, v{HV+1+2*i}")
    for i in range(5): a(f"v_lshlrev_b32 v{HV+2*i}, 16, v{16+i}"); a(f"v_and_b32 v{HV+1+2*i}, 0xffff0000, v{16+i}")
    for i in range(5): a(f"v_pk_mul_f32 v[{HV+2*i}:{HV+1+2*i}], v[{HV+2*i}:{HV+1+2*i}], v[50:51] op_sel:[0,1] op_sel_hi:[1,1]")
    for i in range(5): a(f"v_cvt_pk_bf16_f32 v{16+i}, v{HV+2*i}, v{HV+1+2*i}")
    for i in range(5):
        for j in range(8):
            if i == 0: a(f"v_dot2_f32_bf16 v{40+j}, v{16+i}, v{PG[i][j]}, 0")
            else: a(f"v_dot2c_f32_bf16 v{40+j}, v{16+i}, v{PG[i][j]}")
    red_g8(list(range(40, 48)), 48)
    for r in (8, 4):
        a(f"v_add_f32_dpp v48, v48, v48 row_ror:{r} {FULL}"); a(f"v_add_f32_dpp v49, v49, v49 row_ror:{r} {FULL}")
    a(f"ds_write_b64 v8, v[48:49] offset:{L_GU}")
    a("s_waitcnt lgkmcnt(0)")
    with live(): a("s_barrier")
    stamp("gu")
    a("s_cmp_ge_u32 s3, 5"); a("s_cbranch_scc1 L_final")
    for w in range(4): a(f"ds_read2_b32 v[{16+2*w}:{17+2*w}], v9 offset0:{64*w} offset1:{64*w+32}")
    a("s_waitcnt lgkmcnt(0)")
    a("v_add_f32 v16, v16, v17"); a("v_add_f32 v18, v18, v19"); a("v_add_f32 v20, v20, v21"); a("v_add_f32 v22, v22, v23")
    a("v_add_f32 v16, v16, v18"); a("v_add_f32 v20, v20, v22")
    rbf(16, 16); rbf(20, 20)
    a("v_mul_f32 v17, s14, v16"); a("v_exp_f32 v17, -v17"); a("v_add_f32 v17, 1.0, v17"); a("v_rcp_f32 v17, v17")
    a("v_mul_f32 v16, v16, v17"); rbf(16, 16)
    a("v_mul_f32 v16, v16, v20")
    a(f"v_mov_b32_dpp v17, v16 quad_perm:[1,0,3,2] {FULL}")
    a("v_cvt_pk_bf16_f32 v16, v16, v17")
    for i in range(4):
        for j in range(8): a(f"v_dot2c_f32_bf16_dpp v{52+j}, v16, v{PD[i][j]} row_newbcast:{2*i} {FULL}")
    red_g8(list(range(52, 60)), 60)
    guard([60, 61])
    with live(): a("global_store_dwordx2 v10, v[60:61], s[78:79] sc1")
    stamp("f_pub")
    a("s_branch L_tend")
    a.label("L_final")
    a("s_cmp_lg_u32 s3, 5"); a("s_cbranch_scc1 L_tend")
    a(f"s_cmp_ge_u32 s52, {NFIN}"); a("s_cbranch_scc1 L_tend")
    a("s_mov_b32 s44, s78"); a("s_mov_b32 s45, s79"); a(f"s_mov_b32 s46, {NFFN*2560}"); a("s_mov_b32 s47, 0x20000")
    a("v_lshrrev_b32 v4, 3, v0"); a("v_mul_u32_u24 v4, 2560, v4"); a("v_and_b32 v5, 7, v0"); a("v_lshl_add_u32 v4, v5, 4, v4")
    a("s_lshl_b32 s12, s52, 7"); a("v_add_u32 v4, s12, v4")
    a("v_lshl_add_u32 v5, v5, 2, v2"); a("v_and_b32 v6, 1, v5"); a("v_lshrrev_b32 v5, 1, v5"); a("v_lshl_add_u32 v5, v5, 3, v6")
    a("s_lshr_b32 s12, s52, 2"); a("s_lshl_b32 s12, s12, 7"); a("s_and_b32 s13, s52, 3"); a("s_lshl_b32 s13, s13, 1"); a("s_add_u32 s12, s12, s13")
    a("v_add_u32 v5, s12, v5")
    a("v_lshlrev_b32 v6, 2, v5"); a("v_lshlrev_b32 v5, 1, v5")
    a(f"ds_read_b32 v7, v6 offset:{L_H}")
    for i in range(1, 7): a(f"s_mov_b32 s{80+i}, {8*2560*i}")
    def i3(i):
        return (lambda: a(f"buffer_load_dwordx4 v[{104+4*i}:{107+4*i}], v4, s[44:47], " + ("0" if i == 0 else f"s{80+i}") + " offen sc1"), range(104 + 4 * i, 108 + 4 * i))
    def s3():
        for j in (0, 2):
            a(f"v_pk_add_f32 v[{16+j}:{17+j}], v[{104+j}:{105+j}], v[{108+j}:{109+j}]")
            a(f"v_pk_add_f32 v[{20+j}:{21+j}], v[{112+j}:{113+j}], v[{116+j}:{117+j}]")
            a(f"v_pk_add_f32 v[{24+j}:{25+j}], v[{120+j}:{121+j}], v[{124+j}:{125+j}]")
        for j in (0, 2):
            a(f"v_pk_add_f32 v[{16+j}:{17+j}], v[{16+j}:{17+j}], v[{20+j}:{21+j}]")
            a(f"v_pk_add_f32 v[{24+j}:{25+j}], v[{24+j}:{25+j}], v[{128+j}:{129+j}]")
        for j in (0, 2): a(f"v_pk_add_f32 v[{16+j}:{17+j}], v[{16+j}:{17+j}], v[{24+j}:{25+j}]")
    with live(): spoll([i3(i) for i in range(7)], s3, range(16, 20), 14)
    stamp("e3")
    red_g4([16, 17, 18, 19], 20)
    a(f"v_add_f32_dpp v20, v20, v20 row_ror:8 {FULL}")
    rbf(20, 20)
    a("s_waitcnt lgkmcnt(0)")
    a("v_add_f32 v20, v20, v7")
    a("v_cvt_pk_bf16_f32 v20, v20, v20")
    if warm: a("s_cbranch_execz L_warmed")
    a("s_mov_b32 s12, 0x00ff00ff"); a("s_mov_b32 s13, 0x00ff00ff"); a("s_mov_b64 exec, s[12:13]")
    a("global_store_short v5, v20, s[34:35]")
    a("s_cmp_lg_u32 s52, 0"); a("s_cbranch_scc1 L_noep")
    a("s_mov_b64 exec, 1")
    a(f"v_mov_b32 v5, {WS_EP:#x}"); a("v_mov_b32 v6, s15")
    a("global_store_dword v5, v6, s[38:39]")
    if dbl:
        a("s_memrealtime s[90:91]"); a("s_waitcnt lgkmcnt(0)")
        a("s_sub_u32 s92, s90, s88"); a(f"s_mul_i32 s92, s92, {dbl}"); a("s_add_u32 s92, s92, s90"); a("s_mov_b32 s60, 100000")
        a.label("L_dbl")
        a("s_memrealtime s[90:91]"); a("s_waitcnt lgkmcnt(0)"); a("s_sub_u32 s93, s90, s92"); a("s_cmp_ge_i32 s93, 0"); a("s_cbranch_scc1 L_noep")
        a("s_sub_u32 s60, s60, 1"); a("s_cbranch_scc0 L_dbl")
    a.label("L_noep")
    a("s_mov_b64 exec, -1")
    stamp("out")
    a.label("L_tend")
    if warm: a("s_cbranch_execz L_warmed")
    a.label("L_fin")
    dump_stamps()
    a.label("L_exit")
    a("s_endpgm")
    nv = 168
    a.raw('.section .rodata,"a"'); a.raw(".p2align 6"); a.raw(f".amdhsa_kernel {KN}")
    a.raw(f"  .amdhsa_next_free_vgpr {nv}"); a.raw("  .amdhsa_next_free_sgpr 96"); a.raw(f"  .amdhsa_accum_offset {nv}")
    a.raw("  .amdhsa_group_segment_fixed_size 0"); a.raw("  .amdhsa_kernarg_size 96"); a.raw("  .amdhsa_user_sgpr_count 2")
    a.raw("  .amdhsa_user_sgpr_kernarg_segment_ptr 1"); a.raw("  .amdhsa_system_sgpr_workgroup_id_x 1")
    a.raw("  .amdhsa_float_denorm_mode_32 3")
    a.raw(".end_amdhsa_kernel")
    return a.text(), stampn

if __name__ == "__main__":
    out = sys.argv[1] if len(sys.argv) > 1 else "sequential_preLN__mha_block_cached__swiglu_ffn__decode.s"
    kw = eval("dict(%s)" % sys.argv[2]) if len(sys.argv) > 2 else {}
    t, st = gen(**kw)
    open(out, "w").write(t)
    print("wrote", out, len(t.splitlines()), "lines", st)
```

```python
import sys
sys.path.insert(0, "work")
from asmlib import Asm

KN = "sequential_preLN__mha_block_cached__swiglu_ffn__decode_kernel"
HEADER = open("sequential_preLN__mha_block_cached__swiglu_ffn__decode.s.ref").read().split("; Override launch")[0]

MB = 4352
MB_Q = 0
MB_ST = 512
MB_O = 1024
WS_EP = 0x110000
WS_YP = 0x120000
WS_FP = 0x130000
L_FL = 0
L_Q = 256
L_QS = 768
L_SC = 2048
L_PP = L_SC + 32768
L_OL = L_PP + 16384
L_YL = L_OL + 4096
L_H = L_YL + 2048
L_GU = L_H + 2560
L_ST = L_GU + 1024
L_END = L_ST + 64
NWO, NFFN, NFIN = 160, 54, 20
NWAVE = 12
SPIN = 20000
LSPIN = 2000000
LOG2E = 0x3fb8aa3b
SCALE = 0x3db504f3
INV640 = 0x3acccccd
EPS = 0x3727c5ac
FULL = "row_mask:0xf bank_mask:0xf"

def gen(diag=False, wpol="nt", sleep=1, wpace=2, prio=3, now=False, ssleep=4, bs=False, DS=(5, 6, 8), GR=2, rolemix=True, modes=(1, 1, 2), F=8, epace=2, masked=True, lastit=3, hprio=2, pairx=False, noclear=False, dbl=0, kvpol='nt', warm=True, pdepth=1, pfirst=3, psleep=0, fine=True, hint=None, hs=64, hk=3, tlb=False, pre=6, late_wo=True, late_ffn=None, lpace=0, early_from=7, down_late=True, deep_until=99, wo_at=32):
    a = Asm()
    uid = [0]
    def L(n):
        uid[0] += 1
        return f"L_{n}_{uid[0]}"
    stampn = {}
    SV = 166
    def stamp(name):
        if not diag: return
        if diag == 1 and name not in ("start", "v_done", "out"): return
        if diag == 4 and name not in ("start", "v_done", "out", "iss0", "land0", "land1", "land3", "s_filled", "q_ready", "h_x", "h_dots", "qp_pub", "q_got", "ka_done"): return
        if diag == 2 and name not in ("start", "v_done", "tail", "e1", "y_pub", "e2", "gu", "f_pub", "e3", "out", "x1", "x2", "x3", "x4"): return
        i = stampn.setdefault(name, len(stampn))
        sk = L("st"); a(f"s_cbranch_execz {sk}")
        a("s_memrealtime s[90:91]"); a("s_waitcnt lgkmcnt(0)"); a(f"v_writelane_b32 v{SV}, s90, {i}")
        a.label(sk)
    def prog():
        if diag != 3: return
        a("s_memrealtime s[90:91]"); a("s_waitcnt lgkmcnt(0)"); a("s_mov_b32 m0, s94"); a("s_nop 0"); a(f"v_writelane_b32 v{SV}, s90, m0"); a("s_add_u32 s94, s94, 1")
    def dump_stamps():
        if not diag: return
        a("s_add_u32 s90, s38, 0x10000000"); a("s_addc_u32 s91, s39, 0")
        a(f"s_mul_i32 s92, s2, {NWAVE}"); a("s_add_u32 s92, s92, s93"); a("s_lshl_b32 s92, s92, 8")
        a(f"v_lshlrev_b32 v{SV+1}, 2, v0"); a(f"v_add_u32 v{SV+1}, s92, v{SV+1}")
        a(f"global_store_dword v{SV+1}, v{SV}, s[90:91]")

    class live:
        def __enter__(self_):
            self_.l = L("live")
            if warm: a(f"s_cbranch_execz {self_.l}")
        def __exit__(self_, *x):
            if warm: a.label(self_.l)
    def rbf(dst, src):
        a(f"v_cvt_pk_bf16_f32 v{dst}, v{src}, v{src}"); a(f"v_and_b32 v{dst}, 0xffff0000, v{dst}")
    def rowred(op, v):
        for r in (8, 4, 2, 1):
            a(f"{op}_dpp v{v}, v{v}, v{v} row_ror:{r} {FULL}")
    def allred(op, v, t):
        rowred(op, v)
        a(f"v_mov_b32 v{t}, v{v}"); a(f"v_permlane16_swap_b32 v{v}, v{t}"); a(f"{op} v{v}, v{v}, v{t}")
        a(f"v_mov_b32 v{t}, v{v}"); a(f"v_permlane32_swap_b32 v{v}, v{t}"); a(f"{op} v{v}, v{v}, v{t}")
    def red_g8(r, dst):
        for j in range(4): a(f"v_permlane32_swap_b32 v{r[j]}, v{r[j+4]}")
        for j in range(4): a(f"v_add_f32 v{r[j]}, v{r[j]}, v{r[j+4]}")
        a(f"v_permlane16_swap_b32 v{r[0]}, v{r[2]}"); a(f"v_permlane16_swap_b32 v{r[1]}, v{r[3]}")
        a(f"v_add_f32 v{dst}, v{r[0]}, v{r[2]}"); a(f"v_add_f32 v{dst+1}, v{r[1]}, v{r[3]}")
    def red_g4(r, dst):
        a(f"v_permlane32_swap_b32 v{r[0]}, v{r[2]}"); a(f"v_permlane32_swap_b32 v{r[1]}, v{r[3]}")
        a(f"v_add_f32 v{r[0]}, v{r[0]}, v{r[2]}"); a(f"v_add_f32 v{r[1]}, v{r[1]}, v{r[3]}")
        a(f"v_permlane16_swap_b32 v{r[0]}, v{r[1]}")
        a(f"v_add_f32 v{dst}, v{r[0]}, v{r[1]}")
    def guard(regs):
        for r in regs: a(f"v_min_u32 v{r}, -2, v{r}")
    def poll(issue, regs, t, cnt="s60", sleep=sleep):
        top, done = L("poll"), L("polled")
        a(f"s_mov_b32 {cnt}, {SPIN}")
        a.label(top)
        issue()
        a("s_waitcnt vmcnt(0)")
        rs = list(regs)
        if len(rs) == 2:
            a(f"v_max_u32 v{t}, v{rs[0]}, v{rs[1]}")
        else:
            a(f"v_max3_u32 v{t}, v{rs[0]}, v{rs[1]}, v{rs[2]}")
            rs = rs[3:]
            while len(rs) >= 2:
                a(f"v_max3_u32 v{t}, v{t}, v{rs[0]}, v{rs[1]}"); rs = rs[2:]
            if rs: a(f"v_max_u32 v{t}, v{t}, v{rs[0]}")
        a(f"v_cmp_eq_u32 vcc, -1, v{t}")
        a(f"s_cbranch_vccz {done}")
        if sleep: a(f"s_sleep {sleep}")
        a(f"s_sub_u32 {cnt}, {cnt}, 1")
        a(f"s_cbranch_scc0 {top}")
        a.label(done)
    def umax(t, rs):
        rs = list(rs)
        a(f"v_max3_u32 v{t}, v{rs[0]}, v{rs[1]}, v{rs[2]}")
        rs = rs[3:]
        while len(rs) >= 2:
            a(f"v_max3_u32 v{t}, v{t}, v{rs[0]}, v{rs[1]}"); rs = rs[2:]
        if rs: a(f"v_max_u32 v{t}, v{t}, v{rs[0]}")
    def mpoll(groups, t, sm):
        if not masked:
            def allissue():
                for g, _ in groups: g()
            poll(allissue, [r for _, rs in groups for r in rs], t)
            return
        top, done = L("mpoll"), L("mpolled")
        a(f"s_mov_b32 s60, {SPIN}")
        for g, _ in groups: g()
        a.label(top)
        a("s_waitcnt vmcnt(0)")
        for i, (_, rs) in enumerate(groups): umax(t + i, rs)
        for i in range(len(groups)): a(f"v_cmp_eq_u32 s[{sm+2*i}:{sm+2*i+1}], -1, v{t+i}")
        a(f"s_or_b64 s[58:59], s[{sm}:{sm+1}], s[{sm+2}:{sm+3}]")
        for i in range(2, len(groups)): a(f"s_or_b64 s[58:59], s[58:59], s[{sm+2*i}:{sm+2*i+1}]")
        a(f"s_cbranch_scc0 {done}")
        if sleep: a(f"s_sleep {sleep}")
        for i, (g, _) in enumerate(groups):
            sk = L("mskip")
            a(f"s_mov_b64 exec, s[{sm+2*i}:{sm+2*i+1}]")
            a(f"s_cbranch_execz {sk}")
            g()
            a.label(sk)
        a("s_mov_b64 exec, -1")
        a("s_sub_u32 s60, s60, 1")
        a(f"s_cbranch_scc0 {top}")
        a("s_waitcnt vmcnt(0)")
        a.label(done)
    def spoll(groups, sums, outs, t, first=0):
        top, done = L("spoll"), L("spolled")
        a(f"s_mov_b32 s60, {SPIN}")
        if first: a(f"s_sleep {first}")
        for g, _ in groups: g()
        a.label(top)
        a("s_waitcnt vmcnt(0)")
        sums()
        umax(t, outs)
        a(f"v_cmp_eq_u32 vcc, -1, v{t}")
        a(f"s_cbranch_vccz {done}")
        if psleep: a(f"s_sleep {psleep}")
        if fine:
            for g, rs in groups:
                sk = L("gsk")
                umax(t, rs)
                a(f"v_cmp_eq_u32 vcc, -1, v{t}")
                a(f"s_cbranch_vccz {sk}")
                a("s_mov_b64 exec, vcc")
                g()
                a("s_mov_b64 exec, -1")
                a.label(sk)
        else:
            a("s_mov_b64 exec, vcc")
            for g, _ in groups: g()
            a("s_mov_b64 exec, -1")
        a("s_sub_u32 s60, s60, 1")
        a(f"s_cbranch_scc0 {top}")
        a("s_waitcnt vmcnt(0)")
        a.label(done)
    def lds_wait(vaddr, off, val, t, slp):
        top, done = L("lw"), L("lwd")
        a(f"s_mov_b32 s60, {LSPIN}")
        a.label(top)
        a(f"ds_read_b32 v{t}, v{vaddr} offset:{off}")
        a("s_waitcnt lgkmcnt(0)")
        a(f"v_cmp_gt_u32 vcc, {val}, v{t}")
        a(f"s_cbranch_vccz {done}")
        a(f"s_sleep {slp}")
        a("s_sub_u32 s60, s60, 1"); a(f"s_cbranch_scc0 {top}")
        a.label(done)
    def lds_signal(vaddr, off, one):
        a("s_waitcnt lgkmcnt(0)")
        a("s_mov_b64 exec, 1"); a(f"ds_add_u32 v{vaddr}, v{one} offset:{off}"); a("s_mov_b64 exec, -1")
    def pair_perm(W, spare):
        out = []
        for t in range(0, len(W), 2):
            cols = []
            for j in range(4):
                A_, B_ = W[t][j], W[t + 1][j]
                a(f"v_perm_b32 v{spare}, v{B_}, v{A_}, s70")
                a(f"v_perm_b32 v{B_}, v{B_}, v{A_}, s71")
                cols += [spare, B_]
                spare = A_
            out.append(cols)
        return out
    def ln_stats(x, m, rs, t0, t1):
        a(f"v_add_f32 v{m}, v{x[0]}, v{x[1]}")
        for r in x[2:]: a(f"v_add_f32 v{m}, v{m}, v{r}")
        allred("v_add_f32", m, t0)
        a(f"v_mul_f32 v{m}, {INV640:#x}, v{m}")
        for i, r in enumerate(x):
            a(f"v_sub_f32 v{t0}, v{r}, v{m}")
            if i == 0: a(f"v_mul_f32 v{rs}, v{t0}, v{t0}")
            else: a(f"v_fmac_f32 v{rs}, v{t0}, v{t0}")
        allred("v_add_f32", rs, t0)
        a(f"v_mul_f32 v{rs}, {INV640:#x}, v{rs}")
        rbf(rs, rs); rbf(m, m)
        a(f"v_add_f32 v{rs}, {EPS:#x}, v{rs}"); rbf(rs, rs)
        a(f"v_sqrt_f32 v{rs}, v{rs}"); rbf(rs, rs)
        a(f"v_rcp_f32 v{rs}, v{rs}")

    a.raw(HEADER.rstrip("\n"))
    a.raw(f"; @launch grid=(256,1,1) block=({64*NWAVE},1,1) lds={L_END}")
    a.raw('.amdgcn_target "amdgcn-amd-amdhsa--gfx950"')
    a.raw(".text"); a.raw(f".globl {KN}"); a.raw(".p2align 8"); a.raw(f".type {KN},@function")
    a.label(KN)
    a("s_cmp_ge_u32 s2, 256"); a("s_cbranch_scc1 L_exit")
    if dbl or diag == 4: a("s_memrealtime s[88:89]")
    a("s_load_dwordx16 s[16:31], s[0:1], 0")
    a("s_load_dwordx8 s[32:39], s[0:1], 64")
    a("v_lshrrev_b32 v1, 6, v0")
    a("v_and_b32 v0, 63, v0")
    a("v_readfirstlane_b32 s3, v1")
    if diag: a(f"v_mov_b32 v{SV}, 0")
    a("v_lshlrev_b32 v1, 4, v0")
    a("s_lshr_b32 s4, s2, 4")
    if diag: a("s_mov_b32 s93, s3"); a("s_mov_b32 s94, 32")
    if rolemix:
        a("s_mul_i32 s67, s4, 3"); a("s_add_u32 s67, s67, s2"); a("s_and_b32 s67, s67, 15"); a("s_lshl_b32 s67, s67, 4"); a("s_add_u32 s67, s67, s4")
    else:
        a("s_mov_b32 s67, s2")
    a("s_cmp_ge_u32 s3, 4"); a("s_cbranch_scc1 L_helper")

    R0 = 36
    ring = [8]
    def slot(ck, i): return R0 + 16 * (ck % ring[0]) + 4 * i
    def issue_chunk(ck, pacer=None, lo=0, hi=4):
        for i in range(lo, hi):
            if pacer and i % GR == 0: pacer(i)
            s = slot(ck, i)
            a(f"buffer_load_dwordx4 v[{s}:{s+3}], v1, s[8:11], s12 offen offset:{1024*i} {kvpol}")
        if hi == 4: a("s_add_u32 s12, s12, 0x4000")
    a("s_add_u32 s5, s2, s4"); a("s_and_b32 s5, s5, 7")
    a("s_and_b32 s6, s2, 8"); a("s_or_b32 s5, s5, s6")
    a("s_lshl_b32 s13, s4, 23"); a("s_lshl_b32 s14, s5, 18"); a("s_add_u32 s13, s13, s14")
    a("s_lshl_b32 s14, s3, 12"); a("s_add_u32 s13, s13, s14")
    a("s_mov_b32 s12, s13")
    a("s_mov_b32 s10, 0x8000000"); a("s_mov_b32 s11, 0x20000")
    a("s_waitcnt lgkmcnt(0)")
    a("s_mov_b32 s8, s18"); a("s_mov_b32 s9, s19")
    if diag == 4: a(f"v_writelane_b32 v{SV}, s88, 59")
    stamp("start")
    if bs: a("s_barrier")
    issue_chunk(0)
    if pre > 4: issue_chunk(1, None, 0, pre - 4)
    stamp("iss0")
    a(f"s_add_u32 s14, s14, {L_SC}")
    a("v_lshlrev_b32 v20, 2, v0"); a("v_add_u32 v20, s14, v20")
    a("v_and_b32 v21, 15, v0"); a("v_lshlrev_b32 v21, 4, v21")
    a("v_mov_b32 v22, 0"); a("v_mov_b32 v23, 1")
    stamp("s_issued")
    if not bs: a("s_barrier")
    a(f"s_mov_b32 s15, {modes[0]}")
    a(f"s_cmp_lt_u32 s67, {NWO+NFFN}"); a(f"s_cselect_b32 s15, {modes[2]}, s15")
    a(f"s_cmp_lt_u32 s67, {NWO}"); a(f"s_cselect_b32 s15, {modes[1]}, s15")
    a("s_mov_b32 s46, s15"); a("s_mov_b32 s47, 4"); a("v_mov_b32 v3, 0")
    def hint_read():
        if hint is not None: a(f"ds_read_b32 v2, v3 offset:{L_FL+28}")
    def hint_apply():
        if hint is None: return
        a("v_readfirstlane_b32 s45, v2")
        a("s_lshr_b32 s48, s45, 8"); a("s_and_b32 s45, s45, 3")
        a("s_cmp_lt_u32 s47, s48"); a("s_cselect_b32 s15, s45, s46")
        a("s_add_u32 s47, s47, 1")
    def hint_mark(off):
        if hint is None: return
        sk = L("hm")
        a("s_cmp_lg_u32 s6, 0"); a(f"s_cbranch_scc1 {sk}")
        a("s_mov_b64 exec, 1"); a(f"ds_add_u32 v22, v23 offset:{off}"); a("s_mov_b64 exec, -1")
        a.label(sk)
    def pace(i):
        go = L("go")
        a(f"s_waitcnt vmcnt({DS[2]-GR})")
        if DS[1] != DS[2] or DS[0] != DS[2]:
            a("s_cmp_ge_u32 s15, 2"); a(f"s_cbranch_scc1 {go}")
            a(f"s_waitcnt vmcnt({DS[1]-GR})")
            if DS[0] != DS[1]:
                a("s_cmp_ge_u32 s15, 1"); a(f"s_cbranch_scc1 {go}")
                a(f"s_waitcnt vmcnt({DS[0]-GR})")
            a.label(go)
    assert DS[2] <= 8
    for ck in range(1, F):
        if ck == 1 and pre == 8: continue
        issue_chunk(ck, lambda i: a(f"s_waitcnt vmcnt({DS[1]-GR})"), (pre - 4 if ck == 1 else 0))
        if ck in (1, 2, 4): stamp({1: "land0", 2: "land1", 4: "land3"}[ck])
    stamp("s_filled")
    lds_wait(22, L_FL + 4, 4, 8, 1)
    a(f"ds_read_b128 v[4:7], v21 offset:{L_Q}")
    a(f"ds_read_b128 v[16:19], v21 offset:{L_Q+256}")
    a("s_waitcnt lgkmcnt(0)")
    stamp("q_ready")
    def switch_point():
        a("s_cmp_eq_u32 s6, 3")
        a("s_cselect_b32 s8, s40, s8"); a("s_cselect_b32 s9, s41, s9")
        a("s_cselect_b32 s12, s42, s12"); a("s_cselect_b32 s10, s43, s10")
    def proc_k(ck, q, off):
        for j in range(4):
            for i in range(4):
                a(f"v_dot2_f32_bf16 v{8+i}, v{slot(ck,i)+j}, v{q+j}, " + ("0" if j == 0 else f"v{8+i}"))
        a("v_add_f32_dpp v12, v8, v8 row_ror:8 row_mask:0xf bank_mask:0x3")
        a("s_nop 0")
        a("v_add_f32_dpp v13, v10, v10 row_ror:8 row_mask:0xf bank_mask:0x3")
        a("v_add_f32_dpp v12, v9, v9 row_ror:8 row_mask:0xf bank_mask:0xc")
        a("v_add_f32_dpp v13, v11, v11 row_ror:8 row_mask:0xf bank_mask:0xc")
        a("v_add_f32_dpp v14, v12, v12 row_half_mirror row_mask:0xf bank_mask:0x5")
        a("v_add_f32_dpp v14, v13, v13 row_half_mirror row_mask:0xf bank_mask:0xa")
        a(f"ds_write_b32 v20, v14 offset:{off}")
    n = F
    since = 9
    burst = 0
    for k in range(16):
        if n - ring[0] < k and n < 18 and (n - k <= 2 or since >= 2 or burst < 2):
            if n == 16: a("s_add_u32 s12, s13, 0x400000")
            issue_chunk(n, pace); n += 1; since = 0; burst += 1
        assert k <= n - 3
        proc_k(k, 4, 256 * k)
        since += 1
        if k % 4 == 3: prog()
    assert n == 18, n
    lds_signal(22, L_FL + 8, 23)
    stamp("ka_done")
    ring[0] = 4
    a("s_mov_b32 s40, s20"); a("s_mov_b32 s41, s21"); a("s_mov_b32 s42, s13"); a("s_mov_b32 s43, 0x8000000")
    a("s_mov_b32 s6, 0")
    a.label("L_kiter")
    hint_read()
    for k in range(4):
        if k == 2: switch_point()
        issue_chunk(k + 2, pace)
        if k == 0 and hint is not None: a("s_waitcnt lgkmcnt(0)"); hint_apply()
        proc_k(k, 16, 0x4000 + 256 * k)
        if k == hk: hint_mark(L_FL + 32)
    prog()
    a("v_add_u32 v20, 0x400, v20")
    a("s_add_u32 s6, s6, 1"); a("s_cmp_lt_u32 s6, 4"); a("s_cbranch_scc1 L_kiter")
    lds_signal(22, L_FL + 12, 23)
    stamp("k_done")
    a("s_lshl_b32 s14, s3, 11"); a(f"s_add_u32 s14, s14, {L_PP}")
    a("v_lshlrev_b32 v20, 3, v0"); a("v_add_u32 v20, s14, v20")
    a("s_lshl_b32 s14, s3, 9"); a(f"s_add_u32 s14, s14, {L_OL}")
    a("v_and_b32 v21, 15, v0"); a("v_lshlrev_b32 v21, 5, v21"); a("v_lshrrev_b32 v8, 4, v0"); a("v_lshl_add_u32 v21, v8, 3, v21")
    a("v_add_u32 v21, s14, v21")
    a("s_add_u32 s42, s13, 0x400000")
    a("s_mov_b32 s7, 0"); a("s_mov_b32 s44, 99")
    a.label("L_vhead")
    lds_wait(22, L_FL + 16, 1, 8, 1)
    stamp("p_wait")
    for j in range(8): a(f"v_mov_b32 v{24+j}, 0")
    a("s_mov_b32 s6, 0")
    a.label("L_viter")
    a("ds_read_b64 v[32:33], v20")
    hint_read()
    if deep_until < 8:
        a("s_lshl_b32 s45, s7, 2"); a("s_add_u32 s45, s45, s6"); a(f"s_cmp_ge_u32 s45, {deep_until}"); a(f"s_cselect_b32 s15, {modes[0]}, s15")
    a("s_cmp_ge_u32 s6, s44"); a("s_cselect_b32 s15, 2, s15")
    for k in range(4):
        if k == 2: switch_point()
        if k >= 2:
            dr, go = L("drain"), L("drained")
            a("s_cmp_eq_u32 s10, 0"); a(f"s_cbranch_scc1 {dr}")
            issue_chunk(k + 2, pace)
            a(f"s_branch {go}")
            a.label(dr)
            a(f"s_waitcnt vmcnt({4*(3-k)})")
            a.label(go)
        else:
            issue_chunk(k + 2, pace)
        if k == 1: a("s_mov_b64 exec, 1"); a(f"ds_add_u32 v3, v23 offset:{L_FL+44}"); a("s_mov_b64 exec, -1")
        if k == 0:
            a("s_waitcnt lgkmcnt(0)")
            hint_apply()
            if hint is not None: a("s_cmp_ge_u32 s6, s44"); a("s_cselect_b32 s15, 2, s15")
        for i in range(4):
            s = slot(k, i)
            c = ((i & 1) << 3) | ((i >> 1) << 2) | k
            for j in range(4):
                a(f"v_dot2c_f32_bf16_dpp v{24+2*j}, v32, v{s+j} row_newbcast:{c} {FULL}")
                a(f"v_dot2c_f32_bf16_dpp v{25+2*j}, v33, v{s+j} row_newbcast:{c} {FULL}")
        if k == hk: hint_mark(L_FL + 36)
    prog()
    a("v_add_u32 v20, 0x200, v20")
    a("s_add_u32 s6, s6, 1"); a("s_cmp_lt_u32 s6, 4"); a("s_cbranch_scc1 L_viter")
    red_g8(list(range(24, 32)), 34)
    a("ds_write_b64 v21, v[34:35]")
    a("s_cmp_lg_u32 s7, 0"); a("s_cbranch_scc1 L_vend")
    lds_signal(22, L_FL + 24, 23)
    stamp("va_done")
    a("v_add_u32 v20, 0x1800, v20"); a("v_add_u32 v21, 0x800, v21"); a("v_mov_b32 v22, 4")
    a("s_mov_b32 s43, 0"); a("s_mov_b32 s7, 1"); a(f"s_mov_b32 s44, {lastit}")
    a("s_branch L_vhead")
    a.label("L_vend")
    a("s_mov_b64 exec, 1"); a(f"ds_add_u32 v3, v23 offset:{L_FL+48}"); a("s_mov_b64 exec, -1")
    stamp("v_done")
    a("s_branch L_fin")

    def ffn_index(d):
        a(f"s_sub_u32 {d}, s67, {NWO}")
        if pairx:
            a(f"s_and_b32 s64, {d}, 7"); a("s_lshl_b32 s64, s64, 1"); a(f"s_bfe_u32 s65, {d}, 0x10003"); a("s_add_u32 s64, s64, s65")
            a(f"s_and_b32 s65, {d}, 0x30"); a("s_add_u32 s64, s64, s65")
            a(f"s_cmp_lt_u32 {d}, 48"); a(f"s_cselect_b32 {d}, s64, {d}")
    W0 = 64
    def load_weights(wpace=wpace, down=True, wo=True, fw=True, gu=True):
        if now or not (wo or fw): return
        ffn, done = L("ffnw"), L("wdone")
        cnt = [0]
        def ld(idx, off):
            if wpace and cnt[0] >= wpace: a(f"s_waitcnt vmcnt({wpace-1})")
            cnt[0] += 1
            a(f"buffer_load_dwordx4 v[{W0+4*idx}:{W0+4*idx+3}], v2, s[44:47], s50 offen offset:{off} {wpol}")
        a(f"s_cmp_ge_u32 s67, {NWO}"); a(f"s_cbranch_scc1 {ffn}")
        if not wo: a(f"s_branch {done}")
        a("s_mov_b32 s44, s24"); a("s_mov_b32 s45, s25"); a(f"s_mov_b32 s46, {4096*1280}"); a("s_mov_b32 s47, 0x20000")
        a("s_and_b32 s50, s67, 15"); a("s_lshl_b32 s50, s50, 3"); a("s_add_u32 s50, s50, s3"); a(f"s_mul_i32 s50, s50, {32*1280}")
        a("s_lshr_b32 s51, s67, 4"); a("s_lshl_b32 s51, s51, 7"); a("s_add_u32 s50, s50, s51")
        a("v_lshrrev_b32 v2, 3, v0"); a(f"v_mul_u32_u24 v2, {4*1280}, v2"); a("v_and_b32 v3, 7, v0"); a("v_lshl_add_u32 v2, v3, 4, v2")
        for t in range(4 if wo else 0): ld(t, t * 1280)
        a(f"s_branch {done}")
        a.label(ffn)
        cnt[0] = 0
        if not fw:
            a.label(done); return
        a(f"s_cmp_ge_u32 s67, {NWO+NFFN}"); a(f"s_cbranch_scc1 {done}")
        a("s_cmp_lt_u32 s3, 4"); a("s_cselect_b32 s44, s28, s30"); a("s_cselect_b32 s45, s29, s31")
        a(f"s_mov_b32 s46, {640*3456}"); a("s_mov_b32 s47, 0x20000")
        ffn_index("s52")
        a("s_and_b32 s50, s3, 3"); a(f"s_mul_i32 s50, s50, {160*3456}"); a("s_lshl_b32 s51, s52, 6"); a("s_add_u32 s50, s50, s51")
        a("v_lshrrev_b32 v2, 2, v0"); a(f"v_mul_u32_u24 v2, {10*3456}, v2"); a("v_and_b32 v3, 3, v0"); a("v_lshl_add_u32 v2, v3, 4, v2")
        for t in range(10 if gu else 0):
            if t and t % 2 == 0: a(f"s_add_u32 s50, s50, {2*3456}")
            ld(t, (t % 2) * 3456)
        if not down:
            a.label(done); return
        a("s_cmp_ge_u32 s3, 5"); a(f"s_cbranch_scc1 {done}")
        a("s_mov_b32 s44, s32"); a("s_mov_b32 s45, s33"); a(f"s_mov_b32 s46, {1728*1280}")
        a(f"s_mul_i32 s50, s52, {32*1280}"); a("s_lshl_b32 s51, s3, 8"); a("s_add_u32 s50, s50, s51")
        a("v_lshrrev_b32 v2, 4, v0"); a(f"v_mul_u32_u24 v2, {8*1280}, v2"); a("v_and_b32 v3, 15, v0"); a("v_lshl_add_u32 v2, v3, 4, v2")
        for t in range(8):
            if t == 4: a(f"s_add_u32 s50, s50, {4*1280}")
            ld(10 + t, (t % 4) * 1280)
        a.label(done)

    a.label("L_helper")
    a("s_sub_u32 s3, s3, 4")
    a("s_and_b32 s6, s2, 15")
    a("v_lshlrev_b32 v6, 2, v0")
    a("v_mov_b32 v14, 0"); a("v_mov_b32 v15, 1")
    a("s_mov_b32 s70, 0x05040100"); a("s_mov_b32 s71, 0x07060302")
    a("s_cmp_ge_u32 s3, 4"); a("s_cbranch_scc1 L_helper2")
    if prio: a(f"s_setprio {prio}")
    a("v_lshrrev_b32 v2, 3, v0")
    a("v_and_b32 v3, 7, v0")
    a("v_mul_u32_u24 v4, 5, v2")
    a("s_lshr_b32 s8, s6, 2"); a("s_lshl_b32 s8, s8, 2"); a("s_add_u32 s8, s8, s3"); a("s_mul_i32 s8, s8, 40")
    a("v_add_u32 v4, s8, v4")
    a("v_lshlrev_b32 v5, 13, v4"); a("v_lshl_add_u32 v5, v3, 4, v5")
    a("v_lshlrev_b32 v4, 1, v4")
    a("s_lshl_b32 s9, s4, 9"); a("s_and_b32 s10, s6, 3"); a("s_lshl_b32 s10, s10, 7"); a("s_add_u32 s9, s9, s10")
    a(f"s_mov_b32 s46, {640*8192}"); a("s_mov_b32 s47, 0x20000")
    a("s_waitcnt lgkmcnt(0)")
    stamp("start")
    a(f"s_add_u32 s74, s38, {WS_EP}"); a("s_addc_u32 s75, s39, 0")
    a("s_load_dword s15, s[74:75], 0")
    a("global_load_dwordx4 v[16:19], v1, s[16:17]"); a("global_load_dword v20, v6, s[16:17] offset:1024")
    for t in range(5): a(f"global_load_ushort v{21+t}, v4, s[16:17] offset:{2*t}")
    a("s_mov_b32 s44, s22"); a("s_mov_b32 s45, s23")
    for t in range(5):
        a(f"buffer_load_dwordx4 v[{64+4*t}:{64+4*t+3}], v5, s[44:47], s9 offen {wpol}")
        if t < 4: a("s_add_u32 s9, s9, 0x2000")
    a("s_barrier")
    a("v_lshlrev_b32 v12, 2, v2"); a("v_lshl_add_u32 v12, v3, 5, v12")
    a("s_lshl_b32 s12, s3, 8"); a("v_add_u32 v12, s12, v12")
    a("s_mov_b32 s62, 0xff00ff00"); a("s_mov_b32 s63, 0xff00ff00")
    stamp("h_issued")
    a("s_waitcnt vmcnt(5)")
    stamp("h_x")
    for i in range(5):
        a(f"v_and_b32 v{30+2*i+1}, 0xffff0000, v{16+i}"); a(f"v_lshlrev_b32 v{30+2*i}, 16, v{16+i}")
    ln_stats(list(range(30, 40)), 26, 27, 28, 29)
    for t in range(5):
        a(f"v_lshlrev_b32 v{21+t}, 16, v{21+t}"); a(f"v_sub_f32 v{21+t}, v{21+t}, v26"); rbf(21 + t, 21 + t)
        a(f"v_mul_f32 v{21+t}, v{21+t}, v27")
        a(f"v_cvt_pk_bf16_f32 v{30+t}, v{21+t}, 0"); a(f"v_cvt_pk_bf16_f32 v{35+t}, 0, v{21+t}")
    for j in range(8): a(f"v_mov_b32 v{40+j}, 0")
    stamp("h_ln")
    for t in range(5):
        a(f"s_waitcnt vmcnt({4-t})")
        for j in range(4):
            a(f"v_dot2c_f32_bf16 v{40+2*j}, v{30+t}, v{64+4*t+j}"); a(f"v_dot2c_f32_bf16 v{41+2*j}, v{35+t}, v{64+4*t+j}")
    red_g8(list(range(40, 48)), 48)
    a(f"v_add_f32_dpp v48, v48, v48 row_ror:8 {FULL}"); a(f"v_add_f32_dpp v49, v49, v49 row_ror:8 {FULL}")
    a("v_cndmask_b32 v48, v48, v49, s[62:63]")
    a(f"ds_write_b32 v12, v48 offset:{L_QS}")
    a("s_waitcnt lgkmcnt(0)")
    a("s_add_u32 s15, s15, 1")
    a("s_mov_b64 exec, 1"); a(f"ds_add_rtn_u32 v13, v14, v15 offset:{L_FL}"); a("s_mov_b64 exec, -1")
    a("v_lshrrev_b32 v10, 5, v0"); a(f"v_mul_u32_u24 v12, {8*MB}, v10"); a("v_and_b32 v11, 31, v0"); a("v_lshl_add_u32 v12, v11, 4, v12")
    a("s_lshl_b32 s12, s4, 4"); a("s_add_u32 s12, s12, s3"); a(f"s_mul_i32 s12, s12, {MB}"); a("v_add_u32 v12, s12, v12")
    a(f"v_add_u32 v9, {4*MB}, v12")
    a("s_waitcnt lgkmcnt(0)")
    a("v_readfirstlane_b32 s12, v13")
    stamp("h_dots")
    a("s_cmp_lg_u32 s12, 3"); a("s_cbranch_scc1 L_qnopub")
    a(f"v_add_u32 v16, {L_QS}, v6")
    a("ds_read2st64_b32 v[18:19], v16 offset0:0 offset1:1"); a("ds_read2st64_b32 v[20:21], v16 offset0:2 offset1:3")
    a(f"s_mul_i32 s12, s2, {MB}"); a("v_lshlrev_b32 v17, 3, v0"); a("v_add_u32 v17, s12, v17")
    a("s_waitcnt lgkmcnt(0)")
    a("v_add_f32 v18, v18, v19"); a("v_add_f32 v20, v20, v21"); a("v_add_f32 v18, v18, v20"); a("v_mov_b32 v19, s15")
    a("global_store_dwordx2 v17, v[18:19], s[38:39] sc1")
    stamp("qp_pub")
    a.label("L_qnopub")
    a(f"s_mov_b32 s60, {SPIN}")
    a.label("L_qpoll")
    a("global_load_dwordx4 v[24:27], v12, s[38:39] sc1"); a("global_load_dwordx4 v[28:31], v9, s[38:39] sc1")
    a("s_waitcnt vmcnt(0)")
    for r in (25, 27, 29, 31): a(f"v_xor_b32 v{r}, s15, v{r}")
    a("v_or3_b32 v25, v25, v27, v29"); a("v_or_b32 v25, v25, v31")
    a("v_cmp_ne_u32 vcc, 0, v25")
    a("s_cbranch_vccz L_qpolled")
    if sleep: a(f"s_sleep {sleep}")
    a("s_sub_u32 s60, s60, 1"); a("s_cbranch_scc0 L_qpoll")
    a.label("L_qpolled")
    stamp("q_got")
    a("v_add_f32 v24, v24, v28"); a("v_add_f32 v26, v26, v30")
    a("v_permlane32_swap_b32 v24, v26")
    a("v_add_f32 v24, v24, v26")
    a("v_cvt_pk_bf16_f32 v24, v24, v24")
    a("v_lshl_add_u32 v12, v11, 1, v10"); a("v_lshlrev_b32 v12, 1, v12")
    a("s_lshl_b32 s12, s3, 7"); a("v_add_u32 v12, s12, v12")
    a(f"ds_write_b16 v12, v24 offset:{L_Q}")
    lds_signal(14, L_FL + 4, 15)
    a(f"s_setprio {hprio}")
    a("s_branch L_weights")

    a.label("L_helper2")
    a(f"s_setprio {hprio}")
    a("s_cmp_lg_u32 s3, 4"); a("s_cbranch_scc1 L_noinit")
    a(f"ds_write_b32 v6, v14 offset:{L_FL}")
    a.label("L_noinit")
    a("s_waitcnt lgkmcnt(0)")
    stamp("start")
    a(f"s_add_u32 s74, s38, {WS_EP}"); a("s_addc_u32 s75, s39, 0")
    a("s_load_dword s15, s[74:75], 0")
    a("s_cmp_lg_u32 s3, 6"); a("s_cbranch_scc1 L_clrdone")
    if noclear: a("s_branch L_clrdone")
    for r in range(8, 12): a(f"v_mov_b32 v{r}, -1")
    a(f"s_mul_i32 s11, s2, {MB}"); a("v_add_u32 v7, s11, v1")
    a(f"global_store_dwordx4 v7, v[8:11], s[38:39] offset:{MB_O} sc1")
    a(f"s_cmp_ge_u32 s67, {NWO}"); a("s_cbranch_scc1 L_clrffn")
    a("s_and_b32 s12, s67, 15"); a("s_mul_i32 s12, s12, 2560"); a("s_lshr_b32 s13, s67, 4"); a("s_lshl_b32 s13, s13, 8"); a("s_add_u32 s12, s12, s13")
    a(f"s_add_u32 s12, s12, {WS_YP}"); a("v_add_u32 v12, s12, v6")
    a("global_store_dword v12, v8, s[38:39] sc1")
    a("s_branch L_clrdone")
    a.label("L_clrffn")
    a(f"s_cmp_ge_u32 s67, {NWO+NFFN}"); a("s_cbranch_scc1 L_clrdone")
    ffn_index("s12"); a("s_mul_i32 s12, s12, 2560"); a(f"s_add_u32 s12, s12, {WS_FP}")
    a("v_add_u32 v12, s12, v1")
    a("global_store_dwordx4 v12, v[8:11], s[38:39] sc1"); a("global_store_dwordx4 v12, v[8:11], s[38:39] offset:1024 sc1")
    a("s_mov_b32 exec_hi, 0")
    a("global_store_dwordx4 v12, v[8:11], s[38:39] offset:2048 sc1")
    a("s_mov_b64 exec, -1")
    a.label("L_clrdone")
    a("s_barrier")
    if late_ffn is not None:
        a(f"s_cmp_lt_u32 s3, {early_from}"); a("s_cbranch_scc1 L_noearly")
        load_weights(epace, wo=False, down=False)
        a.label("L_noearly")
        if not down_late: load_weights(epace, wo=False, gu=False)
    else:
        load_weights(epace, wo=not late_wo)
    if tlb:
        a("s_cmp_lg_u32 s3, 5"); a("s_cbranch_scc1 L_notlb")
        a("s_add_u32 s12, s2, s4"); a("s_and_b32 s12, s12, 7"); a("s_and_b32 s13, s2, 8"); a("s_or_b32 s12, s12, s13")
        a("s_lshl_b32 s13, s4, 23"); a("s_lshl_b32 s12, s12, 18"); a("s_add_u32 s12, s12, s13")
        a("v_mov_b32 v16, s12"); a("v_add_u32 v17, 0x400000, v16")
        a("s_mov_b64 exec, 1")
        a("global_load_dword v18, v17, s[18:19] nt"); a("global_load_dword v19, v16, s[20:21] nt"); a("global_load_dword v20, v17, s[20:21] nt")
        a("s_mov_b64 exec, -1")
        a.label("L_notlb")
    a("s_waitcnt lgkmcnt(0)")
    a("s_add_u32 s15, s15, 1")
    a("s_cmp_lt_u32 s3, 6"); a("s_cbranch_scc1 L_weights_done")
    a("s_sub_u32 s7, s3, 6")
    a("s_lshl_b32 s12, s7, 2"); a("v_mov_b32 v13, s12")
    a("v_and_b32 v20, 3, v0"); a("v_lshlrev_b32 v20, 8, v20"); a("v_and_b32 v21, 60, v0"); a("v_lshl_add_u32 v20, v21, 2, v20")
    a("s_lshl_b32 s12, s7, 14"); a(f"s_add_u32 s12, s12, {L_SC}"); a("v_add_u32 v20, s12, v20")
    a("s_lshl_b32 s12, s7, 13"); a(f"s_add_u32 s12, s12, {L_PP}"); a("v_lshlrev_b32 v21, 3, v0"); a("v_add_u32 v21, s12, v21")
    a(f"s_mul_i32 s12, s4, {16*MB}"); a("s_lshl_b32 s13, s7, 7"); a("s_add_u32 s12, s12, s13")
    a("v_and_b32 v22, 15, v0"); a(f"v_mul_u32_u24 v22, {MB}, v22"); a("v_add_u32 v22, s12, v22")
    a(f"s_mul_i32 s13, s6, {MB}"); a("s_add_u32 s12, s12, s13"); a("v_mov_b32 v23, s12")
    a(f"s_mov_b32 s14, {LOG2E:#x}")
    lds_wait(13, L_FL + 8, 4, 8, 4)
    S = list(range(32, 48))
    for i in range(16):
        if i % 8 == 0:
            for u in range(8): a(f"ds_read_b128 v[{104+4*u}:{107+4*u}], v20 offset:{1024*(i+u)}")
        b = 104 + 4 * (i % 8)
        a(f"s_waitcnt lgkmcnt({7-i%8})")
        a(f"v_add_f32 v{b}, v{b}, v{b+1}"); a(f"v_add_f32 v{b+2}, v{b+2}, v{b+3}"); a(f"v_add_f32 v{S[i]}, v{b}, v{b+2}")
        rbf(S[i], S[i]); a(f"v_mul_f32 v{S[i]}, {SCALE:#x}, v{S[i]}"); rbf(S[i], S[i])
    a(f"v_max_f32 v28, v{S[0]}, v{S[1]}")
    for i in range(2, 16, 2): a(f"v_max3_f32 v28, v28, v{S[i]}, v{S[i+1]}")
    allred("v_max_f32", 28, 30)
    for i in range(16):
        a(f"v_sub_f32 v{104+i}, v{S[i]}, v28"); a(f"v_mul_f32 v{104+i}, s14, v{104+i}"); a(f"v_exp_f32 v{104+i}, v{104+i}")
    for st in (8, 4, 2):
        for i in range(st): a(f"v_add_f32 v{104+i}, v{104+i}, v{104+i+st}")
    a("v_add_f32 v29, v104, v105")
    allred("v_add_f32", 29, 30)
    a("v_mov_b32 v24, v28"); a("v_mov_b32 v25, s15"); a("v_mov_b32 v26, v29"); a("v_mov_b32 v27, s15")
    a("s_waitcnt vmcnt(0)")
    a("s_mov_b64 exec, 1")
    a(f"global_store_dwordx4 v23, v[24:27], s[38:39] offset:{MB_ST} sc1")
    a("s_mov_b64 exec, -1")
    stamp("st_pub")
    a(f"s_mov_b32 s60, {SPIN}")
    a.label("L_stpoll")
    a(f"global_load_dwordx4 v[16:19], v22, s[38:39] offset:{MB_ST} sc1")
    a("s_waitcnt vmcnt(0)")
    a("v_xor_b32 v17, s15, v17"); a("v_xor_b32 v19, s15, v19"); a("v_or_b32 v17, v17, v19")
    a("v_cmp_ne_u32 vcc, 0, v17")
    a("s_cbranch_vccz L_stpolled")
    a(f"s_sleep {ssleep}")
    a("s_sub_u32 s60, s60, 1"); a("s_cbranch_scc0 L_stpoll")
    a.label("L_stpolled")
    a("v_mov_b32 v24, v16"); a("v_mov_b32 v25, v18")
    a("v_mov_b32 v28, v24")
    rowred("v_max_f32", 28)
    a("v_sub_f32 v24, v24, v28"); a("v_mul_f32 v24, s14, v24"); a("v_exp_f32 v24, v24"); a("v_mul_f32 v29, v24, v25")
    rowred("v_add_f32", 29)
    a("v_rcp_f32 v29, v29")
    for i in range(16):
        a(f"v_sub_f32 v{S[i]}, v{S[i]}, v28"); a(f"v_mul_f32 v{S[i]}, s14, v{S[i]}"); a(f"v_exp_f32 v{S[i]}, v{S[i]}")
    for i in range(16):
        a(f"v_mul_f32 v{S[i]}, v{S[i]}, v29")
        a(f"v_cvt_pk_bf16_f32 v{104+2*i}, v{S[i]}, 0"); a(f"v_cvt_pk_bf16_f32 v{105+2*i}, 0, v{S[i]}")
        a(f"ds_write_b64 v21, v[{104+2*i}:{105+2*i}] offset:{512*i}")
    lds_signal(13, L_FL + 16, 15)
    stamp("p_ready")
    a("s_cmp_lg_u32 s3, 7"); a("s_cbranch_scc1 L_weights_done")
    a(f"s_cmp_ge_u32 s67, {NWO+NFFN}"); a("s_cbranch_scc1 L_weights_done")
    a(f"s_cmp_lt_u32 s67, {NWO}"); a("s_cbranch_scc1 L_weights_done")
    a(f"v_mul_u32_u24 v16, {MB}, v0")
    for i in range(1, 4): a(f"v_add_u32 v{16+i}, {64*MB*i:#x}, v16")
    a(f"s_mov_b32 s60, {SPIN}")
    a.label("L_marks")
    for i in range(4):
        a(f"global_load_dword v{20+i}, v{16+i}, s[38:39] offset:{MB_ST+4} sc1")
        a("s_waitcnt vmcnt(0)")
    for i in range(4): a(f"v_xor_b32 v{20+i}, s15, v{20+i}")
    a("v_or3_b32 v20, v20, v21, v22"); a("v_or_b32 v20, v20, v23")
    a("v_cmp_ne_u32 vcc, 0, v20")
    a("s_cbranch_vccz L_marked")
    a("s_sleep 32")
    a("s_sub_u32 s60, s60, 1"); a("s_cbranch_scc0 L_marks")
    a.label("L_marked")
    lds_signal(14, L_FL + 52, 15)
    a("s_branch L_weights_done")

    a.label("L_weights")
    if late_ffn is None: load_weights(wo=not late_wo)
    else:
        if early_from < 4:
            a(f"s_cmp_lt_u32 s3, {early_from}"); a("s_cbranch_scc1 L_noearly2")
            load_weights(wo=False, down=False)
            a.label("L_noearly2")
        if not down_late: load_weights(wo=False, gu=False)
    a.label("L_weights_done")
    a(f"s_add_u32 s76, s38, {WS_YP}"); a("s_addc_u32 s77, s39, 0")
    a(f"s_add_u32 s78, s38, {WS_FP}"); a("s_addc_u32 s79, s39, 0")
    def osum(head, d):
        for w in range(4): a(f"ds_read_b64 v[{142+2*w}:{143+2*w}], v138 offset:{L_OL+2048*head+512*w}")
        a("s_waitcnt lgkmcnt(0)")
        a("v_pk_add_f32 v[142:143], v[142:143], v[144:145]"); a("v_pk_add_f32 v[146:147], v[146:147], v[148:149]")
        a(f"v_pk_add_f32 v[{d}:{d+1}], v[142:143], v[146:147]")
        guard([d, d + 1])
    def opub():
        with live(): a(f"global_store_dwordx2 v139, v[140:141], s[38:39] offset:{MB_O} sc1")
        osum(1, 142)
        with live(): a(f"global_store_dwordx2 v139, v[142:143], s[38:39] offset:{MB_O+512} sc1")
    a("v_lshlrev_b32 v138, 3, v0")
    a(f"s_mul_i32 s11, s2, {MB}"); a("v_add_u32 v139, s11, v138")
    if hint is not None:
        a("s_cmp_lg_u32 s3, 5"); a("s_cbranch_scc1 L_nohint")
        a("v_mul_u32_u24 v16, 37, v0"); a("v_add_u32 v16, s2, v16"); a("v_and_b32 v16, 255, v16"); a(f"v_mul_u32_u24 v16, {MB}, v16")
        for h in range(2):
            if hint[h] is None: continue
            nb0, kb, nt0, kt = hint[h]
            lds_wait(14, L_FL + 32 + 4 * h, 4, 8, 4)
            if hs == 32: a("s_mov_b32 exec_hi, 0")
            a(f"global_load_dword v17, v16, s[38:39] offset:{MB_ST+4+128*h} sc1")
            a("s_waitcnt vmcnt(0)")
            a("v_cmp_eq_u32 vcc, s15, v17")
            if hs == 32: a("s_mov_b64 exec, -1")
            a("s_bcnt1_i32_b64 s12, vcc")
            if hs == 32: a("s_lshl_b32 s12, s12, 1")
            if diag: a(f"v_writelane_b32 v{SV}, s12, {60+h}")
            it0 = (6 if hk >= 2 else 5) + 4 * h
            a("s_mov_b32 s13, 0")
            a(f"s_sub_i32 s61, s12, {nb0}"); a(f"s_mul_i32 s61, s61, {kb}"); a("s_ashr_i32 s61, s61, 4")
            a(f"s_add_u32 s62, s61, {it0}"); a("s_lshl_b32 s62, s62, 8"); a("s_or_b32 s62, s62, 2")
            a("s_cmp_gt_i32 s61, 0"); a("s_cselect_b32 s13, s62, s13")
            a(f"s_sub_i32 s61, {nt0}, s12"); a(f"s_mul_i32 s61, s61, {kt}"); a("s_ashr_i32 s61, s61, 4")
            a(f"s_add_u32 s62, s61, {it0}"); a("s_lshl_b32 s62, s62, 8")
            a("s_cmp_gt_i32 s61, 0"); a("s_cselect_b32 s13, s62, s13")
            a(f"s_sub_u32 s61, s67, {NWO}"); a(f"s_cmp_lt_u32 s61, {NFFN}"); a("s_cselect_b32 s13, 0, s13")
            a("v_mov_b32 v17, s13")
            a(f"ds_write_b32 v14, v17 offset:{L_FL+28}")
        a.label("L_nohint")
    a("s_cmp_lg_u32 s3, 7"); a("s_cbranch_scc1 L_noA")
    lds_wait(14, L_FL + 24, 4, 8, 8)
    osum(0, 140)
    a("s_setprio 3")
    a.label("L_noA")
    a("s_waitcnt vmcnt(0)")
    stamp("w_done")
    def b5():
        sk = L("nopubB")
        with live(): lds_wait(14, L_FL + 48, 4, 150, 1)
        a("s_cmp_lg_u32 s3, 7"); a(f"s_cbranch_scc1 {sk}")
        opub()
        with live(): a(f"s_setprio {hprio}")
        a.label(sk)
        stamp("tail")
    ffn_index("s52")
    if warm:
        a("s_mov_b64 exec, 0")
        a(f"s_cmp_lt_u32 s67, {NWO}"); a("s_cbranch_scc1 L_wo_go")
        a(f"s_cmp_lt_u32 s67, {NWO+NFFN}"); a("s_cbranch_scc1 L_ffn_go")
        a("s_branch L_none_go")
        a.label("L_warmed")
        a("s_mov_b64 exec, -1")
    a(f"s_cmp_lt_u32 s67, {NWO}"); a("s_cbranch_scc1 L_wo")
    a(f"s_cmp_lt_u32 s67, {NWO+NFFN}"); a("s_cbranch_scc1 L_ffn")
    a.label("L_none_go")
    a("s_cmp_lg_u32 s3, 7"); a("s_cbranch_scc1 L_tend")
    b5()
    a("s_branch L_tend")

    a.label("L_wo")
    if late_wo:
        lds_wait(14, L_FL + 44, wo_at, 8, 2)
        load_weights(0, fw=False)
    a("s_and_b32 s50, s67, 15"); a(f"s_mul_i32 s12, s50, {16*MB}"); a("s_lshl_b32 s13, s3, 7"); a("s_add_u32 s12, s12, s13")
    a("v_and_b32 v3, 7, v0"); a(f"v_mul_u32_u24 v2, {2*MB}, v3"); a("v_lshrrev_b32 v4, 3, v0"); a("v_lshl_add_u32 v2, v4, 4, v2"); a("v_add_u32 v2, s12, v2")
    a(f"v_add_u32 v8, {MB}, v2")
    a("v_lshrrev_b32 v5, 4, v0"); a("v_lshlrev_b32 v5, 3, v5"); a("v_lshl_add_u32 v5, v3, 5, v5")
    a("s_lshl_b32 s13, s3, 8"); a("v_add_u32 v5, s13, v5")
    a("s_mul_i32 s12, s50, 2560"); a("s_lshr_b32 s13, s67, 4"); a("s_lshl_b32 s13, s13, 8"); a("s_add_u32 s12, s12, s13"); a("v_add_u32 v7, s12, v6")
    a(f"v_add_u32 v6, {L_YL}, v6")
    for j in range(8): a(f"v_mov_b32 v{40+j}, 0")
    a.label("L_wo_go")
    b5()
    a("s_waitcnt vmcnt(2)"); a("s_cmp_eq_u32 s3, 7"); a("s_cbranch_scc1 L_wo_w"); a("s_waitcnt vmcnt(0)")
    a.label("L_wo_w")
    with live(): PW = pair_perm([[W0 + 4 * t + j for j in range(4)] for t in range(4)], 136)
    def io(v, d): return (lambda: a(f"global_load_dwordx4 v[{d}:{d+3}], v{v}, s[38:39] offset:{MB_O} sc1"), range(d, d + 4))
    def so():
        for j in range(4): a(f"v_add_f32 v{16+j}, v{24+j}, v{28+j}")
    with live(): spoll([io(2, 24), io(8, 28)], so, range(16, 20), 14, first=pfirst)
    stamp("e1")
    for pat in ("quad_perm:[1,0,3,2]", "quad_perm:[2,3,0,1]", "row_half_mirror"):
        for j in range(4): a(f"v_add_f32_dpp v{16+j}, v{16+j}, v{16+j} {pat} {FULL}")
    for i in range(2): a(f"v_cvt_pk_bf16_f32 v{32+i}, v{16+2*i}, v{17+2*i}")
    for i in range(2):
        for j in range(8): a(f"v_dot2c_f32_bf16 v{40+j}, v{32+i}, v{PW[i][j]}")
    red_g8(list(range(40, 48)), 48)
    a(f"v_add_f32_dpp v48, v48, v48 row_ror:8 {FULL}"); a(f"v_add_f32_dpp v49, v49, v49 row_ror:8 {FULL}")
    a(f"ds_write_b64 v5, v[48:49] offset:{L_YL}")
    a("s_waitcnt lgkmcnt(0)")
    with live(): a("s_barrier")
    a("s_cmp_lg_u32 s3, 0"); a("s_cbranch_scc1 L_tend")
    for w in range(4): a(f"ds_read2st64_b32 v[{16+2*w}:{17+2*w}], v6 offset0:{2*w} offset1:{2*w+1}")
    a("s_waitcnt lgkmcnt(0)")
    a("v_pk_add_f32 v[16:17], v[16:17], v[18:19]"); a("v_pk_add_f32 v[20:21], v[20:21], v[22:23]"); a("v_pk_add_f32 v[16:17], v[16:17], v[20:21]")
    a("v_add_f32 v16, v16, v17")
    guard([16])
    with live(): a("global_store_dword v7, v16, s[76:77] sc1")
    stamp("y_pub")
    a("s_branch L_tend")

    a.label("L_ffn")
    if late_ffn is not None:
        a("s_cmp_eq_u32 s3, 7"); a("s_cbranch_scc1 L_ffn_have")
        if late_ffn <= 8: lds_wait(14, L_FL + 44, 4 * late_ffn, 8, 4)
        else: lds_wait(14, L_FL + 48, 4, 8, 2); a("s_sleep 3")
        a(f"s_cmp_ge_u32 s3, {early_from}"); a("s_cbranch_scc1 L_ffn_gu")
        load_weights(lpace, wo=False, down=False)
        a.label("L_ffn_gu")
        if down_late: load_weights(lpace, wo=False, gu=False)
        a.label("L_ffn_have")
    a("v_lshrrev_b32 v2, 4, v0"); a("v_and_b32 v3, 15, v0")
    a("s_min_u32 s12, s3, 4"); a("s_lshl_b32 s12, s12, 8")
    a("v_lshrrev_b32 v5, 1, v2"); a("v_lshlrev_b32 v5, 7, v5"); a("v_lshl_add_u32 v5, v3, 3, v5")
    a("v_and_b32 v4, 1, v2"); a("v_lshl_add_u32 v5, v4, 2, v5"); a("v_add_u32 v5, s12, v5")
    a("global_load_dword v11, v5, s[16:17]")
    a("s_lshl_b32 s12, s3, 9")
    a("v_mul_u32_u24 v4, 10240, v2"); a("v_lshl_add_u32 v4, v3, 4, v4"); a("v_add_u32 v4, s12, v4")
    a("v_add_u32 v62, 5120, v4")
    a("v_lshlrev_b32 v5, 1, v5")
    a("s_lshl_b32 s13, s3, 3"); a("v_mov_b32 v6, s13"); a("v_mov_b32 v63, 0")
    a("v_lshrrev_b32 v7, 2, v0"); a("v_mul_u32_u24 v7, 40, v7"); a("s_and_b32 s13, s3, 3"); a("s_mul_i32 s13, s13, 640"); a("v_add_u32 v7, s13, v7")
    a("v_and_b32 v8, 3, v0"); a("v_lshlrev_b32 v8, 5, v8"); a("v_lshl_add_u32 v8, v2, 3, v8"); a("s_lshl_b32 s13, s3, 7"); a("v_add_u32 v8, s13, v8")
    a("v_and_b32 v9, 7, v0"); a("v_lshl_add_u32 v9, v2, 3, v9"); a("v_lshlrev_b32 v9, 2, v9"); a(f"v_add_u32 v9, {L_GU}, v9")
    a("s_mul_i32 s13, s52, 2560"); a("s_add_u32 s13, s13, s12"); a("v_lshlrev_b32 v10, 3, v0"); a("v_add_u32 v10, s13, v10")
    for j in range(8): a(f"v_mov_b32 v{52+j}, 0")
    a(f"s_mov_b32 s14, {LOG2E:#x}")
    lds_wait(14, L_FL + 52, 1, 150, 8)
    a.label("L_ffn_go")
    b5()
    a("s_waitcnt vmcnt(0)")
    stamp("x1")
    with live():
        a("v_and_b32 v13, 0xffff0000, v11"); a("v_lshlrev_b32 v12, 16, v11")
        PG = pair_perm([[W0 + 4 * t + j for j in range(4)] for t in range(10)], 136)
        PD = pair_perm([[W0 + 40 + 4 * t + j for j in range(4)] for t in range(8)], 137)
    a("s_cmp_ge_u32 s3, 5"); a("s_cbranch_scc1 L_h_wait")
    YI = [140, 148, 156, 24]
    HV = 40
    def iy(u):
        v, o = (4, 62)[u // 2], 2560 * (u % 2)
        return (lambda: (a(f"global_load_dwordx4 v[{YI[u]}:{YI[u]+3}], v{v}, s[76:77] offset:{o} sc1"),
                         a(f"global_load_dwordx4 v[{YI[u]+4}:{YI[u]+7}], v{v}, s[76:77] offset:{o+256} sc1")), range(YI[u], YI[u] + 8))
    def sy():
        for j in range(0, 8, 2):
            a(f"v_pk_add_f32 v[{16+j}:{17+j}], v[{YI[0]+j}:{YI[0]+j+1}], v[{YI[1]+j}:{YI[1]+j+1}]")
            a(f"v_pk_add_f32 v[{32+j}:{33+j}], v[{YI[2]+j}:{YI[2]+j+1}], v[{YI[3]+j}:{YI[3]+j+1}]")
        for j in range(0, 8, 2): a(f"v_pk_add_f32 v[{16+j}:{17+j}], v[{16+j}:{17+j}], v[{32+j}:{33+j}]")
    with live(): spoll([iy(u) for u in range(4)], sy, range(16, 24), 14, first=pfirst)
    stamp("e2")
    red_g8(list(range(16, 24)), 32)
    a("v_cvt_pk_bf16_f32 v34, v32, v33"); a("v_lshlrev_b32 v32, 16, v34"); a("v_and_b32 v33, 0xffff0000, v34")
    a("v_pk_add_f32 v[32:33], v[32:33], v[12:13]")
    a("v_cvt_pk_bf16_f32 v34, v32, v33"); a("v_lshlrev_b32 v32, 16, v34"); a("v_and_b32 v33, 0xffff0000, v34")
    a(f"ds_write_b64 v5, v[32:33] offset:{L_H}")
    a("v_readfirstlane_b32 s12, v32")
    a("v_subrev_f32 v34, s12, v32"); a("v_subrev_f32 v35, s12, v33")
    a("v_add_f32 v36, v34, v35"); a("v_mul_f32 v37, v34, v34"); a("v_fmac_f32 v37, v35, v35")
    for r in (8, 4, 2, 1):
        a(f"v_add_f32_dpp v36, v36, v36 row_ror:{r} {FULL}"); a(f"v_add_f32_dpp v37, v37, v37 row_ror:{r} {FULL}")
    a("v_permlane16_swap_b32 v36, v37")
    a("v_add_f32 v36, v36, v37")
    a("v_mov_b32 v37, v36"); a("v_permlane32_swap_b32 v36, v37"); a("v_add_f32 v36, v36, v37")
    a("v_mov_b32 v37, v36"); a("v_permlane16_swap_b32 v36, v37")
    a("v_mul_f32 v38, 0x3c000000, v36")
    a("v_fma_f32 v39, -v38, v36, v37"); a("v_add_f32 v38, s12, v38")
    a(f"ds_write_b64 v6, v[38:39] offset:{L_ST}")
    a("s_waitcnt lgkmcnt(0)")
    a.label("L_h_wait")
    with live(): a("s_barrier")
    a(f"ds_read_b128 v[32:35], v63 offset:{L_ST}"); a(f"ds_read_b128 v[36:39], v63 offset:{L_ST+16}"); a(f"ds_read_b64 v[22:23], v63 offset:{L_ST+32}")
    for i in range(5): a(f"ds_read_b64 v[{HV+2*i}:{HV+1+2*i}], v7 offset:{L_H+8*i}")
    a("s_waitcnt lgkmcnt(5)")
    a("v_pk_add_f32 v[50:51], v[32:33], v[34:35]"); a("v_pk_add_f32 v[60:61], v[36:37], v[38:39]")
    a("v_pk_add_f32 v[50:51], v[50:51], v[22:23]"); a("v_pk_add_f32 v[50:51], v[50:51], v[60:61]")
    a("v_mul_f32 v50, 0x3e4ccccd, v50")
    for i, r in enumerate((32, 34, 36, 38, 22)): a(f"v_sub_f32 v{r}, v{r}, v50")
    a("v_mul_f32 v60, v32, v32")
    for r in (34, 36, 38, 22): a(f"v_fmac_f32 v60, v{r}, v{r}")
    a("v_fmac_f32 v51, 0x43000000, v60")
    a(f"v_mul_f32 v51, {INV640:#x}, v51")
    a("v_cvt_pk_bf16_f32 v60, v50, v51"); a("v_lshlrev_b32 v50, 16, v60"); a("v_and_b32 v51, 0xffff0000, v60")
    a(f"v_add_f32 v51, {EPS:#x}, v51"); rbf(51, 51)
    a("v_sqrt_f32 v51, v51"); rbf(51, 51)
    a("v_rcp_f32 v51, v51")
    a("s_waitcnt lgkmcnt(0)")
    for i in range(5): a(f"v_pk_add_f32 v[{HV+2*i}:{HV+1+2*i}], v[{HV+2*i}:{HV+1+2*i}], v[50:51] op_sel_hi:[1,0] neg_lo:[0,1] neg_hi:[0,1]")
    for i in range(5): a(f"v_cvt_pk_bf16_f32 v{16+i}, v{HV+2*i}, v{HV+1+2*i}")
    for i in range(5): a(f"v_lshlrev_b32 v{HV+2*i}, 16, v{16+i}"); a(f"v_and_b32 v{HV+1+2*i}, 0xffff0000, v{16+i}")
    for i in range(5): a(f"v_pk_mul_f32 v[{HV+2*i}:{HV+1+2*i}], v[{HV+2*i}:{HV+1+2*i}], v[50:51] op_sel:[0,1] op_sel_hi:[1,1]")
    for i in range(5): a(f"v_cvt_pk_bf16_f32 v{16+i}, v{HV+2*i}, v{HV+1+2*i}")
    for i in range(5):
        for j in range(8):
            if i == 0: a(f"v_dot2_f32_bf16 v{40+j}, v{16+i}, v{PG[i][j]}, 0")
            else: a(f"v_dot2c_f32_bf16 v{40+j}, v{16+i}, v{PG[i][j]}")
    red_g8(list(range(40, 48)), 48)
    for r in (8, 4):
        a(f"v_add_f32_dpp v48, v48, v48 row_ror:{r} {FULL}"); a(f"v_add_f32_dpp v49, v49, v49 row_ror:{r} {FULL}")
    a(f"ds_write_b64 v8, v[48:49] offset:{L_GU}")
    a("s_waitcnt lgkmcnt(0)")
    with live(): a("s_barrier")
    stamp("gu")
    a("s_cmp_ge_u32 s3, 5"); a("s_cbranch_scc1 L_final")
    for w in range(4): a(f"ds_read2_b32 v[{16+2*w}:{17+2*w}], v9 offset0:{64*w} offset1:{64*w+32}")
    a("s_waitcnt lgkmcnt(0)")
    a("v_add_f32 v16, v16, v17"); a("v_add_f32 v18, v18, v19"); a("v_add_f32 v20, v20, v21"); a("v_add_f32 v22, v22, v23")
    a("v_add_f32 v16, v16, v18"); a("v_add_f32 v20, v20, v22")
    rbf(16, 16); rbf(20, 20)
    a("v_mul_f32 v17, s14, v16"); a("v_exp_f32 v17, -v17"); a("v_add_f32 v17, 1.0, v17"); a("v_rcp_f32 v17, v17")
    a("v_mul_f32 v16, v16, v17"); rbf(16, 16)
    a("v_mul_f32 v16, v16, v20")
    a(f"v_mov_b32_dpp v17, v16 quad_perm:[1,0,3,2] {FULL}")
    a("v_cvt_pk_bf16_f32 v16, v16, v17")
    for i in range(4):
        for j in range(8): a(f"v_dot2c_f32_bf16_dpp v{52+j}, v16, v{PD[i][j]} row_newbcast:{2*i} {FULL}")
    red_g8(list(range(52, 60)), 60)
    guard([60, 61])
    with live(): a("global_store_dwordx2 v10, v[60:61], s[78:79] sc1")
    stamp("f_pub")
    a("s_branch L_tend")
    a.label("L_final")
    a("s_cmp_lg_u32 s3, 5"); a("s_cbranch_scc1 L_tend")
    a(f"s_cmp_ge_u32 s52, {NFIN}"); a("s_cbranch_scc1 L_tend")
    a("s_mov_b32 s44, s78"); a("s_mov_b32 s45, s79"); a(f"s_mov_b32 s46, {NFFN*2560}"); a("s_mov_b32 s47, 0x20000")
    a("v_lshrrev_b32 v4, 3, v0"); a("v_mul_u32_u24 v4, 2560, v4"); a("v_and_b32 v5, 7, v0"); a("v_lshl_add_u32 v4, v5, 4, v4")
    a("s_lshl_b32 s12, s52, 7"); a("v_add_u32 v4, s12, v4")
    a("v_lshl_add_u32 v5, v5, 2, v2"); a("v_and_b32 v6, 1, v5"); a("v_lshrrev_b32 v5, 1, v5"); a("v_lshl_add_u32 v5, v5, 3, v6")
    a("s_lshr_b32 s12, s52, 2"); a("s_lshl_b32 s12, s12, 7"); a("s_and_b32 s13, s52, 3"); a("s_lshl_b32 s13, s13, 1"); a("s_add_u32 s12, s12, s13")
    a("v_add_u32 v5, s12, v5")
    a("v_lshlrev_b32 v6, 2, v5"); a("v_lshlrev_b32 v5, 1, v5")
    a(f"ds_read_b32 v7, v6 offset:{L_H}")
    for i in range(1, 7): a(f"s_mov_b32 s{80+i}, {8*2560*i}")
    def i3(i):
        return (lambda: a(f"buffer_load_dwordx4 v[{104+4*i}:{107+4*i}], v4, s[44:47], " + ("0" if i == 0 else f"s{80+i}") + " offen sc1"), range(104 + 4 * i, 108 + 4 * i))
    def s3():
        for j in (0, 2):
            a(f"v_pk_add_f32 v[{16+j}:{17+j}], v[{104+j}:{105+j}], v[{108+j}:{109+j}]")
            a(f"v_pk_add_f32 v[{20+j}:{21+j}], v[{112+j}:{113+j}], v[{116+j}:{117+j}]")
            a(f"v_pk_add_f32 v[{24+j}:{25+j}], v[{120+j}:{121+j}], v[{124+j}:{125+j}]")
        for j in (0, 2):
            a(f"v_pk_add_f32 v[{16+j}:{17+j}], v[{16+j}:{17+j}], v[{20+j}:{21+j}]")
            a(f"v_pk_add_f32 v[{24+j}:{25+j}], v[{24+j}:{25+j}], v[{128+j}:{129+j}]")
        for j in (0, 2): a(f"v_pk_add_f32 v[{16+j}:{17+j}], v[{16+j}:{17+j}], v[{24+j}:{25+j}]")
    with live(): spoll([i3(i) for i in range(7)], s3, range(16, 20), 14)
    stamp("e3")
    red_g4([16, 17, 18, 19], 20)
    a(f"v_add_f32_dpp v20, v20, v20 row_ror:8 {FULL}")
    rbf(20, 20)
    a("s_waitcnt lgkmcnt(0)")
    a("v_add_f32 v20, v20, v7")
    a("v_cvt_pk_bf16_f32 v20, v20, v20")
    if warm: a("s_cbranch_execz L_warmed")
    a("s_mov_b32 s12, 0x00ff00ff"); a("s_mov_b32 s13, 0x00ff00ff"); a("s_mov_b64 exec, s[12:13]")
    a("global_store_short v5, v20, s[34:35]")
    a("s_cmp_lg_u32 s52, 0"); a("s_cbranch_scc1 L_noep")
    a("s_mov_b64 exec, 1")
    a(f"v_mov_b32 v5, {WS_EP:#x}"); a("v_mov_b32 v6, s15")
    a("global_store_dword v5, v6, s[38:39]")
    if dbl:
        a("s_memrealtime s[90:91]"); a("s_waitcnt lgkmcnt(0)")
        a("s_sub_u32 s92, s90, s88"); a(f"s_mul_i32 s92, s92, {dbl}"); a("s_add_u32 s92, s92, s90"); a("s_mov_b32 s60, 100000")
        a.label("L_dbl")
        a("s_memrealtime s[90:91]"); a("s_waitcnt lgkmcnt(0)"); a("s_sub_u32 s93, s90, s92"); a("s_cmp_ge_i32 s93, 0"); a("s_cbranch_scc1 L_noep")
        a("s_sub_u32 s60, s60, 1"); a("s_cbranch_scc0 L_dbl")
    a.label("L_noep")
    a("s_mov_b64 exec, -1")
    stamp("out")
    a.label("L_tend")
    if warm: a("s_cbranch_execz L_warmed")
    a.label("L_fin")
    dump_stamps()
    a.label("L_exit")
    a("s_endpgm")
    nv = 168
    a.raw('.section .rodata,"a"'); a.raw(".p2align 6"); a.raw(f".amdhsa_kernel {KN}")
    a.raw(f"  .amdhsa_next_free_vgpr {nv}"); a.raw("  .amdhsa_next_free_sgpr 96"); a.raw(f"  .amdhsa_accum_offset {nv}")
    a.raw("  .amdhsa_group_segment_fixed_size 0"); a.raw("  .amdhsa_kernarg_size 96"); a.raw("  .amdhsa_user_sgpr_count 2")
    a.raw("  .amdhsa_user_sgpr_kernarg_segment_ptr 1"); a.raw("  .amdhsa_system_sgpr_workgroup_id_x 1")
    a.raw("  .amdhsa_float_denorm_mode_32 3")
    a.raw(".end_amdhsa_kernel")
    return a.text(), stampn

if __name__ == "__main__":
    out = sys.argv[1] if len(sys.argv) > 1 else "sequential_preLN__mha_block_cached__swiglu_ffn__decode.s"
    kw = eval("dict(%s)" % sys.argv[2]) if len(sys.argv) > 2 else {}
    t, st = gen(**kw)
    open(out, "w").write(t)
    print("wrote", out, len(t.splitlines()), "lines", st)
```

```python
import sys
sys.path.insert(0, "work")
from asmlib import Asm

KN = "sequential_preLN__mha_block_cached__swiglu_ffn__decode_kernel"
HEADER = open("sequential_preLN__mha_block_cached__swiglu_ffn__decode.s.ref").read().split("; Override launch")[0]

MB = 4352
MB_Q = 0
MB_ST = 512
MB_O = 1024
WS_EP = 0x110000
WS_YP = 0x120000
WS_FP = 0x130000
L_FL = 0
L_Q = 256
L_QS = 768
L_SC = 2048
L_PP = L_SC + 32768
L_OL = L_PP + 16384
L_YL = L_OL + 4096
L_H = L_YL + 2048
L_GU = L_H + 2560
L_ST = L_GU + 1024
L_END = L_ST + 64
NWO, NFFN, NFIN = 160, 54, 20
NWAVE = 12
SPIN = 20000
LSPIN = 2000000
LOG2E = 0x3fb8aa3b
SCALE = 0x3db504f3
INV640 = 0x3acccccd
EPS = 0x3727c5ac
FULL = "row_mask:0xf bank_mask:0xf"

def gen(diag=False, wpol="nt", sleep=1, wpace=2, prio=3, now=False, ssleep=4, bs=False, DS=(5, 6, 8), GR=2, rolemix=True, modes=(1, 1, 2), F=8, epace=2, masked=True, lastit=3, hprio=2, pairx=False, noclear=False, dbl=0, kvpol='nt', warm=True, pdepth=1, pfirst=3, psleep=0, fine=True, hint=None, hs=64, hk=3, tlb=False, pre=6, late_wo=True, late_ffn=None, lpace=0, early_from=7, down_late=True, deep_until=99, wo_at=32, gupol=None, rev=False, kdeep=True):
    a = Asm()
    uid = [0]
    def L(n):
        uid[0] += 1
        return f"L_{n}_{uid[0]}"
    stampn = {}
    SV = 166
    def stamp(name):
        if not diag: return
        if diag == 1 and name not in ("start", "v_done", "out"): return
        if diag == 4 and name not in ("start", "v_done", "out", "iss0", "land0", "land1", "land3", "s_filled", "q_ready", "h_x", "h_dots", "qp_pub", "q_got", "ka_done"): return
        if diag == 2 and name not in ("start", "v_done", "tail", "e1", "y_pub", "e2", "gu", "f_pub", "e3", "out", "x1", "x2", "x3", "x4"): return
        i = stampn.setdefault(name, len(stampn))
        sk = L("st"); a(f"s_cbranch_execz {sk}")
        a("s_memrealtime s[90:91]"); a("s_waitcnt lgkmcnt(0)"); a(f"v_writelane_b32 v{SV}, s90, {i}")
        a.label(sk)
    def prog():
        if diag != 3: return
        a("s_memrealtime s[90:91]"); a("s_waitcnt lgkmcnt(0)"); a("s_mov_b32 m0, s94"); a("s_nop 0"); a(f"v_writelane_b32 v{SV}, s90, m0"); a("s_add_u32 s94, s94, 1")
    def dump_stamps():
        if not diag: return
        a("s_add_u32 s90, s38, 0x10000000"); a("s_addc_u32 s91, s39, 0")
        a(f"s_mul_i32 s92, s2, {NWAVE}"); a("s_add_u32 s92, s92, s93"); a("s_lshl_b32 s92, s92, 8")
        a(f"v_lshlrev_b32 v{SV+1}, 2, v0"); a(f"v_add_u32 v{SV+1}, s92, v{SV+1}")
        a(f"global_store_dword v{SV+1}, v{SV}, s[90:91]")

    class live:
        def __enter__(self_):
            self_.l = L("live")
            if warm: a(f"s_cbranch_execz {self_.l}")
        def __exit__(self_, *x):
            if warm: a.label(self_.l)
    def rbf(dst, src):
        a(f"v_cvt_pk_bf16_f32 v{dst}, v{src}, v{src}"); a(f"v_and_b32 v{dst}, 0xffff0000, v{dst}")
    def rowred(op, v):
        for r in (8, 4, 2, 1):
            a(f"{op}_dpp v{v}, v{v}, v{v} row_ror:{r} {FULL}")
    def allred(op, v, t):
        rowred(op, v)
        a(f"v_mov_b32 v{t}, v{v}"); a(f"v_permlane16_swap_b32 v{v}, v{t}"); a(f"{op} v{v}, v{v}, v{t}")
        a(f"v_mov_b32 v{t}, v{v}"); a(f"v_permlane32_swap_b32 v{v}, v{t}"); a(f"{op} v{v}, v{v}, v{t}")
    def red_g8(r, dst):
        for j in range(4): a(f"v_permlane32_swap_b32 v{r[j]}, v{r[j+4]}")
        for j in range(4): a(f"v_add_f32 v{r[j]}, v{r[j]}, v{r[j+4]}")
        a(f"v_permlane16_swap_b32 v{r[0]}, v{r[2]}"); a(f"v_permlane16_swap_b32 v{r[1]}, v{r[3]}")
        a(f"v_add_f32 v{dst}, v{r[0]}, v{r[2]}"); a(f"v_add_f32 v{dst+1}, v{r[1]}, v{r[3]}")
    def red_g4(r, dst):
        a(f"v_permlane32_swap_b32 v{r[0]}, v{r[2]}"); a(f"v_permlane32_swap_b32 v{r[1]}, v{r[3]}")
        a(f"v_add_f32 v{r[0]}, v{r[0]}, v{r[2]}"); a(f"v_add_f32 v{r[1]}, v{r[1]}, v{r[3]}")
        a(f"v_permlane16_swap_b32 v{r[0]}, v{r[1]}")
        a(f"v_add_f32 v{dst}, v{r[0]}, v{r[1]}")
    def guard(regs):
        for r in regs: a(f"v_min_u32 v{r}, -2, v{r}")
    def poll(issue, regs, t, cnt="s60", sleep=sleep):
        top, done = L("poll"), L("polled")
        a(f"s_mov_b32 {cnt}, {SPIN}")
        a.label(top)
        issue()
        a("s_waitcnt vmcnt(0)")
        rs = list(regs)
        if len(rs) == 2:
            a(f"v_max_u32 v{t}, v{rs[0]}, v{rs[1]}")
        else:
            a(f"v_max3_u32 v{t}, v{rs[0]}, v{rs[1]}, v{rs[2]}")
            rs = rs[3:]
            while len(rs) >= 2:
                a(f"v_max3_u32 v{t}, v{t}, v{rs[0]}, v{rs[1]}"); rs = rs[2:]
            if rs: a(f"v_max_u32 v{t}, v{t}, v{rs[0]}")
        a(f"v_cmp_eq_u32 vcc, -1, v{t}")
        a(f"s_cbranch_vccz {done}")
        if sleep: a(f"s_sleep {sleep}")
        a(f"s_sub_u32 {cnt}, {cnt}, 1")
        a(f"s_cbranch_scc0 {top}")
        a.label(done)
    def umax(t, rs):
        rs = list(rs)
        a(f"v_max3_u32 v{t}, v{rs[0]}, v{rs[1]}, v{rs[2]}")
        rs = rs[3:]
        while len(rs) >= 2:
            a(f"v_max3_u32 v{t}, v{t}, v{rs[0]}, v{rs[1]}"); rs = rs[2:]
        if rs: a(f"v_max_u32 v{t}, v{t}, v{rs[0]}")
    def mpoll(groups, t, sm):
        if not masked:
            def allissue():
                for g, _ in groups: g()
            poll(allissue, [r for _, rs in groups for r in rs], t)
            return
        top, done = L("mpoll"), L("mpolled")
        a(f"s_mov_b32 s60, {SPIN}")
        for g, _ in groups: g()
        a.label(top)
        a("s_waitcnt vmcnt(0)")
        for i, (_, rs) in enumerate(groups): umax(t + i, rs)
        for i in range(len(groups)): a(f"v_cmp_eq_u32 s[{sm+2*i}:{sm+2*i+1}], -1, v{t+i}")
        a(f"s_or_b64 s[58:59], s[{sm}:{sm+1}], s[{sm+2}:{sm+3}]")
        for i in range(2, len(groups)): a(f"s_or_b64 s[58:59], s[58:59], s[{sm+2*i}:{sm+2*i+1}]")
        a(f"s_cbranch_scc0 {done}")
        if sleep: a(f"s_sleep {sleep}")
        for i, (g, _) in enumerate(groups):
            sk = L("mskip")
            a(f"s_mov_b64 exec, s[{sm+2*i}:{sm+2*i+1}]")
            a(f"s_cbranch_execz {sk}")
            g()
            a.label(sk)
        a("s_mov_b64 exec, -1")
        a("s_sub_u32 s60, s60, 1")
        a(f"s_cbranch_scc0 {top}")
        a("s_waitcnt vmcnt(0)")
        a.label(done)
    def spoll(groups, sums, outs, t, first=0):
        top, done = L("spoll"), L("spolled")
        a(f"s_mov_b32 s60, {SPIN}")
        if first: a(f"s_sleep {first}")
        for g, _ in groups: g()
        a.label(top)
        a("s_waitcnt vmcnt(0)")
        sums()
        umax(t, outs)
        a(f"v_cmp_eq_u32 vcc, -1, v{t}")
        a(f"s_cbranch_vccz {done}")
        if psleep: a(f"s_sleep {psleep}")
        if fine:
            for g, rs in groups:
                sk = L("gsk")
                umax(t, rs)
                a(f"v_cmp_eq_u32 vcc, -1, v{t}")
                a(f"s_cbranch_vccz {sk}")
                a("s_mov_b64 exec, vcc")
                g()
                a("s_mov_b64 exec, -1")
                a.label(sk)
        else:
            a("s_mov_b64 exec, vcc")
            for g, _ in groups: g()
            a("s_mov_b64 exec, -1")
        a("s_sub_u32 s60, s60, 1")
        a(f"s_cbranch_scc0 {top}")
        a("s_waitcnt vmcnt(0)")
        a.label(done)
    def lds_wait(vaddr, off, val, t, slp):
        top, done = L("lw"), L("lwd")
        a(f"s_mov_b32 s60, {LSPIN}")
        a.label(top)
        a(f"ds_read_b32 v{t}, v{vaddr} offset:{off}")
        a("s_waitcnt lgkmcnt(0)")
        a(f"v_cmp_gt_u32 vcc, {val}, v{t}")
        a(f"s_cbranch_vccz {done}")
        a(f"s_sleep {slp}")
        a("s_sub_u32 s60, s60, 1"); a(f"s_cbranch_scc0 {top}")
        a.label(done)
    def lds_signal(vaddr, off, one):
        a("s_waitcnt lgkmcnt(0)")
        a("s_mov_b64 exec, 1"); a(f"ds_add_u32 v{vaddr}, v{one} offset:{off}"); a("s_mov_b64 exec, -1")
    def pair_perm(W, spare):
        out = []
        for t in range(0, len(W), 2):
            cols = []
            for j in range(4):
                A_, B_ = W[t][j], W[t + 1][j]
                a(f"v_perm_b32 v{spare}, v{B_}, v{A_}, s70")
                a(f"v_perm_b32 v{B_}, v{B_}, v{A_}, s71")
                cols += [spare, B_]
                spare = A_
            out.append(cols)
        return out
    def ln_stats(x, m, rs, t0, t1):
        a(f"v_add_f32 v{m}, v{x[0]}, v{x[1]}")
        for r in x[2:]: a(f"v_add_f32 v{m}, v{m}, v{r}")
        allred("v_add_f32", m, t0)
        a(f"v_mul_f32 v{m}, {INV640:#x}, v{m}")
        for i, r in enumerate(x):
            a(f"v_sub_f32 v{t0}, v{r}, v{m}")
            if i == 0: a(f"v_mul_f32 v{rs}, v{t0}, v{t0}")
            else: a(f"v_fmac_f32 v{rs}, v{t0}, v{t0}")
        allred("v_add_f32", rs, t0)
        a(f"v_mul_f32 v{rs}, {INV640:#x}, v{rs}")
        rbf(rs, rs); rbf(m, m)
        a(f"v_add_f32 v{rs}, {EPS:#x}, v{rs}"); rbf(rs, rs)
        a(f"v_sqrt_f32 v{rs}, v{rs}"); rbf(rs, rs)
        a(f"v_rcp_f32 v{rs}, v{rs}")

    a.raw(HEADER.rstrip("\n"))
    a.raw(f"; @launch grid=(256,1,1) block=({64*NWAVE},1,1) lds={L_END}")
    a.raw('.amdgcn_target "amdgcn-amd-amdhsa--gfx950"')
    a.raw(".text"); a.raw(f".globl {KN}"); a.raw(".p2align 8"); a.raw(f".type {KN},@function")
    a.label(KN)
    a("s_cmp_ge_u32 s2, 256"); a("s_cbranch_scc1 L_exit")
    if dbl or diag == 4: a("s_memrealtime s[88:89]")
    a("s_load_dwordx16 s[16:31], s[0:1], 0")
    a("s_load_dwordx8 s[32:39], s[0:1], 64")
    a("v_lshrrev_b32 v1, 6, v0")
    a("v_and_b32 v0, 63, v0")
    a("v_readfirstlane_b32 s3, v1")
    if diag: a(f"v_mov_b32 v{SV}, 0")
    a("v_lshlrev_b32 v1, 4, v0")
    a("s_lshr_b32 s4, s2, 4")
    if diag: a("s_mov_b32 s93, s3"); a("s_mov_b32 s94, 32")
    if rolemix:
        a("s_mul_i32 s67, s4, 3"); a("s_add_u32 s67, s67, s2"); a("s_and_b32 s67, s67, 15"); a("s_lshl_b32 s67, s67, 4"); a("s_add_u32 s67, s67, s4")
    else:
        a("s_mov_b32 s67, s2")
    a("s_cmp_ge_u32 s3, 4"); a("s_cbranch_scc1 L_helper")

    R0 = 36
    ring = [8]
    def slot(ck, i): return R0 + 16 * (ck % ring[0]) + 4 * i
    def issue_chunk(ck, pacer=None, lo=0, hi=4):
        for i in range(lo, hi):
            if pacer and i % GR == 0: pacer(i)
            s = slot(ck, i)
            a(f"buffer_load_dwordx4 v[{s}:{s+3}], v1, s[8:11], s12 offen offset:{1024*i} {kvpol}")
        if hi == 4: a("s_add_u32 s12, s12, 0x4000")
    a("s_add_u32 s5, s2, s4"); a("s_and_b32 s5, s5, 7")
    a("s_and_b32 s6, s2, 8"); a("s_or_b32 s5, s5, s6")
    a("s_lshl_b32 s13, s4, 23"); a("s_lshl_b32 s14, s5, 18"); a("s_add_u32 s13, s13, s14")
    a("s_lshl_b32 s14, s3, 12"); a("s_add_u32 s13, s13, s14")
    a("s_mov_b32 s12, s13")
    a("s_mov_b32 s10, 0x8000000"); a("s_mov_b32 s11, 0x20000")
    a("s_waitcnt lgkmcnt(0)")
    a("s_mov_b32 s8, s18"); a("s_mov_b32 s9, s19")
    if diag == 4: a(f"v_writelane_b32 v{SV}, s88, 59")
    stamp("start")
    if bs: a("s_barrier")
    issue_chunk(0)
    if pre > 4: issue_chunk(1, None, 0, pre - 4)
    stamp("iss0")
    a(f"s_add_u32 s14, s14, {L_SC}")
    a("v_lshlrev_b32 v20, 2, v0"); a("v_add_u32 v20, s14, v20")
    a("v_and_b32 v21, 15, v0"); a("v_lshlrev_b32 v21, 4, v21")
    a("v_mov_b32 v22, 0"); a("v_mov_b32 v23, 1")
    stamp("s_issued")
    if not bs: a("s_barrier")
    a(f"s_mov_b32 s15, {modes[0]}")
    a(f"s_cmp_lt_u32 s67, {NWO+NFFN}"); a(f"s_cselect_b32 s15, {modes[2]}, s15")
    a(f"s_cmp_lt_u32 s67, {NWO}"); a(f"s_cselect_b32 s15, {modes[1]}, s15")
    a("s_mov_b32 s46, s15"); a("s_mov_b32 s47, 4"); a("v_mov_b32 v3, 0")
    def hint_read():
        if hint is not None: a(f"ds_read_b32 v2, v3 offset:{L_FL+28}")
    def hint_apply():
        if hint is None: return
        a("v_readfirstlane_b32 s45, v2")
        a("s_lshr_b32 s48, s45, 8"); a("s_and_b32 s45, s45, 3")
        a("s_cmp_lt_u32 s47, s48"); a("s_cselect_b32 s15, s45, s46")
        a("s_add_u32 s47, s47, 1")
    def hint_mark(off):
        if hint is None: return
        sk = L("hm")
        a("s_cmp_lg_u32 s6, 0"); a(f"s_cbranch_scc1 {sk}")
        a("s_mov_b64 exec, 1"); a(f"ds_add_u32 v22, v23 offset:{off}"); a("s_mov_b64 exec, -1")
        a.label(sk)
    def pace(i):
        go = L("go")
        a(f"s_waitcnt vmcnt({DS[2]-GR})")
        if DS[1] != DS[2] or DS[0] != DS[2]:
            a("s_cmp_ge_u32 s15, 2"); a(f"s_cbranch_scc1 {go}")
            a(f"s_waitcnt vmcnt({DS[1]-GR})")
            if DS[0] != DS[1]:
                a("s_cmp_ge_u32 s15, 1"); a(f"s_cbranch_scc1 {go}")
                a(f"s_waitcnt vmcnt({DS[0]-GR})")
            a.label(go)
    assert DS[2] <= 8
    for ck in range(1, F):
        if ck == 1 and pre == 8: continue
        issue_chunk(ck, lambda i: a(f"s_waitcnt vmcnt({DS[1]-GR})"), (pre - 4 if ck == 1 else 0))
        if ck in (1, 2, 4): stamp({1: "land0", 2: "land1", 4: "land3"}[ck])
    stamp("s_filled")
    lds_wait(22, L_FL + 4, 4, 8, 1)
    a(f"ds_read_b128 v[4:7], v21 offset:{L_Q}")
    a(f"ds_read_b128 v[16:19], v21 offset:{L_Q+256}")
    a("s_waitcnt lgkmcnt(0)")
    stamp("q_ready")
    def switch_point():
        a("s_cmp_eq_u32 s6, 3")
        a("s_cselect_b32 s8, s40, s8"); a("s_cselect_b32 s9, s41, s9")
        a("s_cselect_b32 s12, s42, s12"); a("s_cselect_b32 s10, s43, s10")
    def proc_k(ck, q, off):
        for j in range(4):
            for i in range(4):
                a(f"v_dot2_f32_bf16 v{8+i}, v{slot(ck,i)+j}, v{q+j}, " + ("0" if j == 0 else f"v{8+i}"))
        a("v_add_f32_dpp v12, v8, v8 row_ror:8 row_mask:0xf bank_mask:0x3")
        a("s_nop 0")
        a("v_add_f32_dpp v13, v10, v10 row_ror:8 row_mask:0xf bank_mask:0x3")
        a("v_add_f32_dpp v12, v9, v9 row_ror:8 row_mask:0xf bank_mask:0xc")
        a("v_add_f32_dpp v13, v11, v11 row_ror:8 row_mask:0xf bank_mask:0xc")
        a("v_add_f32_dpp v14, v12, v12 row_half_mirror row_mask:0xf bank_mask:0x5")
        a("v_add_f32_dpp v14, v13, v13 row_half_mirror row_mask:0xf bank_mask:0xa")
        a(f"ds_write_b32 v20, v14 offset:{off}")
    n = F
    since = 9
    burst = 0
    for k in range(16):
        if n - ring[0] < k and n < 18 and (n - k <= 2 or since >= 2 or burst < 2):
            if n == 16: a("s_add_u32 s12, s13, 0x400000")
            issue_chunk(n, pace); n += 1; since = 0; burst += 1
        assert k <= n - 3
        proc_k(k, 4, 256 * k)
        since += 1
        if k % 4 == 3: prog()
    assert n == 18, n
    lds_signal(22, L_FL + 8, 23)
    stamp("ka_done")
    ring[0] = 4
    a("s_mov_b32 s40, s20"); a("s_mov_b32 s41, s21"); a("s_mov_b32 s42, s13"); a("s_mov_b32 s43, 0x8000000")
    if not kdeep: a(f"s_mov_b32 s15, {modes[0]}")
    a("s_mov_b32 s6, 0")
    a.label("L_kiter")
    hint_read()
    for k in range(4):
        if k == 2: switch_point()
        issue_chunk(k + 2, pace)
        if k == 0 and hint is not None: a("s_waitcnt lgkmcnt(0)"); hint_apply()
        proc_k(k, 16, 0x4000 + 256 * k)
        if k == hk: hint_mark(L_FL + 32)
    prog()
    a("v_add_u32 v20, 0x400, v20")
    a("s_add_u32 s6, s6, 1"); a("s_cmp_lt_u32 s6, 4"); a("s_cbranch_scc1 L_kiter")
    lds_signal(22, L_FL + 12, 23)
    stamp("k_done")
    a("s_lshl_b32 s14, s3, 11"); a(f"s_add_u32 s14, s14, {L_PP}")
    a("v_lshlrev_b32 v20, 3, v0"); a("v_add_u32 v20, s14, v20")
    a("s_lshl_b32 s14, s3, 9"); a(f"s_add_u32 s14, s14, {L_OL}")
    a("v_and_b32 v21, 15, v0"); a("v_lshlrev_b32 v21, 5, v21"); a("v_lshrrev_b32 v8, 4, v0"); a("v_lshl_add_u32 v21, v8, 3, v21")
    a("v_add_u32 v21, s14, v21")
    a("s_add_u32 s42, s13, 0x400000")
    a("s_mov_b32 s7, 0"); a("s_mov_b32 s44, 99")
    a.label("L_vhead")
    lds_wait(22, L_FL + 16, 1, 8, 1)
    stamp("p_wait")
    for j in range(8): a(f"v_mov_b32 v{24+j}, 0")
    a("s_mov_b32 s6, 0")
    a.label("L_viter")
    a("ds_read_b64 v[32:33], v20")
    hint_read()
    if deep_until < 8:
        a("s_lshl_b32 s45, s7, 2"); a("s_add_u32 s45, s45, s6"); a(f"s_cmp_ge_u32 s45, {deep_until}"); a(f"s_cselect_b32 s15, {modes[0]}, s15")
    a("s_cmp_ge_u32 s6, s44"); a("s_cselect_b32 s15, 2, s15")
    for k in range(4):
        if k == 2: switch_point()
        if k >= 2:
            dr, go = L("drain"), L("drained")
            a("s_cmp_eq_u32 s10, 0"); a(f"s_cbranch_scc1 {dr}")
            issue_chunk(k + 2, pace)
            a(f"s_branch {go}")
            a.label(dr)
            a(f"s_waitcnt vmcnt({4*(3-k)})")
            a.label(go)
        else:
            issue_chunk(k + 2, pace)
        if k == 1: a("s_mov_b64 exec, 1"); a(f"ds_add_u32 v3, v23 offset:{L_FL+44}"); a("s_mov_b64 exec, -1")
        if k == 0:
            a("s_waitcnt lgkmcnt(0)")
            hint_apply()
            if hint is not None: a("s_cmp_ge_u32 s6, s44"); a("s_cselect_b32 s15, 2, s15")
        for i in range(4):
            s = slot(k, i)
            c = ((i & 1) << 3) | ((i >> 1) << 2) | k
            for j in range(4):
                a(f"v_dot2c_f32_bf16_dpp v{24+2*j}, v32, v{s+j} row_newbcast:{c} {FULL}")
                a(f"v_dot2c_f32_bf16_dpp v{25+2*j}, v33, v{s+j} row_newbcast:{c} {FULL}")
        if k == hk: hint_mark(L_FL + 36)
    prog()
    a("v_add_u32 v20, 0x200, v20")
    a("s_add_u32 s6, s6, 1"); a("s_cmp_lt_u32 s6, 4"); a("s_cbranch_scc1 L_viter")
    red_g8(list(range(24, 32)), 34)
    a("ds_write_b64 v21, v[34:35]")
    a("s_cmp_lg_u32 s7, 0"); a("s_cbranch_scc1 L_vend")
    lds_signal(22, L_FL + 24, 23)
    stamp("va_done")
    a("v_add_u32 v20, 0x1800, v20"); a("v_add_u32 v21, 0x800, v21"); a("v_mov_b32 v22, 4")
    a("s_mov_b32 s43, 0"); a("s_mov_b32 s7, 1"); a(f"s_mov_b32 s44, {lastit}")
    a("s_branch L_vhead")
    a.label("L_vend")
    a("s_mov_b64 exec, 1"); a(f"ds_add_u32 v3, v23 offset:{L_FL+48}"); a("s_mov_b64 exec, -1")
    stamp("v_done")
    a("s_branch L_fin")

    def ffn_index(d):
        a(f"s_sub_u32 {d}, s67, {NWO}")
        if pairx:
            a(f"s_and_b32 s64, {d}, 7"); a("s_lshl_b32 s64, s64, 1"); a(f"s_bfe_u32 s65, {d}, 0x10003"); a("s_add_u32 s64, s64, s65")
            a(f"s_and_b32 s65, {d}, 0x30"); a("s_add_u32 s64, s64, s65")
            a(f"s_cmp_lt_u32 {d}, 48"); a(f"s_cselect_b32 {d}, s64, {d}")
    W0 = 64
    def load_weights(wpace=wpace, down=True, wo=True, fw=True, gu=True):
        if now or not (wo or fw): return
        ffn, done = L("ffnw"), L("wdone")
        cnt = [0]
        def ld(idx, off, pol=wpol):
            if wpace and cnt[0] >= wpace: a(f"s_waitcnt vmcnt({wpace-1})")
            cnt[0] += 1
            a(f"buffer_load_dwordx4 v[{W0+4*idx}:{W0+4*idx+3}], v2, s[44:47], s50 offen offset:{off} {pol}")
        a(f"s_cmp_ge_u32 s67, {NWO}"); a(f"s_cbranch_scc1 {ffn}")
        if not wo: a(f"s_branch {done}")
        a("s_mov_b32 s44, s24"); a("s_mov_b32 s45, s25"); a(f"s_mov_b32 s46, {4096*1280}"); a("s_mov_b32 s47, 0x20000")
        a("s_and_b32 s50, s67, 15"); a("s_lshl_b32 s50, s50, 3"); a("s_add_u32 s50, s50, s3"); a(f"s_mul_i32 s50, s50, {32*1280}")
        a("s_lshr_b32 s51, s67, 4"); a("s_lshl_b32 s51, s51, 7"); a("s_add_u32 s50, s50, s51")
        a("v_lshrrev_b32 v2, 3, v0"); a(f"v_mul_u32_u24 v2, {4*1280}, v2"); a("v_and_b32 v3, 7, v0"); a("v_lshl_add_u32 v2, v3, 4, v2")
        for t in range(4 if wo else 0): ld(t, t * 1280)
        a(f"s_branch {done}")
        a.label(ffn)
        cnt[0] = 0
        if not fw:
            a.label(done); return
        a(f"s_cmp_ge_u32 s67, {NWO+NFFN}"); a(f"s_cbranch_scc1 {done}")
        a("s_cmp_lt_u32 s3, 4"); a("s_cselect_b32 s44, s28, s30"); a("s_cselect_b32 s45, s29, s31")
        a(f"s_mov_b32 s46, {640*3456}"); a("s_mov_b32 s47, 0x20000")
        ffn_index("s52")
        a("s_and_b32 s50, s3, 3"); a(f"s_mul_i32 s50, s50, {160*3456}"); a("s_lshl_b32 s51, s52, 6"); a("s_add_u32 s50, s50, s51")
        a("v_lshrrev_b32 v2, 2, v0"); a(f"v_mul_u32_u24 v2, {10*3456}, v2"); a("v_and_b32 v3, 3, v0"); a("v_lshl_add_u32 v2, v3, 4, v2")
        gp = wpol if gupol is None else gupol
        if gu and rev:
            od, jn = L("odd"), L("join")
            a("s_bitcmp1_b32 s52, 0"); a(f"s_cbranch_scc1 {od}")
        for t in range(10 if gu else 0):
            if t and t % 2 == 0: a(f"s_add_u32 s50, s50, {2*3456}")
            ld(t, (t % 2) * 3456, gp)
        if gu and rev:
            a(f"s_branch {jn}")
            a.label(od)
            cnt[0] = 0
            a(f"s_add_u32 s50, s50, {8*3456}")
            for t in range(9, -1, -1):
                ld(t, (t % 2) * 3456, gp)
                if t and t % 2 == 0: a(f"s_sub_u32 s50, s50, {2*3456}")
            a.label(jn)
        if not down:
            a.label(done); return
        a("s_cmp_ge_u32 s3, 5"); a(f"s_cbranch_scc1 {done}")
        a("s_mov_b32 s44, s32"); a("s_mov_b32 s45, s33"); a(f"s_mov_b32 s46, {1728*1280}")
        a(f"s_mul_i32 s50, s52, {32*1280}"); a("s_lshl_b32 s51, s3, 8"); a("s_add_u32 s50, s50, s51")
        a("v_lshrrev_b32 v2, 4, v0"); a(f"v_mul_u32_u24 v2, {8*1280}, v2"); a("v_and_b32 v3, 15, v0"); a("v_lshl_add_u32 v2, v3, 4, v2")
        for t in range(8):
            if t == 4: a(f"s_add_u32 s50, s50, {4*1280}")
            ld(10 + t, (t % 4) * 1280)
        a.label(done)

    a.label("L_helper")
    a("s_sub_u32 s3, s3, 4")
    a("s_and_b32 s6, s2, 15")
    a("v_lshlrev_b32 v6, 2, v0")
    a("v_mov_b32 v14, 0"); a("v_mov_b32 v15, 1")
    a("s_mov_b32 s70, 0x05040100"); a("s_mov_b32 s71, 0x07060302")
    a("s_cmp_ge_u32 s3, 4"); a("s_cbranch_scc1 L_helper2")
    if prio: a(f"s_setprio {prio}")
    a("v_lshrrev_b32 v2, 3, v0")
    a("v_and_b32 v3, 7, v0")
    a("v_mul_u32_u24 v4, 5, v2")
    a("s_lshr_b32 s8, s6, 2"); a("s_lshl_b32 s8, s8, 2"); a("s_add_u32 s8, s8, s3"); a("s_mul_i32 s8, s8, 40")
    a("v_add_u32 v4, s8, v4")
    a("v_lshlrev_b32 v5, 13, v4"); a("v_lshl_add_u32 v5, v3, 4, v5")
    a("v_lshlrev_b32 v4, 1, v4")
    a("s_lshl_b32 s9, s4, 9"); a("s_and_b32 s10, s6, 3"); a("s_lshl_b32 s10, s10, 7"); a("s_add_u32 s9, s9, s10")
    a(f"s_mov_b32 s46, {640*8192}"); a("s_mov_b32 s47, 0x20000")
    a("s_waitcnt lgkmcnt(0)")
    stamp("start")
    a(f"s_add_u32 s74, s38, {WS_EP}"); a("s_addc_u32 s75, s39, 0")
    a("s_load_dword s15, s[74:75], 0")
    a("global_load_dwordx4 v[16:19], v1, s[16:17]"); a("global_load_dword v20, v6, s[16:17] offset:1024")
    for t in range(5): a(f"global_load_ushort v{21+t}, v4, s[16:17] offset:{2*t}")
    a("s_mov_b32 s44, s22"); a("s_mov_b32 s45, s23")
    for t in range(5):
        a(f"buffer_load_dwordx4 v[{64+4*t}:{64+4*t+3}], v5, s[44:47], s9 offen {wpol}")
        if t < 4: a("s_add_u32 s9, s9, 0x2000")
    a("s_barrier")
    a("v_lshlrev_b32 v12, 2, v2"); a("v_lshl_add_u32 v12, v3, 5, v12")
    a("s_lshl_b32 s12, s3, 8"); a("v_add_u32 v12, s12, v12")
    a("s_mov_b32 s62, 0xff00ff00"); a("s_mov_b32 s63, 0xff00ff00")
    stamp("h_issued")
    a("s_waitcnt vmcnt(5)")
    stamp("h_x")
    for i in range(5):
        a(f"v_and_b32 v{30+2*i+1}, 0xffff0000, v{16+i}"); a(f"v_lshlrev_b32 v{30+2*i}, 16, v{16+i}")
    ln_stats(list(range(30, 40)), 26, 27, 28, 29)
    for t in range(5):
        a(f"v_lshlrev_b32 v{21+t}, 16, v{21+t}"); a(f"v_sub_f32 v{21+t}, v{21+t}, v26"); rbf(21 + t, 21 + t)
        a(f"v_mul_f32 v{21+t}, v{21+t}, v27")
        a(f"v_cvt_pk_bf16_f32 v{30+t}, v{21+t}, 0"); a(f"v_cvt_pk_bf16_f32 v{35+t}, 0, v{21+t}")
    for j in range(8): a(f"v_mov_b32 v{40+j}, 0")
    stamp("h_ln")
    for t in range(5):
        a(f"s_waitcnt vmcnt({4-t})")
        for j in range(4):
            a(f"v_dot2c_f32_bf16 v{40+2*j}, v{30+t}, v{64+4*t+j}"); a(f"v_dot2c_f32_bf16 v{41+2*j}, v{35+t}, v{64+4*t+j}")
    red_g8(list(range(40, 48)), 48)
    a(f"v_add_f32_dpp v48, v48, v48 row_ror:8 {FULL}"); a(f"v_add_f32_dpp v49, v49, v49 row_ror:8 {FULL}")
    a("v_cndmask_b32 v48, v48, v49, s[62:63]")
    a(f"ds_write_b32 v12, v48 offset:{L_QS}")
    a("s_waitcnt lgkmcnt(0)")
    a("s_add_u32 s15, s15, 1")
    a("s_mov_b64 exec, 1"); a(f"ds_add_rtn_u32 v13, v14, v15 offset:{L_FL}"); a("s_mov_b64 exec, -1")
    a("v_lshrrev_b32 v10, 5, v0"); a(f"v_mul_u32_u24 v12, {8*MB}, v10"); a("v_and_b32 v11, 31, v0"); a("v_lshl_add_u32 v12, v11, 4, v12")
    a("s_lshl_b32 s12, s4, 4"); a("s_add_u32 s12, s12, s3"); a(f"s_mul_i32 s12, s12, {MB}"); a("v_add_u32 v12, s12, v12")
    a(f"v_add_u32 v9, {4*MB}, v12")
    a("s_waitcnt lgkmcnt(0)")
    a("v_readfirstlane_b32 s12, v13")
    stamp("h_dots")
    a("s_cmp_lg_u32 s12, 3"); a("s_cbranch_scc1 L_qnopub")
    a(f"v_add_u32 v16, {L_QS}, v6")
    a("ds_read2st64_b32 v[18:19], v16 offset0:0 offset1:1"); a("ds_read2st64_b32 v[20:21], v16 offset0:2 offset1:3")
    a(f"s_mul_i32 s12, s2, {MB}"); a("v_lshlrev_b32 v17, 3, v0"); a("v_add_u32 v17, s12, v17")
    a("s_waitcnt lgkmcnt(0)")
    a("v_add_f32 v18, v18, v19"); a("v_add_f32 v20, v20, v21"); a("v_add_f32 v18, v18, v20"); a("v_mov_b32 v19, s15")
    a("global_store_dwordx2 v17, v[18:19], s[38:39] sc1")
    stamp("qp_pub")
    a.label("L_qnopub")
    a(f"s_mov_b32 s60, {SPIN}")
    a.label("L_qpoll")
    a("global_load_dwordx4 v[24:27], v12, s[38:39] sc1"); a("global_load_dwordx4 v[28:31], v9, s[38:39] sc1")
    a("s_waitcnt vmcnt(0)")
    for r in (25, 27, 29, 31): a(f"v_xor_b32 v{r}, s15, v{r}")
    a("v_or3_b32 v25, v25, v27, v29"); a("v_or_b32 v25, v25, v31")
    a("v_cmp_ne_u32 vcc, 0, v25")
    a("s_cbranch_vccz L_qpolled")
    if sleep: a(f"s_sleep {sleep}")
    a("s_sub_u32 s60, s60, 1"); a("s_cbranch_scc0 L_qpoll")
    a.label("L_qpolled")
    stamp("q_got")
    a("v_add_f32 v24, v24, v28"); a("v_add_f32 v26, v26, v30")
    a("v_permlane32_swap_b32 v24, v26")
    a("v_add_f32 v24, v24, v26")
    a("v_cvt_pk_bf16_f32 v24, v24, v24")
    a("v_lshl_add_u32 v12, v11, 1, v10"); a("v_lshlrev_b32 v12, 1, v12")
    a("s_lshl_b32 s12, s3, 7"); a("v_add_u32 v12, s12, v12")
    a(f"ds_write_b16 v12, v24 offset:{L_Q}")
    lds_signal(14, L_FL + 4, 15)
    a(f"s_setprio {hprio}")
    a("s_branch L_weights")

    a.label("L_helper2")
    a(f"s_setprio {hprio}")
    a("s_cmp_lg_u32 s3, 4"); a("s_cbranch_scc1 L_noinit")
    a(f"ds_write_b32 v6, v14 offset:{L_FL}")
    a.label("L_noinit")
    a("s_waitcnt lgkmcnt(0)")
    stamp("start")
    a(f"s_add_u32 s74, s38, {WS_EP}"); a("s_addc_u32 s75, s39, 0")
    a("s_load_dword s15, s[74:75], 0")
    a("s_cmp_lg_u32 s3, 6"); a("s_cbranch_scc1 L_clrdone")
    if noclear: a("s_branch L_clrdone")
    for r in range(8, 12): a(f"v_mov_b32 v{r}, -1")
    a(f"s_mul_i32 s11, s2, {MB}"); a("v_add_u32 v7, s11, v1")
    a(f"global_store_dwordx4 v7, v[8:11], s[38:39] offset:{MB_O} sc1")
    a(f"s_cmp_ge_u32 s67, {NWO}"); a("s_cbranch_scc1 L_clrffn")
    a("s_and_b32 s12, s67, 15"); a("s_mul_i32 s12, s12, 2560"); a("s_lshr_b32 s13, s67, 4"); a("s_lshl_b32 s13, s13, 8"); a("s_add_u32 s12, s12, s13")
    a(f"s_add_u32 s12, s12, {WS_YP}"); a("v_add_u32 v12, s12, v6")
    a("global_store_dword v12, v8, s[38:39] sc1")
    a("s_branch L_clrdone")
    a.label("L_clrffn")
    a(f"s_cmp_ge_u32 s67, {NWO+NFFN}"); a("s_cbranch_scc1 L_clrdone")
    ffn_index("s12"); a("s_mul_i32 s12, s12, 2560"); a(f"s_add_u32 s12, s12, {WS_FP}")
    a("v_add_u32 v12, s12, v1")
    a("global_store_dwordx4 v12, v[8:11], s[38:39] sc1"); a("global_store_dwordx4 v12, v[8:11], s[38:39] offset:1024 sc1")
    a("s_mov_b32 exec_hi, 0")
    a("global_store_dwordx4 v12, v[8:11], s[38:39] offset:2048 sc1")
    a("s_mov_b64 exec, -1")
    a.label("L_clrdone")
    a("s_barrier")
    if late_ffn is not None:
        a(f"s_cmp_lt_u32 s3, {early_from}"); a("s_cbranch_scc1 L_noearly")
        load_weights(epace, wo=False, down=False)
        a.label("L_noearly")
        if not down_late: load_weights(epace, wo=False, gu=False)
    else:
        load_weights(epace, wo=not late_wo)
    if tlb:
        a("s_cmp_lg_u32 s3, 5"); a("s_cbranch_scc1 L_notlb")
        a("s_add_u32 s12, s2, s4"); a("s_and_b32 s12, s12, 7"); a("s_and_b32 s13, s2, 8"); a("s_or_b32 s12, s12, s13")
        a("s_lshl_b32 s13, s4, 23"); a("s_lshl_b32 s12, s12, 18"); a("s_add_u32 s12, s12, s13")
        a("v_mov_b32 v16, s12"); a("v_add_u32 v17, 0x400000, v16")
        a("s_mov_b64 exec, 1")
        a("global_load_dword v18, v17, s[18:19] nt"); a("global_load_dword v19, v16, s[20:21] nt"); a("global_load_dword v20, v17, s[20:21] nt")
        a("s_mov_b64 exec, -1")
        a.label("L_notlb")
    a("s_waitcnt lgkmcnt(0)")
    a("s_add_u32 s15, s15, 1")
    a("s_cmp_lt_u32 s3, 6"); a("s_cbranch_scc1 L_weights_done")
    a("s_sub_u32 s7, s3, 6")
    a("s_lshl_b32 s12, s7, 2"); a("v_mov_b32 v13, s12")
    a("v_and_b32 v20, 3, v0"); a("v_lshlrev_b32 v20, 8, v20"); a("v_and_b32 v21, 60, v0"); a("v_lshl_add_u32 v20, v21, 2, v20")
    a("s_lshl_b32 s12, s7, 14"); a(f"s_add_u32 s12, s12, {L_SC}"); a("v_add_u32 v20, s12, v20")
    a("s_lshl_b32 s12, s7, 13"); a(f"s_add_u32 s12, s12, {L_PP}"); a("v_lshlrev_b32 v21, 3, v0"); a("v_add_u32 v21, s12, v21")
    a(f"s_mul_i32 s12, s4, {16*MB}"); a("s_lshl_b32 s13, s7, 7"); a("s_add_u32 s12, s12, s13")
    a("v_and_b32 v22, 15, v0"); a(f"v_mul_u32_u24 v22, {MB}, v22"); a("v_add_u32 v22, s12, v22")
    a(f"s_mul_i32 s13, s6, {MB}"); a("s_add_u32 s12, s12, s13"); a("v_mov_b32 v23, s12")
    a(f"s_mov_b32 s14, {LOG2E:#x}")
    lds_wait(13, L_FL + 8, 4, 8, 4)
    S = list(range(32, 48))
    for i in range(16):
        if i % 8 == 0:
            for u in range(8): a(f"ds_read_b128 v[{104+4*u}:{107+4*u}], v20 offset:{1024*(i+u)}")
        b = 104 + 4 * (i % 8)
        a(f"s_waitcnt lgkmcnt({7-i%8})")
        a(f"v_add_f32 v{b}, v{b}, v{b+1}"); a(f"v_add_f32 v{b+2}, v{b+2}, v{b+3}"); a(f"v_add_f32 v{S[i]}, v{b}, v{b+2}")
        rbf(S[i], S[i]); a(f"v_mul_f32 v{S[i]}, {SCALE:#x}, v{S[i]}"); rbf(S[i], S[i])
    a(f"v_max_f32 v28, v{S[0]}, v{S[1]}")
    for i in range(2, 16, 2): a(f"v_max3_f32 v28, v28, v{S[i]}, v{S[i+1]}")
    allred("v_max_f32", 28, 30)
    for i in range(16):
        a(f"v_sub_f32 v{104+i}, v{S[i]}, v28"); a(f"v_mul_f32 v{104+i}, s14, v{104+i}"); a(f"v_exp_f32 v{104+i}, v{104+i}")
    for st in (8, 4, 2):
        for i in range(st): a(f"v_add_f32 v{104+i}, v{104+i}, v{104+i+st}")
    a("v_add_f32 v29, v104, v105")
    allred("v_add_f32", 29, 30)
    a("v_mov_b32 v24, v28"); a("v_mov_b32 v25, s15"); a("v_mov_b32 v26, v29"); a("v_mov_b32 v27, s15")
    a("s_waitcnt vmcnt(0)")
    a("s_mov_b64 exec, 1")
    a(f"global_store_dwordx4 v23, v[24:27], s[38:39] offset:{MB_ST} sc1")
    a("s_mov_b64 exec, -1")
    stamp("st_pub")
    a(f"s_mov_b32 s60, {SPIN}")
    a.label("L_stpoll")
    a(f"global_load_dwordx4 v[16:19], v22, s[38:39] offset:{MB_ST} sc1")
    a("s_waitcnt vmcnt(0)")
    a("v_xor_b32 v17, s15, v17"); a("v_xor_b32 v19, s15, v19"); a("v_or_b32 v17, v17, v19")
    a("v_cmp_ne_u32 vcc, 0, v17")
    a("s_cbranch_vccz L_stpolled")
    a(f"s_sleep {ssleep}")
    a("s_sub_u32 s60, s60, 1"); a("s_cbranch_scc0 L_stpoll")
    a.label("L_stpolled")
    a("v_mov_b32 v24, v16"); a("v_mov_b32 v25, v18")
    a("v_mov_b32 v28, v24")
    rowred("v_max_f32", 28)
    a("v_sub_f32 v24, v24, v28"); a("v_mul_f32 v24, s14, v24"); a("v_exp_f32 v24, v24"); a("v_mul_f32 v29, v24, v25")
    rowred("v_add_f32", 29)
    a("v_rcp_f32 v29, v29")
    for i in range(16):
        a(f"v_sub_f32 v{S[i]}, v{S[i]}, v28"); a(f"v_mul_f32 v{S[i]}, s14, v{S[i]}"); a(f"v_exp_f32 v{S[i]}, v{S[i]}")
    for i in range(16):
        a(f"v_mul_f32 v{S[i]}, v{S[i]}, v29")
        a(f"v_cvt_pk_bf16_f32 v{104+2*i}, v{S[i]}, 0"); a(f"v_cvt_pk_bf16_f32 v{105+2*i}, 0, v{S[i]}")
        a(f"ds_write_b64 v21, v[{104+2*i}:{105+2*i}] offset:{512*i}")
    lds_signal(13, L_FL + 16, 15)
    stamp("p_ready")
    a("s_cmp_lg_u32 s3, 7"); a("s_cbranch_scc1 L_weights_done")
    a(f"s_cmp_ge_u32 s67, {NWO+NFFN}"); a("s_cbranch_scc1 L_weights_done")
    a(f"s_cmp_lt_u32 s67, {NWO}"); a("s_cbranch_scc1 L_weights_done")
    a(f"v_mul_u32_u24 v16, {MB}, v0")
    for i in range(1, 4): a(f"v_add_u32 v{16+i}, {64*MB*i:#x}, v16")
    a(f"s_mov_b32 s60, {SPIN}")
    a.label("L_marks")
    for i in range(4):
        a(f"global_load_dword v{20+i}, v{16+i}, s[38:39] offset:{MB_ST+4} sc1")
        a("s_waitcnt vmcnt(0)")
    for i in range(4): a(f"v_xor_b32 v{20+i}, s15, v{20+i}")
    a("v_or3_b32 v20, v20, v21, v22"); a("v_or_b32 v20, v20, v23")
    a("v_cmp_ne_u32 vcc, 0, v20")
    a("s_cbranch_vccz L_marked")
    a("s_sleep 32")
    a("s_sub_u32 s60, s60, 1"); a("s_cbranch_scc0 L_marks")
    a.label("L_marked")
    lds_signal(14, L_FL + 52, 15)
    a("s_branch L_weights_done")

    a.label("L_weights")
    if late_ffn is None: load_weights(wo=not late_wo)
    else:
        if early_from < 4:
            a(f"s_cmp_lt_u32 s3, {early_from}"); a("s_cbranch_scc1 L_noearly2")
            load_weights(wo=False, down=False)
            a.label("L_noearly2")
        if not down_late: load_weights(wo=False, gu=False)
    a.label("L_weights_done")
    a(f"s_add_u32 s76, s38, {WS_YP}"); a("s_addc_u32 s77, s39, 0")
    a(f"s_add_u32 s78, s38, {WS_FP}"); a("s_addc_u32 s79, s39, 0")
    def osum(head, d):
        for w in range(4): a(f"ds_read_b64 v[{142+2*w}:{143+2*w}], v138 offset:{L_OL+2048*head+512*w}")
        a("s_waitcnt lgkmcnt(0)")
        a("v_pk_add_f32 v[142:143], v[142:143], v[144:145]"); a("v_pk_add_f32 v[146:147], v[146:147], v[148:149]")
        a(f"v_pk_add_f32 v[{d}:{d+1}], v[142:143], v[146:147]")
        guard([d, d + 1])
    def opub():
        with live(): a(f"global_store_dwordx2 v139, v[140:141], s[38:39] offset:{MB_O} sc1")
        osum(1, 142)
        with live(): a(f"global_store_dwordx2 v139, v[142:143], s[38:39] offset:{MB_O+512} sc1")
    a("v_lshlrev_b32 v138, 3, v0")
    a(f"s_mul_i32 s11, s2, {MB}"); a("v_add_u32 v139, s11, v138")
    if hint is not None:
        a("s_cmp_lg_u32 s3, 5"); a("s_cbranch_scc1 L_nohint")
        a("v_mul_u32_u24 v16, 37, v0"); a("v_add_u32 v16, s2, v16"); a("v_and_b32 v16, 255, v16"); a(f"v_mul_u32_u24 v16, {MB}, v16")
        for h in range(2):
            if hint[h] is None: continue
            nb0, kb, nt0, kt = hint[h]
            lds_wait(14, L_FL + 32 + 4 * h, 4, 8, 4)
            if hs == 32: a("s_mov_b32 exec_hi, 0")
            a(f"global_load_dword v17, v16, s[38:39] offset:{MB_ST+4+128*h} sc1")
            a("s_waitcnt vmcnt(0)")
            a("v_cmp_eq_u32 vcc, s15, v17")
            if hs == 32: a("s_mov_b64 exec, -1")
            a("s_bcnt1_i32_b64 s12, vcc")
            if hs == 32: a("s_lshl_b32 s12, s12, 1")
            if diag: a(f"v_writelane_b32 v{SV}, s12, {60+h}")
            it0 = (6 if hk >= 2 else 5) + 4 * h
            a("s_mov_b32 s13, 0")
            a(f"s_sub_i32 s61, s12, {nb0}"); a(f"s_mul_i32 s61, s61, {kb}"); a("s_ashr_i32 s61, s61, 4")
            a(f"s_add_u32 s62, s61, {it0}"); a("s_lshl_b32 s62, s62, 8"); a("s_or_b32 s62, s62, 2")
            a("s_cmp_gt_i32 s61, 0"); a("s_cselect_b32 s13, s62, s13")
            a(f"s_sub_i32 s61, {nt0}, s12"); a(f"s_mul_i32 s61, s61, {kt}"); a("s_ashr_i32 s61, s61, 4")
            a(f"s_add_u32 s62, s61, {it0}"); a("s_lshl_b32 s62, s62, 8")
            a("s_cmp_gt_i32 s61, 0"); a("s_cselect_b32 s13, s62, s13")
            a(f"s_sub_u32 s61, s67, {NWO}"); a(f"s_cmp_lt_u32 s61, {NFFN}"); a("s_cselect_b32 s13, 0, s13")
            a("v_mov_b32 v17, s13")
            a(f"ds_write_b32 v14, v17 offset:{L_FL+28}")
        a.label("L_nohint")
    a("s_cmp_lg_u32 s3, 7"); a("s_cbranch_scc1 L_noA")
    lds_wait(14, L_FL + 24, 4, 8, 8)
    osum(0, 140)
    a("s_setprio 3")
    a.label("L_noA")
    a("s_waitcnt vmcnt(0)")
    stamp("w_done")
    def b5():
        sk = L("nopubB")
        with live(): lds_wait(14, L_FL + 48, 4, 150, 1)
        a("s_cmp_lg_u32 s3, 7"); a(f"s_cbranch_scc1 {sk}")
        opub()
        with live(): a(f"s_setprio {hprio}")
        a.label(sk)
        stamp("tail")
    ffn_index("s52")
    if warm:
        a("s_mov_b64 exec, 0")
        a(f"s_cmp_lt_u32 s67, {NWO}"); a("s_cbranch_scc1 L_wo_go")
        a(f"s_cmp_lt_u32 s67, {NWO+NFFN}"); a("s_cbranch_scc1 L_ffn_go")
        a("s_branch L_none_go")
        a.label("L_warmed")
        a("s_mov_b64 exec, -1")
    a(f"s_cmp_lt_u32 s67, {NWO}"); a("s_cbranch_scc1 L_wo")
    a(f"s_cmp_lt_u32 s67, {NWO+NFFN}"); a("s_cbranch_scc1 L_ffn")
    a.label("L_none_go")
    a("s_cmp_lg_u32 s3, 7"); a("s_cbranch_scc1 L_tend")
    b5()
    a("s_branch L_tend")

    a.label("L_wo")
    if late_wo:
        lds_wait(14, L_FL + 44, wo_at, 8, 2)
        load_weights(0, fw=False)
    a("s_and_b32 s50, s67, 15"); a(f"s_mul_i32 s12, s50, {16*MB}"); a("s_lshl_b32 s13, s3, 7"); a("s_add_u32 s12, s12, s13")
    a("v_and_b32 v3, 7, v0"); a(f"v_mul_u32_u24 v2, {2*MB}, v3"); a("v_lshrrev_b32 v4, 3, v0"); a("v_lshl_add_u32 v2, v4, 4, v2"); a("v_add_u32 v2, s12, v2")
    a(f"v_add_u32 v8, {MB}, v2")
    a("v_lshrrev_b32 v5, 4, v0"); a("v_lshlrev_b32 v5, 3, v5"); a("v_lshl_add_u32 v5, v3, 5, v5")
    a("s_lshl_b32 s13, s3, 8"); a("v_add_u32 v5, s13, v5")
    a("s_mul_i32 s12, s50, 2560"); a("s_lshr_b32 s13, s67, 4"); a("s_lshl_b32 s13, s13, 8"); a("s_add_u32 s12, s12, s13"); a("v_add_u32 v7, s12, v6")
    a(f"v_add_u32 v6, {L_YL}, v6")
    for j in range(8): a(f"v_mov_b32 v{40+j}, 0")
    a.label("L_wo_go")
    b5()
    a("s_waitcnt vmcnt(2)"); a("s_cmp_eq_u32 s3, 7"); a("s_cbranch_scc1 L_wo_w"); a("s_waitcnt vmcnt(0)")
    a.label("L_wo_w")
    with live(): PW = pair_perm([[W0 + 4 * t + j for j in range(4)] for t in range(4)], 136)
    def io(v, d): return (lambda: a(f"global_load_dwordx4 v[{d}:{d+3}], v{v}, s[38:39] offset:{MB_O} sc1"), range(d, d + 4))
    def so():
        for j in range(4): a(f"v_add_f32 v{16+j}, v{24+j}, v{28+j}")
    with live(): spoll([io(2, 24), io(8, 28)], so, range(16, 20), 14, first=pfirst)
    stamp("e1")
    for pat in ("quad_perm:[1,0,3,2]", "quad_perm:[2,3,0,1]", "row_half_mirror"):
        for j in range(4): a(f"v_add_f32_dpp v{16+j}, v{16+j}, v{16+j} {pat} {FULL}")
    for i in range(2): a(f"v_cvt_pk_bf16_f32 v{32+i}, v{16+2*i}, v{17+2*i}")
    for i in range(2):
        for j in range(8): a(f"v_dot2c_f32_bf16 v{40+j}, v{32+i}, v{PW[i][j]}")
    red_g8(list(range(40, 48)), 48)
    a(f"v_add_f32_dpp v48, v48, v48 row_ror:8 {FULL}"); a(f"v_add_f32_dpp v49, v49, v49 row_ror:8 {FULL}")
    a(f"ds_write_b64 v5, v[48:49] offset:{L_YL}")
    a("s_waitcnt lgkmcnt(0)")
    with live(): a("s_barrier")
    a("s_cmp_lg_u32 s3, 0"); a("s_cbranch_scc1 L_tend")
    for w in range(4): a(f"ds_read2st64_b32 v[{16+2*w}:{17+2*w}], v6 offset0:{2*w} offset1:{2*w+1}")
    a("s_waitcnt lgkmcnt(0)")
    a("v_pk_add_f32 v[16:17], v[16:17], v[18:19]"); a("v_pk_add_f32 v[20:21], v[20:21], v[22:23]"); a("v_pk_add_f32 v[16:17], v[16:17], v[20:21]")
    a("v_add_f32 v16, v16, v17")
    guard([16])
    with live(): a("global_store_dword v7, v16, s[76:77] sc1")
    stamp("y_pub")
    a("s_branch L_tend")

    a.label("L_ffn")
    if late_ffn is not None:
        a("s_cmp_eq_u32 s3, 7"); a("s_cbranch_scc1 L_ffn_have")
        if late_ffn <= 8: lds_wait(14, L_FL + 44, 4 * late_ffn, 8, 4)
        else: lds_wait(14, L_FL + 48, 4, 8, 2); a("s_sleep 3")
        a(f"s_cmp_ge_u32 s3, {early_from}"); a("s_cbranch_scc1 L_ffn_gu")
        load_weights(lpace, wo=False, down=False)
        a.label("L_ffn_gu")
        if down_late: load_weights(lpace, wo=False, gu=False)
        a.label("L_ffn_have")
    a("v_lshrrev_b32 v2, 4, v0"); a("v_and_b32 v3, 15, v0")
    a("s_min_u32 s12, s3, 4"); a("s_lshl_b32 s12, s12, 8")
    a("v_lshrrev_b32 v5, 1, v2"); a("v_lshlrev_b32 v5, 7, v5"); a("v_lshl_add_u32 v5, v3, 3, v5")
    a("v_and_b32 v4, 1, v2"); a("v_lshl_add_u32 v5, v4, 2, v5"); a("v_add_u32 v5, s12, v5")
    a("global_load_dword v11, v5, s[16:17]")
    a("s_lshl_b32 s12, s3, 9")
    a("v_mul_u32_u24 v4, 10240, v2"); a("v_lshl_add_u32 v4, v3, 4, v4"); a("v_add_u32 v4, s12, v4")
    a("v_add_u32 v62, 5120, v4")
    a("v_lshlrev_b32 v5, 1, v5")
    a("s_lshl_b32 s13, s3, 3"); a("v_mov_b32 v6, s13"); a("v_mov_b32 v63, 0")
    a("v_lshrrev_b32 v7, 2, v0"); a("v_mul_u32_u24 v7, 40, v7"); a("s_and_b32 s13, s3, 3"); a("s_mul_i32 s13, s13, 640"); a("v_add_u32 v7, s13, v7")
    a("v_and_b32 v8, 3, v0"); a("v_lshlrev_b32 v8, 5, v8"); a("v_lshl_add_u32 v8, v2, 3, v8"); a("s_lshl_b32 s13, s3, 7"); a("v_add_u32 v8, s13, v8")
    a("v_and_b32 v9, 7, v0"); a("v_lshl_add_u32 v9, v2, 3, v9"); a("v_lshlrev_b32 v9, 2, v9"); a(f"v_add_u32 v9, {L_GU}, v9")
    a("s_mul_i32 s13, s52, 2560"); a("s_add_u32 s13, s13, s12"); a("v_lshlrev_b32 v10, 3, v0"); a("v_add_u32 v10, s13, v10")
    for j in range(8): a(f"v_mov_b32 v{52+j}, 0")
    a(f"s_mov_b32 s14, {LOG2E:#x}")
    lds_wait(14, L_FL + 52, 1, 150, 8)
    a.label("L_ffn_go")
    b5()
    a("s_waitcnt vmcnt(0)")
    stamp("x1")
    with live():
        a("v_and_b32 v13, 0xffff0000, v11"); a("v_lshlrev_b32 v12, 16, v11")
        PG = pair_perm([[W0 + 4 * t + j for j in range(4)] for t in range(10)], 136)
        PD = pair_perm([[W0 + 40 + 4 * t + j for j in range(4)] for t in range(8)], 137)
    a("s_cmp_ge_u32 s3, 5"); a("s_cbranch_scc1 L_h_wait")
    YI = [140, 148, 156, 24]
    HV = 40
    def iy(u):
        v, o = (4, 62)[u // 2], 2560 * (u % 2)
        return (lambda: (a(f"global_load_dwordx4 v[{YI[u]}:{YI[u]+3}], v{v}, s[76:77] offset:{o} sc1"),
                         a(f"global_load_dwordx4 v[{YI[u]+4}:{YI[u]+7}], v{v}, s[76:77] offset:{o+256} sc1")), range(YI[u], YI[u] + 8))
    def sy():
        for j in range(0, 8, 2):
            a(f"v_pk_add_f32 v[{16+j}:{17+j}], v[{YI[0]+j}:{YI[0]+j+1}], v[{YI[1]+j}:{YI[1]+j+1}]")
            a(f"v_pk_add_f32 v[{32+j}:{33+j}], v[{YI[2]+j}:{YI[2]+j+1}], v[{YI[3]+j}:{YI[3]+j+1}]")
        for j in range(0, 8, 2): a(f"v_pk_add_f32 v[{16+j}:{17+j}], v[{16+j}:{17+j}], v[{32+j}:{33+j}]")
    with live(): spoll([iy(u) for u in range(4)], sy, range(16, 24), 14, first=pfirst)
    stamp("e2")
    red_g8(list(range(16, 24)), 32)
    a("v_cvt_pk_bf16_f32 v34, v32, v33"); a("v_lshlrev_b32 v32, 16, v34"); a("v_and_b32 v33, 0xffff0000, v34")
    a("v_pk_add_f32 v[32:33], v[32:33], v[12:13]")
    a("v_cvt_pk_bf16_f32 v34, v32, v33"); a("v_lshlrev_b32 v32, 16, v34"); a("v_and_b32 v33, 0xffff0000, v34")
    a(f"ds_write_b64 v5, v[32:33] offset:{L_H}")
    a("v_readfirstlane_b32 s12, v32")
    a("v_subrev_f32 v34, s12, v32"); a("v_subrev_f32 v35, s12, v33")
    a("v_add_f32 v36, v34, v35"); a("v_mul_f32 v37, v34, v34"); a("v_fmac_f32 v37, v35, v35")
    for r in (8, 4, 2, 1):
        a(f"v_add_f32_dpp v36, v36, v36 row_ror:{r} {FULL}"); a(f"v_add_f32_dpp v37, v37, v37 row_ror:{r} {FULL}")
    a("v_permlane16_swap_b32 v36, v37")
    a("v_add_f32 v36, v36, v37")
    a("v_mov_b32 v37, v36"); a("v_permlane32_swap_b32 v36, v37"); a("v_add_f32 v36, v36, v37")
    a("v_mov_b32 v37, v36"); a("v_permlane16_swap_b32 v36, v37")
    a("v_mul_f32 v38, 0x3c000000, v36")
    a("v_fma_f32 v39, -v38, v36, v37"); a("v_add_f32 v38, s12, v38")
    a(f"ds_write_b64 v6, v[38:39] offset:{L_ST}")
    a("s_waitcnt lgkmcnt(0)")
    a.label("L_h_wait")
    with live(): a("s_barrier")
    a(f"ds_read_b128 v[32:35], v63 offset:{L_ST}"); a(f"ds_read_b128 v[36:39], v63 offset:{L_ST+16}"); a(f"ds_read_b64 v[22:23], v63 offset:{L_ST+32}")
    for i in range(5): a(f"ds_read_b64 v[{HV+2*i}:{HV+1+2*i}], v7 offset:{L_H+8*i}")
    a("s_waitcnt lgkmcnt(5)")
    a("v_pk_add_f32 v[50:51], v[32:33], v[34:35]"); a("v_pk_add_f32 v[60:61], v[36:37], v[38:39]")
    a("v_pk_add_f32 v[50:51], v[50:51], v[22:23]"); a("v_pk_add_f32 v[50:51], v[50:51], v[60:61]")
    a("v_mul_f32 v50, 0x3e4ccccd, v50")
    for i, r in enumerate((32, 34, 36, 38, 22)): a(f"v_sub_f32 v{r}, v{r}, v50")
    a("v_mul_f32 v60, v32, v32")
    for r in (34, 36, 38, 22): a(f"v_fmac_f32 v60, v{r}, v{r}")
    a("v_fmac_f32 v51, 0x43000000, v60")
    a(f"v_mul_f32 v51, {INV640:#x}, v51")
    a("v_cvt_pk_bf16_f32 v60, v50, v51"); a("v_lshlrev_b32 v50, 16, v60"); a("v_and_b32 v51, 0xffff0000, v60")
    a(f"v_add_f32 v51, {EPS:#x}, v51"); rbf(51, 51)
    a("v_sqrt_f32 v51, v51"); rbf(51, 51)
    a("v_rcp_f32 v51, v51")
    a("s_waitcnt lgkmcnt(0)")
    for i in range(5): a(f"v_pk_add_f32 v[{HV+2*i}:{HV+1+2*i}], v[{HV+2*i}:{HV+1+2*i}], v[50:51] op_sel_hi:[1,0] neg_lo:[0,1] neg_hi:[0,1]")
    for i in range(5): a(f"v_cvt_pk_bf16_f32 v{16+i}, v{HV+2*i}, v{HV+1+2*i}")
    for i in range(5): a(f"v_lshlrev_b32 v{HV+2*i}, 16, v{16+i}"); a(f"v_and_b32 v{HV+1+2*i}, 0xffff0000, v{16+i}")
    for i in range(5): a(f"v_pk_mul_f32 v[{HV+2*i}:{HV+1+2*i}], v[{HV+2*i}:{HV+1+2*i}], v[50:51] op_sel:[0,1] op_sel_hi:[1,1]")
    for i in range(5): a(f"v_cvt_pk_bf16_f32 v{16+i}, v{HV+2*i}, v{HV+1+2*i}")
    for i in range(5):
        for j in range(8):
            if i == 0: a(f"v_dot2_f32_bf16 v{40+j}, v{16+i}, v{PG[i][j]}, 0")
            else: a(f"v_dot2c_f32_bf16 v{40+j}, v{16+i}, v{PG[i][j]}")
    red_g8(list(range(40, 48)), 48)
    for r in (8, 4):
        a(f"v_add_f32_dpp v48, v48, v48 row_ror:{r} {FULL}"); a(f"v_add_f32_dpp v49, v49, v49 row_ror:{r} {FULL}")
    a(f"ds_write_b64 v8, v[48:49] offset:{L_GU}")
    a("s_waitcnt lgkmcnt(0)")
    with live(): a("s_barrier")
    stamp("gu")
    a("s_cmp_ge_u32 s3, 5"); a("s_cbranch_scc1 L_final")
    for w in range(4): a(f"ds_read2_b32 v[{16+2*w}:{17+2*w}], v9 offset0:{64*w} offset1:{64*w+32}")
    a("s_waitcnt lgkmcnt(0)")
    a("v_add_f32 v16, v16, v17"); a("v_add_f32 v18, v18, v19"); a("v_add_f32 v20, v20, v21"); a("v_add_f32 v22, v22, v23")
    a("v_add_f32 v16, v16, v18"); a("v_add_f32 v20, v20, v22")
    rbf(16, 16); rbf(20, 20)
    a("v_mul_f32 v17, s14, v16"); a("v_exp_f32 v17, -v17"); a("v_add_f32 v17, 1.0, v17"); a("v_rcp_f32 v17, v17")
    a("v_mul_f32 v16, v16, v17"); rbf(16, 16)
    a("v_mul_f32 v16, v16, v20")
    a(f"v_mov_b32_dpp v17, v16 quad_perm:[1,0,3,2] {FULL}")
    a("v_cvt_pk_bf16_f32 v16, v16, v17")
    for i in range(4):
        for j in range(8): a(f"v_dot2c_f32_bf16_dpp v{52+j}, v16, v{PD[i][j]} row_newbcast:{2*i} {FULL}")
    red_g8(list(range(52, 60)), 60)
    guard([60, 61])
    with live(): a("global_store_dwordx2 v10, v[60:61], s[78:79] sc1")
    stamp("f_pub")
    a("s_branch L_tend")
    a.label("L_final")
    a("s_cmp_lg_u32 s3, 5"); a("s_cbranch_scc1 L_tend")
    a(f"s_cmp_ge_u32 s52, {NFIN}"); a("s_cbranch_scc1 L_tend")
    a("s_mov_b32 s44, s78"); a("s_mov_b32 s45, s79"); a(f"s_mov_b32 s46, {NFFN*2560}"); a("s_mov_b32 s47, 0x20000")
    a("v_lshrrev_b32 v4, 3, v0"); a("v_mul_u32_u24 v4, 2560, v4"); a("v_and_b32 v5, 7, v0"); a("v_lshl_add_u32 v4, v5, 4, v4")
    a("s_lshl_b32 s12, s52, 7"); a("v_add_u32 v4, s12, v4")
    a("v_lshl_add_u32 v5, v5, 2, v2"); a("v_and_b32 v6, 1, v5"); a("v_lshrrev_b32 v5, 1, v5"); a("v_lshl_add_u32 v5, v5, 3, v6")
    a("s_lshr_b32 s12, s52, 2"); a("s_lshl_b32 s12, s12, 7"); a("s_and_b32 s13, s52, 3"); a("s_lshl_b32 s13, s13, 1"); a("s_add_u32 s12, s12, s13")
    a("v_add_u32 v5, s12, v5")
    a("v_lshlrev_b32 v6, 2, v5"); a("v_lshlrev_b32 v5, 1, v5")
    a(f"ds_read_b32 v7, v6 offset:{L_H}")
    for i in range(1, 7): a(f"s_mov_b32 s{80+i}, {8*2560*i}")
    def i3(i):
        return (lambda: a(f"buffer_load_dwordx4 v[{104+4*i}:{107+4*i}], v4, s[44:47], " + ("0" if i == 0 else f"s{80+i}") + " offen sc1"), range(104 + 4 * i, 108 + 4 * i))
    def s3():
        for j in (0, 2):
            a(f"v_pk_add_f32 v[{16+j}:{17+j}], v[{104+j}:{105+j}], v[{108+j}:{109+j}]")
            a(f"v_pk_add_f32 v[{20+j}:{21+j}], v[{112+j}:{113+j}], v[{116+j}:{117+j}]")
            a(f"v_pk_add_f32 v[{24+j}:{25+j}], v[{120+j}:{121+j}], v[{124+j}:{125+j}]")
        for j in (0, 2):
            a(f"v_pk_add_f32 v[{16+j}:{17+j}], v[{16+j}:{17+j}], v[{20+j}:{21+j}]")
            a(f"v_pk_add_f32 v[{24+j}:{25+j}], v[{24+j}:{25+j}], v[{128+j}:{129+j}]")
        for j in (0, 2): a(f"v_pk_add_f32 v[{16+j}:{17+j}], v[{16+j}:{17+j}], v[{24+j}:{25+j}]")
    with live(): spoll([i3(i) for i in range(7)], s3, range(16, 20), 14)
    stamp("e3")
    red_g4([16, 17, 18, 19], 20)
    a(f"v_add_f32_dpp v20, v20, v20 row_ror:8 {FULL}")
    rbf(20, 20)
    a("s_waitcnt lgkmcnt(0)")
    a("v_add_f32 v20, v20, v7")
    a("v_cvt_pk_bf16_f32 v20, v20, v20")
    if warm: a("s_cbranch_execz L_warmed")
    a("s_mov_b32 s12, 0x00ff00ff"); a("s_mov_b32 s13, 0x00ff00ff"); a("s_mov_b64 exec, s[12:13]")
    a("global_store_short v5, v20, s[34:35]")
    a("s_cmp_lg_u32 s52, 0"); a("s_cbranch_scc1 L_noep")
    a("s_mov_b64 exec, 1")
    a(f"v_mov_b32 v5, {WS_EP:#x}"); a("v_mov_b32 v6, s15")
    a("global_store_dword v5, v6, s[38:39]")
    if dbl:
        a("s_memrealtime s[90:91]"); a("s_waitcnt lgkmcnt(0)")
        a("s_sub_u32 s92, s90, s88"); a(f"s_mul_i32 s92, s92, {dbl}"); a("s_add_u32 s92, s92, s90"); a("s_mov_b32 s60, 100000")
        a.label("L_dbl")
        a("s_memrealtime s[90:91]"); a("s_waitcnt lgkmcnt(0)"); a("s_sub_u32 s93, s90, s92"); a("s_cmp_ge_i32 s93, 0"); a("s_cbranch_scc1 L_noep")
        a("s_sub_u32 s60, s60, 1"); a("s_cbranch_scc0 L_dbl")
    a.label("L_noep")
    a("s_mov_b64 exec, -1")
    stamp("out")
    a.label("L_tend")
    if warm: a("s_cbranch_execz L_warmed")
    a.label("L_fin")
    dump_stamps()
    a.label("L_exit")
    a("s_endpgm")
    nv = 168
    a.raw('.section .rodata,"a"'); a.raw(".p2align 6"); a.raw(f".amdhsa_kernel {KN}")
    a.raw(f"  .amdhsa_next_free_vgpr {nv}"); a.raw("  .amdhsa_next_free_sgpr 96"); a.raw(f"  .amdhsa_accum_offset {nv}")
    a.raw("  .amdhsa_group_segment_fixed_size 0"); a.raw("  .amdhsa_kernarg_size 96"); a.raw("  .amdhsa_user_sgpr_count 2")
    a.raw("  .amdhsa_user_sgpr_kernarg_segment_ptr 1"); a.raw("  .amdhsa_system_sgpr_workgroup_id_x 1")
    a.raw("  .amdhsa_float_denorm_mode_32 3")
    a.raw(".end_amdhsa_kernel")
    return a.text(), stampn

if __name__ == "__main__":
    out = sys.argv[1] if len(sys.argv) > 1 else "sequential_preLN__mha_block_cached__swiglu_ffn__decode.s"
    kw = eval("dict(%s)" % sys.argv[2]) if len(sys.argv) > 2 else {}
    t, st = gen(**kw)
    open(out, "w").write(t)
    print("wrote", out, len(t.splitlines()), "lines", st)
```

```python
import sys
sys.path.insert(0, "work")
from asmlib import Asm

KN = "sequential_preLN__mha_block_cached__swiglu_ffn__decode_kernel"
HEADER = open("sequential_preLN__mha_block_cached__swiglu_ffn__decode.s.ref").read().split("; Override launch")[0]

MB = 4352
MB_Q = 0
MB_ST = 512
MB_O = 1024
WS_EP = 0x110000
WS_YP = 0x120000
WS_FP = 0x130000
L_FL = 0
L_Q = 256
L_QS = 768
L_SC = 2048
L_PP = L_SC + 32768
L_OL = L_PP + 16384
L_YL = L_OL + 4096
L_H = L_YL + 2048
L_GU = L_H + 2560
L_ST = L_GU + 1024
L_END = L_ST + 64
NWO, NFFN, NFIN = 160, 54, 20
NWAVE = 12
SPIN = 20000
LSPIN = 2000000
LOG2E = 0x3fb8aa3b
SCALE = 0x3db504f3
INV640 = 0x3acccccd
EPS = 0x3727c5ac
FULL = "row_mask:0xf bank_mask:0xf"

def gen(diag=False, wpol="nt", sleep=1, wpace=2, prio=3, now=False, ssleep=4, bs=False, DS=(5, 6, 8), GR=2, rolemix=True, modes=(1, 1, 2), F=8, epace=2, masked=True, lastit=3, hprio=2, pairx=False, noclear=False, dbl=0, kvpol='nt', warm=True, pdepth=1, pfirst=3, psleep=0, fine=True, hint=None, hs=64, hk=3, tlb=False, pre=6, late_wo=True, late_ffn=None, lpace=0, early_from=7, down_late=True, deep_until=99, wo_at=32, gupol=None, rev=False, kdeep=True, codepf=True, e3d=1, coarse=True):
    a = Asm()
    uid = [0]
    def L(n):
        uid[0] += 1
        return f"L_{n}_{uid[0]}"
    stampn = {}
    SV = 166
    def stamp(name):
        if not diag: return
        if diag == 1 and name not in ("start", "v_done", "out"): return
        if diag == 4 and name not in ("start", "v_done", "out", "iss0", "land0", "land1", "land3", "s_filled", "q_ready", "h_x", "h_dots", "qp_pub", "q_got", "ka_done"): return
        if diag == 2 and name not in ("start", "v_done", "tail", "e1", "y_pub", "e2", "gu", "f_pub", "e3", "out", "x1", "x2", "x3", "x4"): return
        i = stampn.setdefault(name, len(stampn))
        sk = L("st"); a(f"s_cbranch_execz {sk}")
        a("s_memrealtime s[90:91]"); a("s_waitcnt lgkmcnt(0)"); a(f"v_writelane_b32 v{SV}, s90, {i}")
        a.label(sk)
    def prog():
        if diag != 3: return
        a("s_memrealtime s[90:91]"); a("s_waitcnt lgkmcnt(0)"); a("s_mov_b32 m0, s94"); a("s_nop 0"); a(f"v_writelane_b32 v{SV}, s90, m0"); a("s_add_u32 s94, s94, 1")
    def dump_stamps():
        if not diag: return
        a("s_add_u32 s90, s38, 0x10000000"); a("s_addc_u32 s91, s39, 0")
        a(f"s_mul_i32 s92, s2, {NWAVE}"); a("s_add_u32 s92, s92, s93"); a("s_lshl_b32 s92, s92, 8")
        a(f"v_lshlrev_b32 v{SV+1}, 2, v0"); a(f"v_add_u32 v{SV+1}, s92, v{SV+1}")
        a(f"global_store_dword v{SV+1}, v{SV}, s[90:91]")

    class live:
        def __enter__(self_):
            self_.l = L("live")
            if warm: a(f"s_cbranch_execz {self_.l}")
        def __exit__(self_, *x):
            if warm: a.label(self_.l)
    def rbf(dst, src):
        a(f"v_cvt_pk_bf16_f32 v{dst}, v{src}, v{src}"); a(f"v_and_b32 v{dst}, 0xffff0000, v{dst}")
    def rowred(op, v):
        for r in (8, 4, 2, 1):
            a(f"{op}_dpp v{v}, v{v}, v{v} row_ror:{r} {FULL}")
    def allred(op, v, t):
        rowred(op, v)
        a(f"v_mov_b32 v{t}, v{v}"); a(f"v_permlane16_swap_b32 v{v}, v{t}"); a(f"{op} v{v}, v{v}, v{t}")
        a(f"v_mov_b32 v{t}, v{v}"); a(f"v_permlane32_swap_b32 v{v}, v{t}"); a(f"{op} v{v}, v{v}, v{t}")
    def red_g8(r, dst):
        for j in range(4): a(f"v_permlane32_swap_b32 v{r[j]}, v{r[j+4]}")
        for j in range(4): a(f"v_add_f32 v{r[j]}, v{r[j]}, v{r[j+4]}")
        a(f"v_permlane16_swap_b32 v{r[0]}, v{r[2]}"); a(f"v_permlane16_swap_b32 v{r[1]}, v{r[3]}")
        a(f"v_add_f32 v{dst}, v{r[0]}, v{r[2]}"); a(f"v_add_f32 v{dst+1}, v{r[1]}, v{r[3]}")
    def red_g4(r, dst):
        a(f"v_permlane32_swap_b32 v{r[0]}, v{r[2]}"); a(f"v_permlane32_swap_b32 v{r[1]}, v{r[3]}")
        a(f"v_add_f32 v{r[0]}, v{r[0]}, v{r[2]}"); a(f"v_add_f32 v{r[1]}, v{r[1]}, v{r[3]}")
        a(f"v_permlane16_swap_b32 v{r[0]}, v{r[1]}")
        a(f"v_add_f32 v{dst}, v{r[0]}, v{r[1]}")
    def guard(regs):
        for r in regs: a(f"v_min_u32 v{r}, -2, v{r}")
    def poll(issue, regs, t, cnt="s60", sleep=sleep):
        top, done = L("poll"), L("polled")
        a(f"s_mov_b32 {cnt}, {SPIN}")
        a.label(top)
        issue()
        a("s_waitcnt vmcnt(0)")
        rs = list(regs)
        if len(rs) == 2:
            a(f"v_max_u32 v{t}, v{rs[0]}, v{rs[1]}")
        else:
            a(f"v_max3_u32 v{t}, v{rs[0]}, v{rs[1]}, v{rs[2]}")
            rs = rs[3:]
            while len(rs) >= 2:
                a(f"v_max3_u32 v{t}, v{t}, v{rs[0]}, v{rs[1]}"); rs = rs[2:]
            if rs: a(f"v_max_u32 v{t}, v{t}, v{rs[0]}")
        a(f"v_cmp_eq_u32 vcc, -1, v{t}")
        a(f"s_cbranch_vccz {done}")
        if sleep: a(f"s_sleep {sleep}")
        a(f"s_sub_u32 {cnt}, {cnt}, 1")
        a(f"s_cbranch_scc0 {top}")
        a.label(done)
    def umax(t, rs):
        rs = list(rs)
        a(f"v_max3_u32 v{t}, v{rs[0]}, v{rs[1]}, v{rs[2]}")
        rs = rs[3:]
        while len(rs) >= 2:
            a(f"v_max3_u32 v{t}, v{t}, v{rs[0]}, v{rs[1]}"); rs = rs[2:]
        if rs: a(f"v_max_u32 v{t}, v{t}, v{rs[0]}")
    def mpoll(groups, t, sm):
        if not masked:
            def allissue():
                for g, _ in groups: g()
            poll(allissue, [r for _, rs in groups for r in rs], t)
            return
        top, done = L("mpoll"), L("mpolled")
        a(f"s_mov_b32 s60, {SPIN}")
        for g, _ in groups: g()
        a.label(top)
        a("s_waitcnt vmcnt(0)")
        for i, (_, rs) in enumerate(groups): umax(t + i, rs)
        for i in range(len(groups)): a(f"v_cmp_eq_u32 s[{sm+2*i}:{sm+2*i+1}], -1, v{t+i}")
        a(f"s_or_b64 s[58:59], s[{sm}:{sm+1}], s[{sm+2}:{sm+3}]")
        for i in range(2, len(groups)): a(f"s_or_b64 s[58:59], s[58:59], s[{sm+2*i}:{sm+2*i+1}]")
        a(f"s_cbranch_scc0 {done}")
        if sleep: a(f"s_sleep {sleep}")
        for i, (g, _) in enumerate(groups):
            sk = L("mskip")
            a(f"s_mov_b64 exec, s[{sm+2*i}:{sm+2*i+1}]")
            a(f"s_cbranch_execz {sk}")
            g()
            a.label(sk)
        a("s_mov_b64 exec, -1")
        a("s_sub_u32 s60, s60, 1")
        a(f"s_cbranch_scc0 {top}")
        a("s_waitcnt vmcnt(0)")
        a.label(done)
    def spoll(groups, sums, outs, t, first=0):
        top, done = L("spoll"), L("spolled")
        a(f"s_mov_b32 s60, {SPIN}")
        if first: a(f"s_sleep {first}")
        for g, _ in groups: g()
        a.label(top)
        a("s_waitcnt vmcnt(0)")
        sums()
        umax(t, outs)
        a(f"v_cmp_eq_u32 vcc, -1, v{t}")
        a(f"s_cbranch_vccz {done}")
        if psleep: a(f"s_sleep {psleep}")
        if fine:
            for g, rs in groups:
                sk = L("gsk")
                umax(t, rs)
                a(f"v_cmp_eq_u32 vcc, -1, v{t}")
                a(f"s_cbranch_vccz {sk}")
                a("s_mov_b64 exec, vcc")
                g()
                a("s_mov_b64 exec, -1")
                a.label(sk)
        else:
            a("s_mov_b64 exec, vcc")
            for g, _ in groups: g()
            a("s_mov_b64 exec, -1")
        a("s_sub_u32 s60, s60, 1")
        a(f"s_cbranch_scc0 {top}")
        a("s_waitcnt vmcnt(0)")
        a.label(done)
    def lds_wait(vaddr, off, val, t, slp):
        top, done = L("lw"), L("lwd")
        a(f"s_mov_b32 s60, {LSPIN}")
        a.label(top)
        a(f"ds_read_b32 v{t}, v{vaddr} offset:{off}")
        a("s_waitcnt lgkmcnt(0)")
        a(f"v_cmp_gt_u32 vcc, {val}, v{t}")
        a(f"s_cbranch_vccz {done}")
        a(f"s_sleep {slp}")
        a("s_sub_u32 s60, s60, 1"); a(f"s_cbranch_scc0 {top}")
        a.label(done)
    def lds_signal(vaddr, off, one):
        a("s_waitcnt lgkmcnt(0)")
        a("s_mov_b64 exec, 1"); a(f"ds_add_u32 v{vaddr}, v{one} offset:{off}"); a("s_mov_b64 exec, -1")
    def pair_perm(W, spare):
        out = []
        for t in range(0, len(W), 2):
            cols = []
            for j in range(4):
                A_, B_ = W[t][j], W[t + 1][j]
                a(f"v_perm_b32 v{spare}, v{B_}, v{A_}, s70")
                a(f"v_perm_b32 v{B_}, v{B_}, v{A_}, s71")
                cols += [spare, B_]
                spare = A_
            out.append(cols)
        return out
    def ln_stats(x, m, rs, t0, t1):
        a(f"v_add_f32 v{m}, v{x[0]}, v{x[1]}")
        for r in x[2:]: a(f"v_add_f32 v{m}, v{m}, v{r}")
        allred("v_add_f32", m, t0)
        a(f"v_mul_f32 v{m}, {INV640:#x}, v{m}")
        for i, r in enumerate(x):
            a(f"v_sub_f32 v{t0}, v{r}, v{m}")
            if i == 0: a(f"v_mul_f32 v{rs}, v{t0}, v{t0}")
            else: a(f"v_fmac_f32 v{rs}, v{t0}, v{t0}")
        allred("v_add_f32", rs, t0)
        a(f"v_mul_f32 v{rs}, {INV640:#x}, v{rs}")
        rbf(rs, rs); rbf(m, m)
        a(f"v_add_f32 v{rs}, {EPS:#x}, v{rs}"); rbf(rs, rs)
        a(f"v_sqrt_f32 v{rs}, v{rs}"); rbf(rs, rs)
        a(f"v_rcp_f32 v{rs}, v{rs}")

    a.raw(HEADER.rstrip("\n"))
    a.raw(f"; @launch grid=(256,1,1) block=({64*NWAVE},1,1) lds={L_END}")
    a.raw('.amdgcn_target "amdgcn-amd-amdhsa--gfx950"')
    a.raw(".text"); a.raw(f".globl {KN}"); a.raw(".p2align 8"); a.raw(f".type {KN},@function")
    a.label(KN)
    a("s_cmp_ge_u32 s2, 256"); a("s_cbranch_scc1 L_exit")
    if dbl or diag == 4: a("s_memrealtime s[88:89]")
    a("s_load_dwordx16 s[16:31], s[0:1], 0")
    a("s_load_dwordx8 s[32:39], s[0:1], 64")
    a("v_lshrrev_b32 v1, 6, v0")
    a("v_and_b32 v0, 63, v0")
    a("v_readfirstlane_b32 s3, v1")
    if diag: a(f"v_mov_b32 v{SV}, 0")
    a("v_lshlrev_b32 v1, 4, v0")
    a("s_lshr_b32 s4, s2, 4")
    if diag: a("s_mov_b32 s93, s3"); a("s_mov_b32 s94, 32")
    if rolemix:
        a("s_mul_i32 s67, s4, 3"); a("s_add_u32 s67, s67, s2"); a("s_and_b32 s67, s67, 15"); a("s_lshl_b32 s67, s67, 4"); a("s_add_u32 s67, s67, s4")
    else:
        a("s_mov_b32 s67, s2")
    a("s_cmp_ge_u32 s3, 4"); a("s_cbranch_scc1 L_helper")

    R0 = 36
    ring = [8]
    def slot(ck, i): return R0 + 16 * (ck % ring[0]) + 4 * i
    def issue_chunk(ck, pacer=None, lo=0, hi=4):
        for i in range(lo, hi):
            if pacer and i % GR == 0: pacer(i)
            s = slot(ck, i)
            a(f"buffer_load_dwordx4 v[{s}:{s+3}], v1, s[8:11], s12 offen offset:{1024*i} {kvpol}")
        if hi == 4: a("s_add_u32 s12, s12, 0x4000")
    a("s_add_u32 s5, s2, s4"); a("s_and_b32 s5, s5, 7")
    a("s_and_b32 s6, s2, 8"); a("s_or_b32 s5, s5, s6")
    a("s_lshl_b32 s13, s4, 23"); a("s_lshl_b32 s14, s5, 18"); a("s_add_u32 s13, s13, s14")
    a("s_lshl_b32 s14, s3, 12"); a("s_add_u32 s13, s13, s14")
    a("s_mov_b32 s12, s13")
    a("s_mov_b32 s10, 0x8000000"); a("s_mov_b32 s11, 0x20000")
    a("s_waitcnt lgkmcnt(0)")
    a("s_mov_b32 s8, s18"); a("s_mov_b32 s9, s19")
    if diag == 4: a(f"v_writelane_b32 v{SV}, s88, 59")
    stamp("start")
    if bs: a("s_barrier")
    issue_chunk(0)
    if pre > 4: issue_chunk(1, None, 0, pre - 4)
    stamp("iss0")
    a(f"s_add_u32 s14, s14, {L_SC}")
    a("v_lshlrev_b32 v20, 2, v0"); a("v_add_u32 v20, s14, v20")
    a("v_and_b32 v21, 15, v0"); a("v_lshlrev_b32 v21, 4, v21")
    a("v_mov_b32 v22, 0"); a("v_mov_b32 v23, 1")
    stamp("s_issued")
    if not bs: a("s_barrier")
    a(f"s_mov_b32 s15, {modes[0]}")
    a(f"s_cmp_lt_u32 s67, {NWO+NFFN}"); a(f"s_cselect_b32 s15, {modes[2]}, s15")
    a(f"s_cmp_lt_u32 s67, {NWO}"); a(f"s_cselect_b32 s15, {modes[1]}, s15")
    a("s_mov_b32 s46, s15"); a("s_mov_b32 s47, 4"); a("v_mov_b32 v3, 0")
    def hint_read():
        if hint is not None: a(f"ds_read_b32 v2, v3 offset:{L_FL+28}")
    def hint_apply():
        if hint is None: return
        a("v_readfirstlane_b32 s45, v2")
        a("s_lshr_b32 s48, s45, 8"); a("s_and_b32 s45, s45, 3")
        a("s_cmp_lt_u32 s47, s48"); a("s_cselect_b32 s15, s45, s46")
        a("s_add_u32 s47, s47, 1")
    def hint_mark(off):
        if hint is None: return
        sk = L("hm")
        a("s_cmp_lg_u32 s6, 0"); a(f"s_cbranch_scc1 {sk}")
        a("s_mov_b64 exec, 1"); a(f"ds_add_u32 v22, v23 offset:{off}"); a("s_mov_b64 exec, -1")
        a.label(sk)
    def pace(i):
        go = L("go")
        a(f"s_waitcnt vmcnt({DS[2]-GR})")
        if DS[1] != DS[2] or DS[0] != DS[2]:
            a("s_cmp_ge_u32 s15, 2"); a(f"s_cbranch_scc1 {go}")
            a(f"s_waitcnt vmcnt({DS[1]-GR})")
            if DS[0] != DS[1]:
                a("s_cmp_ge_u32 s15, 1"); a(f"s_cbranch_scc1 {go}")
                a(f"s_waitcnt vmcnt({DS[0]-GR})")
            a.label(go)
    assert DS[2] <= 8
    for ck in range(1, F):
        if ck == 1 and pre == 8: continue
        issue_chunk(ck, lambda i: a(f"s_waitcnt vmcnt({DS[1]-GR})"), (pre - 4 if ck == 1 else 0))
        if ck in (1, 2, 4): stamp({1: "land0", 2: "land1", 4: "land3"}[ck])
    stamp("s_filled")
    lds_wait(22, L_FL + 4, 4, 8, 1)
    a(f"ds_read_b128 v[4:7], v21 offset:{L_Q}")
    a(f"ds_read_b128 v[16:19], v21 offset:{L_Q+256}")
    a("s_waitcnt lgkmcnt(0)")
    stamp("q_ready")
    def switch_point():
        a("s_cmp_eq_u32 s6, 3")
        a("s_cselect_b32 s8, s40, s8"); a("s_cselect_b32 s9, s41, s9")
        a("s_cselect_b32 s12, s42, s12"); a("s_cselect_b32 s10, s43, s10")
    def proc_k(ck, q, off):
        for j in range(4):
            for i in range(4):
                a(f"v_dot2_f32_bf16 v{8+i}, v{slot(ck,i)+j}, v{q+j}, " + ("0" if j == 0 else f"v{8+i}"))
        a("v_add_f32_dpp v12, v8, v8 row_ror:8 row_mask:0xf bank_mask:0x3")
        a("s_nop 0")
        a("v_add_f32_dpp v13, v10, v10 row_ror:8 row_mask:0xf bank_mask:0x3")
        a("v_add_f32_dpp v12, v9, v9 row_ror:8 row_mask:0xf bank_mask:0xc")
        a("v_add_f32_dpp v13, v11, v11 row_ror:8 row_mask:0xf bank_mask:0xc")
        a("v_add_f32_dpp v14, v12, v12 row_half_mirror row_mask:0xf bank_mask:0x5")
        a("v_add_f32_dpp v14, v13, v13 row_half_mirror row_mask:0xf bank_mask:0xa")
        a(f"ds_write_b32 v20, v14 offset:{off}")
    n = F
    since = 9
    burst = 0
    for k in range(16):
        if n - ring[0] < k and n < 18 and (n - k <= 2 or since >= 2 or burst < 2):
            if n == 16: a("s_add_u32 s12, s13, 0x400000")
            issue_chunk(n, pace); n += 1; since = 0; burst += 1
        assert k <= n - 3
        proc_k(k, 4, 256 * k)
        since += 1
        if k % 4 == 3: prog()
    assert n == 18, n
    lds_signal(22, L_FL + 8, 23)
    stamp("ka_done")
    ring[0] = 4
    a("s_mov_b32 s40, s20"); a("s_mov_b32 s41, s21"); a("s_mov_b32 s42, s13"); a("s_mov_b32 s43, 0x8000000")
    if not kdeep: a(f"s_mov_b32 s15, {modes[0]}")
    a("s_mov_b32 s6, 0")
    a.label("L_kiter")
    hint_read()
    for k in range(4):
        if k == 2: switch_point()
        issue_chunk(k + 2, pace)
        if k == 0 and hint is not None: a("s_waitcnt lgkmcnt(0)"); hint_apply()
        proc_k(k, 16, 0x4000 + 256 * k)
        if k == hk: hint_mark(L_FL + 32)
    prog()
    a("v_add_u32 v20, 0x400, v20")
    a("s_add_u32 s6, s6, 1"); a("s_cmp_lt_u32 s6, 4"); a("s_cbranch_scc1 L_kiter")
    lds_signal(22, L_FL + 12, 23)
    stamp("k_done")
    a("s_lshl_b32 s14, s3, 11"); a(f"s_add_u32 s14, s14, {L_PP}")
    a("v_lshlrev_b32 v20, 3, v0"); a("v_add_u32 v20, s14, v20")
    a("s_lshl_b32 s14, s3, 9"); a(f"s_add_u32 s14, s14, {L_OL}")
    a("v_and_b32 v21, 15, v0"); a("v_lshlrev_b32 v21, 5, v21"); a("v_lshrrev_b32 v8, 4, v0"); a("v_lshl_add_u32 v21, v8, 3, v21")
    a("v_add_u32 v21, s14, v21")
    a("s_add_u32 s42, s13, 0x400000")
    a("s_mov_b32 s7, 0"); a("s_mov_b32 s44, 99")
    a.label("L_vhead")
    lds_wait(22, L_FL + 16, 1, 8, 1)
    stamp("p_wait")
    for j in range(8): a(f"v_mov_b32 v{24+j}, 0")
    a("s_mov_b32 s6, 0")
    a.label("L_viter")
    a("ds_read_b64 v[32:33], v20")
    hint_read()
    if deep_until < 8:
        a("s_lshl_b32 s45, s7, 2"); a("s_add_u32 s45, s45, s6"); a(f"s_cmp_ge_u32 s45, {deep_until}"); a(f"s_cselect_b32 s15, {modes[0]}, s15")
    a("s_cmp_ge_u32 s6, s44"); a("s_cselect_b32 s15, 2, s15")
    for k in range(4):
        if k == 2: switch_point()
        if k >= 2:
            dr, go = L("drain"), L("drained")
            a("s_cmp_eq_u32 s10, 0"); a(f"s_cbranch_scc1 {dr}")
            issue_chunk(k + 2, pace)
            a(f"s_branch {go}")
            a.label(dr)
            a(f"s_waitcnt vmcnt({4*(3-k)})")
            a.label(go)
        else:
            issue_chunk(k + 2, pace)
        if k == 1: a("s_mov_b64 exec, 1"); a(f"ds_add_u32 v3, v23 offset:{L_FL+44}"); a("s_mov_b64 exec, -1")
        if k == 0:
            a("s_waitcnt lgkmcnt(0)")
            hint_apply()
            if hint is not None: a("s_cmp_ge_u32 s6, s44"); a("s_cselect_b32 s15, 2, s15")
        for i in range(4):
            s = slot(k, i)
            c = ((i & 1) << 3) | ((i >> 1) << 2) | k
            for j in range(4):
                a(f"v_dot2c_f32_bf16_dpp v{24+2*j}, v32, v{s+j} row_newbcast:{c} {FULL}")
                a(f"v_dot2c_f32_bf16_dpp v{25+2*j}, v33, v{s+j} row_newbcast:{c} {FULL}")
        if k == hk: hint_mark(L_FL + 36)
    prog()
    a("v_add_u32 v20, 0x200, v20")
    a("s_add_u32 s6, s6, 1"); a("s_cmp_lt_u32 s6, 4"); a("s_cbranch_scc1 L_viter")
    red_g8(list(range(24, 32)), 34)
    a("ds_write_b64 v21, v[34:35]")
    a("s_cmp_lg_u32 s7, 0"); a("s_cbranch_scc1 L_vend")
    lds_signal(22, L_FL + 24, 23)
    stamp("va_done")
    a("v_add_u32 v20, 0x1800, v20"); a("v_add_u32 v21, 0x800, v21"); a("v_mov_b32 v22, 4")
    a("s_mov_b32 s43, 0"); a("s_mov_b32 s7, 1"); a(f"s_mov_b32 s44, {lastit}")
    a("s_branch L_vhead")
    a.label("L_vend")
    a("s_mov_b64 exec, 1"); a(f"ds_add_u32 v3, v23 offset:{L_FL+48}"); a("s_mov_b64 exec, -1")
    stamp("v_done")
    a("s_branch L_fin")

    def ffn_index(d):
        a(f"s_sub_u32 {d}, s67, {NWO}")
        if pairx:
            a(f"s_and_b32 s64, {d}, 7"); a("s_lshl_b32 s64, s64, 1"); a(f"s_bfe_u32 s65, {d}, 0x10003"); a("s_add_u32 s64, s64, s65")
            a(f"s_and_b32 s65, {d}, 0x30"); a("s_add_u32 s64, s64, s65")
            a(f"s_cmp_lt_u32 {d}, 48"); a(f"s_cselect_b32 {d}, s64, {d}")
    W0 = 64
    def load_weights(wpace=wpace, down=True, wo=True, fw=True, gu=True):
        if now or not (wo or fw): return
        ffn, done = L("ffnw"), L("wdone")
        cnt = [0]
        def ld(idx, off, pol=wpol):
            if wpace and cnt[0] >= wpace: a(f"s_waitcnt vmcnt({wpace-1})")
            cnt[0] += 1
            a(f"buffer_load_dwordx4 v[{W0+4*idx}:{W0+4*idx+3}], v2, s[44:47], s50 offen offset:{off} {pol}")
        a(f"s_cmp_ge_u32 s67, {NWO}"); a(f"s_cbranch_scc1 {ffn}")
        if not wo: a(f"s_branch {done}")
        a("s_mov_b32 s44, s24"); a("s_mov_b32 s45, s25"); a(f"s_mov_b32 s46, {4096*1280}"); a("s_mov_b32 s47, 0x20000")
        a("s_and_b32 s50, s67, 15"); a("s_lshl_b32 s50, s50, 3"); a("s_add_u32 s50, s50, s3"); a(f"s_mul_i32 s50, s50, {32*1280}")
        a("s_lshr_b32 s51, s67, 4"); a("s_lshl_b32 s51, s51, 7"); a("s_add_u32 s50, s50, s51")
        a("v_lshrrev_b32 v2, 3, v0"); a(f"v_mul_u32_u24 v2, {4*1280}, v2"); a("v_and_b32 v3, 7, v0"); a("v_lshl_add_u32 v2, v3, 4, v2")
        for t in range(4 if wo else 0): ld(t, t * 1280)
        a(f"s_branch {done}")
        a.label(ffn)
        cnt[0] = 0
        if not fw:
            a.label(done); return
        a(f"s_cmp_ge_u32 s67, {NWO+NFFN}"); a(f"s_cbranch_scc1 {done}")
        a("s_cmp_lt_u32 s3, 4"); a("s_cselect_b32 s44, s28, s30"); a("s_cselect_b32 s45, s29, s31")
        a(f"s_mov_b32 s46, {640*3456}"); a("s_mov_b32 s47, 0x20000")
        ffn_index("s52")
        a("s_and_b32 s50, s3, 3"); a(f"s_mul_i32 s50, s50, {160*3456}"); a("s_lshl_b32 s51, s52, 6"); a("s_add_u32 s50, s50, s51")
        a("v_lshrrev_b32 v2, 2, v0"); a(f"v_mul_u32_u24 v2, {10*3456}, v2"); a("v_and_b32 v3, 3, v0"); a("v_lshl_add_u32 v2, v3, 4, v2")
        gp = wpol if gupol is None else gupol
        if gu and rev:
            od, jn = L("odd"), L("join")
            a("s_bitcmp1_b32 s52, 0"); a(f"s_cbranch_scc1 {od}")
        for t in range(10 if gu else 0):
            if t and t % 2 == 0: a(f"s_add_u32 s50, s50, {2*3456}")
            ld(t, (t % 2) * 3456, gp)
        if gu and rev:
            a(f"s_branch {jn}")
            a.label(od)
            cnt[0] = 0
            a(f"s_add_u32 s50, s50, {8*3456}")
            for t in range(9, -1, -1):
                ld(t, (t % 2) * 3456, gp)
                if t and t % 2 == 0: a(f"s_sub_u32 s50, s50, {2*3456}")
            a.label(jn)
        if not down:
            a.label(done); return
        a("s_cmp_ge_u32 s3, 5"); a(f"s_cbranch_scc1 {done}")
        a("s_mov_b32 s44, s32"); a("s_mov_b32 s45, s33"); a(f"s_mov_b32 s46, {1728*1280}")
        a(f"s_mul_i32 s50, s52, {32*1280}"); a("s_lshl_b32 s51, s3, 8"); a("s_add_u32 s50, s50, s51")
        a("v_lshrrev_b32 v2, 4, v0"); a(f"v_mul_u32_u24 v2, {8*1280}, v2"); a("v_and_b32 v3, 15, v0"); a("v_lshl_add_u32 v2, v3, 4, v2")
        for t in range(8):
            if t == 4: a(f"s_add_u32 s50, s50, {4*1280}")
            ld(10 + t, (t % 4) * 1280)
        a.label(done)

    a.label("L_helper")
    a("s_sub_u32 s3, s3, 4")
    a("s_and_b32 s6, s2, 15")
    a("v_lshlrev_b32 v6, 2, v0")
    a("v_mov_b32 v14, 0"); a("v_mov_b32 v15, 1")
    a("s_mov_b32 s70, 0x05040100"); a("s_mov_b32 s71, 0x07060302")
    a("s_cmp_ge_u32 s3, 4"); a("s_cbranch_scc1 L_helper2")
    if prio: a(f"s_setprio {prio}")
    a("v_lshrrev_b32 v2, 3, v0")
    a("v_and_b32 v3, 7, v0")
    a("v_mul_u32_u24 v4, 5, v2")
    a("s_lshr_b32 s8, s6, 2"); a("s_lshl_b32 s8, s8, 2"); a("s_add_u32 s8, s8, s3"); a("s_mul_i32 s8, s8, 40")
    a("v_add_u32 v4, s8, v4")
    a("v_lshlrev_b32 v5, 13, v4"); a("v_lshl_add_u32 v5, v3, 4, v5")
    a("v_lshlrev_b32 v4, 1, v4")
    a("s_lshl_b32 s9, s4, 9"); a("s_and_b32 s10, s6, 3"); a("s_lshl_b32 s10, s10, 7"); a("s_add_u32 s9, s9, s10")
    a(f"s_mov_b32 s46, {640*8192}"); a("s_mov_b32 s47, 0x20000")
    a("s_waitcnt lgkmcnt(0)")
    stamp("start")
    a(f"s_add_u32 s74, s38, {WS_EP}"); a("s_addc_u32 s75, s39, 0")
    a("s_load_dword s15, s[74:75], 0")
    a("global_load_dwordx4 v[16:19], v1, s[16:17]"); a("global_load_dword v20, v6, s[16:17] offset:1024")
    for t in range(5): a(f"global_load_ushort v{21+t}, v4, s[16:17] offset:{2*t}")
    a("s_mov_b32 s44, s22"); a("s_mov_b32 s45, s23")
    for t in range(5):
        a(f"buffer_load_dwordx4 v[{64+4*t}:{64+4*t+3}], v5, s[44:47], s9 offen {wpol}")
        if t < 4: a("s_add_u32 s9, s9, 0x2000")
    a("s_barrier")
    a("v_lshlrev_b32 v12, 2, v2"); a("v_lshl_add_u32 v12, v3, 5, v12")
    a("s_lshl_b32 s12, s3, 8"); a("v_add_u32 v12, s12, v12")
    a("s_mov_b32 s62, 0xff00ff00"); a("s_mov_b32 s63, 0xff00ff00")
    stamp("h_issued")
    a("s_waitcnt vmcnt(5)")
    stamp("h_x")
    for i in range(5):
        a(f"v_and_b32 v{30+2*i+1}, 0xffff0000, v{16+i}"); a(f"v_lshlrev_b32 v{30+2*i}, 16, v{16+i}")
    ln_stats(list(range(30, 40)), 26, 27, 28, 29)
    for t in range(5):
        a(f"v_lshlrev_b32 v{21+t}, 16, v{21+t}"); a(f"v_sub_f32 v{21+t}, v{21+t}, v26"); rbf(21 + t, 21 + t)
        a(f"v_mul_f32 v{21+t}, v{21+t}, v27")
        a(f"v_cvt_pk_bf16_f32 v{30+t}, v{21+t}, 0"); a(f"v_cvt_pk_bf16_f32 v{35+t}, 0, v{21+t}")
    for j in range(8): a(f"v_mov_b32 v{40+j}, 0")
    stamp("h_ln")
    for t in range(5):
        a(f"s_waitcnt vmcnt({4-t})")
        for j in range(4):
            a(f"v_dot2c_f32_bf16 v{40+2*j}, v{30+t}, v{64+4*t+j}"); a(f"v_dot2c_f32_bf16 v{41+2*j}, v{35+t}, v{64+4*t+j}")
    red_g8(list(range(40, 48)), 48)
    a(f"v_add_f32_dpp v48, v48, v48 row_ror:8 {FULL}"); a(f"v_add_f32_dpp v49, v49, v49 row_ror:8 {FULL}")
    a("v_cndmask_b32 v48, v48, v49, s[62:63]")
    a(f"ds_write_b32 v12, v48 offset:{L_QS}")
    a("s_waitcnt lgkmcnt(0)")
    a("s_add_u32 s15, s15, 1")
    a("s_mov_b64 exec, 1"); a(f"ds_add_rtn_u32 v13, v14, v15 offset:{L_FL}"); a("s_mov_b64 exec, -1")
    a("v_lshrrev_b32 v10, 5, v0"); a(f"v_mul_u32_u24 v12, {8*MB}, v10"); a("v_and_b32 v11, 31, v0"); a("v_lshl_add_u32 v12, v11, 4, v12")
    a("s_lshl_b32 s12, s4, 4"); a("s_add_u32 s12, s12, s3"); a(f"s_mul_i32 s12, s12, {MB}"); a("v_add_u32 v12, s12, v12")
    a(f"v_add_u32 v9, {4*MB}, v12")
    a("s_waitcnt lgkmcnt(0)")
    a("v_readfirstlane_b32 s12, v13")
    stamp("h_dots")
    a("s_cmp_lg_u32 s12, 3"); a("s_cbranch_scc1 L_qnopub")
    a(f"v_add_u32 v16, {L_QS}, v6")
    a("ds_read2st64_b32 v[18:19], v16 offset0:0 offset1:1"); a("ds_read2st64_b32 v[20:21], v16 offset0:2 offset1:3")
    a(f"s_mul_i32 s12, s2, {MB}"); a("v_lshlrev_b32 v17, 3, v0"); a("v_add_u32 v17, s12, v17")
    a("s_waitcnt lgkmcnt(0)")
    a("v_add_f32 v18, v18, v19"); a("v_add_f32 v20, v20, v21"); a("v_add_f32 v18, v18, v20"); a("v_mov_b32 v19, s15")
    a("global_store_dwordx2 v17, v[18:19], s[38:39] sc1")
    stamp("qp_pub")
    a.label("L_qnopub")
    a(f"s_mov_b32 s60, {SPIN}")
    a.label("L_qpoll")
    a("global_load_dwordx4 v[24:27], v12, s[38:39] sc1"); a("global_load_dwordx4 v[28:31], v9, s[38:39] sc1")
    a("s_waitcnt vmcnt(0)")
    for r in (25, 27, 29, 31): a(f"v_xor_b32 v{r}, s15, v{r}")
    a("v_or3_b32 v25, v25, v27, v29"); a("v_or_b32 v25, v25, v31")
    a("v_cmp_ne_u32 vcc, 0, v25")
    a("s_cbranch_vccz L_qpolled")
    if sleep: a(f"s_sleep {sleep}")
    a("s_sub_u32 s60, s60, 1"); a("s_cbranch_scc0 L_qpoll")
    a.label("L_qpolled")
    stamp("q_got")
    a("v_add_f32 v24, v24, v28"); a("v_add_f32 v26, v26, v30")
    a("v_permlane32_swap_b32 v24, v26")
    a("v_add_f32 v24, v24, v26")
    a("v_cvt_pk_bf16_f32 v24, v24, v24")
    a("v_lshl_add_u32 v12, v11, 1, v10"); a("v_lshlrev_b32 v12, 1, v12")
    a("s_lshl_b32 s12, s3, 7"); a("v_add_u32 v12, s12, v12")
    a(f"ds_write_b16 v12, v24 offset:{L_Q}")
    lds_signal(14, L_FL + 4, 15)
    a(f"s_setprio {hprio}")
    a("s_branch L_weights")

    a.label("L_helper2")
    a(f"s_setprio {hprio}")
    a("s_cmp_lg_u32 s3, 4"); a("s_cbranch_scc1 L_noinit")
    a(f"ds_write_b32 v6, v14 offset:{L_FL}")
    a.label("L_noinit")
    a("s_waitcnt lgkmcnt(0)")
    stamp("start")
    a(f"s_add_u32 s74, s38, {WS_EP}"); a("s_addc_u32 s75, s39, 0")
    a("s_load_dword s15, s[74:75], 0")
    if codepf:
        a("s_cmp_lg_u32 s3, 5"); a("s_cbranch_scc1 L_nocpf")
        a("s_getpc_b64 s[12:13]")
        a.label("L_pc")
        a(f"s_sub_u32 s12, s12, L_pc-{KN}"); a("s_subb_u32 s13, s13, 0")
        a("s_lshr_b32 s11, s2, 3"); a("s_lshl_b32 s11, s11, 10"); a("v_add_u32 v16, s11, v1")
        a(f"v_min_u32 v16, L_exit-{KN}-12, v16")
        a("global_load_dwordx4 v[16:19], v16, s[12:13]")
        a.label("L_nocpf")
    a("s_cmp_lg_u32 s3, 6"); a("s_cbranch_scc1 L_clrdone")
    if noclear: a("s_branch L_clrdone")
    for r in range(8, 12): a(f"v_mov_b32 v{r}, -1")
    a(f"s_mul_i32 s11, s2, {MB}"); a("v_add_u32 v7, s11, v1")
    a(f"global_store_dwordx4 v7, v[8:11], s[38:39] offset:{MB_O} sc1")
    a(f"s_cmp_ge_u32 s67, {NWO}"); a("s_cbranch_scc1 L_clrffn")
    a("s_and_b32 s12, s67, 15"); a("s_mul_i32 s12, s12, 2560"); a("s_lshr_b32 s13, s67, 4"); a("s_lshl_b32 s13, s13, 8"); a("s_add_u32 s12, s12, s13")
    a(f"s_add_u32 s12, s12, {WS_YP}"); a("v_add_u32 v12, s12, v6")
    a("global_store_dword v12, v8, s[38:39] sc1")
    a("s_branch L_clrdone")
    a.label("L_clrffn")
    a(f"s_cmp_ge_u32 s67, {NWO+NFFN}"); a("s_cbranch_scc1 L_clrdone")
    ffn_index("s12"); a("s_mul_i32 s12, s12, 2560"); a(f"s_add_u32 s12, s12, {WS_FP}")
    a("v_add_u32 v12, s12, v1")
    a("global_store_dwordx4 v12, v[8:11], s[38:39] sc1"); a("global_store_dwordx4 v12, v[8:11], s[38:39] offset:1024 sc1")
    a("s_mov_b32 exec_hi, 0")
    a("global_store_dwordx4 v12, v[8:11], s[38:39] offset:2048 sc1")
    a("s_mov_b64 exec, -1")
    a.label("L_clrdone")
    a("s_barrier")
    if late_ffn is not None:
        a(f"s_cmp_lt_u32 s3, {early_from}"); a("s_cbranch_scc1 L_noearly")
        load_weights(epace, wo=False, down=False)
        a.label("L_noearly")
        if not down_late: load_weights(epace, wo=False, gu=False)
    else:
        load_weights(epace, wo=not late_wo)
    if tlb:
        a("s_cmp_lg_u32 s3, 5"); a("s_cbranch_scc1 L_notlb")
        a("s_add_u32 s12, s2, s4"); a("s_and_b32 s12, s12, 7"); a("s_and_b32 s13, s2, 8"); a("s_or_b32 s12, s12, s13")
        a("s_lshl_b32 s13, s4, 23"); a("s_lshl_b32 s12, s12, 18"); a("s_add_u32 s12, s12, s13")
        a("v_mov_b32 v16, s12"); a("v_add_u32 v17, 0x400000, v16")
        a("s_mov_b64 exec, 1")
        a("global_load_dword v18, v17, s[18:19] nt"); a("global_load_dword v19, v16, s[20:21] nt"); a("global_load_dword v20, v17, s[20:21] nt")
        a("s_mov_b64 exec, -1")
        a.label("L_notlb")
    a("s_waitcnt lgkmcnt(0)")
    a("s_add_u32 s15, s15, 1")
    a("s_cmp_lt_u32 s3, 6"); a("s_cbranch_scc1 L_weights_done")
    a("s_sub_u32 s7, s3, 6")
    a("s_lshl_b32 s12, s7, 2"); a("v_mov_b32 v13, s12")
    a("v_and_b32 v20, 3, v0"); a("v_lshlrev_b32 v20, 8, v20"); a("v_and_b32 v21, 60, v0"); a("v_lshl_add_u32 v20, v21, 2, v20")
    a("s_lshl_b32 s12, s7, 14"); a(f"s_add_u32 s12, s12, {L_SC}"); a("v_add_u32 v20, s12, v20")
    a("s_lshl_b32 s12, s7, 13"); a(f"s_add_u32 s12, s12, {L_PP}"); a("v_lshlrev_b32 v21, 3, v0"); a("v_add_u32 v21, s12, v21")
    a(f"s_mul_i32 s12, s4, {16*MB}"); a("s_lshl_b32 s13, s7, 7"); a("s_add_u32 s12, s12, s13")
    a("v_and_b32 v22, 15, v0"); a(f"v_mul_u32_u24 v22, {MB}, v22"); a("v_add_u32 v22, s12, v22")
    a(f"s_mul_i32 s13, s6, {MB}"); a("s_add_u32 s12, s12, s13"); a("v_mov_b32 v23, s12")
    a(f"s_mov_b32 s14, {LOG2E:#x}")
    lds_wait(13, L_FL + 8, 4, 8, 4)
    S = list(range(32, 48))
    for i in range(16):
        if i % 8 == 0:
            for u in range(8): a(f"ds_read_b128 v[{104+4*u}:{107+4*u}], v20 offset:{1024*(i+u)}")
        b = 104 + 4 * (i % 8)
        a(f"s_waitcnt lgkmcnt({7-i%8})")
        a(f"v_add_f32 v{b}, v{b}, v{b+1}"); a(f"v_add_f32 v{b+2}, v{b+2}, v{b+3}"); a(f"v_add_f32 v{S[i]}, v{b}, v{b+2}")
        rbf(S[i], S[i]); a(f"v_mul_f32 v{S[i]}, {SCALE:#x}, v{S[i]}"); rbf(S[i], S[i])
    a(f"v_max_f32 v28, v{S[0]}, v{S[1]}")
    for i in range(2, 16, 2): a(f"v_max3_f32 v28, v28, v{S[i]}, v{S[i+1]}")
    allred("v_max_f32", 28, 30)
    for i in range(16):
        a(f"v_sub_f32 v{104+i}, v{S[i]}, v28"); a(f"v_mul_f32 v{104+i}, s14, v{104+i}"); a(f"v_exp_f32 v{104+i}, v{104+i}")
    for st in (8, 4, 2):
        for i in range(st): a(f"v_add_f32 v{104+i}, v{104+i}, v{104+i+st}")
    a("v_add_f32 v29, v104, v105")
    allred("v_add_f32", 29, 30)
    a("v_mov_b32 v24, v28"); a("v_mov_b32 v25, s15"); a("v_mov_b32 v26, v29"); a("v_mov_b32 v27, s15")
    a("s_waitcnt vmcnt(0)")
    a("s_mov_b64 exec, 1")
    a(f"global_store_dwordx4 v23, v[24:27], s[38:39] offset:{MB_ST} sc1")
    a("s_mov_b64 exec, -1")
    stamp("st_pub")
    a(f"s_mov_b32 s60, {SPIN}")
    a.label("L_stpoll")
    a(f"global_load_dwordx4 v[16:19], v22, s[38:39] offset:{MB_ST} sc1")
    a("s_waitcnt vmcnt(0)")
    a("v_xor_b32 v17, s15, v17"); a("v_xor_b32 v19, s15, v19"); a("v_or_b32 v17, v17, v19")
    a("v_cmp_ne_u32 vcc, 0, v17")
    a("s_cbranch_vccz L_stpolled")
    a(f"s_sleep {ssleep}")
    a("s_sub_u32 s60, s60, 1"); a("s_cbranch_scc0 L_stpoll")
    a.label("L_stpolled")
    a("v_mov_b32 v24, v16"); a("v_mov_b32 v25, v18")
    a("v_mov_b32 v28, v24")
    rowred("v_max_f32", 28)
    a("v_sub_f32 v24, v24, v28"); a("v_mul_f32 v24, s14, v24"); a("v_exp_f32 v24, v24"); a("v_mul_f32 v29, v24, v25")
    rowred("v_add_f32", 29)
    a("v_rcp_f32 v29, v29")
    for i in range(16):
        a(f"v_sub_f32 v{S[i]}, v{S[i]}, v28"); a(f"v_mul_f32 v{S[i]}, s14, v{S[i]}"); a(f"v_exp_f32 v{S[i]}, v{S[i]}")
    for i in range(16):
        a(f"v_mul_f32 v{S[i]}, v{S[i]}, v29")
        a(f"v_cvt_pk_bf16_f32 v{104+2*i}, v{S[i]}, 0"); a(f"v_cvt_pk_bf16_f32 v{105+2*i}, 0, v{S[i]}")
        a(f"ds_write_b64 v21, v[{104+2*i}:{105+2*i}] offset:{512*i}")
    lds_signal(13, L_FL + 16, 15)
    stamp("p_ready")
    a("s_cmp_lg_u32 s3, 7"); a("s_cbranch_scc1 L_weights_done")
    a(f"s_cmp_ge_u32 s67, {NWO+NFFN}"); a("s_cbranch_scc1 L_weights_done")
    a(f"s_cmp_lt_u32 s67, {NWO}"); a("s_cbranch_scc1 L_weights_done")
    a(f"v_mul_u32_u24 v16, {MB}, v0")
    for i in range(1, 4): a(f"v_add_u32 v{16+i}, {64*MB*i:#x}, v16")
    a(f"s_mov_b32 s60, {SPIN}")
    a.label("L_marks")
    for i in range(4):
        a(f"global_load_dword v{20+i}, v{16+i}, s[38:39] offset:{MB_ST+4} sc1")
        a("s_waitcnt vmcnt(0)")
    for i in range(4): a(f"v_xor_b32 v{20+i}, s15, v{20+i}")
    a("v_or3_b32 v20, v20, v21, v22"); a("v_or_b32 v20, v20, v23")
    a("v_cmp_ne_u32 vcc, 0, v20")
    a("s_cbranch_vccz L_marked")
    a("s_sleep 32")
    a("s_sub_u32 s60, s60, 1"); a("s_cbranch_scc0 L_marks")
    a.label("L_marked")
    lds_signal(14, L_FL + 52, 15)
    a("s_branch L_weights_done")

    a.label("L_weights")
    if late_ffn is None: load_weights(wo=not late_wo)
    else:
        if early_from < 4:
            a(f"s_cmp_lt_u32 s3, {early_from}"); a("s_cbranch_scc1 L_noearly2")
            load_weights(wo=False, down=False)
            a.label("L_noearly2")
        if not down_late: load_weights(wo=False, gu=False)
    a.label("L_weights_done")
    a(f"s_add_u32 s76, s38, {WS_YP}"); a("s_addc_u32 s77, s39, 0")
    a(f"s_add_u32 s78, s38, {WS_FP}"); a("s_addc_u32 s79, s39, 0")
    def osum(head, d):
        for w in range(4): a(f"ds_read_b64 v[{142+2*w}:{143+2*w}], v138 offset:{L_OL+2048*head+512*w}")
        a("s_waitcnt lgkmcnt(0)")
        a("v_pk_add_f32 v[142:143], v[142:143], v[144:145]"); a("v_pk_add_f32 v[146:147], v[146:147], v[148:149]")
        a(f"v_pk_add_f32 v[{d}:{d+1}], v[142:143], v[146:147]")
        guard([d, d + 1])
    def opub():
        with live(): a(f"global_store_dwordx2 v139, v[140:141], s[38:39] offset:{MB_O} sc1")
        osum(1, 142)
        with live(): a(f"global_store_dwordx2 v139, v[142:143], s[38:39] offset:{MB_O+512} sc1")
    a("v_lshlrev_b32 v138, 3, v0")
    a(f"s_mul_i32 s11, s2, {MB}"); a("v_add_u32 v139, s11, v138")
    if hint is not None:
        a("s_cmp_lg_u32 s3, 5"); a("s_cbranch_scc1 L_nohint")
        a("v_mul_u32_u24 v16, 37, v0"); a("v_add_u32 v16, s2, v16"); a("v_and_b32 v16, 255, v16"); a(f"v_mul_u32_u24 v16, {MB}, v16")
        for h in range(2):
            if hint[h] is None: continue
            nb0, kb, nt0, kt = hint[h]
            lds_wait(14, L_FL + 32 + 4 * h, 4, 8, 4)
            if hs == 32: a("s_mov_b32 exec_hi, 0")
            a(f"global_load_dword v17, v16, s[38:39] offset:{MB_ST+4+128*h} sc1")
            a("s_waitcnt vmcnt(0)")
            a("v_cmp_eq_u32 vcc, s15, v17")
            if hs == 32: a("s_mov_b64 exec, -1")
            a("s_bcnt1_i32_b64 s12, vcc")
            if hs == 32: a("s_lshl_b32 s12, s12, 1")
            if diag: a(f"v_writelane_b32 v{SV}, s12, {60+h}")
            it0 = (6 if hk >= 2 else 5) + 4 * h
            a("s_mov_b32 s13, 0")
            a(f"s_sub_i32 s61, s12, {nb0}"); a(f"s_mul_i32 s61, s61, {kb}"); a("s_ashr_i32 s61, s61, 4")
            a(f"s_add_u32 s62, s61, {it0}"); a("s_lshl_b32 s62, s62, 8"); a("s_or_b32 s62, s62, 2")
            a("s_cmp_gt_i32 s61, 0"); a("s_cselect_b32 s13, s62, s13")
            a(f"s_sub_i32 s61, {nt0}, s12"); a(f"s_mul_i32 s61, s61, {kt}"); a("s_ashr_i32 s61, s61, 4")
            a(f"s_add_u32 s62, s61, {it0}"); a("s_lshl_b32 s62, s62, 8")
            a("s_cmp_gt_i32 s61, 0"); a("s_cselect_b32 s13, s62, s13")
            a(f"s_sub_u32 s61, s67, {NWO}"); a(f"s_cmp_lt_u32 s61, {NFFN}"); a("s_cselect_b32 s13, 0, s13")
            a("v_mov_b32 v17, s13")
            a(f"ds_write_b32 v14, v17 offset:{L_FL+28}")
        a.label("L_nohint")
    a("s_cmp_lg_u32 s3, 7"); a("s_cbranch_scc1 L_noA")
    lds_wait(14, L_FL + 24, 4, 8, 8)
    osum(0, 140)
    a("s_setprio 3")
    a.label("L_noA")
    a("s_waitcnt vmcnt(0)")
    stamp("w_done")
    def b5():
        sk = L("nopubB")
        with live(): lds_wait(14, L_FL + 48, 4, 150, 1)
        a("s_cmp_lg_u32 s3, 7"); a(f"s_cbranch_scc1 {sk}")
        opub()
        with live(): a(f"s_setprio {hprio}")
        a.label(sk)
        stamp("tail")
    ffn_index("s52")
    if warm:
        a("s_mov_b64 exec, 0")
        a(f"s_cmp_lt_u32 s67, {NWO}"); a("s_cbranch_scc1 L_wo_go")
        a(f"s_cmp_lt_u32 s67, {NWO+NFFN}"); a("s_cbranch_scc1 L_ffn_go")
        a("s_branch L_none_go")
        a.label("L_warmed")
        a("s_mov_b64 exec, -1")
    a(f"s_cmp_lt_u32 s67, {NWO}"); a("s_cbranch_scc1 L_wo")
    a(f"s_cmp_lt_u32 s67, {NWO+NFFN}"); a("s_cbranch_scc1 L_ffn")
    a.label("L_none_go")
    a("s_cmp_lg_u32 s3, 7"); a("s_cbranch_scc1 L_tend")
    if coarse:
        with live(): lds_wait(14, L_FL + 44, 28, 150, 24)
    b5()
    a("s_branch L_tend")

    a.label("L_wo")
    a("s_and_b32 s50, s67, 15"); a(f"s_mul_i32 s12, s50, {16*MB}"); a("s_lshl_b32 s13, s3, 7"); a("s_add_u32 s12, s12, s13")
    a("v_and_b32 v3, 7, v0"); a(f"v_mul_u32_u24 v2, {2*MB}, v3"); a("v_lshrrev_b32 v4, 3, v0"); a("v_lshl_add_u32 v2, v4, 4, v2"); a("v_add_u32 v2, s12, v2")
    a(f"v_add_u32 v8, {MB}, v2")
    a("v_lshrrev_b32 v5, 4, v0"); a("v_lshlrev_b32 v5, 3, v5"); a("v_lshl_add_u32 v5, v3, 5, v5")
    a("s_lshl_b32 s13, s3, 8"); a("v_add_u32 v5, s13, v5")
    a("s_mul_i32 s12, s50, 2560"); a("s_lshr_b32 s13, s67, 4"); a("s_lshl_b32 s13, s13, 8"); a("s_add_u32 s12, s12, s13"); a("v_add_u32 v7, s12, v6")
    a(f"v_add_u32 v6, {L_YL}, v6")
    for j in range(8): a(f"v_mov_b32 v{40+j}, 0")
    if late_wo:
        a("s_mov_b32 s44, s24"); a("s_mov_b32 s45, s25"); a(f"s_mov_b32 s46, {4096*1280}"); a("s_mov_b32 s47, 0x20000")
        a("s_lshl_b32 s50, s50, 3"); a("s_add_u32 s50, s50, s3"); a(f"s_mul_i32 s50, s50, {32*1280}")
        a("s_lshr_b32 s51, s67, 4"); a("s_lshl_b32 s51, s51, 7"); a("s_add_u32 s50, s50, s51")
        a(f"v_mul_u32_u24 v9, {4*1280}, v4"); a("v_lshl_add_u32 v9, v3, 4, v9")
    if coarse: lds_wait(14, L_FL + 44, wo_at - 4, 150, 24)
    a.label("L_wo_go")
    if late_wo and not now:
        with live():
            lds_wait(14, L_FL + 44, wo_at, 150, 2)
            for t in range(4): a(f"buffer_load_dwordx4 v[{W0+4*t}:{W0+4*t+3}], v9, s[44:47], s50 offen offset:{t*1280} {wpol}")
    b5()
    a("s_waitcnt vmcnt(2)"); a("s_cmp_eq_u32 s3, 7"); a("s_cbranch_scc1 L_wo_w"); a("s_waitcnt vmcnt(0)")
    a.label("L_wo_w")
    PW = pair_perm([[W0 + 4 * t + j for j in range(4)] for t in range(4)], 136)
    def io(v, d): return (lambda: a(f"global_load_dwordx4 v[{d}:{d+3}], v{v}, s[38:39] offset:{MB_O} sc1"), range(d, d + 4))
    def so():
        for j in range(4): a(f"v_add_f32 v{16+j}, v{24+j}, v{28+j}")
    with live(): spoll([io(2, 24), io(8, 28)], so, range(16, 20), 14, first=pfirst)
    stamp("e1")
    for pat in ("quad_perm:[1,0,3,2]", "quad_perm:[2,3,0,1]", "row_half_mirror"):
        for j in range(4): a(f"v_add_f32_dpp v{16+j}, v{16+j}, v{16+j} {pat} {FULL}")
    for i in range(2): a(f"v_cvt_pk_bf16_f32 v{32+i}, v{16+2*i}, v{17+2*i}")
    for i in range(2):
        for j in range(8): a(f"v_dot2c_f32_bf16 v{40+j}, v{32+i}, v{PW[i][j]}")
    red_g8(list(range(40, 48)), 48)
    a(f"v_add_f32_dpp v48, v48, v48 row_ror:8 {FULL}"); a(f"v_add_f32_dpp v49, v49, v49 row_ror:8 {FULL}")
    a(f"ds_write_b64 v5, v[48:49] offset:{L_YL}")
    a("s_waitcnt lgkmcnt(0)")
    with live(): a("s_barrier")
    a("s_cmp_lg_u32 s3, 0"); a("s_cbranch_scc1 L_tend")
    for w in range(4): a(f"ds_read2st64_b32 v[{16+2*w}:{17+2*w}], v6 offset0:{2*w} offset1:{2*w+1}")
    a("s_waitcnt lgkmcnt(0)")
    a("v_pk_add_f32 v[16:17], v[16:17], v[18:19]"); a("v_pk_add_f32 v[20:21], v[20:21], v[22:23]"); a("v_pk_add_f32 v[16:17], v[16:17], v[20:21]")
    a("v_add_f32 v16, v16, v17")
    guard([16])
    with live(): a("global_store_dword v7, v16, s[76:77] sc1")
    stamp("y_pub")
    a("s_branch L_tend")

    a.label("L_ffn")
    fast_late = late_ffn is not None and not down_late and not rev
    if late_ffn is not None and not fast_late:
        a("s_cmp_eq_u32 s3, 7"); a("s_cbranch_scc1 L_ffn_have")
        if late_ffn <= 8: lds_wait(14, L_FL + 44, 4 * late_ffn, 8, 4)
        else: lds_wait(14, L_FL + 48, 4, 8, 2); a("s_sleep 3")
        a(f"s_cmp_ge_u32 s3, {early_from}"); a("s_cbranch_scc1 L_ffn_gu")
        load_weights(lpace, wo=False, down=False)
        a.label("L_ffn_gu")
        if down_late: load_weights(lpace, wo=False, gu=False)
        a.label("L_ffn_have")
    a("v_lshrrev_b32 v2, 4, v0"); a("v_and_b32 v3, 15, v0")
    a("s_min_u32 s12, s3, 4"); a("s_lshl_b32 s12, s12, 8")
    a("v_lshrrev_b32 v5, 1, v2"); a("v_lshlrev_b32 v5, 7, v5"); a("v_lshl_add_u32 v5, v3, 3, v5")
    a("v_and_b32 v4, 1, v2"); a("v_lshl_add_u32 v5, v4, 2, v5"); a("v_add_u32 v5, s12, v5")
    a("global_load_dword v11, v5, s[16:17]")
    a("s_lshl_b32 s12, s3, 9")
    a("v_mul_u32_u24 v4, 10240, v2"); a("v_lshl_add_u32 v4, v3, 4, v4"); a("v_add_u32 v4, s12, v4")
    a("v_add_u32 v62, 5120, v4")
    a("v_lshlrev_b32 v5, 1, v5")
    a("s_lshl_b32 s13, s3, 3"); a("v_mov_b32 v6, s13"); a("v_mov_b32 v63, 0")
    a("v_lshrrev_b32 v7, 2, v0"); a("v_mul_u32_u24 v7, 40, v7"); a("s_and_b32 s13, s3, 3"); a("s_mul_i32 s13, s13, 640"); a("v_add_u32 v7, s13, v7")
    a("v_and_b32 v8, 3, v0"); a("v_lshlrev_b32 v8, 5, v8"); a("v_lshl_add_u32 v8, v2, 3, v8"); a("s_lshl_b32 s13, s3, 7"); a("v_add_u32 v8, s13, v8")
    a("v_and_b32 v9, 7, v0"); a("v_lshl_add_u32 v9, v2, 3, v9"); a("v_lshlrev_b32 v9, 2, v9"); a(f"v_add_u32 v9, {L_GU}, v9")
    a("s_mul_i32 s13, s52, 2560"); a("s_add_u32 s13, s13, s12"); a("v_lshlrev_b32 v10, 3, v0"); a("v_add_u32 v10, s13, v10")
    for j in range(8): a(f"v_mov_b32 v{52+j}, 0")
    a(f"s_mov_b32 s14, {LOG2E:#x}")
    lds_wait(14, L_FL + 52, 1, 150, 8)
    if fast_late:
        PD = pair_perm([[W0 + 40 + 4 * t + j for j in range(4)] for t in range(8)], 137)
        a("s_cmp_lt_u32 s3, 4"); a("s_cselect_b32 s44, s28, s30"); a("s_cselect_b32 s45, s29, s31")
        a(f"s_mov_b32 s46, {640*3456}"); a("s_mov_b32 s47, 0x20000")
        a("s_and_b32 s50, s3, 3"); a(f"s_mul_i32 s50, s50, {160*3456}"); a("s_lshl_b32 s51, s52, 6"); a("s_add_u32 s50, s50, s51")
        for i in range(1, 5): a(f"s_add_u32 s{80+i}, s50, {2*3456*i}")
        a("v_lshrrev_b32 v15, 2, v0"); a(f"v_mul_u32_u24 v15, {10*3456}, v15"); a("v_and_b32 v1, 3, v0"); a("v_lshl_add_u32 v15, v1, 4, v15")
    if coarse: lds_wait(14, L_FL + 44, 4 * min(late_ffn or 8, 8) - 4, 150, 24)
    a.label("L_ffn_go")
    if fast_late and not now:
        a(f"s_cmp_ge_u32 s3, {early_from}"); a("s_cbranch_scc1 L_ffn_have")
        with live():
            if late_ffn <= 8: lds_wait(14, L_FL + 44, 4 * late_ffn, 150, 2)
            else: lds_wait(14, L_FL + 48, 4, 150, 2); a("s_sleep 3")
        for t in range(10):
            if t % 4 == 0: lv = live(); lv.__enter__()
            if lpace and t >= lpace: a(f"s_waitcnt vmcnt({lpace-1})")
            a(f"buffer_load_dwordx4 v[{W0+4*t}:{W0+4*t+3}], v15, s[44:47], " + ("s50" if t < 2 else f"s{80+t//2}") + f" offen offset:{(t%2)*3456} {wpol if gupol is None else gupol}")
            if t % 4 == 3 or t == 9: lv.__exit__()
        a.label("L_ffn_have")
    b5()
    a("s_waitcnt vmcnt(0)")
    stamp("x1")
    a("v_and_b32 v13, 0xffff0000, v11"); a("v_lshlrev_b32 v12, 16, v11")
    PG = pair_perm([[W0 + 4 * t + j for j in range(4)] for t in range(10)], 136)
    if not fast_late: PD = pair_perm([[W0 + 40 + 4 * t + j for j in range(4)] for t in range(8)], 137)
    a("s_cmp_ge_u32 s3, 5"); a("s_cbranch_scc1 L_h_wait")
    YI = [140, 148, 156, 24]
    HV = 40
    def iy(u):
        v, o = (4, 62)[u // 2], 2560 * (u % 2)
        return (lambda: (a(f"global_load_dwordx4 v[{YI[u]}:{YI[u]+3}], v{v}, s[76:77] offset:{o} sc1"),
                         a(f"global_load_dwordx4 v[{YI[u]+4}:{YI[u]+7}], v{v}, s[76:77] offset:{o+256} sc1")), range(YI[u], YI[u] + 8))
    def sy():
        for j in range(0, 8, 2):
            a(f"v_pk_add_f32 v[{16+j}:{17+j}], v[{YI[0]+j}:{YI[0]+j+1}], v[{YI[1]+j}:{YI[1]+j+1}]")
            a(f"v_pk_add_f32 v[{32+j}:{33+j}], v[{YI[2]+j}:{YI[2]+j+1}], v[{YI[3]+j}:{YI[3]+j+1}]")
        for j in range(0, 8, 2): a(f"v_pk_add_f32 v[{16+j}:{17+j}], v[{16+j}:{17+j}], v[{32+j}:{33+j}]")
    with live(): spoll([iy(u) for u in range(4)], sy, range(16, 24), 14, first=pfirst)
    stamp("e2")
    red_g8(list(range(16, 24)), 32)
    a("v_cvt_pk_bf16_f32 v34, v32, v33"); a("v_lshlrev_b32 v32, 16, v34"); a("v_and_b32 v33, 0xffff0000, v34")
    a("v_pk_add_f32 v[32:33], v[32:33], v[12:13]")
    a("v_cvt_pk_bf16_f32 v34, v32, v33"); a("v_lshlrev_b32 v32, 16, v34"); a("v_and_b32 v33, 0xffff0000, v34")
    a(f"ds_write_b64 v5, v[32:33] offset:{L_H}")
    a("v_readfirstlane_b32 s12, v32")
    a("v_subrev_f32 v34, s12, v32"); a("v_subrev_f32 v35, s12, v33")
    a("v_add_f32 v36, v34, v35"); a("v_mul_f32 v37, v34, v34"); a("v_fmac_f32 v37, v35, v35")
    for r in (8, 4, 2, 1):
        a(f"v_add_f32_dpp v36, v36, v36 row_ror:{r} {FULL}"); a(f"v_add_f32_dpp v37, v37, v37 row_ror:{r} {FULL}")
    a("v_permlane16_swap_b32 v36, v37")
    a("v_add_f32 v36, v36, v37")
    a("v_mov_b32 v37, v36"); a("v_permlane32_swap_b32 v36, v37"); a("v_add_f32 v36, v36, v37")
    a("v_mov_b32 v37, v36"); a("v_permlane16_swap_b32 v36, v37")
    a("v_mul_f32 v38, 0x3c000000, v36")
    a("v_fma_f32 v39, -v38, v36, v37"); a("v_add_f32 v38, s12, v38")
    a(f"ds_write_b64 v6, v[38:39] offset:{L_ST}")
    a("s_waitcnt lgkmcnt(0)")
    a.label("L_h_wait")
    with live(): a("s_barrier")
    a(f"ds_read_b128 v[32:35], v63 offset:{L_ST}"); a(f"ds_read_b128 v[36:39], v63 offset:{L_ST+16}"); a(f"ds_read_b64 v[22:23], v63 offset:{L_ST+32}")
    for i in range(5): a(f"ds_read_b64 v[{HV+2*i}:{HV+1+2*i}], v7 offset:{L_H+8*i}")
    a("s_waitcnt lgkmcnt(5)")
    a("v_pk_add_f32 v[50:51], v[32:33], v[34:35]"); a("v_pk_add_f32 v[60:61], v[36:37], v[38:39]")
    a("v_pk_add_f32 v[50:51], v[50:51], v[22:23]"); a("v_pk_add_f32 v[50:51], v[50:51], v[60:61]")
    a("v_mul_f32 v50, 0x3e4ccccd, v50")
    for i, r in enumerate((32, 34, 36, 38, 22)): a(f"v_sub_f32 v{r}, v{r}, v50")
    a("v_mul_f32 v60, v32, v32")
    for r in (34, 36, 38, 22): a(f"v_fmac_f32 v60, v{r}, v{r}")
    a("v_fmac_f32 v51, 0x43000000, v60")
    a(f"v_mul_f32 v51, {INV640:#x}, v51")
    a("v_cvt_pk_bf16_f32 v60, v50, v51"); a("v_lshlrev_b32 v50, 16, v60"); a("v_and_b32 v51, 0xffff0000, v60")
    a(f"v_add_f32 v51, {EPS:#x}, v51"); rbf(51, 51)
    a("v_sqrt_f32 v51, v51"); rbf(51, 51)
    a("v_rcp_f32 v51, v51")
    a("s_waitcnt lgkmcnt(0)")
    for i in range(5): a(f"v_pk_add_f32 v[{HV+2*i}:{HV+1+2*i}], v[{HV+2*i}:{HV+1+2*i}], v[50:51] op_sel_hi:[1,0] neg_lo:[0,1] neg_hi:[0,1]")
    for i in range(5): a(f"v_cvt_pk_bf16_f32 v{16+i}, v{HV+2*i}, v{HV+1+2*i}")
    for i in range(5): a(f"v_lshlrev_b32 v{HV+2*i}, 16, v{16+i}"); a(f"v_and_b32 v{HV+1+2*i}, 0xffff0000, v{16+i}")
    for i in range(5): a(f"v_pk_mul_f32 v[{HV+2*i}:{HV+1+2*i}], v[{HV+2*i}:{HV+1+2*i}], v[50:51] op_sel:[0,1] op_sel_hi:[1,1]")
    for i in range(5): a(f"v_cvt_pk_bf16_f32 v{16+i}, v{HV+2*i}, v{HV+1+2*i}")
    for i in range(5):
        for j in range(8):
            if i == 0: a(f"v_dot2_f32_bf16 v{40+j}, v{16+i}, v{PG[i][j]}, 0")
            else: a(f"v_dot2c_f32_bf16 v{40+j}, v{16+i}, v{PG[i][j]}")
    red_g8(list(range(40, 48)), 48)
    for r in (8, 4):
        a(f"v_add_f32_dpp v48, v48, v48 row_ror:{r} {FULL}"); a(f"v_add_f32_dpp v49, v49, v49 row_ror:{r} {FULL}")
    a(f"ds_write_b64 v8, v[48:49] offset:{L_GU}")
    a("s_waitcnt lgkmcnt(0)")
    with live(): a("s_barrier")
    stamp("gu")
    a("s_cmp_ge_u32 s3, 5"); a("s_cbranch_scc1 L_final")
    for w in range(4): a(f"ds_read2_b32 v[{16+2*w}:{17+2*w}], v9 offset0:{64*w} offset1:{64*w+32}")
    a("s_waitcnt lgkmcnt(0)")
    a("v_add_f32 v16, v16, v17"); a("v_add_f32 v18, v18, v19"); a("v_add_f32 v20, v20, v21"); a("v_add_f32 v22, v22, v23")
    a("v_add_f32 v16, v16, v18"); a("v_add_f32 v20, v20, v22")
    rbf(16, 16); rbf(20, 20)
    a("v_mul_f32 v17, s14, v16"); a("v_exp_f32 v17, -v17"); a("v_add_f32 v17, 1.0, v17"); a("v_rcp_f32 v17, v17")
    a("v_mul_f32 v16, v16, v17"); rbf(16, 16)
    a("v_mul_f32 v16, v16, v20")
    a(f"v_mov_b32_dpp v17, v16 quad_perm:[1,0,3,2] {FULL}")
    a("v_cvt_pk_bf16_f32 v16, v16, v17")
    for i in range(4):
        for j in range(8): a(f"v_dot2c_f32_bf16_dpp v{52+j}, v16, v{PD[i][j]} row_newbcast:{2*i} {FULL}")
    red_g8(list(range(52, 60)), 60)
    guard([60, 61])
    with live(): a("global_store_dwordx2 v10, v[60:61], s[78:79] sc1")
    stamp("f_pub")
    a("s_branch L_tend")
    a.label("L_final")
    a("s_cmp_lg_u32 s3, 5"); a("s_cbranch_scc1 L_tend")
    a(f"s_cmp_ge_u32 s52, {NFIN}"); a("s_cbranch_scc1 L_tend")
    a("s_mov_b32 s44, s78"); a("s_mov_b32 s45, s79"); a(f"s_mov_b32 s46, {NFFN*2560}"); a("s_mov_b32 s47, 0x20000")
    a("v_lshrrev_b32 v4, 3, v0"); a("v_mul_u32_u24 v4, 2560, v4"); a("v_and_b32 v5, 7, v0"); a("v_lshl_add_u32 v4, v5, 4, v4")
    a("s_lshl_b32 s12, s52, 7"); a("v_add_u32 v4, s12, v4")
    a("v_lshl_add_u32 v5, v5, 2, v2"); a("v_and_b32 v6, 1, v5"); a("v_lshrrev_b32 v5, 1, v5"); a("v_lshl_add_u32 v5, v5, 3, v6")
    a("s_lshr_b32 s12, s52, 2"); a("s_lshl_b32 s12, s12, 7"); a("s_and_b32 s13, s52, 3"); a("s_lshl_b32 s13, s13, 1"); a("s_add_u32 s12, s12, s13")
    a("v_add_u32 v5, s12, v5")
    a("v_lshlrev_b32 v6, 2, v5"); a("v_lshlrev_b32 v5, 1, v5")
    a(f"ds_read_b32 v7, v6 offset:{L_H}")
    for i in range(1, 7): a(f"s_mov_b32 s{80+i}, {8*2560*i}")
    def i3(i):
        return (lambda: a(f"buffer_load_dwordx4 v[{104+4*i}:{107+4*i}], v4, s[44:47], " + ("0" if i == 0 else f"s{80+i}") + " offen sc1"), range(104 + 4 * i, 108 + 4 * i))
    def s3():
        for j in (0, 2):
            a(f"v_pk_add_f32 v[{16+j}:{17+j}], v[{104+j}:{105+j}], v[{108+j}:{109+j}]")
            a(f"v_pk_add_f32 v[{20+j}:{21+j}], v[{112+j}:{113+j}], v[{116+j}:{117+j}]")
            a(f"v_pk_add_f32 v[{24+j}:{25+j}], v[{120+j}:{121+j}], v[{124+j}:{125+j}]")
        for j in (0, 2):
            a(f"v_pk_add_f32 v[{16+j}:{17+j}], v[{16+j}:{17+j}], v[{20+j}:{21+j}]")
            a(f"v_pk_add_f32 v[{24+j}:{25+j}], v[{24+j}:{25+j}], v[{128+j}:{129+j}]")
        for j in (0, 2): a(f"v_pk_add_f32 v[{16+j}:{17+j}], v[{16+j}:{17+j}], v[{24+j}:{25+j}]")
    with live(): spoll([i3(i) for i in range(7)], s3, range(16, 20), 14)
    stamp("e3")
    red_g4([16, 17, 18, 19], 20)
    a(f"v_add_f32_dpp v20, v20, v20 row_ror:8 {FULL}")
    rbf(20, 20)
    a("s_waitcnt lgkmcnt(0)")
    a("v_add_f32 v20, v20, v7")
    a("v_cvt_pk_bf16_f32 v20, v20, v20")
    if warm: a("s_cbranch_execz L_warmed")
    a("s_mov_b32 s12, 0x00ff00ff"); a("s_mov_b32 s13, 0x00ff00ff"); a("s_mov_b64 exec, s[12:13]")
    a("global_store_short v5, v20, s[34:35]")
    a("s_cmp_lg_u32 s52, 0"); a("s_cbranch_scc1 L_noep")
    a("s_mov_b64 exec, 1")
    a(f"v_mov_b32 v5, {WS_EP:#x}"); a("v_mov_b32 v6, s15")
    a("global_store_dword v5, v6, s[38:39]")
    if dbl:
        a("s_memrealtime s[90:91]"); a("s_waitcnt lgkmcnt(0)")
        a("s_sub_u32 s92, s90, s88"); a(f"s_mul_i32 s92, s92, {dbl}"); a("s_add_u32 s92, s92, s90"); a("s_mov_b32 s60, 100000")
        a.label("L_dbl")
        a("s_memrealtime s[90:91]"); a("s_waitcnt lgkmcnt(0)"); a("s_sub_u32 s93, s90, s92"); a("s_cmp_ge_i32 s93, 0"); a("s_cbranch_scc1 L_noep")
        a("s_sub_u32 s60, s60, 1"); a("s_cbranch_scc0 L_dbl")
    a.label("L_noep")
    a("s_mov_b64 exec, -1")
    stamp("out")
    a.label("L_tend")
    if warm: a("s_cbranch_execz L_warmed")
    a.label("L_fin")
    dump_stamps()
    a.label("L_exit")
    a("s_endpgm")
    nv = 168
    a.raw('.section .rodata,"a"'); a.raw(".p2align 6"); a.raw(f".amdhsa_kernel {KN}")
    a.raw(f"  .amdhsa_next_free_vgpr {nv}"); a.raw("  .amdhsa_next_free_sgpr 96"); a.raw(f"  .amdhsa_accum_offset {nv}")
    a.raw("  .amdhsa_group_segment_fixed_size 0"); a.raw("  .amdhsa_kernarg_size 96"); a.raw("  .amdhsa_user_sgpr_count 2")
    a.raw("  .amdhsa_user_sgpr_kernarg_segment_ptr 1"); a.raw("  .amdhsa_system_sgpr_workgroup_id_x 1")
    a.raw("  .amdhsa_float_denorm_mode_32 3")
    a.raw(".end_amdhsa_kernel")
    return a.text(), stampn

if __name__ == "__main__":
    out = sys.argv[1] if len(sys.argv) > 1 else "sequential_preLN__mha_block_cached__swiglu_ffn__decode.s"
    kw = eval("dict(%s)" % sys.argv[2]) if len(sys.argv) > 2 else {}
    t, st = gen(**kw)
    open(out, "w").write(t)
    print("wrote", out, len(t.splitlines()), "lines", st)
```

```python
import sys
sys.path.insert(0, "work")
from asmlib import Asm

KN = "sequential_preLN__mha_block_cached__swiglu_ffn__decode_kernel"
HEADER = open("sequential_preLN__mha_block_cached__swiglu_ffn__decode.s.ref").read().split("; Override launch")[0]

MB = 4352
MB_Q = 0
MB_ST = 512
MB_MK = 768
MB_O = 1024
WS_EP = 0x110000
WS_YP = 0x120000
WS_FP = 0x130000
L_FL = 0
L_Q = 256
L_QS = 768
L_SC = 2048
L_PP = L_SC + 32768
L_OL = L_PP + 16384
L_YL = L_OL + 4096
L_H = L_YL + 2048
L_GU = L_H + 2560
L_ST = L_GU + 1024
L_END = L_ST + 64
NWO, NFFN, NFIN = 160, 54, 20
NWAVE = 12
SPIN = 20000
LSPIN = 2000000
LOG2E = 0x3fb8aa3b
SCALE = 0x3db504f3
INV640 = 0x3acccccd
EPS = 0x3727c5ac
FULL = "row_mask:0xf bank_mask:0xf"

def gen(diag=False, wpol="nt", sleep=1, wpace=1, prio=3, now=False, ssleep=4, bs=False, DS=(5, 6, 8), GR=2, rolemix=True, modes=(1, 1, 2), F=6, epace=2, masked=True, lastit=3, hprio=2, pairx=False, noclear=False, dbl=0, kvpol='nt', warm=True, pdepth=1, pfirst=3, psleep=0, fine=True, hint=None, hs=64, hk=3, tlb=False, pre=6, late_wo=True, late_ffn=8, lpace=0, early_from=7, down_late=False, deep_until=0, wo_at=32, gupol='', rev=False, kdeep=True, codepf=False, e3d=1, coarse=True, stag=2, fastloc=True, QTO=12):
    a = Asm()
    uid = [0]
    def L(n):
        uid[0] += 1
        return f"L_{n}_{uid[0]}"
    stampn = {}
    SV = 166
    def stamp(name):
        if not diag: return
        if diag == 1 and name not in ("start", "v_done", "out"): return
        if diag == 4 and name not in ("start", "v_done", "out", "iss0", "land0", "land1", "land3", "s_filled", "q_ready", "h_x", "h_dots", "qp_pub", "q_got", "ka_done"): return
        if diag == 2 and name not in ("start", "v_done", "tail", "e1", "y_pub", "e2", "gu", "f_pub", "e3", "out", "x1", "x2", "x3", "x4"): return
        i = stampn.setdefault(name, len(stampn))
        sk = L("st"); a(f"s_cbranch_execz {sk}")
        a("s_memrealtime s[90:91]"); a("s_waitcnt lgkmcnt(0)"); a(f"v_writelane_b32 v{SV}, s90, {i}")
        a.label(sk)
    def prog():
        if diag != 3: return
        a("s_memrealtime s[90:91]"); a("s_waitcnt lgkmcnt(0)"); a("s_mov_b32 m0, s94"); a("s_nop 0"); a(f"v_writelane_b32 v{SV}, s90, m0"); a("s_add_u32 s94, s94, 1")
    def dump_stamps():
        if not diag: return
        a("s_add_u32 s90, s38, 0x10000000"); a("s_addc_u32 s91, s39, 0")
        a(f"s_mul_i32 s92, s2, {NWAVE}"); a("s_add_u32 s92, s92, s93"); a("s_lshl_b32 s92, s92, 8")
        a(f"v_lshlrev_b32 v{SV+1}, 2, v0"); a(f"v_add_u32 v{SV+1}, s92, v{SV+1}")
        a(f"global_store_dword v{SV+1}, v{SV}, s[90:91]")

    class live:
        def __enter__(self_):
            self_.l = L("live")
            if warm: a(f"s_cbranch_execz {self_.l}")
        def __exit__(self_, *x):
            if warm: a.label(self_.l)
    def rbf(dst, src):
        a(f"v_cvt_pk_bf16_f32 v{dst}, v{src}, v{src}"); a(f"v_and_b32 v{dst}, 0xffff0000, v{dst}")
    def rowred(op, v):
        for r in (8, 4, 2, 1):
            a(f"{op}_dpp v{v}, v{v}, v{v} row_ror:{r} {FULL}")
    def allred(op, v, t):
        rowred(op, v)
        a(f"v_mov_b32 v{t}, v{v}"); a(f"v_permlane16_swap_b32 v{v}, v{t}"); a(f"{op} v{v}, v{v}, v{t}")
        a(f"v_mov_b32 v{t}, v{v}"); a(f"v_permlane32_swap_b32 v{v}, v{t}"); a(f"{op} v{v}, v{v}, v{t}")
    def red_g8(r, dst):
        for j in range(4): a(f"v_permlane32_swap_b32 v{r[j]}, v{r[j+4]}")
        for j in range(4): a(f"v_add_f32 v{r[j]}, v{r[j]}, v{r[j+4]}")
        a(f"v_permlane16_swap_b32 v{r[0]}, v{r[2]}"); a(f"v_permlane16_swap_b32 v{r[1]}, v{r[3]}")
        a(f"v_add_f32 v{dst}, v{r[0]}, v{r[2]}"); a(f"v_add_f32 v{dst+1}, v{r[1]}, v{r[3]}")
    def red_g4(r, dst):
        a(f"v_permlane32_swap_b32 v{r[0]}, v{r[2]}"); a(f"v_permlane32_swap_b32 v{r[1]}, v{r[3]}")
        a(f"v_add_f32 v{r[0]}, v{r[0]}, v{r[2]}"); a(f"v_add_f32 v{r[1]}, v{r[1]}, v{r[3]}")
        a(f"v_permlane16_swap_b32 v{r[0]}, v{r[1]}")
        a(f"v_add_f32 v{dst}, v{r[0]}, v{r[1]}")
    def guard(regs):
        for r in regs: a(f"v_min_u32 v{r}, -2, v{r}")
    def poll(issue, regs, t, cnt="s60", sleep=sleep):
        top, done = L("poll"), L("polled")
        a(f"s_mov_b32 {cnt}, {SPIN}")
        a.label(top)
        issue()
        a("s_waitcnt vmcnt(0)")
        rs = list(regs)
        if len(rs) == 2:
            a(f"v_max_u32 v{t}, v{rs[0]}, v{rs[1]}")
        else:
            a(f"v_max3_u32 v{t}, v{rs[0]}, v{rs[1]}, v{rs[2]}")
            rs = rs[3:]
            while len(rs) >= 2:
                a(f"v_max3_u32 v{t}, v{t}, v{rs[0]}, v{rs[1]}"); rs = rs[2:]
            if rs: a(f"v_max_u32 v{t}, v{t}, v{rs[0]}")
        a(f"v_cmp_eq_u32 vcc, -1, v{t}")
        a(f"s_cbranch_vccz {done}")
        if sleep: a(f"s_sleep {sleep}")
        a(f"s_sub_u32 {cnt}, {cnt}, 1")
        a(f"s_cbranch_scc0 {top}")
        a.label(done)
    def umax(t, rs):
        rs = list(rs)
        a(f"v_max3_u32 v{t}, v{rs[0]}, v{rs[1]}, v{rs[2]}")
        rs = rs[3:]
        while len(rs) >= 2:
            a(f"v_max3_u32 v{t}, v{t}, v{rs[0]}, v{rs[1]}"); rs = rs[2:]
        if rs: a(f"v_max_u32 v{t}, v{t}, v{rs[0]}")
    def mpoll(groups, t, sm):
        if not masked:
            def allissue():
                for g, _ in groups: g()
            poll(allissue, [r for _, rs in groups for r in rs], t)
            return
        top, done = L("mpoll"), L("mpolled")
        a(f"s_mov_b32 s60, {SPIN}")
        for g, _ in groups: g()
        a.label(top)
        a("s_waitcnt vmcnt(0)")
        for i, (_, rs) in enumerate(groups): umax(t + i, rs)
        for i in range(len(groups)): a(f"v_cmp_eq_u32 s[{sm+2*i}:{sm+2*i+1}], -1, v{t+i}")
        a(f"s_or_b64 s[58:59], s[{sm}:{sm+1}], s[{sm+2}:{sm+3}]")
        for i in range(2, len(groups)): a(f"s_or_b64 s[58:59], s[58:59], s[{sm+2*i}:{sm+2*i+1}]")
        a(f"s_cbranch_scc0 {done}")
        if sleep: a(f"s_sleep {sleep}")
        for i, (g, _) in enumerate(groups):
            sk = L("mskip")
            a(f"s_mov_b64 exec, s[{sm+2*i}:{sm+2*i+1}]")
            a(f"s_cbranch_execz {sk}")
            g()
            a.label(sk)
        a("s_mov_b64 exec, -1")
        a("s_sub_u32 s60, s60, 1")
        a(f"s_cbranch_scc0 {top}")
        a("s_waitcnt vmcnt(0)")
        a.label(done)
    def spoll(groups, sums, outs, t, first=0):
        top, done = L("spoll"), L("spolled")
        a(f"s_mov_b32 s60, {SPIN}")
        if first: a(f"s_sleep {first}")
        for g, _ in groups: g()
        a.label(top)
        a("s_waitcnt vmcnt(0)")
        sums()
        umax(t, outs)
        a(f"v_cmp_eq_u32 vcc, -1, v{t}")
        a(f"s_cbranch_vccz {done}")
        if psleep: a(f"s_sleep {psleep}")
        if fine:
            for g, rs in groups:
                sk = L("gsk")
                umax(t, rs)
                a(f"v_cmp_eq_u32 vcc, -1, v{t}")
                a(f"s_cbranch_vccz {sk}")
                a("s_mov_b64 exec, vcc")
                g()
                a("s_mov_b64 exec, -1")
                a.label(sk)
        else:
            a("s_mov_b64 exec, vcc")
            for g, _ in groups: g()
            a("s_mov_b64 exec, -1")
        a("s_sub_u32 s60, s60, 1")
        a(f"s_cbranch_scc0 {top}")
        a("s_waitcnt vmcnt(0)")
        a.label(done)
    def pub2(ins):
        gl, dn = L("glob"), L("pubd")
        a("s_cmp_eq_u32 s66, 0"); a(f"s_cbranch_scc1 {gl}")
        a(ins); a(f"s_branch {dn}")
        a.label(gl); a(ins + " sc1"); a.label(dn)
    def lds_wait(vaddr, off, val, t, slp):
        top, done = L("lw"), L("lwd")
        a(f"s_mov_b32 s60, {LSPIN}")
        a.label(top)
        a(f"ds_read_b32 v{t}, v{vaddr} offset:{off}")
        a("s_waitcnt lgkmcnt(0)")
        a(f"v_cmp_gt_u32 vcc, {val}, v{t}")
        a(f"s_cbranch_vccz {done}")
        a(f"s_sleep {slp}")
        a("s_sub_u32 s60, s60, 1"); a(f"s_cbranch_scc0 {top}")
        a.label(done)
    def lds_signal(vaddr, off, one):
        a("s_waitcnt lgkmcnt(0)")
        a("s_mov_b64 exec, 1"); a(f"ds_add_u32 v{vaddr}, v{one} offset:{off}"); a("s_mov_b64 exec, -1")
    def pair_perm(W, spare):
        out = []
        for t in range(0, len(W), 2):
            cols = []
            for j in range(4):
                A_, B_ = W[t][j], W[t + 1][j]
                a(f"v_perm_b32 v{spare}, v{B_}, v{A_}, s70")
                a(f"v_perm_b32 v{B_}, v{B_}, v{A_}, s71")
                cols += [spare, B_]
                spare = A_
            out.append(cols)
        return out
    def ln_stats(x, m, rs, t0, t1):
        a(f"v_add_f32 v{m}, v{x[0]}, v{x[1]}")
        for r in x[2:]: a(f"v_add_f32 v{m}, v{m}, v{r}")
        allred("v_add_f32", m, t0)
        a(f"v_mul_f32 v{m}, {INV640:#x}, v{m}")
        for i, r in enumerate(x):
            a(f"v_sub_f32 v{t0}, v{r}, v{m}")
            if i == 0: a(f"v_mul_f32 v{rs}, v{t0}, v{t0}")
            else: a(f"v_fmac_f32 v{rs}, v{t0}, v{t0}")
        allred("v_add_f32", rs, t0)
        a(f"v_mul_f32 v{rs}, {INV640:#x}, v{rs}")
        rbf(rs, rs); rbf(m, m)
        a(f"v_add_f32 v{rs}, {EPS:#x}, v{rs}"); rbf(rs, rs)
        a(f"v_sqrt_f32 v{rs}, v{rs}"); rbf(rs, rs)
        a(f"v_rcp_f32 v{rs}, v{rs}")

    a.raw(HEADER.rstrip("\n"))
    a.raw(f"; @launch grid=(256,1,1) block=({64*NWAVE},1,1) lds={L_END}")
    a.raw('.amdgcn_target "amdgcn-amd-amdhsa--gfx950"')
    a.raw(".text"); a.raw(f".globl {KN}"); a.raw(".p2align 8"); a.raw(f".type {KN},@function")
    a.label(KN)
    a("s_cmp_ge_u32 s2, 256"); a("s_cbranch_scc1 L_exit")
    if dbl or diag == 4: a("s_memrealtime s[88:89]")
    a("s_load_dwordx16 s[16:31], s[0:1], 0")
    a("s_load_dwordx8 s[32:39], s[0:1], 64")
    a("v_lshrrev_b32 v1, 6, v0")
    a("v_and_b32 v0, 63, v0")
    a("v_readfirstlane_b32 s3, v1")
    if diag: a(f"v_mov_b32 v{SV}, 0")
    a("v_lshlrev_b32 v1, 4, v0")
    a("s_and_b32 s4, s2, 7"); a("s_lshl_b32 s4, s4, 5"); a("s_lshr_b32 s2, s2, 3"); a("s_or_b32 s2, s2, s4")
    a("s_lshr_b32 s4, s2, 4")
    if diag: a("s_mov_b32 s93, s3"); a("s_mov_b32 s94, 32")
    a("s_and_b32 s67, s2, 15"); a("s_lshl_b32 s67, s67, 4"); a("s_add_u32 s67, s67, s4")
    a("s_cmp_ge_u32 s3, 4"); a("s_cbranch_scc1 L_helper")

    R0 = 36
    ring = [8]
    def slot(ck, i): return R0 + 16 * (ck % ring[0]) + 4 * i
    def issue_chunk(ck, pacer=None, lo=0, hi=4):
        for i in range(lo, hi):
            if pacer and i % GR == 0: pacer(i)
            s = slot(ck, i)
            a(f"buffer_load_dwordx4 v[{s}:{s+3}], v1, s[8:11], s12 offen offset:{1024*i} {kvpol}")
        if hi == 4: a("s_add_u32 s12, s12, 0x4000"); a("s_and_b32 s12, s12, 0x3ffff")
    a("s_and_b32 s5, s2, 15")
    a("s_lshl_b32 s13, s4, 23"); a("s_lshl_b32 s14, s5, 18"); a("s_add_u32 s13, s13, s14")
    a(f"s_mul_i32 s12, s5, {stag*0x4000}"); a("s_and_b32 s12, s12, 0x3ffff")
    a("s_lshl_b32 s14, s3, 12"); a("s_add_u32 s12, s12, s14")
    a("s_mov_b32 s10, 0x40000"); a("s_mov_b32 s11, 0x20000")
    a("s_waitcnt lgkmcnt(0)")
    a("s_add_u32 s8, s18, s13"); a("s_addc_u32 s9, s19, 0")
    if diag == 4: a(f"v_writelane_b32 v{SV}, s88, 59")
    stamp("start")
    if bs: a("s_barrier")
    issue_chunk(0)
    if pre > 4: issue_chunk(1, None, 0, pre - 4)
    stamp("iss0")
    a(f"s_add_u32 s14, s14, {L_SC}")
    a("v_lshlrev_b32 v20, 2, v0"); a("v_add_u32 v20, s14, v20")
    a("v_and_b32 v21, 15, v0"); a("v_lshlrev_b32 v21, 4, v21")
    a("v_mov_b32 v22, 0"); a("v_mov_b32 v23, 1")
    stamp("s_issued")
    if not bs: a("s_barrier")
    a(f"s_mov_b32 s15, {modes[0]}")
    a(f"s_cmp_lt_u32 s67, {NWO+NFFN}"); a(f"s_cselect_b32 s15, {modes[2]}, s15")
    a(f"s_cmp_lt_u32 s67, {NWO}"); a(f"s_cselect_b32 s15, {modes[1]}, s15")
    a("s_mov_b32 s46, s15"); a("s_mov_b32 s47, 4"); a("v_mov_b32 v3, 0")
    def hint_read():
        if hint is not None: a(f"ds_read_b32 v2, v3 offset:{L_FL+28}")
    def hint_apply():
        if hint is None: return
        a("v_readfirstlane_b32 s45, v2")
        a("s_lshr_b32 s48, s45, 8"); a("s_and_b32 s45, s45, 3")
        a("s_cmp_lt_u32 s47, s48"); a("s_cselect_b32 s15, s45, s46")
        a("s_add_u32 s47, s47, 1")
    def hint_mark(off):
        if hint is None: return
        sk = L("hm")
        a("s_cmp_lg_u32 s6, 0"); a(f"s_cbranch_scc1 {sk}")
        a("s_mov_b64 exec, 1"); a(f"ds_add_u32 v22, v23 offset:{off}"); a("s_mov_b64 exec, -1")
        a.label(sk)
    def pace(i):
        go = L("go")
        a(f"s_waitcnt vmcnt({DS[2]-GR})")
        if DS[1] != DS[2] or DS[0] != DS[2]:
            a("s_cmp_ge_u32 s15, 2"); a(f"s_cbranch_scc1 {go}")
            a(f"s_waitcnt vmcnt({DS[1]-GR})")
            if DS[0] != DS[1]:
                a("s_cmp_ge_u32 s15, 1"); a(f"s_cbranch_scc1 {go}")
                a(f"s_waitcnt vmcnt({DS[0]-GR})")
            a.label(go)
    assert DS[2] <= 8
    for ck in range(1, F):
        if ck == 1 and pre == 8: continue
        issue_chunk(ck, lambda i: a(f"s_waitcnt vmcnt({DS[1]-GR})"), (pre - 4 if ck == 1 else 0))
        if ck in (1, 2, 4): stamp({1: "land0", 2: "land1", 4: "land3"}[ck])
    stamp("s_filled")
    lds_wait(22, L_FL + 4, 4, 8, 1)
    a(f"ds_read_b128 v[4:7], v21 offset:{L_Q}")
    a(f"ds_read_b128 v[16:19], v21 offset:{L_Q+256}")
    a("s_waitcnt lgkmcnt(0)")
    stamp("q_ready")
    def switch_point():
        a("s_cmp_eq_u32 s6, 3")
        a("s_cselect_b32 s8, s40, s8"); a("s_cselect_b32 s9, s41, s9")
        a("s_cselect_b32 s10, s43, s10")
    def proc_k(ck, q, off):
        for j in range(4):
            for i in range(4):
                a(f"v_dot2_f32_bf16 v{8+i}, v{slot(ck,i)+j}, v{q+j}, " + ("0" if j == 0 else f"v{8+i}"))
        a("v_add_f32_dpp v12, v8, v8 row_ror:8 row_mask:0xf bank_mask:0x3")
        a("s_nop 0")
        a("v_add_f32_dpp v13, v10, v10 row_ror:8 row_mask:0xf bank_mask:0x3")
        a("v_add_f32_dpp v12, v9, v9 row_ror:8 row_mask:0xf bank_mask:0xc")
        a("v_add_f32_dpp v13, v11, v11 row_ror:8 row_mask:0xf bank_mask:0xc")
        a("v_add_f32_dpp v14, v12, v12 row_half_mirror row_mask:0xf bank_mask:0x5")
        a("v_add_f32_dpp v14, v13, v13 row_half_mirror row_mask:0xf bank_mask:0xa")
        a(f"ds_write_b32 v20, v14 offset:{off}")
    n = F
    since = 9
    burst = 0
    for k in range(16):
        if n - ring[0] < k and n < 18 and (n - k <= 2 or since >= 2 or burst < 2):
            if n == 16: a("s_add_u32 s8, s8, 0x400000"); a("s_addc_u32 s9, s9, 0")
            issue_chunk(n, pace); n += 1; since = 0; burst += 1
        assert k <= n - 3
        proc_k(k, 4, 256 * k)
        since += 1
        if k % 4 == 3: prog()
    assert n == 18, n
    lds_signal(22, L_FL + 8, 23)
    stamp("ka_done")
    ring[0] = 4
    a("s_add_u32 s40, s20, s13"); a("s_addc_u32 s41, s21, 0"); a("s_mov_b32 s43, 0x40000")
    if not kdeep: a(f"s_mov_b32 s15, {modes[0]}")
    a("s_mov_b32 s6, 0")
    a.label("L_kiter")
    hint_read()
    for k in range(4):
        if k == 2: switch_point()
        issue_chunk(k + 2, pace)
        if k == 0 and hint is not None: a("s_waitcnt lgkmcnt(0)"); hint_apply()
        proc_k(k, 16, 0x4000 + 256 * k)
        if k == hk: hint_mark(L_FL + 32)
    prog()
    a("v_add_u32 v20, 0x400, v20")
    a("s_add_u32 s6, s6, 1"); a("s_cmp_lt_u32 s6, 4"); a("s_cbranch_scc1 L_kiter")
    lds_signal(22, L_FL + 12, 23)
    stamp("k_done")
    a("s_lshl_b32 s14, s3, 11"); a(f"s_add_u32 s14, s14, {L_PP}")
    a("v_lshlrev_b32 v20, 3, v0"); a("v_add_u32 v20, s14, v20")
    a("s_lshl_b32 s14, s3, 9"); a(f"s_add_u32 s14, s14, {L_OL}")
    a("v_and_b32 v21, 15, v0"); a("v_lshlrev_b32 v21, 5, v21"); a("v_lshrrev_b32 v8, 4, v0"); a("v_lshl_add_u32 v21, v8, 3, v21")
    a("v_add_u32 v21, s14, v21")
    a("s_add_u32 s40, s40, 0x400000"); a("s_addc_u32 s41, s41, 0")
    a("s_mov_b32 s7, 0"); a("s_mov_b32 s44, 99")
    a.label("L_vhead")
    lds_wait(22, L_FL + 16, 1, 8, 1)
    stamp("p_wait")
    for j in range(8): a(f"v_mov_b32 v{24+j}, 0")
    a("s_mov_b32 s6, 0")
    a.label("L_viter")
    a("ds_read_b64 v[32:33], v20")
    hint_read()
    if deep_until < 8:
        a("s_lshl_b32 s45, s7, 2"); a("s_add_u32 s45, s45, s6"); a(f"s_cmp_ge_u32 s45, {deep_until}"); a(f"s_cselect_b32 s15, {modes[0]}, s15")
    a("s_cmp_ge_u32 s6, s44"); a("s_cselect_b32 s15, 2, s15")
    for k in range(4):
        if k == 2: switch_point()
        if k >= 2:
            dr, go = L("drain"), L("drained")
            a("s_cmp_eq_u32 s10, 0"); a(f"s_cbranch_scc1 {dr}")
            issue_chunk(k + 2, pace)
            a(f"s_branch {go}")
            a.label(dr)
            a(f"s_waitcnt vmcnt({4*(3-k)})")
            a.label(go)
        else:
            issue_chunk(k + 2, pace)
        if k == 1: a("s_mov_b64 exec, 1"); a(f"ds_add_u32 v3, v23 offset:{L_FL+44}"); a("s_mov_b64 exec, -1")
        if k == 0:
            a("s_waitcnt lgkmcnt(0)")
            hint_apply()
            if hint is not None: a("s_cmp_ge_u32 s6, s44"); a("s_cselect_b32 s15, 2, s15")
        for i in range(4):
            s = slot(k, i)
            c = ((i & 1) << 3) | ((i >> 1) << 2) | k
            for j in range(4):
                a(f"v_dot2c_f32_bf16_dpp v{24+2*j}, v32, v{s+j} row_newbcast:{c} {FULL}")
                a(f"v_dot2c_f32_bf16_dpp v{25+2*j}, v33, v{s+j} row_newbcast:{c} {FULL}")
        if k == hk: hint_mark(L_FL + 36)
    prog()
    a("v_add_u32 v20, 0x200, v20")
    a("s_add_u32 s6, s6, 1"); a("s_cmp_lt_u32 s6, 4"); a("s_cbranch_scc1 L_viter")
    red_g8(list(range(24, 32)), 34)
    a("ds_write_b64 v21, v[34:35]")
    a("s_cmp_lg_u32 s7, 0"); a("s_cbranch_scc1 L_vend")
    lds_signal(22, L_FL + 24, 23)
    stamp("va_done")
    a("v_add_u32 v20, 0x1800, v20"); a("v_add_u32 v21, 0x800, v21"); a("v_mov_b32 v22, 4")
    a("s_mov_b32 s43, 0"); a("s_mov_b32 s7, 1"); a(f"s_mov_b32 s44, {lastit}")
    a("s_branch L_vhead")
    a.label("L_vend")
    a("s_mov_b64 exec, 1"); a(f"ds_add_u32 v3, v23 offset:{L_FL+48}"); a("s_mov_b64 exec, -1")
    stamp("v_done")
    a("s_branch L_fin")

    def ffn_index(d):
        a(f"s_sub_u32 {d}, s67, {NWO}")
    W0 = 64
    def load_weights(wpace=wpace, down=True, wo=True, fw=True, gu=True):
        if now or not (wo or fw): return
        ffn, done = L("ffnw"), L("wdone")
        cnt = [0]
        def ld(idx, off, pol=wpol):
            if wpace and cnt[0] >= wpace: a(f"s_waitcnt vmcnt({wpace-1})")
            cnt[0] += 1
            a(f"buffer_load_dwordx4 v[{W0+4*idx}:{W0+4*idx+3}], v2, s[44:47], s50 offen offset:{off} {pol}")
        a(f"s_cmp_ge_u32 s67, {NWO}"); a(f"s_cbranch_scc1 {ffn}")
        if not wo: a(f"s_branch {done}")
        a("s_mov_b32 s44, s24"); a("s_mov_b32 s45, s25"); a(f"s_mov_b32 s46, {4096*1280}"); a("s_mov_b32 s47, 0x20000")
        a("s_and_b32 s50, s67, 15"); a("s_lshl_b32 s50, s50, 3"); a("s_add_u32 s50, s50, s3"); a(f"s_mul_i32 s50, s50, {32*1280}")
        a("s_lshr_b32 s51, s67, 4"); a("s_lshl_b32 s51, s51, 7"); a("s_add_u32 s50, s50, s51")
        a("v_lshrrev_b32 v2, 3, v0"); a(f"v_mul_u32_u24 v2, {4*1280}, v2"); a("v_and_b32 v3, 7, v0"); a("v_lshl_add_u32 v2, v3, 4, v2")
        for t in range(4 if wo else 0): ld(t, t * 1280)
        a(f"s_branch {done}")
        a.label(ffn)
        cnt[0] = 0
        if not fw:
            a.label(done); return
        a(f"s_cmp_ge_u32 s67, {NWO+NFFN}"); a(f"s_cbranch_scc1 {done}")
        a("s_cmp_lt_u32 s3, 4"); a("s_cselect_b32 s44, s28, s30"); a("s_cselect_b32 s45, s29, s31")
        a(f"s_mov_b32 s46, {640*3456}"); a("s_mov_b32 s47, 0x20000")
        ffn_index("s52")
        a("s_and_b32 s50, s3, 3"); a(f"s_mul_i32 s50, s50, {160*3456}"); a("s_lshl_b32 s51, s52, 6"); a("s_add_u32 s50, s50, s51")
        a("v_lshrrev_b32 v2, 2, v0"); a(f"v_mul_u32_u24 v2, {10*3456}, v2"); a("v_and_b32 v3, 3, v0"); a("v_lshl_add_u32 v2, v3, 4, v2")
        gp = wpol if gupol is None else gupol
        if gu and rev:
            od, jn = L("odd"), L("join")
            a("s_bitcmp1_b32 s52, 0"); a(f"s_cbranch_scc1 {od}")
        for t in range(10 if gu else 0):
            if t and t % 2 == 0: a(f"s_add_u32 s50, s50, {2*3456}")
            ld(t, (t % 2) * 3456, gp)
        if gu and rev:
            a(f"s_branch {jn}")
            a.label(od)
            cnt[0] = 0
            a(f"s_add_u32 s50, s50, {8*3456}")
            for t in range(9, -1, -1):
                ld(t, (t % 2) * 3456, gp)
                if t and t % 2 == 0: a(f"s_sub_u32 s50, s50, {2*3456}")
            a.label(jn)
        if not down:
            a.label(done); return
        a("s_cmp_ge_u32 s3, 5"); a(f"s_cbranch_scc1 {done}")
        a("s_mov_b32 s44, s32"); a("s_mov_b32 s45, s33"); a(f"s_mov_b32 s46, {1728*1280}")
        a(f"s_mul_i32 s50, s52, {32*1280}"); a("s_lshl_b32 s51, s3, 8"); a("s_add_u32 s50, s50, s51")
        a("v_lshrrev_b32 v2, 4, v0"); a(f"v_mul_u32_u24 v2, {8*1280}, v2"); a("v_and_b32 v3, 15, v0"); a("v_lshl_add_u32 v2, v3, 4, v2")
        for t in range(8):
            if t == 4: a(f"s_add_u32 s50, s50, {4*1280}")
            ld(10 + t, (t % 4) * 1280)
        a.label(done)

    a.label("L_helper")
    a("s_sub_u32 s3, s3, 4")
    a("s_and_b32 s6, s2, 15")
    a("v_lshlrev_b32 v6, 2, v0")
    a("v_mov_b32 v14, 0"); a("v_mov_b32 v15, 1")
    a("s_mov_b32 s70, 0x05040100"); a("s_mov_b32 s71, 0x07060302")
    a("s_cmp_ge_u32 s3, 4"); a("s_cbranch_scc1 L_helper2")
    if prio: a(f"s_setprio {prio}")
    a("v_lshrrev_b32 v2, 3, v0")
    a("v_and_b32 v3, 7, v0")
    a("v_mul_u32_u24 v4, 5, v2")
    a("s_lshr_b32 s8, s6, 2"); a("s_lshl_b32 s8, s8, 2"); a("s_add_u32 s8, s8, s3"); a("s_mul_i32 s8, s8, 40")
    a("v_add_u32 v4, s8, v4")
    a("v_lshlrev_b32 v5, 13, v4"); a("v_lshl_add_u32 v5, v3, 4, v5")
    a("v_lshlrev_b32 v4, 1, v4")
    a("s_lshl_b32 s9, s4, 9"); a("s_and_b32 s10, s6, 3"); a("s_lshl_b32 s10, s10, 7"); a("s_add_u32 s9, s9, s10")
    a(f"s_mov_b32 s46, {640*8192}"); a("s_mov_b32 s47, 0x20000")
    a("s_waitcnt lgkmcnt(0)")
    stamp("start")
    a(f"s_add_u32 s74, s38, {WS_EP}"); a("s_addc_u32 s75, s39, 0")
    a("s_load_dword s15, s[74:75], 0")
    a("global_load_dwordx4 v[16:19], v1, s[16:17]"); a("global_load_dword v20, v6, s[16:17] offset:1024")
    for t in range(5): a(f"global_load_ushort v{21+t}, v4, s[16:17] offset:{2*t}")
    a("s_mov_b32 s44, s22"); a("s_mov_b32 s45, s23")
    for t in range(5):
        a(f"buffer_load_dwordx4 v[{64+4*t}:{64+4*t+3}], v5, s[44:47], s9 offen {wpol}")
        if t < 4: a("s_add_u32 s9, s9, 0x2000")
    a("s_barrier")
    a("v_lshlrev_b32 v12, 2, v2"); a("v_lshl_add_u32 v12, v3, 5, v12")
    a("s_lshl_b32 s12, s3, 8"); a("v_add_u32 v12, s12, v12")
    a("s_mov_b32 s62, 0xff00ff00"); a("s_mov_b32 s63, 0xff00ff00")
    stamp("h_issued")
    a("s_waitcnt vmcnt(5)")
    stamp("h_x")
    for i in range(5):
        a(f"v_and_b32 v{30+2*i+1}, 0xffff0000, v{16+i}"); a(f"v_lshlrev_b32 v{30+2*i}, 16, v{16+i}")
    ln_stats(list(range(30, 40)), 26, 27, 28, 29)
    for t in range(5):
        a(f"v_lshlrev_b32 v{21+t}, 16, v{21+t}"); a(f"v_sub_f32 v{21+t}, v{21+t}, v26"); rbf(21 + t, 21 + t)
        a(f"v_mul_f32 v{21+t}, v{21+t}, v27")
        a(f"v_cvt_pk_bf16_f32 v{30+t}, v{21+t}, 0"); a(f"v_cvt_pk_bf16_f32 v{35+t}, 0, v{21+t}")
    for j in range(8): a(f"v_mov_b32 v{40+j}, 0")
    stamp("h_ln")
    for t in range(5):
        a(f"s_waitcnt vmcnt({4-t})")
        for j in range(4):
            a(f"v_dot2c_f32_bf16 v{40+2*j}, v{30+t}, v{64+4*t+j}"); a(f"v_dot2c_f32_bf16 v{41+2*j}, v{35+t}, v{64+4*t+j}")
    red_g8(list(range(40, 48)), 48)
    a(f"v_add_f32_dpp v48, v48, v48 row_ror:8 {FULL}"); a(f"v_add_f32_dpp v49, v49, v49 row_ror:8 {FULL}")
    a("v_cndmask_b32 v48, v48, v49, s[62:63]")
    a(f"ds_write_b32 v12, v48 offset:{L_QS}")
    a("s_waitcnt lgkmcnt(0)")
    a("s_add_u32 s15, s15, 1")
    a("s_mov_b64 exec, 1"); a(f"ds_add_rtn_u32 v13, v14, v15 offset:{L_FL}"); a("s_mov_b64 exec, -1")
    a("v_lshrrev_b32 v10, 5, v0"); a(f"v_mul_u32_u24 v12, {8*MB}, v10"); a("v_and_b32 v11, 31, v0"); a("v_lshl_add_u32 v12, v11, 4, v12")
    a("s_lshl_b32 s12, s4, 4"); a("s_add_u32 s12, s12, s3"); a(f"s_mul_i32 s12, s12, {MB}"); a("v_add_u32 v12, s12, v12")
    a(f"v_add_u32 v9, {4*MB}, v12")
    a("s_waitcnt lgkmcnt(0)")
    a("v_readfirstlane_b32 s12, v13")
    stamp("h_dots")
    a("s_getreg_b32 s13, hwreg(HW_REG_XCC_ID, 0, 4)"); a("s_lshl_b32 s13, s13, 28"); a("s_xor_b32 s13, s13, s15")
    a(f"v_add_u32 v16, {L_QS}, v6")
    a(f"s_mul_i32 s14, s2, {MB}"); a("v_lshlrev_b32 v17, 3, v0"); a("v_add_u32 v17, s14, v17")
    def qpub(pol):
        a("ds_read2st64_b32 v[18:19], v16 offset0:0 offset1:1"); a("ds_read2st64_b32 v[20:21], v16 offset0:2 offset1:3")
        a("s_waitcnt lgkmcnt(0)")
        a("v_add_f32 v18, v18, v19"); a("v_add_f32 v20, v20, v21"); a("v_add_f32 v18, v18, v20"); a("v_mov_b32 v19, s13")
        a(f"global_store_dwordx2 v17, v[18:19], s[38:39] {pol}")
    a("s_cmp_lg_u32 s12, 3"); a("s_cbranch_scc1 L_qnopub")
    qpub("" if fastloc else "sc1")
    stamp("qp_pub")
    a.label("L_qnopub")
    a(f"s_mov_b32 s61, {SPIN}")
    a.label("L_qpoll")
    a("global_load_dwordx4 v[24:27], v12, s[38:39] sc1"); a("global_load_dwordx4 v[28:31], v9, s[38:39] sc1")
    a("s_waitcnt vmcnt(0)")
    for r in (25, 27, 29, 31): a(f"v_xor_b32 v{r}, s13, v{r}")
    a("v_or3_b32 v25, v25, v27, v29"); a("v_or_b32 v25, v25, v31"); a("v_and_b32 v27, 0x0fffffff, v25")
    a("v_cmp_ne_u32 vcc, 0, v27")
    a("s_cbranch_vccz L_qpolled")
    if sleep: a(f"s_sleep {sleep}")
    if fastloc:
        a(f"s_cmp_lg_u32 s61, {SPIN-QTO}"); a("s_cbranch_scc1 L_qagain")
        lds_wait(14, L_FL, 4, 8, 2)
        qpub("sc1")
        a.label("L_qagain")
    a("s_sub_u32 s61, s61, 1"); a("s_cbranch_scc0 L_qpoll")
    a.label("L_qpolled")
    if fastloc:
        a("v_cmp_ne_u32 vcc, 0, v25")
        a("s_cbranch_vccz L_qsame")
        lds_wait(14, L_FL, 4, 8, 2)
        qpub("sc1")
        a("s_branch L_qdiff")
        a.label("L_qsame")
        a("s_mov_b64 exec, 1"); a(f"ds_add_u32 v14, v15 offset:{L_FL+56}"); a("s_mov_b64 exec, -1")
        a.label("L_qdiff")
    stamp("q_got")
    a("v_add_f32 v24, v24, v28"); a("v_add_f32 v26, v26, v30")
    a("v_permlane32_swap_b32 v24, v26")
    a("v_add_f32 v24, v24, v26")
    a("v_cvt_pk_bf16_f32 v24, v24, v24")
    a("v_lshl_add_u32 v12, v11, 1, v10"); a("v_lshlrev_b32 v12, 1, v12")
    a("s_lshl_b32 s12, s3, 7"); a("v_add_u32 v12, s12, v12")
    a(f"ds_write_b16 v12, v24 offset:{L_Q}")
    lds_signal(14, L_FL + 4, 15)
    a(f"s_setprio {hprio}")
    a("s_branch L_weights")

    a.label("L_helper2")
    a(f"s_setprio {hprio}")
    a("s_cmp_lg_u32 s3, 4"); a("s_cbranch_scc1 L_noinit")
    a(f"ds_write_b32 v6, v14 offset:{L_FL}")
    a.label("L_noinit")
    a("s_waitcnt lgkmcnt(0)")
    stamp("start")
    a(f"s_add_u32 s74, s38, {WS_EP}"); a("s_addc_u32 s75, s39, 0")
    a("s_load_dword s15, s[74:75], 0")
    if codepf:
        a("s_cmp_lg_u32 s3, 5"); a("s_cbranch_scc1 L_nocpf")
        a("s_getpc_b64 s[12:13]")
        a.label("L_pc")
        a(f"s_sub_u32 s12, s12, L_pc-{KN}"); a("s_subb_u32 s13, s13, 0")
        a("s_lshr_b32 s11, s2, 3"); a("s_lshl_b32 s11, s11, 10"); a("v_add_u32 v16, s11, v1")
        a(f"v_min_u32 v16, L_exit-{KN}-12, v16")
        a("global_load_dwordx4 v[16:19], v16, s[12:13]")
        a.label("L_nocpf")
    a("s_cmp_lg_u32 s3, 6"); a("s_cbranch_scc1 L_clrdone")
    if noclear: a("s_branch L_clrdone")
    for r in range(8, 12): a(f"v_mov_b32 v{r}, -1")
    a(f"s_cmp_ge_u32 s67, {NWO}"); a("s_cbranch_scc1 L_clrffn")
    a("s_and_b32 s12, s67, 15"); a("s_mul_i32 s12, s12, 2560"); a("s_lshr_b32 s13, s67, 4"); a("s_lshl_b32 s13, s13, 8"); a("s_add_u32 s12, s12, s13")
    a(f"s_add_u32 s12, s12, {WS_YP}"); a("v_add_u32 v12, s12, v6")
    a("global_store_dword v12, v8, s[38:39] sc1")
    a("s_branch L_clrdone")
    a.label("L_clrffn")
    a(f"s_cmp_ge_u32 s67, {NWO+NFFN}"); a("s_cbranch_scc1 L_clrdone")
    ffn_index("s12"); a("s_mul_i32 s12, s12, 2560"); a(f"s_add_u32 s12, s12, {WS_FP}")
    a("v_add_u32 v12, s12, v1")
    a("global_store_dwordx4 v12, v[8:11], s[38:39] sc1"); a("global_store_dwordx4 v12, v[8:11], s[38:39] offset:1024 sc1")
    a("s_mov_b32 exec_hi, 0")
    a("global_store_dwordx4 v12, v[8:11], s[38:39] offset:2048 sc1")
    a("s_mov_b64 exec, -1")
    a.label("L_clrdone")
    a("s_barrier")
    if late_ffn is not None:
        a(f"s_cmp_lt_u32 s3, {early_from}"); a("s_cbranch_scc1 L_noearly")
        load_weights(epace, wo=False, down=False)
        a.label("L_noearly")
        if not down_late: load_weights(epace, wo=False, gu=False)
    else:
        load_weights(epace, wo=not late_wo)
    if tlb:
        a("s_cmp_lg_u32 s3, 5"); a("s_cbranch_scc1 L_notlb")
        a("s_add_u32 s12, s2, s4"); a("s_and_b32 s12, s12, 7"); a("s_and_b32 s13, s2, 8"); a("s_or_b32 s12, s12, s13")
        a("s_lshl_b32 s13, s4, 23"); a("s_lshl_b32 s12, s12, 18"); a("s_add_u32 s12, s12, s13")
        a("v_mov_b32 v16, s12"); a("v_add_u32 v17, 0x400000, v16")
        a("s_mov_b64 exec, 1")
        a("global_load_dword v18, v17, s[18:19] nt"); a("global_load_dword v19, v16, s[20:21] nt"); a("global_load_dword v20, v17, s[20:21] nt")
        a("s_mov_b64 exec, -1")
        a.label("L_notlb")
    a("s_waitcnt lgkmcnt(0)")
    a("s_add_u32 s15, s15, 1")
    a("s_cmp_lt_u32 s3, 6"); a("s_cbranch_scc1 L_weights_done")
    a("s_sub_u32 s7, s3, 6")
    a(f"s_mul_i32 s11, s2, {MB}"); a("v_add_u32 v7, s11, v1")
    a("s_cmp_lg_u32 s7, 0"); a("s_cbranch_scc1 L_nomark")
    a(f"s_cmp_ge_u32 s67, {NWO+NFFN}"); a("s_cbranch_scc1 L_nomark")
    a("s_waitcnt vmcnt(0)")
    a("v_mov_b32 v12, s15")
    a("s_mov_b64 exec, 1"); a(f"global_store_dword v7, v12, s[38:39] offset:{MB_MK} sc1"); a("s_mov_b64 exec, -1")
    a.label("L_nomark")
    lds_wait(14, L_FL + 4, 4, 8, 8)
    a(f"ds_read_b32 v8, v14 offset:{L_FL+56}"); a("s_waitcnt lgkmcnt(0)"); a("v_readfirstlane_b32 s66, v8")
    a("s_lshr_b32 s66, s66, 2")
    a("s_cmp_lg_u32 s7, 0"); a("s_cbranch_scc1 L_noclrO")
    for r in range(8, 12): a(f"v_mov_b32 v{r}, -1")
    pub2(f"global_store_dwordx4 v7, v[8:11], s[38:39] offset:{MB_O}")
    a.label("L_noclrO")
    a("s_lshl_b32 s12, s7, 2"); a("v_mov_b32 v13, s12")
    a("v_and_b32 v20, 3, v0"); a("v_lshlrev_b32 v20, 8, v20"); a("v_and_b32 v21, 60, v0"); a("v_lshl_add_u32 v20, v21, 2, v20")
    a("s_lshl_b32 s12, s7, 14"); a(f"s_add_u32 s12, s12, {L_SC}"); a("v_add_u32 v20, s12, v20")
    a("s_lshl_b32 s12, s7, 13"); a(f"s_add_u32 s12, s12, {L_PP}"); a("v_lshlrev_b32 v21, 3, v0"); a("v_add_u32 v21, s12, v21")
    a(f"s_mul_i32 s12, s4, {16*MB}"); a("s_lshl_b32 s13, s7, 7"); a("s_add_u32 s12, s12, s13")
    a("v_and_b32 v22, 15, v0"); a(f"v_mul_u32_u24 v22, {MB}, v22"); a("v_add_u32 v22, s12, v22")
    a(f"s_mul_i32 s13, s6, {MB}"); a("s_add_u32 s12, s12, s13"); a("v_mov_b32 v23, s12")
    a(f"s_mov_b32 s14, {LOG2E:#x}")
    lds_wait(13, L_FL + 8, 4, 8, 4)
    S = list(range(32, 48))
    for i in range(16):
        if i % 8 == 0:
            for u in range(8): a(f"ds_read_b128 v[{104+4*u}:{107+4*u}], v20 offset:{1024*(i+u)}")
        b = 104 + 4 * (i % 8)
        a(f"s_waitcnt lgkmcnt({7-i%8})")
        a(f"v_add_f32 v{b}, v{b}, v{b+1}"); a(f"v_add_f32 v{b+2}, v{b+2}, v{b+3}"); a(f"v_add_f32 v{S[i]}, v{b}, v{b+2}")
        rbf(S[i], S[i]); a(f"v_mul_f32 v{S[i]}, {SCALE:#x}, v{S[i]}"); rbf(S[i], S[i])
    a(f"v_max_f32 v28, v{S[0]}, v{S[1]}")
    for i in range(2, 16, 2): a(f"v_max3_f32 v28, v28, v{S[i]}, v{S[i+1]}")
    allred("v_max_f32", 28, 30)
    for i in range(16):
        a(f"v_sub_f32 v{104+i}, v{S[i]}, v28"); a(f"v_mul_f32 v{104+i}, s14, v{104+i}"); a(f"v_exp_f32 v{104+i}, v{104+i}")
    for st in (8, 4, 2):
        for i in range(st): a(f"v_add_f32 v{104+i}, v{104+i}, v{104+i+st}")
    a("v_add_f32 v29, v104, v105")
    allred("v_add_f32", 29, 30)
    a("v_mov_b32 v24, v28"); a("v_mov_b32 v25, s15"); a("v_mov_b32 v26, v29")
    a("v_mov_b32 v27, s15")
    a("s_waitcnt vmcnt(0)")
    a("s_mov_b64 exec, 1")
    pub2(f"global_store_dwordx4 v23, v[24:27], s[38:39] offset:{MB_ST}")
    a("s_mov_b64 exec, -1")
    stamp("st_pub")
    a(f"s_mov_b32 s60, {SPIN}")
    a.label("L_stpoll")
    a(f"global_load_dwordx4 v[16:19], v22, s[38:39] offset:{MB_ST} sc1")
    a("s_waitcnt vmcnt(0)")
    a("v_xor_b32 v17, s15, v17"); a("v_xor_b32 v19, s15, v19"); a("v_or_b32 v17, v17, v19")
    a("v_cmp_ne_u32 vcc, 0, v17")
    a("s_cbranch_vccz L_stpolled")
    a(f"s_sleep {ssleep}")
    a("s_sub_u32 s60, s60, 1"); a("s_cbranch_scc0 L_stpoll")
    a.label("L_stpolled")
    a("v_mov_b32 v24, v16"); a("v_mov_b32 v25, v18")
    a("v_mov_b32 v28, v24")
    rowred("v_max_f32", 28)
    a("v_sub_f32 v24, v24, v28"); a("v_mul_f32 v24, s14, v24"); a("v_exp_f32 v24, v24"); a("v_mul_f32 v29, v24, v25")
    rowred("v_add_f32", 29)
    a("v_rcp_f32 v29, v29")
    for i in range(16):
        a(f"v_sub_f32 v{S[i]}, v{S[i]}, v28"); a(f"v_mul_f32 v{S[i]}, s14, v{S[i]}"); a(f"v_exp_f32 v{S[i]}, v{S[i]}")
    for i in range(16):
        a(f"v_mul_f32 v{S[i]}, v{S[i]}, v29")
        a(f"v_cvt_pk_bf16_f32 v{104+2*i}, v{S[i]}, 0"); a(f"v_cvt_pk_bf16_f32 v{105+2*i}, 0, v{S[i]}")
        a(f"ds_write_b64 v21, v[{104+2*i}:{105+2*i}] offset:{512*i}")
    lds_signal(13, L_FL + 16, 15)
    stamp("p_ready")
    a("s_cmp_lg_u32 s3, 7"); a("s_cbranch_scc1 L_weights_done")
    a(f"s_cmp_ge_u32 s67, {NWO+NFFN}"); a("s_cbranch_scc1 L_weights_done")
    a(f"s_cmp_lt_u32 s67, {NWO}"); a("s_cbranch_scc1 L_weights_done")
    a(f"v_mul_u32_u24 v16, {MB}, v0")
    for i in range(1, 4): a(f"v_add_u32 v{16+i}, {64*MB*i:#x}, v16")
    a(f"s_mov_b32 s60, {SPIN}")
    a.label("L_marks")
    for i in range(4):
        a(f"global_load_dword v{20+i}, v{16+i}, s[38:39] offset:{MB_MK} sc1")
        a("s_waitcnt vmcnt(0)")
    for i in range(4):
        a(f"v_xor_b32 v{20+i}, s15, v{20+i}")
        m = 0
        for l in range(64):
            wid = 64 * i + l
            if 16 * (wid & 15) + (wid >> 4) < NWO + NFFN: m |= 1 << l
        a(f"s_mov_b32 s12, {m & 0xffffffff:#x}"); a(f"s_mov_b32 s13, {m >> 32:#x}")
        a(f"v_cndmask_b32 v{20+i}, 0, v{20+i}, s[12:13]")
    a("v_or3_b32 v20, v20, v21, v22"); a("v_or_b32 v20, v20, v23")
    a("v_cmp_ne_u32 vcc, 0, v20")
    a("s_cbranch_vccz L_marked")
    a("s_sleep 32")
    a("s_sub_u32 s60, s60, 1"); a("s_cbranch_scc0 L_marks")
    a.label("L_marked")
    lds_signal(14, L_FL + 52, 15)
    a("s_branch L_weights_done")

    a.label("L_weights")
    if late_ffn is None: load_weights(wo=not late_wo)
    else:
        if early_from < 4:
            a(f"s_cmp_lt_u32 s3, {early_from}"); a("s_cbranch_scc1 L_noearly2")
            load_weights(wo=False, down=False)
            a.label("L_noearly2")
        if not down_late: load_weights(wo=False, gu=False)
    a.label("L_weights_done")
    a(f"s_add_u32 s76, s38, {WS_YP}"); a("s_addc_u32 s77, s39, 0")
    a(f"s_add_u32 s78, s38, {WS_FP}"); a("s_addc_u32 s79, s39, 0")
    def osum(head, d):
        for w in range(4): a(f"ds_read_b64 v[{142+2*w}:{143+2*w}], v138 offset:{L_OL+2048*head+512*w}")
        a("s_waitcnt lgkmcnt(0)")
        a("v_pk_add_f32 v[142:143], v[142:143], v[144:145]"); a("v_pk_add_f32 v[146:147], v[146:147], v[148:149]")
        a(f"v_pk_add_f32 v[{d}:{d+1}], v[142:143], v[146:147]")
        guard([d, d + 1])
    def opub():
        osum(1, 142)
        with live():
            if fastloc:
                gl, dn = L("oglob"), L("odone")
                a("s_cmp_eq_u32 s66, 0"); a(f"s_cbranch_scc1 {gl}")
                a(f"global_store_dwordx2 v139, v[142:143], s[38:39] offset:{MB_O+512}")
                a(f"s_branch {dn}")
                a.label(gl)
            a(f"global_store_dwordx2 v139, v[142:143], s[38:39] offset:{MB_O+512} sc1")
            a(f"global_store_dwordx2 v139, v[140:141], s[38:39] offset:{MB_O} sc1")
            if fastloc: a.label(dn)
    a("v_lshlrev_b32 v138, 3, v0")
    a(f"s_mul_i32 s11, s2, {MB}"); a("v_add_u32 v139, s11, v138")
    if hint is not None:
        a("s_cmp_lg_u32 s3, 5"); a("s_cbranch_scc1 L_nohint")
        a("v_mul_u32_u24 v16, 37, v0"); a("v_add_u32 v16, s2, v16"); a("v_and_b32 v16, 255, v16"); a(f"v_mul_u32_u24 v16, {MB}, v16")
        for h in range(2):
            if hint[h] is None: continue
            nb0, kb, nt0, kt = hint[h]
            lds_wait(14, L_FL + 32 + 4 * h, 4, 8, 4)
            if hs == 32: a("s_mov_b32 exec_hi, 0")
            a(f"global_load_dword v17, v16, s[38:39] offset:{MB_ST+4+128*h} sc1")
            a("s_waitcnt vmcnt(0)")
            a("v_cmp_eq_u32 vcc, s15, v17")
            if hs == 32: a("s_mov_b64 exec, -1")
            a("s_bcnt1_i32_b64 s12, vcc")
            if hs == 32: a("s_lshl_b32 s12, s12, 1")
            if diag: a(f"v_writelane_b32 v{SV}, s12, {60+h}")
            it0 = (6 if hk >= 2 else 5) + 4 * h
            a("s_mov_b32 s13, 0")
            a(f"s_sub_i32 s61, s12, {nb0}"); a(f"s_mul_i32 s61, s61, {kb}"); a("s_ashr_i32 s61, s61, 4")
            a(f"s_add_u32 s62, s61, {it0}"); a("s_lshl_b32 s62, s62, 8"); a("s_or_b32 s62, s62, 2")
            a("s_cmp_gt_i32 s61, 0"); a("s_cselect_b32 s13, s62, s13")
            a(f"s_sub_i32 s61, {nt0}, s12"); a(f"s_mul_i32 s61, s61, {kt}"); a("s_ashr_i32 s61, s61, 4")
            a(f"s_add_u32 s62, s61, {it0}"); a("s_lshl_b32 s62, s62, 8")
            a("s_cmp_gt_i32 s61, 0"); a("s_cselect_b32 s13, s62, s13")
            a(f"s_sub_u32 s61, s67, {NWO}"); a(f"s_cmp_lt_u32 s61, {NFFN}"); a("s_cselect_b32 s13, 0, s13")
            a("v_mov_b32 v17, s13")
            a(f"ds_write_b32 v14, v17 offset:{L_FL+28}")
        a.label("L_nohint")
    a("s_cmp_lg_u32 s3, 7"); a("s_cbranch_scc1 L_noA")
    lds_wait(14, L_FL + 24, 4, 8, 8)
    osum(0, 140)
    if fastloc:
        a("s_cmp_eq_u32 s66, 0"); a("s_cbranch_scc1 L_noAloc")
        a(f"global_store_dwordx2 v139, v[140:141], s[38:39] offset:{MB_O}")
        a.label("L_noAloc")
    a("s_setprio 3")
    a.label("L_noA")
    a("s_waitcnt vmcnt(0)")
    stamp("w_done")
    def b5():
        sk = L("nopubB")
        with live(): lds_wait(14, L_FL + 48, 4, 150, 1)
        a("s_cmp_lg_u32 s3, 7"); a(f"s_cbranch_scc1 {sk}")
        opub()
        with live(): a(f"s_setprio {hprio}")
        a.label(sk)
        stamp("tail")
    ffn_index("s52")
    if warm:
        a("s_mov_b64 exec, 0")
        a(f"s_cmp_lt_u32 s67, {NWO}"); a("s_cbranch_scc1 L_wo_go")
        a(f"s_cmp_lt_u32 s67, {NWO+NFFN}"); a("s_cbranch_scc1 L_ffn_go")
        a("s_branch L_none_go")
        a.label("L_warmed")
        a("s_mov_b64 exec, -1")
    a(f"s_cmp_lt_u32 s67, {NWO}"); a("s_cbranch_scc1 L_wo")
    a(f"s_cmp_lt_u32 s67, {NWO+NFFN}"); a("s_cbranch_scc1 L_ffn")
    a.label("L_none_go")
    a("s_cmp_lg_u32 s3, 7"); a("s_cbranch_scc1 L_tend")
    if coarse:
        with live(): lds_wait(14, L_FL + 44, 28, 150, 24)
    b5()
    a("s_branch L_tend")

    a.label("L_wo")
    a("s_and_b32 s50, s67, 15"); a(f"s_mul_i32 s12, s50, {16*MB}"); a("s_lshl_b32 s13, s3, 7"); a("s_add_u32 s12, s12, s13")
    a("v_and_b32 v3, 7, v0"); a(f"v_mul_u32_u24 v2, {2*MB}, v3"); a("v_lshrrev_b32 v4, 3, v0"); a("v_lshl_add_u32 v2, v4, 4, v2"); a("v_add_u32 v2, s12, v2")
    a(f"v_add_u32 v8, {MB}, v2")
    a("v_lshrrev_b32 v5, 4, v0"); a("v_lshlrev_b32 v5, 3, v5"); a("v_lshl_add_u32 v5, v3, 5, v5")
    a("s_lshl_b32 s13, s3, 8"); a("v_add_u32 v5, s13, v5")
    a("s_mul_i32 s12, s50, 2560"); a("s_lshr_b32 s13, s67, 4"); a("s_lshl_b32 s13, s13, 8"); a("s_add_u32 s12, s12, s13"); a("v_add_u32 v7, s12, v6")
    a(f"v_add_u32 v6, {L_YL}, v6")
    for j in range(8): a(f"v_mov_b32 v{40+j}, 0")
    if late_wo:
        a("s_mov_b32 s44, s24"); a("s_mov_b32 s45, s25"); a(f"s_mov_b32 s46, {4096*1280}"); a("s_mov_b32 s47, 0x20000")
        a("s_lshl_b32 s50, s50, 3"); a("s_add_u32 s50, s50, s3"); a(f"s_mul_i32 s50, s50, {32*1280}")
        a("s_lshr_b32 s51, s67, 4"); a("s_lshl_b32 s51, s51, 7"); a("s_add_u32 s50, s50, s51")
        a(f"v_mul_u32_u24 v9, {4*1280}, v4"); a("v_lshl_add_u32 v9, v3, 4, v9")
    if coarse: lds_wait(14, L_FL + 44, wo_at - 4, 150, 24)
    a.label("L_wo_go")
    if late_wo and not now:
        with live():
            lds_wait(14, L_FL + 44, wo_at, 150, 2)
            for t in range(4): a(f"buffer_load_dwordx4 v[{W0+4*t}:{W0+4*t+3}], v9, s[44:47], s50 offen offset:{t*1280} {wpol}")
    b5()
    a("s_waitcnt vmcnt(0)")
    PW = pair_perm([[W0 + 4 * t + j for j in range(4)] for t in range(4)], 136)
    def io(v, d): return (lambda: a(f"global_load_dwordx4 v[{d}:{d+3}], v{v}, s[38:39] offset:{MB_O} sc1"), range(d, d + 4))
    def so():
        for j in range(4): a(f"v_add_f32 v{16+j}, v{24+j}, v{28+j}")
    with live(): spoll([io(2, 24), io(8, 28)], so, range(16, 20), 14, first=pfirst)
    stamp("e1")
    for pat in ("quad_perm:[1,0,3,2]", "quad_perm:[2,3,0,1]", "row_half_mirror"):
        for j in range(4): a(f"v_add_f32_dpp v{16+j}, v{16+j}, v{16+j} {pat} {FULL}")
    for i in range(2): a(f"v_cvt_pk_bf16_f32 v{32+i}, v{16+2*i}, v{17+2*i}")
    for i in range(2):
        for j in range(8): a(f"v_dot2c_f32_bf16 v{40+j}, v{32+i}, v{PW[i][j]}")
    red_g8(list(range(40, 48)), 48)
    a(f"v_add_f32_dpp v48, v48, v48 row_ror:8 {FULL}"); a(f"v_add_f32_dpp v49, v49, v49 row_ror:8 {FULL}")
    a(f"ds_write_b64 v5, v[48:49] offset:{L_YL}")
    a("s_waitcnt lgkmcnt(0)")
    with live(): a("s_barrier")
    a("s_cmp_lg_u32 s3, 0"); a("s_cbranch_scc1 L_tend")
    for w in range(4): a(f"ds_read2st64_b32 v[{16+2*w}:{17+2*w}], v6 offset0:{2*w} offset1:{2*w+1}")
    a("s_waitcnt lgkmcnt(0)")
    a("v_pk_add_f32 v[16:17], v[16:17], v[18:19]"); a("v_pk_add_f32 v[20:21], v[20:21], v[22:23]"); a("v_pk_add_f32 v[16:17], v[16:17], v[20:21]")
    a("v_add_f32 v16, v16, v17")
    guard([16])
    with live(): a("global_store_dword v7, v16, s[76:77] sc1")
    stamp("y_pub")
    a("s_branch L_tend")

    a.label("L_ffn")
    fast_late = late_ffn is not None and not down_late and not rev
    if late_ffn is not None and not fast_late:
        a("s_cmp_eq_u32 s3, 7"); a("s_cbranch_scc1 L_ffn_have")
        if late_ffn <= 8: lds_wait(14, L_FL + 44, 4 * late_ffn, 8, 4)
        else: lds_wait(14, L_FL + 48, 4, 8, 2); a("s_sleep 3")
        a(f"s_cmp_ge_u32 s3, {early_from}"); a("s_cbranch_scc1 L_ffn_gu")
        load_weights(lpace, wo=False, down=False)
        a.label("L_ffn_gu")
        if down_late: load_weights(lpace, wo=False, gu=False)
        a.label("L_ffn_have")
    a("v_lshrrev_b32 v2, 4, v0"); a("v_and_b32 v3, 15, v0")
    a("s_min_u32 s12, s3, 4"); a("s_lshl_b32 s12, s12, 8")
    a("v_lshrrev_b32 v5, 1, v2"); a("v_lshlrev_b32 v5, 7, v5"); a("v_lshl_add_u32 v5, v3, 3, v5")
    a("v_and_b32 v4, 1, v2"); a("v_lshl_add_u32 v5, v4, 2, v5"); a("v_add_u32 v5, s12, v5")
    a("global_load_dword v11, v5, s[16:17]")
    a("s_lshl_b32 s12, s3, 9")
    a("v_mul_u32_u24 v4, 10240, v2"); a("v_lshl_add_u32 v4, v3, 4, v4"); a("v_add_u32 v4, s12, v4")
    a("v_add_u32 v62, 5120, v4")
    a("v_lshlrev_b32 v5, 1, v5")
    a("s_lshl_b32 s13, s3, 3"); a("v_mov_b32 v6, s13"); a("v_mov_b32 v63, 0")
    a("v_lshrrev_b32 v7, 2, v0"); a("v_mul_u32_u24 v7, 40, v7"); a("s_and_b32 s13, s3, 3"); a("s_mul_i32 s13, s13, 640"); a("v_add_u32 v7, s13, v7")
    a("v_and_b32 v8, 3, v0"); a("v_lshlrev_b32 v8, 5, v8"); a("v_lshl_add_u32 v8, v2, 3, v8"); a("s_lshl_b32 s13, s3, 7"); a("v_add_u32 v8, s13, v8")
    a("v_and_b32 v9, 7, v0"); a("v_lshl_add_u32 v9, v2, 3, v9"); a("v_lshlrev_b32 v9, 2, v9"); a(f"v_add_u32 v9, {L_GU}, v9")
    a("s_mul_i32 s13, s52, 2560"); a("s_add_u32 s13, s13, s12"); a("v_lshlrev_b32 v10, 3, v0"); a("v_add_u32 v10, s13, v10")
    for j in range(8): a(f"v_mov_b32 v{52+j}, 0")
    a(f"s_mov_b32 s14, {LOG2E:#x}")
    lds_wait(14, L_FL + 52, 1, 150, 8)
    if fast_late:
        PD = pair_perm([[W0 + 40 + 4 * t + j for j in range(4)] for t in range(8)], 137)
        a("s_cmp_lt_u32 s3, 4"); a("s_cselect_b32 s44, s28, s30"); a("s_cselect_b32 s45, s29, s31")
        a(f"s_mov_b32 s46, {640*3456}"); a("s_mov_b32 s47, 0x20000")
        a("s_and_b32 s50, s3, 3"); a(f"s_mul_i32 s50, s50, {160*3456}"); a("s_lshl_b32 s51, s52, 6"); a("s_add_u32 s50, s50, s51")
        for i in range(1, 5): a(f"s_add_u32 s{80+i}, s50, {2*3456*i}")
        a("v_lshrrev_b32 v15, 2, v0"); a(f"v_mul_u32_u24 v15, {10*3456}, v15"); a("v_and_b32 v1, 3, v0"); a("v_lshl_add_u32 v15, v1, 4, v15")
    if coarse: lds_wait(14, L_FL + 44, 4 * min(late_ffn or 8, 8) - 4, 150, 24)
    a.label("L_ffn_go")
    if fast_late and not now:
        a(f"s_cmp_ge_u32 s3, {early_from}"); a("s_cbranch_scc1 L_ffn_have")
        with live():
            if late_ffn <= 8: lds_wait(14, L_FL + 44, 4 * late_ffn, 150, 2)
            else: lds_wait(14, L_FL + 48, 4, 150, 2); a("s_sleep 3")
        for t in range(10):
            if t % 4 == 0: lv = live(); lv.__enter__()
            if lpace and t >= lpace: a(f"s_waitcnt vmcnt({lpace-1})")
            a(f"buffer_load_dwordx4 v[{W0+4*t}:{W0+4*t+3}], v15, s[44:47], " + ("s50" if t < 2 else f"s{80+t//2}") + f" offen offset:{(t%2)*3456} {wpol if gupol is None else gupol}")
            if t % 4 == 3 or t == 9: lv.__exit__()
        a.label("L_ffn_have")
    b5()
    a("s_waitcnt vmcnt(0)")
    stamp("x1")
    a("v_and_b32 v13, 0xffff0000, v11"); a("v_lshlrev_b32 v12, 16, v11")
    PG = pair_perm([[W0 + 4 * t + j for j in range(4)] for t in range(10)], 136)
    if not fast_late: PD = pair_perm([[W0 + 40 + 4 * t + j for j in range(4)] for t in range(8)], 137)
    a("s_cmp_ge_u32 s3, 5"); a("s_cbranch_scc1 L_h_wait")
    YI = [140, 148, 156, 24]
    HV = 40
    def iy(u):
        v, o = (4, 62)[u // 2], 2560 * (u % 2)
        return (lambda: (a(f"global_load_dwordx4 v[{YI[u]}:{YI[u]+3}], v{v}, s[76:77] offset:{o} sc1"),
                         a(f"global_load_dwordx4 v[{YI[u]+4}:{YI[u]+7}], v{v}, s[76:77] offset:{o+256} sc1")), range(YI[u], YI[u] + 8))
    def sy():
        for j in range(0, 8, 2):
            a(f"v_pk_add_f32 v[{16+j}:{17+j}], v[{YI[0]+j}:{YI[0]+j+1}], v[{YI[1]+j}:{YI[1]+j+1}]")
            a(f"v_pk_add_f32 v[{32+j}:{33+j}], v[{YI[2]+j}:{YI[2]+j+1}], v[{YI[3]+j}:{YI[3]+j+1}]")
        for j in range(0, 8, 2): a(f"v_pk_add_f32 v[{16+j}:{17+j}], v[{16+j}:{17+j}], v[{32+j}:{33+j}]")
    with live(): spoll([iy(u) for u in range(4)], sy, range(16, 24), 14, first=pfirst)
    stamp("e2")
    red_g8(list(range(16, 24)), 32)
    a("v_cvt_pk_bf16_f32 v34, v32, v33"); a("v_lshlrev_b32 v32, 16, v34"); a("v_and_b32 v33, 0xffff0000, v34")
    a("v_pk_add_f32 v[32:33], v[32:33], v[12:13]")
    a("v_cvt_pk_bf16_f32 v34, v32, v33"); a("v_lshlrev_b32 v32, 16, v34"); a("v_and_b32 v33, 0xffff0000, v34")
    a(f"ds_write_b64 v5, v[32:33] offset:{L_H}")
    a("v_readfirstlane_b32 s12, v32")
    a("v_subrev_f32 v34, s12, v32"); a("v_subrev_f32 v35, s12, v33")
    a("v_add_f32 v36, v34, v35"); a("v_mul_f32 v37, v34, v34"); a("v_fmac_f32 v37, v35, v35")
    for r in (8, 4, 2, 1):
        a(f"v_add_f32_dpp v36, v36, v36 row_ror:{r} {FULL}"); a(f"v_add_f32_dpp v37, v37, v37 row_ror:{r} {FULL}")
    a("v_permlane16_swap_b32 v36, v37")
    a("v_add_f32 v36, v36, v37")
    a("v_mov_b32 v37, v36"); a("v_permlane32_swap_b32 v36, v37"); a("v_add_f32 v36, v36, v37")
    a("v_mov_b32 v37, v36"); a("v_permlane16_swap_b32 v36, v37")
    a("v_mul_f32 v38, 0x3c000000, v36")
    a("v_fma_f32 v39, -v38, v36, v37"); a("v_add_f32 v38, s12, v38")
    a(f"ds_write_b64 v6, v[38:39] offset:{L_ST}")
    a("s_waitcnt lgkmcnt(0)")
    a.label("L_h_wait")
    with live(): a("s_barrier")
    a(f"ds_read_b128 v[32:35], v63 offset:{L_ST}"); a(f"ds_read_b128 v[36:39], v63 offset:{L_ST+16}"); a(f"ds_read_b64 v[22:23], v63 offset:{L_ST+32}")
    for i in range(5): a(f"ds_read_b64 v[{HV+2*i}:{HV+1+2*i}], v7 offset:{L_H+8*i}")
    a("s_waitcnt lgkmcnt(5)")
    a("v_pk_add_f32 v[50:51], v[32:33], v[34:35]"); a("v_pk_add_f32 v[60:61], v[36:37], v[38:39]")
    a("v_pk_add_f32 v[50:51], v[50:51], v[22:23]"); a("v_pk_add_f32 v[50:51], v[50:51], v[60:61]")
    a("v_mul_f32 v50, 0x3e4ccccd, v50")
    for i, r in enumerate((32, 34, 36, 38, 22)): a(f"v_sub_f32 v{r}, v{r}, v50")
    a("v_mul_f32 v60, v32, v32")
    for r in (34, 36, 38, 22): a(f"v_fmac_f32 v60, v{r}, v{r}")
    a("v_fmac_f32 v51, 0x43000000, v60")
    a(f"v_mul_f32 v51, {INV640:#x}, v51")
    a("v_cvt_pk_bf16_f32 v60, v50, v51"); a("v_lshlrev_b32 v50, 16, v60"); a("v_and_b32 v51, 0xffff0000, v60")
    a(f"v_add_f32 v51, {EPS:#x}, v51"); rbf(51, 51)
    a("v_sqrt_f32 v51, v51"); rbf(51, 51)
    a("v_rcp_f32 v51, v51")
    a("s_waitcnt lgkmcnt(0)")
    for i in range(5): a(f"v_pk_add_f32 v[{HV+2*i}:{HV+1+2*i}], v[{HV+2*i}:{HV+1+2*i}], v[50:51] op_sel_hi:[1,0] neg_lo:[0,1] neg_hi:[0,1]")
    for i in range(5): a(f"v_cvt_pk_bf16_f32 v{16+i}, v{HV+2*i}, v{HV+1+2*i}")
    for i in range(5): a(f"v_lshlrev_b32 v{HV+2*i}, 16, v{16+i}"); a(f"v_and_b32 v{HV+1+2*i}, 0xffff0000, v{16+i}")
    for i in range(5): a(f"v_pk_mul_f32 v[{HV+2*i}:{HV+1+2*i}], v[{HV+2*i}:{HV+1+2*i}], v[50:51] op_sel:[0,1] op_sel_hi:[1,1]")
    for i in range(5): a(f"v_cvt_pk_bf16_f32 v{16+i}, v{HV+2*i}, v{HV+1+2*i}")
    for i in range(5):
        for j in range(8):
            if i == 0: a(f"v_dot2_f32_bf16 v{40+j}, v{16+i}, v{PG[i][j]}, 0")
            else: a(f"v_dot2c_f32_bf16 v{40+j}, v{16+i}, v{PG[i][j]}")
    red_g8(list(range(40, 48)), 48)
    for r in (8, 4):
        a(f"v_add_f32_dpp v48, v48, v48 row_ror:{r} {FULL}"); a(f"v_add_f32_dpp v49, v49, v49 row_ror:{r} {FULL}")
    a(f"ds_write_b64 v8, v[48:49] offset:{L_GU}")
    a("s_waitcnt lgkmcnt(0)")
    with live(): a("s_barrier")
    stamp("gu")
    a("s_cmp_ge_u32 s3, 5"); a("s_cbranch_scc1 L_final")
    for w in range(4): a(f"ds_read2_b32 v[{16+2*w}:{17+2*w}], v9 offset0:{64*w} offset1:{64*w+32}")
    a("s_waitcnt lgkmcnt(0)")
    a("v_add_f32 v16, v16, v17"); a("v_add_f32 v18, v18, v19"); a("v_add_f32 v20, v20, v21"); a("v_add_f32 v22, v22, v23")
    a("v_add_f32 v16, v16, v18"); a("v_add_f32 v20, v20, v22")
    rbf(16, 16); rbf(20, 20)
    a("v_mul_f32 v17, s14, v16"); a("v_exp_f32 v17, -v17"); a("v_add_f32 v17, 1.0, v17"); a("v_rcp_f32 v17, v17")
    a("v_mul_f32 v16, v16, v17"); rbf(16, 16)
    a("v_mul_f32 v16, v16, v20")
    a(f"v_mov_b32_dpp v17, v16 quad_perm:[1,0,3,2] {FULL}")
    a("v_cvt_pk_bf16_f32 v16, v16, v17")
    for i in range(4):
        for j in range(8): a(f"v_dot2c_f32_bf16_dpp v{52+j}, v16, v{PD[i][j]} row_newbcast:{2*i} {FULL}")
    red_g8(list(range(52, 60)), 60)
    guard([60, 61])
    with live(): a("global_store_dwordx2 v10, v[60:61], s[78:79] sc1")
    stamp("f_pub")
    a("s_branch L_tend")
    a.label("L_final")
    a("s_cmp_lg_u32 s3, 5"); a("s_cbranch_scc1 L_tend")
    a(f"s_cmp_ge_u32 s52, {NFIN}"); a("s_cbranch_scc1 L_tend")
    a("s_mov_b32 s44, s78"); a("s_mov_b32 s45, s79"); a(f"s_mov_b32 s46, {NFFN*2560}"); a("s_mov_b32 s47, 0x20000")
    a("v_lshrrev_b32 v4, 3, v0"); a("v_mul_u32_u24 v4, 2560, v4"); a("v_and_b32 v5, 7, v0"); a("v_lshl_add_u32 v4, v5, 4, v4")
    a("s_lshl_b32 s12, s52, 7"); a("v_add_u32 v4, s12, v4")
    a("v_lshl_add_u32 v5, v5, 2, v2"); a("v_and_b32 v6, 1, v5"); a("v_lshrrev_b32 v5, 1, v5"); a("v_lshl_add_u32 v5, v5, 3, v6")
    a("s_lshr_b32 s12, s52, 2"); a("s_lshl_b32 s12, s12, 7"); a("s_and_b32 s13, s52, 3"); a("s_lshl_b32 s13, s13, 1"); a("s_add_u32 s12, s12, s13")
    a("v_add_u32 v5, s12, v5")
    a("v_lshlrev_b32 v6, 2, v5"); a("v_lshlrev_b32 v5, 1, v5")
    a(f"ds_read_b32 v7, v6 offset:{L_H}")
    for i in range(1, 7): a(f"s_mov_b32 s{80+i}, {8*2560*i}")
    def i3(i):
        return (lambda: a(f"buffer_load_dwordx4 v[{104+4*i}:{107+4*i}], v4, s[44:47], " + ("0" if i == 0 else f"s{80+i}") + " offen sc1"), range(104 + 4 * i, 108 + 4 * i))
    def s3():
        for j in (0, 2):
            a(f"v_pk_add_f32 v[{16+j}:{17+j}], v[{104+j}:{105+j}], v[{108+j}:{109+j}]")
            a(f"v_pk_add_f32 v[{20+j}:{21+j}], v[{112+j}:{113+j}], v[{116+j}:{117+j}]")
            a(f"v_pk_add_f32 v[{24+j}:{25+j}], v[{120+j}:{121+j}], v[{124+j}:{125+j}]")
        for j in (0, 2):
            a(f"v_pk_add_f32 v[{16+j}:{17+j}], v[{16+j}:{17+j}], v[{20+j}:{21+j}]")
            a(f"v_pk_add_f32 v[{24+j}:{25+j}], v[{24+j}:{25+j}], v[{128+j}:{129+j}]")
        for j in (0, 2): a(f"v_pk_add_f32 v[{16+j}:{17+j}], v[{16+j}:{17+j}], v[{24+j}:{25+j}]")
    with live(): spoll([i3(i) for i in range(7)], s3, range(16, 20), 14)
    stamp("e3")
    red_g4([16, 17, 18, 19], 20)
    a(f"v_add_f32_dpp v20, v20, v20 row_ror:8 {FULL}")
    rbf(20, 20)
    a("s_waitcnt lgkmcnt(0)")
    a("v_add_f32 v20, v20, v7")
    a("v_cvt_pk_bf16_f32 v20, v20, v20")
    if warm: a("s_cbranch_execz L_warmed")
    a("s_mov_b32 s12, 0x00ff00ff"); a("s_mov_b32 s13, 0x00ff00ff"); a("s_mov_b64 exec, s[12:13]")
    a("global_store_short v5, v20, s[34:35]")
    a("s_cmp_lg_u32 s52, 0"); a("s_cbranch_scc1 L_noep")
    a("s_mov_b64 exec, 1")
    a(f"v_mov_b32 v5, {WS_EP:#x}"); a("v_mov_b32 v6, s15")
    a("global_store_dword v5, v6, s[38:39]")
    if dbl:
        a("s_memrealtime s[90:91]"); a("s_waitcnt lgkmcnt(0)")
        a("s_sub_u32 s92, s90, s88"); a(f"s_mul_i32 s92, s92, {dbl}"); a("s_add_u32 s92, s92, s90"); a("s_mov_b32 s60, 100000")
        a.label("L_dbl")
        a("s_memrealtime s[90:91]"); a("s_waitcnt lgkmcnt(0)"); a("s_sub_u32 s93, s90, s92"); a("s_cmp_ge_i32 s93, 0"); a("s_cbranch_scc1 L_noep")
        a("s_sub_u32 s60, s60, 1"); a("s_cbranch_scc0 L_dbl")
    a.label("L_noep")
    a("s_mov_b64 exec, -1")
    stamp("out")
    a.label("L_tend")
    if warm: a("s_cbranch_execz L_warmed")
    a.label("L_fin")
    dump_stamps()
    a.label("L_exit")
    a("s_endpgm")
    nv = 168
    a.raw('.section .rodata,"a"'); a.raw(".p2align 6"); a.raw(f".amdhsa_kernel {KN}")
    a.raw(f"  .amdhsa_next_free_vgpr {nv}"); a.raw("  .amdhsa_next_free_sgpr 96"); a.raw(f"  .amdhsa_accum_offset {nv}")
    a.raw("  .amdhsa_group_segment_fixed_size 0"); a.raw("  .amdhsa_kernarg_size 96"); a.raw("  .amdhsa_user_sgpr_count 2")
    a.raw("  .amdhsa_user_sgpr_kernarg_segment_ptr 1"); a.raw("  .amdhsa_system_sgpr_workgroup_id_x 1")
    a.raw("  .amdhsa_float_denorm_mode_32 3")
    a.raw(".end_amdhsa_kernel")
    return a.text(), stampn

if __name__ == "__main__":
    out = sys.argv[1] if len(sys.argv) > 1 else "sequential_preLN__mha_block_cached__swiglu_ffn__decode.s"
    kw = eval("dict(%s)" % sys.argv[2]) if len(sys.argv) > 2 else {}
    t, st = gen(**kw)
    open(out, "w").write(t)
    print("wrote", out, len(t.splitlines()), "lines", st)
```

```python
import sys
sys.path.insert(0, "work")
from asmlib import Asm

KN = "sequential_preLN__mha_block_cached__swiglu_ffn__decode_kernel"
HEADER = open("sequential_preLN__mha_block_cached__swiglu_ffn__decode.s.ref").read().split("; Override launch")[0]

MB = 4352
MB_Q = 0
MB_ST = 512
MB_MK = 768
MB_O = 1024
WS_EP = 0x110000
WS_PG = 0x118000
WS_XG = 0x160000
WS_YP = 0x120000
WS_FP = 0x130000
L_FL = 0
L_Q = 256
L_QS = 768
L_SC = 2048
L_PP = L_SC + 32768
L_OL = L_PP + 16384
L_YL = L_OL + 4096
L_H = L_YL + 2048
L_GU = L_H + 2560
L_ST = L_GU + 1024
L_END = L_ST + 64
NWO, NFFN, NFIN = 160, 54, 20
NWAVE = 12
SPIN = 20000
LSPIN = 2000000
LOG2E = 0x3fb8aa3b
SCALE = 0x3db504f3
INV640 = 0x3acccccd
EPS = 0x3727c5ac
FULL = "row_mask:0xf bank_mask:0xf"

def gen(diag=False, wpol="nt", sleep=1, wpace=1, prio=3, now=False, ssleep=4, bs=False, DS=(5, 6, 8), GR=1, rolemix=True, modes=(1, 1, 2), F=6, epace=2, masked=True, lastit=3, hprio=0, pairx=False, noclear=False, dbl=0, kvpol='nt', warm=True, pdepth=1, pfirst=3, psleep=0, fine=True, hint=None, hs=64, hk=3, tlb=False, pre=6, late_wo=True, late_ffn=32, lpace=0, early_from=7, down_late=False, deep_until=0, wo_at=30, gupol='nt', rev=False, kdeep=True, codepf=False, e3d=3, coarse=True, stag=2, fastloc=True, QTO=12, wb=False, outpol='', gov=(-1, 4), gsleep=2, gbias=8, xg=False, xsh=0, xper=1, xsm=1, xb=0, wo_atA=None, nbr=False, FD=None):
    a = Asm()
    uid = [0]
    def L(n):
        uid[0] += 1
        return f"L_{n}_{uid[0]}"
    stampn = {}
    SV = 166
    def stamp(name):
        if not diag: return
        if diag == 1 and name not in ("start", "v_done", "out"): return
        if diag == 4 and name not in ("start", "v_done", "out", "iss0", "land0", "land1", "land3", "s_filled", "q_ready", "h_x", "h_dots", "qp_pub", "q_got", "ka_done"): return
        if diag == 2 and name not in ("start", "v_done", "tail", "e1", "y_pub", "e2", "gu", "f_pub", "e3", "out", "x1", "x2", "x3", "x4"): return
        i = stampn.setdefault(name, len(stampn))
        sk = L("st"); a(f"s_cbranch_execz {sk}")
        a("s_memrealtime s[90:91]"); a("s_waitcnt lgkmcnt(0)"); a(f"v_writelane_b32 v{SV}, s90, {i}")
        a.label(sk)
    def prog():
        if diag != 3: return
        a("s_memrealtime s[90:91]"); a("s_waitcnt lgkmcnt(0)"); a("s_mov_b32 m0, s94"); a("s_nop 0"); a(f"v_writelane_b32 v{SV}, s90, m0"); a("s_add_u32 s94, s94, 1")
    def dump_stamps():
        if not diag: return
        a("s_add_u32 s90, s38, 0x10000000"); a("s_addc_u32 s91, s39, 0")
        a(f"s_mul_i32 s92, s2, {NWAVE}"); a("s_add_u32 s92, s92, s93"); a("s_lshl_b32 s92, s92, 8")
        a(f"v_lshlrev_b32 v{SV+1}, 2, v0"); a(f"v_add_u32 v{SV+1}, s92, v{SV+1}")
        a(f"global_store_dword v{SV+1}, v{SV}, s[90:91]")

    class live:
        def __enter__(self_):
            self_.l = L("live")
            if warm: a(f"s_cbranch_execz {self_.l}")
        def __exit__(self_, *x):
            if warm: a.label(self_.l)
    def rbf(dst, src):
        a(f"v_cvt_pk_bf16_f32 v{dst}, v{src}, v{src}"); a(f"v_and_b32 v{dst}, 0xffff0000, v{dst}")
    def rowred(op, v):
        for r in (8, 4, 2, 1):
            a(f"{op}_dpp v{v}, v{v}, v{v} row_ror:{r} {FULL}")
    def allred(op, v, t):
        rowred(op, v)
        a(f"v_mov_b32 v{t}, v{v}"); a(f"v_permlane16_swap_b32 v{v}, v{t}"); a(f"{op} v{v}, v{v}, v{t}")
        a(f"v_mov_b32 v{t}, v{v}"); a(f"v_permlane32_swap_b32 v{v}, v{t}"); a(f"{op} v{v}, v{v}, v{t}")
    def red_g8(r, dst):
        for j in range(4): a(f"v_permlane32_swap_b32 v{r[j]}, v{r[j+4]}")
        for j in range(4): a(f"v_add_f32 v{r[j]}, v{r[j]}, v{r[j+4]}")
        a(f"v_permlane16_swap_b32 v{r[0]}, v{r[2]}"); a(f"v_permlane16_swap_b32 v{r[1]}, v{r[3]}")
        a(f"v_add_f32 v{dst}, v{r[0]}, v{r[2]}"); a(f"v_add_f32 v{dst+1}, v{r[1]}, v{r[3]}")
    def red_g4(r, dst):
        a(f"v_permlane32_swap_b32 v{r[0]}, v{r[2]}"); a(f"v_permlane32_swap_b32 v{r[1]}, v{r[3]}")
        a(f"v_add_f32 v{r[0]}, v{r[0]}, v{r[2]}"); a(f"v_add_f32 v{r[1]}, v{r[1]}, v{r[3]}")
        a(f"v_permlane16_swap_b32 v{r[0]}, v{r[1]}")
        a(f"v_add_f32 v{dst}, v{r[0]}, v{r[1]}")
    def guard(regs):
        for r in regs: a(f"v_min_u32 v{r}, -2, v{r}")
    def poll(issue, regs, t, cnt="s60", sleep=sleep):
        top, done = L("poll"), L("polled")
        a(f"s_mov_b32 {cnt}, {SPIN}")
        a.label(top)
        issue()
        a("s_waitcnt vmcnt(0)")
        rs = list(regs)
        if len(rs) == 2:
            a(f"v_max_u32 v{t}, v{rs[0]}, v{rs[1]}")
        else:
            a(f"v_max3_u32 v{t}, v{rs[0]}, v{rs[1]}, v{rs[2]}")
            rs = rs[3:]
            while len(rs) >= 2:
                a(f"v_max3_u32 v{t}, v{t}, v{rs[0]}, v{rs[1]}"); rs = rs[2:]
            if rs: a(f"v_max_u32 v{t}, v{t}, v{rs[0]}")
        a(f"v_cmp_eq_u32 vcc, -1, v{t}")
        a(f"s_cbranch_vccz {done}")
        if sleep: a(f"s_sleep {sleep}")
        a(f"s_sub_u32 {cnt}, {cnt}, 1")
        a(f"s_cbranch_scc0 {top}")
        a.label(done)
    def umax(t, rs):
        rs = list(rs)
        a(f"v_max3_u32 v{t}, v{rs[0]}, v{rs[1]}, v{rs[2]}")
        rs = rs[3:]
        while len(rs) >= 2:
            a(f"v_max3_u32 v{t}, v{t}, v{rs[0]}, v{rs[1]}"); rs = rs[2:]
        if rs: a(f"v_max_u32 v{t}, v{t}, v{rs[0]}")
    def mpoll(groups, t, sm):
        if not masked:
            def allissue():
                for g, _ in groups: g()
            poll(allissue, [r for _, rs in groups for r in rs], t)
            return
        top, done = L("mpoll"), L("mpolled")
        a(f"s_mov_b32 s60, {SPIN}")
        for g, _ in groups: g()
        a.label(top)
        a("s_waitcnt vmcnt(0)")
        for i, (_, rs) in enumerate(groups): umax(t + i, rs)
        for i in range(len(groups)): a(f"v_cmp_eq_u32 s[{sm+2*i}:{sm+2*i+1}], -1, v{t+i}")
        a(f"s_or_b64 s[58:59], s[{sm}:{sm+1}], s[{sm+2}:{sm+3}]")
        for i in range(2, len(groups)): a(f"s_or_b64 s[58:59], s[58:59], s[{sm+2*i}:{sm+2*i+1}]")
        a(f"s_cbranch_scc0 {done}")
        if sleep: a(f"s_sleep {sleep}")
        for i, (g, _) in enumerate(groups):
            sk = L("mskip")
            a(f"s_mov_b64 exec, s[{sm+2*i}:{sm+2*i+1}]")
            a(f"s_cbranch_execz {sk}")
            g()
            a.label(sk)
        a("s_mov_b64 exec, -1")
        a("s_sub_u32 s60, s60, 1")
        a(f"s_cbranch_scc0 {top}")
        a("s_waitcnt vmcnt(0)")
        a.label(done)
    def spoll(groups, sums, outs, t, first=0):
        top, done = L("spoll"), L("spolled")
        a(f"s_mov_b32 s60, {SPIN}")
        if first: a(f"s_sleep {first}")
        for g, _ in groups: g()
        a.label(top)
        a("s_waitcnt vmcnt(0)")
        sums()
        umax(t, outs)
        a(f"v_cmp_eq_u32 vcc, -1, v{t}")
        a(f"s_cbranch_vccz {done}")
        if psleep: a(f"s_sleep {psleep}")
        if fine:
            for g, rs in groups:
                sk = L("gsk")
                umax(t, rs)
                a(f"v_cmp_eq_u32 vcc, -1, v{t}")
                a(f"s_cbranch_vccz {sk}")
                a("s_mov_b64 exec, vcc")
                g()
                a("s_mov_b64 exec, -1")
                a.label(sk)
        else:
            a("s_mov_b64 exec, vcc")
            for g, _ in groups: g()
            a("s_mov_b64 exec, -1")
        a("s_sub_u32 s60, s60, 1")
        a(f"s_cbranch_scc0 {top}")
        a("s_waitcnt vmcnt(0)")
        a.label(done)
    def pub2(ins):
        gl, dn = L("glob"), L("pubd")
        a("s_cmp_eq_u32 s66, 0"); a(f"s_cbranch_scc1 {gl}")
        a(ins); a(f"s_branch {dn}")
        a.label(gl); a(ins + " sc1"); a.label(dn)
    def lds_wait(vaddr, off, val, t, slp):
        top, done = L("lw"), L("lwd")
        a(f"s_mov_b32 s60, {LSPIN}")
        a.label(top)
        a(f"ds_read_b32 v{t}, v{vaddr} offset:{off}")
        a("s_waitcnt lgkmcnt(0)")
        a(f"v_cmp_gt_u32 vcc, {val}, v{t}")
        a(f"s_cbranch_vccz {done}")
        a(f"s_sleep {slp}")
        a("s_sub_u32 s60, s60, 1"); a(f"s_cbranch_scc0 {top}")
        a.label(done)
    def lds_signal(vaddr, off, one):
        a("s_waitcnt lgkmcnt(0)")
        a("s_mov_b64 exec, 1"); a(f"ds_add_u32 v{vaddr}, v{one} offset:{off}"); a("s_mov_b64 exec, -1")
    def pair_perm(W, spare):
        out = []
        for t in range(0, len(W), 2):
            cols = []
            for j in range(4):
                A_, B_ = W[t][j], W[t + 1][j]
                a(f"v_perm_b32 v{spare}, v{B_}, v{A_}, s70")
                a(f"v_perm_b32 v{B_}, v{B_}, v{A_}, s71")
                cols += [spare, B_]
                spare = A_
            out.append(cols)
        return out
    def ln_stats(x, m, rs, t0, t1):
        a(f"v_add_f32 v{m}, v{x[0]}, v{x[1]}")
        for r in x[2:]: a(f"v_add_f32 v{m}, v{m}, v{r}")
        allred("v_add_f32", m, t0)
        a(f"v_mul_f32 v{m}, {INV640:#x}, v{m}")
        for i, r in enumerate(x):
            a(f"v_sub_f32 v{t0}, v{r}, v{m}")
            if i == 0: a(f"v_mul_f32 v{rs}, v{t0}, v{t0}")
            else: a(f"v_fmac_f32 v{rs}, v{t0}, v{t0}")
        allred("v_add_f32", rs, t0)
        a(f"v_mul_f32 v{rs}, {INV640:#x}, v{rs}")
        rbf(rs, rs); rbf(m, m)
        a(f"v_add_f32 v{rs}, {EPS:#x}, v{rs}"); rbf(rs, rs)
        a(f"v_sqrt_f32 v{rs}, v{rs}"); rbf(rs, rs)
        a(f"v_rcp_f32 v{rs}, v{rs}")

    a.raw(HEADER.rstrip("\n"))
    a.raw(f"; @launch grid=(256,1,1) block=({64*NWAVE},1,1) lds={L_END}")
    a.raw('.amdgcn_target "amdgcn-amd-amdhsa--gfx950"')
    a.raw(".text"); a.raw(f".globl {KN}"); a.raw(".p2align 8"); a.raw(f".type {KN},@function")
    a.label(KN)
    a("s_cmp_ge_u32 s2, 256"); a("s_cbranch_scc1 L_exit")
    if dbl or diag == 4: a("s_memrealtime s[88:89]")
    a("s_load_dwordx16 s[16:31], s[0:1], 0")
    a("s_load_dwordx8 s[32:39], s[0:1], 64")
    a("v_lshrrev_b32 v1, 6, v0")
    a("v_and_b32 v0, 63, v0")
    a("v_readfirstlane_b32 s3, v1")
    if diag: a(f"v_mov_b32 v{SV}, 0")
    a("v_lshlrev_b32 v1, 4, v0")
    a("s_and_b32 s4, s2, 7"); a("s_lshl_b32 s4, s4, 5"); a("s_lshr_b32 s2, s2, 3"); a("s_or_b32 s2, s2, s4")
    a("s_lshr_b32 s4, s2, 4")
    if diag: a("s_mov_b32 s93, s3"); a("s_mov_b32 s94, 32")
    a("s_and_b32 s67, s2, 15"); a("s_lshl_b32 s67, s67, 4"); a("s_add_u32 s67, s67, s4")
    a("s_cmp_ge_u32 s3, 4"); a("s_cbranch_scc1 L_helper")

    R0 = 36
    ring = [8]
    def slot(ck, i): return R0 + 16 * (ck % ring[0]) + 4 * i
    def issue_chunk(ck, pacer=None, lo=0, hi=4):
        for i in range(lo, hi):
            if pacer and i % GR == 0: pacer(i)
            s = slot(ck, i)
            a(f"buffer_load_dwordx4 v[{s}:{s+3}], v1, s[8:11], s12 offen offset:{1024*i} {kvpol}")
        if hi == 4: a("s_add_u32 s12, s12, 0x4000"); a("s_and_b32 s12, s12, 0x3ffff")
    a("s_and_b32 s5, s2, 15")
    a("s_lshl_b32 s13, s4, 23"); a("s_lshl_b32 s14, s5, 18"); a("s_add_u32 s13, s13, s14")
    a(f"s_mul_i32 s12, s5, {stag*0x4000}"); a("s_and_b32 s12, s12, 0x3ffff")
    a("s_lshl_b32 s14, s3, 12"); a("s_add_u32 s12, s12, s14")
    a("s_mov_b32 s10, 0x40000"); a("s_mov_b32 s11, 0x20000")
    a("s_waitcnt lgkmcnt(0)")
    a("s_add_u32 s8, s18, s13"); a("s_addc_u32 s9, s19, 0")
    if diag == 4: a(f"v_writelane_b32 v{SV}, s88, 59")
    stamp("start")
    if bs: a("s_barrier")
    issue_chunk(0)
    if pre > 4: issue_chunk(1, None, 0, pre - 4)
    stamp("iss0")
    a(f"s_add_u32 s14, s14, {L_SC}")
    a("v_lshlrev_b32 v20, 2, v0"); a("v_add_u32 v20, s14, v20")
    a("v_and_b32 v21, 15, v0"); a("v_lshlrev_b32 v21, 4, v21")
    a("v_mov_b32 v22, 0"); a("v_mov_b32 v23, 1")
    stamp("s_issued")
    if not bs: a("s_barrier")
    a(f"s_mov_b32 s15, {modes[0]}")
    a(f"s_cmp_lt_u32 s67, {NWO+NFFN}"); a(f"s_cselect_b32 s15, {modes[2]}, s15")
    a(f"s_cmp_lt_u32 s67, {NWO}"); a(f"s_cselect_b32 s15, {modes[1]}, s15")
    a("s_mov_b32 s46, s15"); a("s_mov_b32 s47, 4"); a("v_mov_b32 v3, 0")
    def hint_read():
        if hint is not None: a(f"ds_read_b32 v2, v3 offset:{L_FL+28}")
    def hint_apply():
        if hint is None: return
        a("v_readfirstlane_b32 s45, v2")
        a("s_lshr_b32 s48, s45, 8"); a("s_and_b32 s45, s45, 3")
        a("s_cmp_lt_u32 s47, s48"); a("s_cselect_b32 s15, s45, s46")
        a("s_add_u32 s47, s47, 1")
    def hint_mark(off):
        if hint is None: return
        sk = L("hm")
        a("s_cmp_lg_u32 s6, 0"); a(f"s_cbranch_scc1 {sk}")
        a("s_mov_b64 exec, 1"); a(f"ds_add_u32 v22, v23 offset:{off}"); a("s_mov_b64 exec, -1")
        a.label(sk)
    def gtick(rd):
        if gov is None: return
        a("s_mov_b64 exec, 1"); a(f"ds_add_u32 v3, v23 offset:{L_FL+64}"); a("s_mov_b64 exec, -1")
        if rd: a(f"ds_read_b32 v2, v3 offset:{L_FL+28}")
    def gmode(rd, last=False):
        if gov is None or not rd: return
        a("s_waitcnt lgkmcnt(0)")
        a("v_readfirstlane_b32 s45, v2")
        a("s_sub_u32 s45, s45, 1"); a("s_cselect_b32 s15, s15, s45")
        if last: a("s_cmp_ge_u32 s6, s44"); a("s_cselect_b32 s15, 2, s15")
    def pace(i):
        go = L("go")
        a(f"s_waitcnt vmcnt({DS[2]-GR})")
        if DS[1] != DS[2] or DS[0] != DS[2]:
            a("s_cmp_ge_u32 s15, 2"); a(f"s_cbranch_scc1 {go}")
            a(f"s_waitcnt vmcnt({DS[1]-GR})")
            if DS[0] != DS[1]:
                a("s_cmp_ge_u32 s15, 1"); a(f"s_cbranch_scc1 {go}")
                a(f"s_waitcnt vmcnt({DS[0]-GR})")
            a.label(go)
    assert DS[2] <= 8
    for ck in range(1, F):
        if ck == 1 and pre == 8: continue
        issue_chunk(ck, lambda i: a(f"s_waitcnt vmcnt({(FD or DS[1])-GR})"), (pre - 4 if ck == 1 else 0))
        if ck in (1, 2, 4): stamp({1: "land0", 2: "land1", 4: "land3"}[ck])
    stamp("s_filled")
    lds_wait(22, L_FL + 4, 4, 8, 1)
    a(f"ds_read_b128 v[4:7], v21 offset:{L_Q}")
    a(f"ds_read_b128 v[16:19], v21 offset:{L_Q+256}")
    a("s_waitcnt lgkmcnt(0)")
    stamp("q_ready")
    def switch_point():
        a("s_cmp_eq_u32 s6, 3")
        a("s_cselect_b32 s8, s40, s8"); a("s_cselect_b32 s9, s41, s9")
        a("s_cselect_b32 s10, s43, s10")
    def proc_k(ck, q, off):
        for j in range(4):
            for i in range(4):
                a(f"v_dot2_f32_bf16 v{8+i}, v{slot(ck,i)+j}, v{q+j}, " + ("0" if j == 0 else f"v{8+i}"))
        a("v_add_f32_dpp v12, v8, v8 row_ror:8 row_mask:0xf bank_mask:0x3")
        a("s_nop 0")
        a("v_add_f32_dpp v13, v10, v10 row_ror:8 row_mask:0xf bank_mask:0x3")
        a("v_add_f32_dpp v12, v9, v9 row_ror:8 row_mask:0xf bank_mask:0xc")
        a("v_add_f32_dpp v13, v11, v11 row_ror:8 row_mask:0xf bank_mask:0xc")
        a("v_add_f32_dpp v14, v12, v12 row_half_mirror row_mask:0xf bank_mask:0x5")
        a("v_add_f32_dpp v14, v13, v13 row_half_mirror row_mask:0xf bank_mask:0xa")
        a(f"ds_write_b32 v20, v14 offset:{off}")
    n = F
    since = 9
    burst = 0
    for k in range(16):
        if n - ring[0] < k and n < 18 and (n - k <= 2 or since >= 2 or burst < 2):
            if n == 16: a("s_add_u32 s8, s8, 0x400000"); a("s_addc_u32 s9, s9, 0")
            issue_chunk(n, pace); n += 1; since = 0; burst += 1
            gtick(True); did = True
        else: did = False
        assert k <= n - 3
        proc_k(k, 4, 256 * k)
        gmode(did)
        since += 1
        if k % 4 == 3: prog()
    assert n == 18, n
    lds_signal(22, L_FL + 8, 23)
    stamp("ka_done")
    ring[0] = 4
    a("s_add_u32 s40, s20, s13"); a("s_addc_u32 s41, s21, 0"); a("s_mov_b32 s43, 0x40000")
    if not kdeep: a(f"s_mov_b32 s15, {modes[0]}")
    a("s_mov_b32 s6, 0")
    a.label("L_kiter")
    hint_read()
    for k in range(4):
        if k == 2: switch_point()
        issue_chunk(k + 2, pace)
        if k == 0 and hint is not None: a("s_waitcnt lgkmcnt(0)"); hint_apply()
        gtick(k % 2 == 0)
        proc_k(k, 16, 0x4000 + 256 * k)
        gmode(k % 2 == 0)
        if k == hk: hint_mark(L_FL + 32)
    prog()
    a("v_add_u32 v20, 0x400, v20")
    a("s_add_u32 s6, s6, 1"); a("s_cmp_lt_u32 s6, 4"); a("s_cbranch_scc1 L_kiter")
    lds_signal(22, L_FL + 12, 23)
    stamp("k_done")
    a("s_lshl_b32 s14, s3, 11"); a(f"s_add_u32 s14, s14, {L_PP}")
    a("v_lshlrev_b32 v20, 3, v0"); a("v_add_u32 v20, s14, v20")
    a("s_lshl_b32 s14, s3, 9"); a(f"s_add_u32 s14, s14, {L_OL}")
    a("v_and_b32 v21, 15, v0"); a("v_lshlrev_b32 v21, 5, v21"); a("v_lshrrev_b32 v8, 4, v0"); a("v_lshl_add_u32 v21, v8, 3, v21")
    a("v_add_u32 v21, s14, v21")
    a("s_add_u32 s40, s40, 0x400000"); a("s_addc_u32 s41, s41, 0")
    a("s_mov_b32 s7, 0"); a("s_mov_b32 s44, 99")
    a.label("L_vhead")
    lds_wait(22, L_FL + 16, 1, 8, 1)
    stamp("p_wait")
    for j in range(8): a(f"v_mov_b32 v{24+j}, 0")
    a("s_mov_b32 s6, 0")
    a.label("L_viter")
    a("ds_read_b64 v[32:33], v20")
    hint_read()
    if deep_until < 8 and gov is None:
        a("s_lshl_b32 s45, s7, 2"); a("s_add_u32 s45, s45, s6"); a(f"s_cmp_ge_u32 s45, {deep_until}"); a(f"s_cselect_b32 s15, {modes[0]}, s15")
    a("s_cmp_ge_u32 s6, s44"); a("s_cselect_b32 s15, 2, s15")
    for k in range(4):
        if k == 2: switch_point()
        if k >= 2:
            dr, go = L("drain"), L("drained")
            a("s_cmp_eq_u32 s10, 0"); a(f"s_cbranch_scc1 {dr}")
            issue_chunk(k + 2, pace)
            a(f"s_branch {go}")
            a.label(dr)
            a(f"s_waitcnt vmcnt({4*(3-k)})")
            a.label(go)
        else:
            issue_chunk(k + 2, pace)
        a("s_mov_b64 exec, 1"); a(f"ds_add_u32 v3, v23 offset:{L_FL+44}"); a("s_mov_b64 exec, -1")
        if k == 0:
            a("s_waitcnt lgkmcnt(0)")
            hint_apply()
            if hint is not None: a("s_cmp_ge_u32 s6, s44"); a("s_cselect_b32 s15, 2, s15")
        gtick(k % 2 == 0)
        for i in range(4):
            s = slot(k, i)
            c = ((i & 1) << 3) | ((i >> 1) << 2) | k
            for j in range(4):
                a(f"v_dot2c_f32_bf16_dpp v{24+2*j}, v32, v{s+j} row_newbcast:{c} {FULL}")
                a(f"v_dot2c_f32_bf16_dpp v{25+2*j}, v33, v{s+j} row_newbcast:{c} {FULL}")
        gmode(k % 2 == 0, True)
        if k == hk: hint_mark(L_FL + 36)
    prog()
    a("v_add_u32 v20, 0x200, v20")
    a("s_add_u32 s6, s6, 1"); a("s_cmp_lt_u32 s6, 4"); a("s_cbranch_scc1 L_viter")
    red_g8(list(range(24, 32)), 34)
    a("ds_write_b64 v21, v[34:35]")
    a("s_cmp_lg_u32 s7, 0"); a("s_cbranch_scc1 L_vend")
    lds_signal(22, L_FL + 24, 23)
    stamp("va_done")
    a("v_add_u32 v20, 0x1800, v20"); a("v_add_u32 v21, 0x800, v21"); a("v_mov_b32 v22, 4")
    a("s_mov_b32 s43, 0"); a("s_mov_b32 s7, 1"); a(f"s_mov_b32 s44, {lastit}")
    a("s_branch L_vhead")
    a.label("L_vend")
    a("s_mov_b64 exec, 1"); a(f"ds_add_u32 v3, v23 offset:{L_FL+48}"); a("s_mov_b64 exec, -1")
    stamp("v_done")
    a("s_branch L_fin")

    def ffn_index(d):
        a(f"s_sub_u32 {d}, s67, {NWO}")
    W0 = 64
    def load_weights(wpace=wpace, down=True, wo=True, fw=True, gu=True):
        if now or not (wo or fw): return
        ffn, done = L("ffnw"), L("wdone")
        cnt = [0]
        def ld(idx, off, pol=wpol):
            if wpace and cnt[0] >= wpace: a(f"s_waitcnt vmcnt({wpace-1})")
            cnt[0] += 1
            a(f"buffer_load_dwordx4 v[{W0+4*idx}:{W0+4*idx+3}], v2, s[44:47], s50 offen offset:{off} {pol}")
        a(f"s_cmp_ge_u32 s67, {NWO}"); a(f"s_cbranch_scc1 {ffn}")
        if not wo: a(f"s_branch {done}")
        a("s_mov_b32 s44, s24"); a("s_mov_b32 s45, s25"); a(f"s_mov_b32 s46, {4096*1280}"); a("s_mov_b32 s47, 0x20000")
        a("s_and_b32 s50, s67, 15"); a("s_lshl_b32 s50, s50, 3"); a("s_add_u32 s50, s50, s3"); a(f"s_mul_i32 s50, s50, {32*1280}")
        a("s_lshr_b32 s51, s67, 4"); a("s_lshl_b32 s51, s51, 7"); a("s_add_u32 s50, s50, s51")
        a("v_lshrrev_b32 v2, 3, v0"); a(f"v_mul_u32_u24 v2, {4*1280}, v2"); a("v_and_b32 v3, 7, v0"); a("v_lshl_add_u32 v2, v3, 4, v2")
        for t in range(4 if wo else 0): ld(t, t * 1280)
        a(f"s_branch {done}")
        a.label(ffn)
        cnt[0] = 0
        if not fw:
            a.label(done); return
        a(f"s_cmp_ge_u32 s67, {NWO+NFFN}"); a(f"s_cbranch_scc1 {done}")
        a("s_cmp_lt_u32 s3, 4"); a("s_cselect_b32 s44, s28, s30"); a("s_cselect_b32 s45, s29, s31")
        a(f"s_mov_b32 s46, {640*3456}"); a("s_mov_b32 s47, 0x20000")
        ffn_index("s52")
        a("s_and_b32 s50, s3, 3"); a(f"s_mul_i32 s50, s50, {160*3456}"); a("s_lshl_b32 s51, s52, 6"); a("s_add_u32 s50, s50, s51")
        a("v_lshrrev_b32 v2, 2, v0"); a(f"v_mul_u32_u24 v2, {10*3456}, v2"); a("v_and_b32 v3, 3, v0"); a("v_lshl_add_u32 v2, v3, 4, v2")
        gp = wpol if gupol is None else gupol
        if gu and rev:
            od, jn = L("odd"), L("join")
            a("s_bitcmp1_b32 s52, 0"); a(f"s_cbranch_scc1 {od}")
        for t in range(10 if gu else 0):
            if t and t % 2 == 0: a(f"s_add_u32 s50, s50, {2*3456}")
            ld(t, (t % 2) * 3456, gp)
        if gu and rev:
            a(f"s_branch {jn}")
            a.label(od)
            cnt[0] = 0
            a(f"s_add_u32 s50, s50, {8*3456}")
            for t in range(9, -1, -1):
                ld(t, (t % 2) * 3456, gp)
                if t and t % 2 == 0: a(f"s_sub_u32 s50, s50, {2*3456}")
            a.label(jn)
        if not down:
            a.label(done); return
        a("s_cmp_ge_u32 s3, 5"); a(f"s_cbranch_scc1 {done}")
        a("s_mov_b32 s44, s32"); a("s_mov_b32 s45, s33"); a(f"s_mov_b32 s46, {1728*1280}")
        a(f"s_mul_i32 s50, s52, {32*1280}"); a("s_lshl_b32 s51, s3, 8"); a("s_add_u32 s50, s50, s51")
        a("v_lshrrev_b32 v2, 4, v0"); a(f"v_mul_u32_u24 v2, {8*1280}, v2"); a("v_and_b32 v3, 15, v0"); a("v_lshl_add_u32 v2, v3, 4, v2")
        for t in range(8):
            if t == 4: a(f"s_add_u32 s50, s50, {4*1280}")
            ld(10 + t, (t % 4) * 1280)
        a.label(done)

    a.label("L_helper")
    a("s_sub_u32 s3, s3, 4")
    a("s_and_b32 s6, s2, 15")
    a("v_lshlrev_b32 v6, 2, v0")
    a("v_mov_b32 v14, 0"); a("v_mov_b32 v15, 1")
    a("s_mov_b32 s70, 0x05040100"); a("s_mov_b32 s71, 0x07060302")
    a("s_cmp_ge_u32 s3, 4"); a("s_cbranch_scc1 L_helper2")
    if prio: a(f"s_setprio {prio}")
    a("v_lshrrev_b32 v2, 3, v0")
    a("v_and_b32 v3, 7, v0")
    a("v_mul_u32_u24 v4, 5, v2")
    a("s_lshr_b32 s8, s6, 2"); a("s_lshl_b32 s8, s8, 2"); a("s_add_u32 s8, s8, s3"); a("s_mul_i32 s8, s8, 40")
    a("v_add_u32 v4, s8, v4")
    a("v_lshlrev_b32 v5, 13, v4"); a("v_lshl_add_u32 v5, v3, 4, v5")
    a("v_lshlrev_b32 v4, 1, v4")
    a("s_lshl_b32 s9, s4, 9"); a("s_and_b32 s10, s6, 3"); a("s_lshl_b32 s10, s10, 7"); a("s_add_u32 s9, s9, s10")
    a(f"s_mov_b32 s46, {640*8192}"); a("s_mov_b32 s47, 0x20000")
    a("s_waitcnt lgkmcnt(0)")
    stamp("start")
    a(f"s_add_u32 s74, s38, {WS_EP}"); a("s_addc_u32 s75, s39, 0")
    a("s_load_dword s15, s[74:75], 0")
    a("global_load_dwordx4 v[16:19], v1, s[16:17]"); a("global_load_dword v20, v6, s[16:17] offset:1024")
    for t in range(5): a(f"global_load_ushort v{21+t}, v4, s[16:17] offset:{2*t}")
    a("s_mov_b32 s44, s22"); a("s_mov_b32 s45, s23")
    for t in range(5):
        a(f"buffer_load_dwordx4 v[{64+4*t}:{64+4*t+3}], v5, s[44:47], s9 offen {wpol}")
        if t < 4: a("s_add_u32 s9, s9, 0x2000")
    a("s_barrier")
    a("v_lshlrev_b32 v12, 2, v2"); a("v_lshl_add_u32 v12, v3, 5, v12")
    a("s_lshl_b32 s12, s3, 8"); a("v_add_u32 v12, s12, v12")
    a("s_mov_b32 s62, 0xff00ff00"); a("s_mov_b32 s63, 0xff00ff00")
    stamp("h_issued")
    a("s_waitcnt vmcnt(5)")
    stamp("h_x")
    for i in range(5):
        a(f"v_and_b32 v{30+2*i+1}, 0xffff0000, v{16+i}"); a(f"v_lshlrev_b32 v{30+2*i}, 16, v{16+i}")
    ln_stats(list(range(30, 40)), 26, 27, 28, 29)
    for t in range(5):
        a(f"v_lshlrev_b32 v{21+t}, 16, v{21+t}"); a(f"v_sub_f32 v{21+t}, v{21+t}, v26"); rbf(21 + t, 21 + t)
        a(f"v_mul_f32 v{21+t}, v{21+t}, v27")
        a(f"v_cvt_pk_bf16_f32 v{30+t}, v{21+t}, 0"); a(f"v_cvt_pk_bf16_f32 v{35+t}, 0, v{21+t}")
    for j in range(8): a(f"v_mov_b32 v{40+j}, 0")
    stamp("h_ln")
    for t in range(5):
        a(f"s_waitcnt vmcnt({4-t})")
        for j in range(4):
            a(f"v_dot2c_f32_bf16 v{40+2*j}, v{30+t}, v{64+4*t+j}"); a(f"v_dot2c_f32_bf16 v{41+2*j}, v{35+t}, v{64+4*t+j}")
    red_g8(list(range(40, 48)), 48)
    a(f"v_add_f32_dpp v48, v48, v48 row_ror:8 {FULL}"); a(f"v_add_f32_dpp v49, v49, v49 row_ror:8 {FULL}")
    a("v_cndmask_b32 v48, v48, v49, s[62:63]")
    a(f"ds_write_b32 v12, v48 offset:{L_QS}")
    a("s_waitcnt lgkmcnt(0)")
    a("s_add_u32 s15, s15, 1")
    a("s_mov_b64 exec, 1"); a(f"ds_add_rtn_u32 v13, v14, v15 offset:{L_FL}"); a("s_mov_b64 exec, -1")
    a("v_lshrrev_b32 v10, 5, v0"); a(f"v_mul_u32_u24 v12, {8*MB}, v10"); a("v_and_b32 v11, 31, v0"); a("v_lshl_add_u32 v12, v11, 4, v12")
    a("s_lshl_b32 s12, s4, 4"); a("s_add_u32 s12, s12, s3"); a(f"s_mul_i32 s12, s12, {MB}"); a("v_add_u32 v12, s12, v12")
    a(f"v_add_u32 v9, {4*MB}, v12")
    a("s_waitcnt lgkmcnt(0)")
    a("v_readfirstlane_b32 s12, v13")
    stamp("h_dots")
    a("s_getreg_b32 s13, hwreg(HW_REG_XCC_ID, 0, 4)"); a("s_lshl_b32 s13, s13, 28"); a("s_xor_b32 s13, s13, s15")
    a(f"v_add_u32 v16, {L_QS}, v6")
    a(f"s_mul_i32 s14, s2, {MB}"); a("v_lshlrev_b32 v17, 3, v0"); a("v_add_u32 v17, s14, v17")
    def qpub(pol):
        a("ds_read2st64_b32 v[18:19], v16 offset0:0 offset1:1"); a("ds_read2st64_b32 v[20:21], v16 offset0:2 offset1:3")
        a("s_waitcnt lgkmcnt(0)")
        a("v_add_f32 v18, v18, v19"); a("v_add_f32 v20, v20, v21"); a("v_add_f32 v18, v18, v20"); a("v_mov_b32 v19, s13")
        a(f"global_store_dwordx2 v17, v[18:19], s[38:39] {pol}")
    a("s_cmp_lg_u32 s12, 3"); a("s_cbranch_scc1 L_qnopub")
    qpub("" if fastloc else "sc1")
    stamp("qp_pub")
    a.label("L_qnopub")
    a(f"s_mov_b32 s61, {SPIN}")
    a.label("L_qpoll")
    a("global_load_dwordx4 v[24:27], v12, s[38:39] sc1"); a("global_load_dwordx4 v[28:31], v9, s[38:39] sc1")
    a("s_waitcnt vmcnt(0)")
    for r in (25, 27, 29, 31): a(f"v_xor_b32 v{r}, s13, v{r}")
    a("v_or3_b32 v25, v25, v27, v29"); a("v_or_b32 v25, v25, v31"); a("v_and_b32 v27, 0x0fffffff, v25")
    a("v_cmp_ne_u32 vcc, 0, v27")
    a("s_cbranch_vccz L_qpolled")
    if sleep: a(f"s_sleep {sleep}")
    if fastloc:
        a(f"s_cmp_lg_u32 s61, {SPIN-QTO}"); a("s_cbranch_scc1 L_qagain")
        lds_wait(14, L_FL, 4, 8, 2)
        qpub("sc1")
        a.label("L_qagain")
    a("s_sub_u32 s61, s61, 1"); a("s_cbranch_scc0 L_qpoll")
    a.label("L_qpolled")
    if fastloc:
        a("v_cmp_ne_u32 vcc, 0, v25")
        a("s_cbranch_vccz L_qsame")
        lds_wait(14, L_FL, 4, 8, 2)
        qpub("sc1")
        a("s_branch L_qdiff")
        a.label("L_qsame")
        a("s_mov_b64 exec, 1"); a(f"ds_add_u32 v14, v15 offset:{L_FL+56}"); a("s_mov_b64 exec, -1")
        a.label("L_qdiff")
    stamp("q_got")
    a("v_add_f32 v24, v24, v28"); a("v_add_f32 v26, v26, v30")
    a("v_permlane32_swap_b32 v24, v26")
    a("v_add_f32 v24, v24, v26")
    a("v_cvt_pk_bf16_f32 v24, v24, v24")
    a("v_lshl_add_u32 v12, v11, 1, v10"); a("v_lshlrev_b32 v12, 1, v12")
    a("s_lshl_b32 s12, s3, 7"); a("v_add_u32 v12, s12, v12")
    a(f"ds_write_b16 v12, v24 offset:{L_Q}")
    lds_signal(14, L_FL + 4, 15)
    a(f"s_setprio {hprio}")
    a("s_branch L_weights")

    a.label("L_helper2")
    a(f"s_setprio {hprio}")
    a("s_cmp_lg_u32 s3, 4"); a("s_cbranch_scc1 L_noinit")
    a(f"ds_write_b32 v6, v14 offset:{L_FL}")
    a.label("L_noinit")
    a("s_waitcnt lgkmcnt(0)")
    stamp("start")
    a(f"s_add_u32 s74, s38, {WS_EP}"); a("s_addc_u32 s75, s39, 0")
    a("s_load_dword s15, s[74:75], 0")
    if codepf:
        a("s_cmp_lg_u32 s3, 5"); a("s_cbranch_scc1 L_nocpf")
        a("s_getpc_b64 s[12:13]")
        a.label("L_pc")
        a(f"s_sub_u32 s12, s12, L_pc-{KN}"); a("s_subb_u32 s13, s13, 0")
        a("s_lshr_b32 s11, s2, 3"); a("s_lshl_b32 s11, s11, 10"); a("v_add_u32 v16, s11, v1")
        a(f"v_min_u32 v16, L_exit-{KN}-12, v16")
        a("global_load_dwordx4 v[16:19], v16, s[12:13]")
        a.label("L_nocpf")
    a("s_cmp_lg_u32 s3, 6"); a("s_cbranch_scc1 L_clrdone")
    if noclear: a("s_branch L_clrdone")
    for r in range(8, 12): a(f"v_mov_b32 v{r}, -1")
    a(f"s_cmp_ge_u32 s67, {NWO}"); a("s_cbranch_scc1 L_clrffn")
    a("s_and_b32 s12, s67, 15"); a("s_mul_i32 s12, s12, 2560"); a("s_lshr_b32 s13, s67, 4"); a("s_lshl_b32 s13, s13, 8"); a("s_add_u32 s12, s12, s13")
    a(f"s_add_u32 s12, s12, {WS_YP}"); a("v_add_u32 v12, s12, v6")
    a("global_store_dword v12, v8, s[38:39] sc1")
    a("s_branch L_clrdone")
    a.label("L_clrffn")
    a(f"s_cmp_ge_u32 s67, {NWO+NFFN}"); a("s_cbranch_scc1 L_clrdone")
    ffn_index("s12"); a("s_mul_i32 s12, s12, 2560"); a(f"s_add_u32 s12, s12, {WS_FP}")
    a("v_add_u32 v12, s12, v1")
    a("global_store_dwordx4 v12, v[8:11], s[38:39] sc1"); a("global_store_dwordx4 v12, v[8:11], s[38:39] offset:1024 sc1")
    a("s_mov_b32 exec_hi, 0")
    a("global_store_dwordx4 v12, v[8:11], s[38:39] offset:2048 sc1")
    a("s_mov_b64 exec, -1")
    a.label("L_clrdone")
    a("s_barrier")
    if late_ffn is not None:
        a(f"s_cmp_lt_u32 s3, {early_from}"); a("s_cbranch_scc1 L_noearly")
        load_weights(epace, wo=False, down=False)
        a.label("L_noearly")
        if not down_late: load_weights(epace, wo=False, gu=False)
    else:
        load_weights(epace, wo=not late_wo)
    if tlb:
        a("s_cmp_lg_u32 s3, 5"); a("s_cbranch_scc1 L_notlb")
        a("s_add_u32 s12, s2, s4"); a("s_and_b32 s12, s12, 7"); a("s_and_b32 s13, s2, 8"); a("s_or_b32 s12, s12, s13")
        a("s_lshl_b32 s13, s4, 23"); a("s_lshl_b32 s12, s12, 18"); a("s_add_u32 s12, s12, s13")
        a("v_mov_b32 v16, s12"); a("v_add_u32 v17, 0x400000, v16")
        a("s_mov_b64 exec, 1")
        a("global_load_dword v18, v17, s[18:19] nt"); a("global_load_dword v19, v16, s[20:21] nt"); a("global_load_dword v20, v17, s[20:21] nt")
        a("s_mov_b64 exec, -1")
        a.label("L_notlb")
    a("s_waitcnt lgkmcnt(0)")
    a("s_add_u32 s15, s15, 1")
    a("s_cmp_lt_u32 s3, 6"); a("s_cbranch_scc1 L_weights_done")
    a("s_sub_u32 s7, s3, 6")
    a(f"s_mul_i32 s11, s2, {MB}"); a("v_add_u32 v7, s11, v1")
    a("s_cmp_lg_u32 s7, 0"); a("s_cbranch_scc1 L_nomark")
    a(f"s_cmp_ge_u32 s67, {NWO+NFFN}"); a("s_cbranch_scc1 L_nomark")
    a("s_waitcnt vmcnt(0)")
    a("v_mov_b32 v12, s15")
    a("s_mov_b64 exec, 1"); a(f"global_store_dword v7, v12, s[38:39] offset:{MB_MK} sc1"); a("s_mov_b64 exec, -1")
    a.label("L_nomark")
    lds_wait(14, L_FL + 4, 4, 8, 8)
    a(f"ds_read_b32 v8, v14 offset:{L_FL+56}"); a("s_waitcnt lgkmcnt(0)"); a("v_readfirstlane_b32 s66, v8")
    a("s_lshr_b32 s66, s66, 2")
    a("s_cmp_lg_u32 s7, 0"); a("s_cbranch_scc1 L_noclrO")
    for r in range(8, 12): a(f"v_mov_b32 v{r}, -1")
    pub2(f"global_store_dwordx4 v7, v[8:11], s[38:39] offset:{MB_O}")
    a.label("L_noclrO")
    a("s_lshl_b32 s12, s7, 2"); a("v_mov_b32 v13, s12")
    a("v_and_b32 v20, 3, v0"); a("v_lshlrev_b32 v20, 8, v20"); a("v_and_b32 v21, 60, v0"); a("v_lshl_add_u32 v20, v21, 2, v20")
    a("s_lshl_b32 s12, s7, 14"); a(f"s_add_u32 s12, s12, {L_SC}"); a("v_add_u32 v20, s12, v20")
    a("s_lshl_b32 s12, s7, 13"); a(f"s_add_u32 s12, s12, {L_PP}"); a("v_lshlrev_b32 v21, 3, v0"); a("v_add_u32 v21, s12, v21")
    a(f"s_mul_i32 s12, s4, {16*MB}"); a("s_lshl_b32 s13, s7, 7"); a("s_add_u32 s12, s12, s13")
    a("v_and_b32 v22, 15, v0"); a(f"v_mul_u32_u24 v22, {MB}, v22"); a("v_add_u32 v22, s12, v22")
    a(f"s_mul_i32 s13, s6, {MB}"); a("s_add_u32 s12, s12, s13"); a("v_mov_b32 v23, s12")
    a(f"s_mov_b32 s14, {LOG2E:#x}")
    lds_wait(13, L_FL + 8, 4, 8, 4)
    S = list(range(32, 48))
    for i in range(16):
        if i % 8 == 0:
            for u in range(8): a(f"ds_read_b128 v[{104+4*u}:{107+4*u}], v20 offset:{1024*(i+u)}")
        b = 104 + 4 * (i % 8)
        a(f"s_waitcnt lgkmcnt({7-i%8})")
        a(f"v_add_f32 v{b}, v{b}, v{b+1}"); a(f"v_add_f32 v{b+2}, v{b+2}, v{b+3}"); a(f"v_add_f32 v{S[i]}, v{b}, v{b+2}")
        rbf(S[i], S[i]); a(f"v_mul_f32 v{S[i]}, {SCALE:#x}, v{S[i]}"); rbf(S[i], S[i])
    a(f"v_max_f32 v28, v{S[0]}, v{S[1]}")
    for i in range(2, 16, 2): a(f"v_max3_f32 v28, v28, v{S[i]}, v{S[i+1]}")
    allred("v_max_f32", 28, 30)
    for i in range(16):
        a(f"v_sub_f32 v{104+i}, v{S[i]}, v28"); a(f"v_mul_f32 v{104+i}, s14, v{104+i}"); a(f"v_exp_f32 v{104+i}, v{104+i}")
    for st in (8, 4, 2):
        for i in range(st): a(f"v_add_f32 v{104+i}, v{104+i}, v{104+i+st}")
    a("v_add_f32 v29, v104, v105")
    allred("v_add_f32", 29, 30)
    a("v_mov_b32 v24, v28"); a("v_mov_b32 v25, s15"); a("v_mov_b32 v26, v29")
    a("v_mov_b32 v27, s15")
    a("s_waitcnt vmcnt(0)")
    a("s_mov_b64 exec, 1")
    pub2(f"global_store_dwordx4 v23, v[24:27], s[38:39] offset:{MB_ST}")
    a("s_mov_b64 exec, -1")
    stamp("st_pub")
    a(f"s_mov_b32 s60, {SPIN}")
    a.label("L_stpoll")
    a(f"global_load_dwordx4 v[16:19], v22, s[38:39] offset:{MB_ST} sc1")
    a("s_waitcnt vmcnt(0)")
    a("v_xor_b32 v17, s15, v17"); a("v_xor_b32 v19, s15, v19"); a("v_or_b32 v17, v17, v19")
    a("v_cmp_ne_u32 vcc, 0, v17")
    a("s_cbranch_vccz L_stpolled")
    a(f"s_sleep {ssleep}")
    a("s_sub_u32 s60, s60, 1"); a("s_cbranch_scc0 L_stpoll")
    a.label("L_stpolled")
    a("v_mov_b32 v24, v16"); a("v_mov_b32 v25, v18")
    a("v_mov_b32 v28, v24")
    rowred("v_max_f32", 28)
    a("v_sub_f32 v24, v24, v28"); a("v_mul_f32 v24, s14, v24"); a("v_exp_f32 v24, v24"); a("v_mul_f32 v29, v24, v25")
    rowred("v_add_f32", 29)
    a("v_rcp_f32 v29, v29")
    for i in range(16):
        a(f"v_sub_f32 v{S[i]}, v{S[i]}, v28"); a(f"v_mul_f32 v{S[i]}, s14, v{S[i]}"); a(f"v_exp_f32 v{S[i]}, v{S[i]}")
    for i in range(16):
        a(f"v_mul_f32 v{S[i]}, v{S[i]}, v29")
        a(f"v_cvt_pk_bf16_f32 v{104+2*i}, v{S[i]}, 0"); a(f"v_cvt_pk_bf16_f32 v{105+2*i}, 0, v{S[i]}")
        a(f"ds_write_b64 v21, v[{104+2*i}:{105+2*i}] offset:{512*i}")
    lds_signal(13, L_FL + 16, 15)
    stamp("p_ready")
    a("s_cmp_lg_u32 s3, 7"); a("s_cbranch_scc1 L_weights_done")
    a(f"s_cmp_ge_u32 s67, {NWO+NFFN}"); a("s_cbranch_scc1 L_weights_done")
    a(f"s_cmp_lt_u32 s67, {NWO}"); a("s_cbranch_scc1 L_weights_done")
    a(f"v_mul_u32_u24 v16, {MB}, v0")
    for i in range(1, 4): a(f"v_add_u32 v{16+i}, {64*MB*i:#x}, v16")
    a(f"s_mov_b32 s60, {SPIN}")
    a.label("L_marks")
    for i in range(4):
        a(f"global_load_dword v{20+i}, v{16+i}, s[38:39] offset:{MB_MK} sc1")
        a("s_waitcnt vmcnt(0)")
    for i in range(4):
        a(f"v_xor_b32 v{20+i}, s15, v{20+i}")
        m = 0
        for l in range(64):
            wid = 64 * i + l
            if 16 * (wid & 15) + (wid >> 4) < NWO + NFFN: m |= 1 << l
        a(f"s_mov_b32 s12, {m & 0xffffffff:#x}"); a(f"s_mov_b32 s13, {m >> 32:#x}")
        a(f"v_cndmask_b32 v{20+i}, 0, v{20+i}, s[12:13]")
    a("v_or3_b32 v20, v20, v21, v22"); a("v_or_b32 v20, v20, v23")
    a("v_cmp_ne_u32 vcc, 0, v20")
    a("s_cbranch_vccz L_marked")
    a("s_sleep 32")
    a("s_sub_u32 s60, s60, 1"); a("s_cbranch_scc0 L_marks")
    a.label("L_marked")
    lds_signal(14, L_FL + 52, 15)
    a("s_branch L_weights_done")

    a.label("L_weights")
    if late_ffn is None: load_weights(wo=not late_wo)
    else:
        if early_from < 4:
            a(f"s_cmp_lt_u32 s3, {early_from}"); a("s_cbranch_scc1 L_noearly2")
            load_weights(wo=False, down=False)
            a.label("L_noearly2")
        if not down_late: load_weights(wo=False, gu=False)
    a.label("L_weights_done")
    a(f"s_add_u32 s76, s38, {WS_YP}"); a("s_addc_u32 s77, s39, 0")
    a(f"s_add_u32 s78, s38, {WS_FP}"); a("s_addc_u32 s79, s39, 0")
    def osum(head, d):
        for w in range(4): a(f"ds_read_b64 v[{142+2*w}:{143+2*w}], v138 offset:{L_OL+2048*head+512*w}")
        a("s_waitcnt lgkmcnt(0)")
        a("v_pk_add_f32 v[142:143], v[142:143], v[144:145]"); a("v_pk_add_f32 v[146:147], v[146:147], v[148:149]")
        a(f"v_pk_add_f32 v[{d}:{d+1}], v[142:143], v[146:147]")
        guard([d, d + 1])
    def opub():
        osum(1, 142)
        with live():
            if fastloc:
                gl, dn = L("oglob"), L("odone")
                a("s_cmp_eq_u32 s66, 0"); a(f"s_cbranch_scc1 {gl}")
                a(f"global_store_dwordx2 v139, v[142:143], s[38:39] offset:{MB_O+512}")
                a(f"s_branch {dn}")
                a.label(gl)
            a(f"global_store_dwordx2 v139, v[142:143], s[38:39] offset:{MB_O+512} sc1")
            a(f"global_store_dwordx2 v139, v[140:141], s[38:39] offset:{MB_O} sc1")
            if fastloc: a.label(dn)
    a("v_lshlrev_b32 v138, 3, v0")
    a(f"s_mul_i32 s11, s2, {MB}"); a("v_add_u32 v139, s11, v138")
    if hint is not None:
        a("s_cmp_lg_u32 s3, 5"); a("s_cbranch_scc1 L_nohint")
        a("v_mul_u32_u24 v16, 37, v0"); a("v_add_u32 v16, s2, v16"); a("v_and_b32 v16, 255, v16"); a(f"v_mul_u32_u24 v16, {MB}, v16")
        for h in range(2):
            if hint[h] is None: continue
            nb0, kb, nt0, kt = hint[h]
            lds_wait(14, L_FL + 32 + 4 * h, 4, 8, 4)
            if hs == 32: a("s_mov_b32 exec_hi, 0")
            a(f"global_load_dword v17, v16, s[38:39] offset:{MB_ST+4+128*h} sc1")
            a("s_waitcnt vmcnt(0)")
            a("v_cmp_eq_u32 vcc, s15, v17")
            if hs == 32: a("s_mov_b64 exec, -1")
            a("s_bcnt1_i32_b64 s12, vcc")
            if hs == 32: a("s_lshl_b32 s12, s12, 1")
            if diag: a(f"v_writelane_b32 v{SV}, s12, {60+h}")
            it0 = (6 if hk >= 2 else 5) + 4 * h
            a("s_mov_b32 s13, 0")
            a(f"s_sub_i32 s61, s12, {nb0}"); a(f"s_mul_i32 s61, s61, {kb}"); a("s_ashr_i32 s61, s61, 4")
            a(f"s_add_u32 s62, s61, {it0}"); a("s_lshl_b32 s62, s62, 8"); a("s_or_b32 s62, s62, 2")
            a("s_cmp_gt_i32 s61, 0"); a("s_cselect_b32 s13, s62, s13")
            a(f"s_sub_i32 s61, {nt0}, s12"); a(f"s_mul_i32 s61, s61, {kt}"); a("s_ashr_i32 s61, s61, 4")
            a(f"s_add_u32 s62, s61, {it0}"); a("s_lshl_b32 s62, s62, 8")
            a("s_cmp_gt_i32 s61, 0"); a("s_cselect_b32 s13, s62, s13")
            a(f"s_sub_u32 s61, s67, {NWO}"); a(f"s_cmp_lt_u32 s61, {NFFN}"); a("s_cselect_b32 s13, 0, s13")
            a("v_mov_b32 v17, s13")
            a(f"ds_write_b32 v14, v17 offset:{L_FL+28}")
        a.label("L_nohint")
    if gov is not None:
        a("s_cmp_lg_u32 s3, 5"); a("s_cbranch_scc1 L_nogov")
        lds_wait(14, L_FL + 4, 4, 8, 8)
        a(f"ds_read_b32 v8, v14 offset:{L_FL+56}"); a("s_waitcnt lgkmcnt(0)"); a("v_readfirstlane_b32 s12, v8")
        a("s_cmp_lg_u32 s12, 4"); a("s_cbranch_scc1 L_nogov")
        a("s_lshr_b32 s12, s2, 5"); a("s_lshl_b32 s12, s12, 8"); a(f"s_add_u32 s12, s12, {WS_PG}")
        a("v_min_u32 v16, 32, v0"); a("v_lshlrev_b32 v16, 2, v16"); a("v_add_u32 v16, s12, v16")
        if xg:
            a("s_add_u32 s68, s12, 128"); a("v_mov_b32 v21, s68")
            a("v_and_b32 v22, 7, v0"); a(f"v_mul_u32_u24 v22, {MB}, v22"); a(f"v_add_u32 v22, {WS_XG:#x}, v22")
            a("s_lshr_b32 s69, s2, 5"); a(f"s_mul_i32 s68, s69, {MB}"); a(f"s_add_u32 s68, s68, {WS_XG}"); a("v_mov_b32 v23, s68")
            a("s_lshl_b32 s68, s15, 15"); a("s_mov_b32 s53, 0"); a("s_mov_b32 s73, 0")
        a("s_and_b32 s64, s2, 31"); a("s_lshl_b32 s13, s64, 2"); a("s_add_u32 s12, s12, s13"); a("v_mov_b32 v17, s12")
        a("s_lshl_b32 s13, s15, 10")
        a(f"s_sub_u32 s62, s67, {NWO}"); a(f"s_cmp_lt_u32 s62, {NFFN}"); a(f"s_cselect_b32 s65, 0, {gbias}"); a("s_add_u32 s65, s65, s13")
        a("s_mov_b32 s61, 4000")
        a.label("L_gov")
        a(f"ds_read_b32 v20, v14 offset:{L_FL+64}")
        a("s_waitcnt lgkmcnt(0)")
        a("v_add_u32 v19, s65, v20")
        a("s_mov_b64 exec, 1"); a("global_store_dword v17, v19, s[38:39]"); a("s_mov_b64 exec, -1")
        a("global_load_dword v18, v16, s[38:39] sc1")
        a("v_readfirstlane_b32 s62, v20")
        a(f"s_cmp_ge_u32 s62, {4*(18-F+16+26)}"); a("s_cbranch_scc1 L_nogov")
        a("s_waitcnt vmcnt(0)")
        if xg: a("v_readlane_b32 s72, v18, 32")
        a("v_subrev_u32 v18, s13, v18")
        a("v_cmp_le_u32 vcc, 0x400, v18")
        a("s_cmp_lg_u32 vcc_lo, 0"); a("s_cbranch_scc1 L_gov_next")
        a("v_readlane_b32 s62, v18, s64")
        rowred("v_add_u32", 18)
        a("s_lshl_b32 s62, s62, 5")
        a("v_readlane_b32 s63, v18, 0"); a("v_readlane_b32 s12, v18, 16")
        a("s_add_u32 s63, s63, s12"); a("s_sub_i32 s62, s62, s63")
        if xg:
            a("s_sub_u32 s72, s72, s68"); a("s_cmp_lt_u32 s72, 0x8000"); a("s_cselect_b32 s72, s72, 0x4000"); a("s_sub_i32 s72, s72, 0x4000")
            if xsh > 0: a(f"s_lshl_b32 s72, s72, {xsh}")
            if xsh < 0: a(f"s_ashr_i32 s72, s72, {-xsh}")
            a("s_add_i32 s62, s62, s72")
            a("s_cmp_lg_u32 s64, 15"); a("s_cbranch_scc1 L_notrep")
            if xper > 1: a(f"s_and_b32 s12, s61, {xper-1}"); a("s_cmp_lg_u32 s12, 0"); a("s_cbranch_scc1 L_notrep")
            for x in range(8): a(f"s_load_dword s{80+x}, s[74:75], {WS_XG-WS_EP+x*MB:#x} glc")
            a("s_add_u32 s12, s63, s68"); a("v_mov_b32 v25, s12")
            a("s_mov_b64 exec, 1"); a("global_store_dword v23, v25, s[38:39] sc1"); a("s_mov_b64 exec, -1")
            a("s_waitcnt lgkmcnt(0)")
            a("s_mov_b32 s12, 0"); a("s_mov_b32 s88, 0")
            for x in range(8):
                a(f"s_sub_u32 s{80+x}, s{80+x}, s68"); a(f"s_add_u32 s12, s12, s{80+x}"); a(f"s_max_u32 s88, s88, s{80+x}")
            a("s_mov_b32 s89, s73"); a("s_mov_b32 s73, s63")
            a("s_cmp_ge_u32 s88, 0x8000"); a("s_cbranch_scc1 L_notrep")
            a("s_lshr_b32 s12, s12, 3"); a("s_sub_i32 s12, s89, s12"); a(f"s_sub_i32 s12, s12, {32*xb}")
            a(f"s_sub_i32 s12, s12, s53"); a(f"s_ashr_i32 s12, s12, {xsm}"); a("s_add_i32 s53, s53, s12")
            a("s_add_u32 s12, s53, 0x4000"); a("s_add_u32 s12, s12, s68")
            a("v_mov_b32 v25, s12")
            a("s_mov_b64 exec, 1"); a("global_store_dword v21, v25, s[38:39]"); a("s_mov_b64 exec, -1")
            a.label("L_notrep")
        a("s_mov_b32 s63, 2")
        a(f"s_cmp_gt_i32 s62, {32*gov[1]}"); a("s_cselect_b32 s63, 1, s63")
        a(f"s_cmp_lt_i32 s62, {32*gov[0]}"); a("s_cselect_b32 s63, 3, s63")
        a("v_mov_b32 v18, s63")
        a(f"ds_write_b32 v14, v18 offset:{L_FL+28}")
        a.label("L_gov_next")
        a(f"s_sleep {gsleep}")
        a("s_sub_u32 s61, s61, 1"); a("s_cbranch_scc0 L_gov")
        a.label("L_nogov")
    a("s_cmp_lg_u32 s3, 7"); a("s_cbranch_scc1 L_noA")
    lds_wait(14, L_FL + 24, 4, 8, 8)
    osum(0, 140)
    if fastloc:
        a("s_cmp_eq_u32 s66, 0"); a("s_cbranch_scc1 L_noAloc")
        a(f"global_store_dwordx2 v139, v[140:141], s[38:39] offset:{MB_O}")
        a.label("L_noAloc")
    a("s_setprio 3")
    a.label("L_noA")
    a("s_waitcnt vmcnt(0)")
    stamp("w_done")
    def b5():
        sk = L("nopubB")
        with live(): lds_wait(14, L_FL + 48, 4, 150, 1)
        a("s_cmp_lg_u32 s3, 7"); a(f"s_cbranch_scc1 {sk}")
        opub()
        with live(): a(f"s_setprio {hprio}")
        a.label(sk)
        stamp("tail")
    ffn_index("s52")
    if warm:
        a("s_mov_b64 exec, 0")
        a(f"s_cmp_lt_u32 s67, {NWO}"); a("s_cbranch_scc1 L_wo_go")
        a(f"s_cmp_lt_u32 s67, {NWO+NFFN}"); a("s_cbranch_scc1 L_ffn_go")
        a("s_branch L_none_go")
        a.label("L_warmed")
        a("s_mov_b64 exec, -1")
    a(f"s_cmp_lt_u32 s67, {NWO}"); a("s_cbranch_scc1 L_wo")
    a(f"s_cmp_lt_u32 s67, {NWO+NFFN}"); a("s_cbranch_scc1 L_ffn")
    a.label("L_none_go")
    a("s_cmp_lg_u32 s3, 7"); a("s_cbranch_scc1 L_tend")
    if coarse:
        with live(): lds_wait(14, L_FL + 44, 4 * 27, 150, 24)
    b5()
    a("s_branch L_tend")

    a.label("L_wo")
    a("s_and_b32 s50, s67, 15"); a(f"s_mul_i32 s12, s50, {16*MB}"); a("s_lshl_b32 s13, s3, 7"); a("s_add_u32 s12, s12, s13")
    a("v_and_b32 v3, 7, v0"); a(f"v_mul_u32_u24 v2, {2*MB}, v3"); a("v_lshrrev_b32 v4, 3, v0"); a("v_lshl_add_u32 v2, v4, 4, v2"); a("v_add_u32 v2, s12, v2")
    a(f"v_add_u32 v8, {MB}, v2")
    a("v_lshrrev_b32 v5, 4, v0"); a("v_lshlrev_b32 v5, 3, v5"); a("v_lshl_add_u32 v5, v3, 5, v5")
    a("s_lshl_b32 s13, s3, 8"); a("v_add_u32 v5, s13, v5")
    a("s_mul_i32 s12, s50, 2560"); a("s_lshr_b32 s13, s67, 4"); a("s_lshl_b32 s13, s13, 8"); a("s_add_u32 s12, s12, s13"); a("v_add_u32 v7, s12, v6")
    a(f"v_add_u32 v6, {L_YL}, v6")
    for j in range(8): a(f"v_mov_b32 v{40+j}, 0")
    if late_wo:
        a("s_mov_b32 s44, s24"); a("s_mov_b32 s45, s25"); a(f"s_mov_b32 s46, {4096*1280}"); a("s_mov_b32 s47, 0x20000")
        a("s_lshl_b32 s50, s50, 3"); a("s_add_u32 s50, s50, s3"); a(f"s_mul_i32 s50, s50, {32*1280}")
        a("s_lshr_b32 s51, s67, 4"); a("s_lshl_b32 s51, s51, 7"); a("s_add_u32 s50, s50, s51")
        a(f"v_mul_u32_u24 v9, {4*1280}, v4"); a("v_lshl_add_u32 v9, v3, 4, v9")
    if coarse: lds_wait(14, L_FL + 44, 4 * (min(wo_at, wo_atA or 99) - 3), 150, 24)
    a(f"s_cmp_lt_u32 s3, 4"); a(f"s_cselect_b32 s53, {wo_atA or wo_at}, {wo_at}"); a("s_lshl_b32 s53, s53, 2")
    if nbr:
        a("s_add_u32 s54, s50, 128"); a("s_sub_u32 s55, s50, 1152"); a(f"s_cmp_lt_u32 s67, {NWO-16}"); a("s_cselect_b32 s54, s54, s55")
    a.label("L_wo_go")
    if late_wo and not now:
        with live():
            lds_wait(14, L_FL + 44, "s53", 150, 2)
            for t in range(4): a(f"buffer_load_dwordx4 v[{W0+4*t}:{W0+4*t+3}], v9, s[44:47], s50 offen offset:{t*1280} {wpol}")
    b5()
    a("s_waitcnt vmcnt(0)")
    PW = pair_perm([[W0 + 4 * t + j for j in range(4)] for t in range(4)], 136)
    nbr_done = [False]
    def io(v, d): return (lambda: a(f"global_load_dwordx4 v[{d}:{d+3}], v{v}, s[38:39] offset:{MB_O} sc1"), range(d, d + 4))
    def so():
        for j in range(4): a(f"v_add_f32 v{16+j}, v{24+j}, v{28+j}")
    with live(): spoll([io(2, 24), io(8, 28)], so, range(16, 20), 14, first=pfirst)
    stamp("e1")
    for pat in ("quad_perm:[1,0,3,2]", "quad_perm:[2,3,0,1]", "row_half_mirror"):
        for j in range(4): a(f"v_add_f32_dpp v{16+j}, v{16+j}, v{16+j} {pat} {FULL}")
    for i in range(2): a(f"v_cvt_pk_bf16_f32 v{32+i}, v{16+2*i}, v{17+2*i}")
    for i in range(2):
        for j in range(8): a(f"v_dot2c_f32_bf16 v{40+j}, v{32+i}, v{PW[i][j]}")
    red_g8(list(range(40, 48)), 48)
    a(f"v_add_f32_dpp v48, v48, v48 row_ror:8 {FULL}"); a(f"v_add_f32_dpp v49, v49, v49 row_ror:8 {FULL}")
    a(f"ds_write_b64 v5, v[48:49] offset:{L_YL}")
    a("s_waitcnt lgkmcnt(0)")
    with live(): a("s_barrier")
    a("s_cmp_lg_u32 s3, 0"); a("s_cbranch_scc1 L_tend")
    for w in range(4): a(f"ds_read2st64_b32 v[{16+2*w}:{17+2*w}], v6 offset0:{2*w} offset1:{2*w+1}")
    a("s_waitcnt lgkmcnt(0)")
    a("v_pk_add_f32 v[16:17], v[16:17], v[18:19]"); a("v_pk_add_f32 v[20:21], v[20:21], v[22:23]"); a("v_pk_add_f32 v[16:17], v[16:17], v[20:21]")
    a("v_add_f32 v16, v16, v17")
    guard([16])
    with live():
        a("global_store_dword v7, v16, s[76:77] sc1")
        if wb:
            sk = L("nowb")
            a("s_cmp_ge_u32 s67, 16"); a(f"s_cbranch_scc1 {sk}")
            a("buffer_wbl2 sc1")
            a.label(sk)
    stamp("y_pub")
    a("s_branch L_tend")

    a.label("L_ffn")
    fast_late = late_ffn is not None and not down_late and not rev
    if late_ffn is not None and not fast_late:
        a("s_cmp_eq_u32 s3, 7"); a("s_cbranch_scc1 L_ffn_have")
        if late_ffn <= 32: lds_wait(14, L_FL + 44, 4 * late_ffn, 8, 4)
        else: lds_wait(14, L_FL + 48, 4, 8, 2); a("s_sleep 3")
        a(f"s_cmp_ge_u32 s3, {early_from}"); a("s_cbranch_scc1 L_ffn_gu")
        load_weights(lpace, wo=False, down=False)
        a.label("L_ffn_gu")
        if down_late: load_weights(lpace, wo=False, gu=False)
        a.label("L_ffn_have")
    a("v_lshrrev_b32 v2, 4, v0"); a("v_and_b32 v3, 15, v0")
    a("s_min_u32 s12, s3, 4"); a("s_lshl_b32 s12, s12, 8")
    a("v_lshrrev_b32 v5, 1, v2"); a("v_lshlrev_b32 v5, 7, v5"); a("v_lshl_add_u32 v5, v3, 3, v5")
    a("v_and_b32 v4, 1, v2"); a("v_lshl_add_u32 v5, v4, 2, v5"); a("v_add_u32 v5, s12, v5")
    a("global_load_dword v11, v5, s[16:17]")
    a("s_lshl_b32 s12, s3, 9")
    a("v_mul_u32_u24 v4, 10240, v2"); a("v_lshl_add_u32 v4, v3, 4, v4"); a("v_add_u32 v4, s12, v4")
    a("v_add_u32 v62, 5120, v4")
    a("v_lshlrev_b32 v5, 1, v5")
    a("s_lshl_b32 s13, s3, 3"); a("v_mov_b32 v6, s13"); a("v_mov_b32 v63, 0")
    a("v_lshrrev_b32 v7, 2, v0"); a("v_mul_u32_u24 v7, 40, v7"); a("s_and_b32 s13, s3, 3"); a("s_mul_i32 s13, s13, 640"); a("v_add_u32 v7, s13, v7")
    a("v_and_b32 v8, 3, v0"); a("v_lshlrev_b32 v8, 5, v8"); a("v_lshl_add_u32 v8, v2, 3, v8"); a("s_lshl_b32 s13, s3, 7"); a("v_add_u32 v8, s13, v8")
    a("v_and_b32 v9, 7, v0"); a("v_lshl_add_u32 v9, v2, 3, v9"); a("v_lshlrev_b32 v9, 2, v9"); a(f"v_add_u32 v9, {L_GU}, v9")
    a("s_mul_i32 s13, s52, 2560"); a("s_add_u32 s13, s13, s12"); a("v_lshlrev_b32 v10, 3, v0"); a("v_add_u32 v10, s13, v10")
    for j in range(8): a(f"v_mov_b32 v{52+j}, 0")
    a(f"s_mov_b32 s14, {LOG2E:#x}")
    lds_wait(14, L_FL + 52, 1, 150, 8)
    if fast_late:
        PD = pair_perm([[W0 + 40 + 4 * t + j for j in range(4)] for t in range(8)], 137)
        a("s_cmp_lt_u32 s3, 4"); a("s_cselect_b32 s44, s28, s30"); a("s_cselect_b32 s45, s29, s31")
        a(f"s_mov_b32 s46, {640*3456}"); a("s_mov_b32 s47, 0x20000")
        a("s_and_b32 s50, s3, 3"); a(f"s_mul_i32 s50, s50, {160*3456}"); a("s_lshl_b32 s51, s52, 6"); a("s_add_u32 s50, s50, s51")
        for i in range(1, 5): a(f"s_add_u32 s{80+i}, s50, {2*3456*i}")
        a("v_lshrrev_b32 v15, 2, v0"); a(f"v_mul_u32_u24 v15, {10*3456}, v15"); a("v_and_b32 v1, 3, v0"); a("v_lshl_add_u32 v15, v1, 4, v15")
    if coarse: lds_wait(14, L_FL + 44, 4 * (min(late_ffn or 30, 30) - 3), 150, 24)
    a.label("L_ffn_go")
    if fast_late and not now:
        a(f"s_cmp_ge_u32 s3, {early_from}"); a("s_cbranch_scc1 L_ffn_have")
        with live():
            if late_ffn <= 32: lds_wait(14, L_FL + 44, 4 * late_ffn, 150, 2)
            else: lds_wait(14, L_FL + 48, 4, 150, 2); a("s_sleep 3")
        for t in range(10):
            if t % 4 == 0: lv = live(); lv.__enter__()
            if lpace and t >= lpace: a(f"s_waitcnt vmcnt({lpace-1})")
            a(f"buffer_load_dwordx4 v[{W0+4*t}:{W0+4*t+3}], v15, s[44:47], " + ("s50" if t < 2 else f"s{80+t//2}") + f" offen offset:{(t%2)*3456} {wpol if gupol is None else gupol}")
            if t % 4 == 3 or t == 9: lv.__exit__()
        a.label("L_ffn_have")
    b5()
    a("s_waitcnt vmcnt(0)")
    stamp("x1")
    a("v_and_b32 v13, 0xffff0000, v11"); a("v_lshlrev_b32 v12, 16, v11")
    PG = pair_perm([[W0 + 4 * t + j for j in range(4)] for t in range(10)], 136)
    if not fast_late: PD = pair_perm([[W0 + 40 + 4 * t + j for j in range(4)] for t in range(8)], 137)
    a("s_cmp_ge_u32 s3, 5"); a("s_cbranch_scc1 L_h_wait")
    YI = [140, 148, 156, 24]
    HV = 40
    def iy(u):
        v, o = (4, 62)[u // 2], 2560 * (u % 2)
        return (lambda: (a(f"global_load_dwordx4 v[{YI[u]}:{YI[u]+3}], v{v}, s[76:77] offset:{o} sc1"),
                         a(f"global_load_dwordx4 v[{YI[u]+4}:{YI[u]+7}], v{v}, s[76:77] offset:{o+256} sc1")), range(YI[u], YI[u] + 8))
    def sy():
        for j in range(0, 8, 2):
            a(f"v_pk_add_f32 v[{16+j}:{17+j}], v[{YI[0]+j}:{YI[0]+j+1}], v[{YI[1]+j}:{YI[1]+j+1}]")
            a(f"v_pk_add_f32 v[{32+j}:{33+j}], v[{YI[2]+j}:{YI[2]+j+1}], v[{YI[3]+j}:{YI[3]+j+1}]")
        for j in range(0, 8, 2): a(f"v_pk_add_f32 v[{16+j}:{17+j}], v[{16+j}:{17+j}], v[{32+j}:{33+j}]")
    with live(): spoll([iy(u) for u in range(4)], sy, range(16, 24), 14, first=pfirst)
    stamp("e2")
    red_g8(list(range(16, 24)), 32)
    a("v_cvt_pk_bf16_f32 v34, v32, v33"); a("v_lshlrev_b32 v32, 16, v34"); a("v_and_b32 v33, 0xffff0000, v34")
    a("v_pk_add_f32 v[32:33], v[32:33], v[12:13]")
    a("v_cvt_pk_bf16_f32 v34, v32, v33"); a("v_lshlrev_b32 v32, 16, v34"); a("v_and_b32 v33, 0xffff0000, v34")
    a(f"ds_write_b64 v5, v[32:33] offset:{L_H}")
    a("v_readfirstlane_b32 s12, v32")
    a("v_subrev_f32 v34, s12, v32"); a("v_subrev_f32 v35, s12, v33")
    a("v_add_f32 v36, v34, v35"); a("v_mul_f32 v37, v34, v34"); a("v_fmac_f32 v37, v35, v35")
    for r in (8, 4, 2, 1):
        a(f"v_add_f32_dpp v36, v36, v36 row_ror:{r} {FULL}"); a(f"v_add_f32_dpp v37, v37, v37 row_ror:{r} {FULL}")
    a("v_permlane16_swap_b32 v36, v37")
    a("v_add_f32 v36, v36, v37")
    a("v_mov_b32 v37, v36"); a("v_permlane32_swap_b32 v36, v37"); a("v_add_f32 v36, v36, v37")
    a("v_mov_b32 v37, v36"); a("v_permlane16_swap_b32 v36, v37")
    a("v_mul_f32 v38, 0x3c000000, v36")
    a("v_fma_f32 v39, -v38, v36, v37"); a("v_add_f32 v38, s12, v38")
    a(f"ds_write_b64 v6, v[38:39] offset:{L_ST}")
    a("s_waitcnt lgkmcnt(0)")
    a.label("L_h_wait")
    with live(): a("s_barrier")
    a(f"ds_read_b128 v[32:35], v63 offset:{L_ST}"); a(f"ds_read_b128 v[36:39], v63 offset:{L_ST+16}"); a(f"ds_read_b64 v[22:23], v63 offset:{L_ST+32}")
    for i in range(5): a(f"ds_read_b64 v[{HV+2*i}:{HV+1+2*i}], v7 offset:{L_H+8*i}")
    a("s_waitcnt lgkmcnt(5)")
    a("v_pk_add_f32 v[50:51], v[32:33], v[34:35]"); a("v_pk_add_f32 v[60:61], v[36:37], v[38:39]")
    a("v_pk_add_f32 v[50:51], v[50:51], v[22:23]"); a("v_pk_add_f32 v[50:51], v[50:51], v[60:61]")
    a("v_mul_f32 v50, 0x3e4ccccd, v50")
    for i, r in enumerate((32, 34, 36, 38, 22)): a(f"v_sub_f32 v{r}, v{r}, v50")
    rbf(50, 50)
    var = ["v_mul_f32 v60, v32, v32"] + [f"v_fmac_f32 v60, v{r}, v{r}" for r in (34, 36, 38, 22)] + [
        "v_fmac_f32 v51, 0x43000000, v60", f"v_mul_f32 v61, {INV640:#x}, v51",
        "v_cvt_pk_bf16_f32 v61, v61, v61", "v_and_b32 v61, 0xffff0000, v61", f"v_add_f32 v61, {EPS:#x}, v61",
        "v_cvt_pk_bf16_f32 v61, v61, v61", "v_and_b32 v61, 0xffff0000, v61", "v_sqrt_f32 v61, v61",
        "v_cvt_pk_bf16_f32 v61, v61, v61", "v_and_b32 v61, 0xffff0000, v61", "v_rcp_f32 v61, v61"]
    cen = [f"v_pk_add_f32 v[{HV+2*i}:{HV+1+2*i}], v[{HV+2*i}:{HV+1+2*i}], v[50:51] op_sel_hi:[1,0] neg_lo:[0,1] neg_hi:[0,1]" for i in range(5)]
    cen += [f"v_cvt_pk_bf16_f32 v{16+i}, v{HV+2*i}, v{HV+1+2*i}" for i in range(5)]
    for i in range(5): cen += [f"v_lshlrev_b32 v{HV+2*i}, 16, v{16+i}", f"v_and_b32 v{HV+1+2*i}, 0xffff0000, v{16+i}"]
    a("s_waitcnt lgkmcnt(0)")
    while var or cen:
        if var: a(var.pop(0))
        if cen: a(cen.pop(0))
    for i in range(5): a(f"v_pk_mul_f32 v[{HV+2*i}:{HV+1+2*i}], v[{HV+2*i}:{HV+1+2*i}], v[60:61] op_sel:[0,1] op_sel_hi:[1,1]")
    for i in range(5): a(f"v_cvt_pk_bf16_f32 v{16+i}, v{HV+2*i}, v{HV+1+2*i}")
    for i in range(5):
        for j in range(8):
            if i == 0: a(f"v_dot2_f32_bf16 v{40+j}, v{16+i}, v{PG[i][j]}, 0")
            else: a(f"v_dot2c_f32_bf16 v{40+j}, v{16+i}, v{PG[i][j]}")
    red_g8(list(range(40, 48)), 48)
    for r in (8, 4):
        a(f"v_add_f32_dpp v48, v48, v48 row_ror:{r} {FULL}"); a(f"v_add_f32_dpp v49, v49, v49 row_ror:{r} {FULL}")
    a(f"ds_write_b64 v8, v[48:49] offset:{L_GU}")
    a("s_waitcnt lgkmcnt(0)")
    with live(): a("s_barrier")
    stamp("gu")
    a("s_cmp_ge_u32 s3, 5"); a("s_cbranch_scc1 L_final")
    for w in range(4): a(f"ds_read2_b32 v[{16+2*w}:{17+2*w}], v9 offset0:{64*w} offset1:{64*w+32}")
    a("s_waitcnt lgkmcnt(0)")
    a("v_add_f32 v16, v16, v17"); a("v_add_f32 v18, v18, v19"); a("v_add_f32 v20, v20, v21"); a("v_add_f32 v22, v22, v23")
    a("v_add_f32 v16, v16, v18"); a("v_add_f32 v20, v20, v22")
    rbf(16, 16); rbf(20, 20)
    a("v_mul_f32 v17, s14, v16"); a("v_exp_f32 v17, -v17"); a("v_add_f32 v17, 1.0, v17"); a("v_rcp_f32 v17, v17")
    a("v_mul_f32 v16, v16, v17"); rbf(16, 16)
    a("v_mul_f32 v16, v16, v20")
    a(f"v_mov_b32_dpp v17, v16 quad_perm:[1,0,3,2] {FULL}")
    a("v_cvt_pk_bf16_f32 v16, v16, v17")
    for i in range(4):
        for j in range(8): a(f"v_dot2c_f32_bf16_dpp v{52+j}, v16, v{PD[i][j]} row_newbcast:{2*i} {FULL}")
    red_g8(list(range(52, 60)), 60)
    guard([60, 61])
    with live(): a("global_store_dwordx2 v10, v[60:61], s[78:79] sc1")
    stamp("f_pub")
    a("s_branch L_tend")
    a.label("L_final")
    a("s_cmp_lg_u32 s3, 5"); a("s_cbranch_scc1 L_tend")
    a(f"s_cmp_ge_u32 s52, {NFIN}"); a("s_cbranch_scc1 L_tend")
    a("s_mov_b32 s44, s78"); a("s_mov_b32 s45, s79"); a(f"s_mov_b32 s46, {NFFN*2560}"); a("s_mov_b32 s47, 0x20000")
    a("v_lshrrev_b32 v4, 3, v0"); a("v_mul_u32_u24 v4, 2560, v4"); a("v_and_b32 v5, 7, v0"); a("v_lshl_add_u32 v4, v5, 4, v4")
    a("s_lshl_b32 s12, s52, 7"); a("v_add_u32 v4, s12, v4")
    a("v_lshl_add_u32 v5, v5, 2, v2"); a("v_and_b32 v6, 1, v5"); a("v_lshrrev_b32 v5, 1, v5"); a("v_lshl_add_u32 v5, v5, 3, v6")
    a("s_lshr_b32 s12, s52, 2"); a("s_lshl_b32 s12, s12, 7"); a("s_and_b32 s13, s52, 3"); a("s_lshl_b32 s13, s13, 1"); a("s_add_u32 s12, s12, s13")
    a("v_add_u32 v5, s12, v5")
    a("v_lshlrev_b32 v6, 2, v5"); a("v_lshlrev_b32 v5, 1, v5")
    a(f"ds_read_b32 v7, v6 offset:{L_H}")
    for i in range(1, 7): a(f"s_mov_b32 s{80+i}, {8*2560*i}")
    def i3(i):
        return (lambda: a(f"buffer_load_dwordx4 v[{104+4*i}:{107+4*i}], v4, s[44:47], " + ("0" if i == 0 else f"s{80+i}") + " offen sc1"), range(104 + 4 * i, 108 + 4 * i))
    def s3():
        for j in (0, 2):
            a(f"v_pk_add_f32 v[{16+j}:{17+j}], v[{104+j}:{105+j}], v[{108+j}:{109+j}]")
            a(f"v_pk_add_f32 v[{20+j}:{21+j}], v[{112+j}:{113+j}], v[{116+j}:{117+j}]")
            a(f"v_pk_add_f32 v[{24+j}:{25+j}], v[{120+j}:{121+j}], v[{124+j}:{125+j}]")
        for j in (0, 2):
            a(f"v_pk_add_f32 v[{16+j}:{17+j}], v[{16+j}:{17+j}], v[{20+j}:{21+j}]")
            a(f"v_pk_add_f32 v[{24+j}:{25+j}], v[{24+j}:{25+j}], v[{128+j}:{129+j}]")
        for j in (0, 2): a(f"v_pk_add_f32 v[{16+j}:{17+j}], v[{16+j}:{17+j}], v[{24+j}:{25+j}]")
    with live():
        if e3d == 1: spoll([i3(i) for i in range(7)], s3, range(16, 20), 14)
        else:
            a(f"s_mov_b32 s60, {SPIN}")
            for d in range(e3d):
                for i in range(7): i3(i)[0]()
                if d < e3d - 1: a("s_sleep 1")
            a.label("L_e3p")
            a(f"s_waitcnt vmcnt({7*(e3d-1)})")
            s3(); umax(14, range(16, 20))
            a("v_cmp_eq_u32 vcc, -1, v14"); a("s_cbranch_vccz L_e3d")
            a("s_mov_b64 exec, vcc")
            for i in range(7): i3(i)[0]()
            a("s_mov_b64 exec, -1")
            a("s_sub_u32 s60, s60, 1"); a("s_cbranch_scc0 L_e3p")
            a.label("L_e3d")
    stamp("e3")
    red_g4([16, 17, 18, 19], 20)
    a(f"v_add_f32_dpp v20, v20, v20 row_ror:8 {FULL}")
    rbf(20, 20)
    a("s_waitcnt lgkmcnt(0)")
    a("v_add_f32 v20, v20, v7")
    a("v_cvt_pk_bf16_f32 v20, v20, v20")
    if warm: a("s_cbranch_execz L_warmed")
    a("s_mov_b32 s12, 0x00ff00ff"); a("s_mov_b32 s13, 0x00ff00ff"); a("s_mov_b64 exec, s[12:13]")
    a(f"global_store_short v5, v20, s[34:35] {outpol}")
    a("s_cmp_lg_u32 s52, 0"); a("s_cbranch_scc1 L_noep")
    a("s_mov_b64 exec, 1")
    a(f"v_mov_b32 v5, {WS_EP:#x}"); a("v_mov_b32 v6, s15")
    a(f"global_store_dword v5, v6, s[38:39] {outpol}")
    if dbl:
        a("s_memrealtime s[90:91]"); a("s_waitcnt lgkmcnt(0)")
        a("s_sub_u32 s92, s90, s88"); a(f"s_mul_i32 s92, s92, {dbl}"); a("s_add_u32 s92, s92, s90"); a("s_mov_b32 s60, 100000")
        a.label("L_dbl")
        a("s_memrealtime s[90:91]"); a("s_waitcnt lgkmcnt(0)"); a("s_sub_u32 s93, s90, s92"); a("s_cmp_ge_i32 s93, 0"); a("s_cbranch_scc1 L_noep")
        a("s_sub_u32 s60, s60, 1"); a("s_cbranch_scc0 L_dbl")
    a.label("L_noep")
    a("s_mov_b64 exec, -1")
    stamp("out")
    a.label("L_tend")
    if warm: a("s_cbranch_execz L_warmed")
    a.label("L_fin")
    dump_stamps()
    a.label("L_exit")
    a("s_endpgm")
    nv = 168
    a.raw('.section .rodata,"a"'); a.raw(".p2align 6"); a.raw(f".amdhsa_kernel {KN}")
    a.raw(f"  .amdhsa_next_free_vgpr {nv}"); a.raw("  .amdhsa_next_free_sgpr 96"); a.raw(f"  .amdhsa_accum_offset {nv}")
    a.raw("  .amdhsa_group_segment_fixed_size 0"); a.raw("  .amdhsa_kernarg_size 96"); a.raw("  .amdhsa_user_sgpr_count 2")
    a.raw("  .amdhsa_user_sgpr_kernarg_segment_ptr 1"); a.raw("  .amdhsa_system_sgpr_workgroup_id_x 1")
    a.raw("  .amdhsa_float_denorm_mode_32 3")
    a.raw(".end_amdhsa_kernel")
    return a.text(), stampn

if __name__ == "__main__":
    out = sys.argv[1] if len(sys.argv) > 1 else "sequential_preLN__mha_block_cached__swiglu_ffn__decode.s"
    kw = eval("dict(%s)" % sys.argv[2]) if len(sys.argv) > 2 else {}
    t, st = gen(**kw)
    open(out, "w").write(t)
    print("wrote", out, len(t.splitlines()), "lines", st)
```

```python
import sys
sys.path.insert(0, "work")
from asmlib import Asm

KN = "sequential_preLN__mha_block_cached__swiglu_ffn__decode_kernel"
HEADER = open("sequential_preLN__mha_block_cached__swiglu_ffn__decode.s.ref").read().split("; Override launch")[0]

MB = 4352
MB_Q = 0
MB_ST = 512
MB_MK = 768
MB_O = 1024
WS_EP = 0x110000
WS_PG = 0x118000
WS_XG = 0x160000
WS_YP = 0x120000
WS_FP = 0x130000
L_FL = 0
L_Q = 256
L_QS = 768
L_SC = 2048
L_PP = L_SC + 32768
L_OL = L_PP + 16384
L_YL = L_OL + 4096
L_H = L_YL + 2048
L_GU = L_H + 2560
L_ST = L_GU + 1024
L_END = L_ST + 64
NWO, NFFN, NFIN = 160, 54, 20
NWAVE = 12
SPIN = 20000
LSPIN = 2000000
LOG2E = 0x3fb8aa3b
SCALE = 0x3db504f3
INV640 = 0x3acccccd
EPS = 0x3727c5ac
FULL = "row_mask:0xf bank_mask:0xf"

def gen(diag=False, wpol="nt", sleep=1, wpace=1, prio=3, now=False, ssleep=4, bs=False, DS=(5, 6, 8), GR=1, rolemix=True, modes=(1, 1, 2), F=6, epace=2, masked=True, lastit=3, hprio=0, pairx=False, noclear=False, dbl=0, kvpol='nt', warm=True, pdepth=1, pfirst=3, psleep=0, fine=True, hint=None, hs=64, hk=3, tlb=False, pre=6, late_wo=True, late_ffn=32, lpace=0, early_from=7, down_late=False, deep_until=0, wo_at=30, gupol='nt', rev=False, kdeep=True, codepf=False, e3d=3, coarse=True, stag=2, fastloc=True, QTO=12, wb=False, outpol='', gov=(-1, 4), gsleep=2, gbias=8, xg=False, xsh=0, xper=1, xsm=1, xb=0, wo_atA=None, nbr=False, FD=None, skew=0):
    a = Asm()
    uid = [0]
    def L(n):
        uid[0] += 1
        return f"L_{n}_{uid[0]}"
    stampn = {}
    SV = 166
    def stamp(name):
        if not diag: return
        if diag == 1 and name not in ("start", "v_done", "out"): return
        if diag == 4 and name not in ("start", "v_done", "out", "iss0", "land0", "land1", "land3", "s_filled", "q_ready", "h_x", "h_dots", "qp_pub", "q_got", "ka_done"): return
        if diag == 2 and name not in ("start", "v_done", "tail", "e1", "y_pub", "e2", "gu", "f_pub", "e3", "out", "x1", "x2", "x3", "x4"): return
        i = stampn.setdefault(name, len(stampn))
        sk = L("st"); a(f"s_cbranch_execz {sk}")
        a("s_memrealtime s[90:91]"); a("s_waitcnt lgkmcnt(0)"); a(f"v_writelane_b32 v{SV}, s90, {i}")
        a.label(sk)
    def prog():
        if diag != 3: return
        a("s_memrealtime s[90:91]"); a("s_waitcnt lgkmcnt(0)"); a("s_mov_b32 m0, s94"); a("s_nop 0"); a(f"v_writelane_b32 v{SV}, s90, m0"); a("s_add_u32 s94, s94, 1")
    def dump_stamps():
        if not diag: return
        a("s_add_u32 s90, s38, 0x10000000"); a("s_addc_u32 s91, s39, 0")
        a(f"s_mul_i32 s92, s2, {NWAVE}"); a("s_add_u32 s92, s92, s93"); a("s_lshl_b32 s92, s92, 8")
        a(f"v_lshlrev_b32 v{SV+1}, 2, v0"); a(f"v_add_u32 v{SV+1}, s92, v{SV+1}")
        a(f"global_store_dword v{SV+1}, v{SV}, s[90:91]")

    class live:
        def __enter__(self_):
            self_.l = L("live")
            if warm: a(f"s_cbranch_execz {self_.l}")
        def __exit__(self_, *x):
            if warm: a.label(self_.l)
    def rbf(dst, src):
        a(f"v_cvt_pk_bf16_f32 v{dst}, v{src}, v{src}"); a(f"v_and_b32 v{dst}, 0xffff0000, v{dst}")
    def rowred(op, v):
        for r in (8, 4, 2, 1):
            a(f"{op}_dpp v{v}, v{v}, v{v} row_ror:{r} {FULL}")
    def allred(op, v, t):
        rowred(op, v)
        a(f"v_mov_b32 v{t}, v{v}"); a(f"v_permlane16_swap_b32 v{v}, v{t}"); a(f"{op} v{v}, v{v}, v{t}")
        a(f"v_mov_b32 v{t}, v{v}"); a(f"v_permlane32_swap_b32 v{v}, v{t}"); a(f"{op} v{v}, v{v}, v{t}")
    def red_g8(r, dst):
        for j in range(4): a(f"v_permlane32_swap_b32 v{r[j]}, v{r[j+4]}")
        for j in range(4): a(f"v_add_f32 v{r[j]}, v{r[j]}, v{r[j+4]}")
        a(f"v_permlane16_swap_b32 v{r[0]}, v{r[2]}"); a(f"v_permlane16_swap_b32 v{r[1]}, v{r[3]}")
        a(f"v_add_f32 v{dst}, v{r[0]}, v{r[2]}"); a(f"v_add_f32 v{dst+1}, v{r[1]}, v{r[3]}")
    def red_g4(r, dst):
        a(f"v_permlane32_swap_b32 v{r[0]}, v{r[2]}"); a(f"v_permlane32_swap_b32 v{r[1]}, v{r[3]}")
        a(f"v_add_f32 v{r[0]}, v{r[0]}, v{r[2]}"); a(f"v_add_f32 v{r[1]}, v{r[1]}, v{r[3]}")
        a(f"v_permlane16_swap_b32 v{r[0]}, v{r[1]}")
        a(f"v_add_f32 v{dst}, v{r[0]}, v{r[1]}")
    def guard(regs):
        for r in regs: a(f"v_min_u32 v{r}, -2, v{r}")
    def poll(issue, regs, t, cnt="s60", sleep=sleep):
        top, done = L("poll"), L("polled")
        a(f"s_mov_b32 {cnt}, {SPIN}")
        a.label(top)
        issue()
        a("s_waitcnt vmcnt(0)")
        rs = list(regs)
        if len(rs) == 2:
            a(f"v_max_u32 v{t}, v{rs[0]}, v{rs[1]}")
        else:
            a(f"v_max3_u32 v{t}, v{rs[0]}, v{rs[1]}, v{rs[2]}")
            rs = rs[3:]
            while len(rs) >= 2:
                a(f"v_max3_u32 v{t}, v{t}, v{rs[0]}, v{rs[1]}"); rs = rs[2:]
            if rs: a(f"v_max_u32 v{t}, v{t}, v{rs[0]}")
        a(f"v_cmp_eq_u32 vcc, -1, v{t}")
        a(f"s_cbranch_vccz {done}")
        if sleep: a(f"s_sleep {sleep}")
        a(f"s_sub_u32 {cnt}, {cnt}, 1")
        a(f"s_cbranch_scc0 {top}")
        a.label(done)
    def umax(t, rs):
        rs = list(rs)
        a(f"v_max3_u32 v{t}, v{rs[0]}, v{rs[1]}, v{rs[2]}")
        rs = rs[3:]
        while len(rs) >= 2:
            a(f"v_max3_u32 v{t}, v{t}, v{rs[0]}, v{rs[1]}"); rs = rs[2:]
        if rs: a(f"v_max_u32 v{t}, v{t}, v{rs[0]}")
    def mpoll(groups, t, sm):
        if not masked:
            def allissue():
                for g, _ in groups: g()
            poll(allissue, [r for _, rs in groups for r in rs], t)
            return
        top, done = L("mpoll"), L("mpolled")
        a(f"s_mov_b32 s60, {SPIN}")
        for g, _ in groups: g()
        a.label(top)
        a("s_waitcnt vmcnt(0)")
        for i, (_, rs) in enumerate(groups): umax(t + i, rs)
        for i in range(len(groups)): a(f"v_cmp_eq_u32 s[{sm+2*i}:{sm+2*i+1}], -1, v{t+i}")
        a(f"s_or_b64 s[58:59], s[{sm}:{sm+1}], s[{sm+2}:{sm+3}]")
        for i in range(2, len(groups)): a(f"s_or_b64 s[58:59], s[58:59], s[{sm+2*i}:{sm+2*i+1}]")
        a(f"s_cbranch_scc0 {done}")
        if sleep: a(f"s_sleep {sleep}")
        for i, (g, _) in enumerate(groups):
            sk = L("mskip")
            a(f"s_mov_b64 exec, s[{sm+2*i}:{sm+2*i+1}]")
            a(f"s_cbranch_execz {sk}")
            g()
            a.label(sk)
        a("s_mov_b64 exec, -1")
        a("s_sub_u32 s60, s60, 1")
        a(f"s_cbranch_scc0 {top}")
        a("s_waitcnt vmcnt(0)")
        a.label(done)
    def spoll(groups, sums, outs, t, first=0):
        top, done = L("spoll"), L("spolled")
        a(f"s_mov_b32 s60, {SPIN}")
        if first: a(f"s_sleep {first}")
        for g, _ in groups: g()
        a.label(top)
        a("s_waitcnt vmcnt(0)")
        sums()
        umax(t, outs)
        a(f"v_cmp_eq_u32 vcc, -1, v{t}")
        a(f"s_cbranch_vccz {done}")
        if psleep: a(f"s_sleep {psleep}")
        if fine:
            for g, rs in groups:
                sk = L("gsk")
                umax(t, rs)
                a(f"v_cmp_eq_u32 vcc, -1, v{t}")
                a(f"s_cbranch_vccz {sk}")
                a("s_mov_b64 exec, vcc")
                g()
                a("s_mov_b64 exec, -1")
                a.label(sk)
        else:
            a("s_mov_b64 exec, vcc")
            for g, _ in groups: g()
            a("s_mov_b64 exec, -1")
        a("s_sub_u32 s60, s60, 1")
        a(f"s_cbranch_scc0 {top}")
        a("s_waitcnt vmcnt(0)")
        a.label(done)
    def pub2(ins):
        gl, dn = L("glob"), L("pubd")
        a("s_cmp_eq_u32 s66, 0"); a(f"s_cbranch_scc1 {gl}")
        a(ins); a(f"s_branch {dn}")
        a.label(gl); a(ins + " sc1"); a.label(dn)
    def lds_wait(vaddr, off, val, t, slp):
        top, done = L("lw"), L("lwd")
        a(f"s_mov_b32 s60, {LSPIN}")
        a.label(top)
        a(f"ds_read_b32 v{t}, v{vaddr} offset:{off}")
        a("s_waitcnt lgkmcnt(0)")
        a(f"v_cmp_gt_u32 vcc, {val}, v{t}")
        a(f"s_cbranch_vccz {done}")
        a(f"s_sleep {slp}")
        a("s_sub_u32 s60, s60, 1"); a(f"s_cbranch_scc0 {top}")
        a.label(done)
    def lds_signal(vaddr, off, one):
        a("s_waitcnt lgkmcnt(0)")
        a("s_mov_b64 exec, 1"); a(f"ds_add_u32 v{vaddr}, v{one} offset:{off}"); a("s_mov_b64 exec, -1")
    def pair_perm(W, spare):
        out = []
        for t in range(0, len(W), 2):
            cols = []
            for j in range(4):
                A_, B_ = W[t][j], W[t + 1][j]
                a(f"v_perm_b32 v{spare}, v{B_}, v{A_}, s70")
                a(f"v_perm_b32 v{B_}, v{B_}, v{A_}, s71")
                cols += [spare, B_]
                spare = A_
            out.append(cols)
        return out
    def ln_stats(x, m, rs, t0, t1):
        a(f"v_add_f32 v{m}, v{x[0]}, v{x[1]}")
        for r in x[2:]: a(f"v_add_f32 v{m}, v{m}, v{r}")
        allred("v_add_f32", m, t0)
        a(f"v_mul_f32 v{m}, {INV640:#x}, v{m}")
        for i, r in enumerate(x):
            a(f"v_sub_f32 v{t0}, v{r}, v{m}")
            if i == 0: a(f"v_mul_f32 v{rs}, v{t0}, v{t0}")
            else: a(f"v_fmac_f32 v{rs}, v{t0}, v{t0}")
        allred("v_add_f32", rs, t0)
        a(f"v_mul_f32 v{rs}, {INV640:#x}, v{rs}")
        rbf(rs, rs); rbf(m, m)
        a(f"v_add_f32 v{rs}, {EPS:#x}, v{rs}"); rbf(rs, rs)
        a(f"v_sqrt_f32 v{rs}, v{rs}"); rbf(rs, rs)
        a(f"v_rcp_f32 v{rs}, v{rs}")

    a.raw(HEADER.rstrip("\n"))
    a.raw(f"; @launch grid=(256,1,1) block=({64*NWAVE},1,1) lds={L_END}")
    a.raw('.amdgcn_target "amdgcn-amd-amdhsa--gfx950"')
    a.raw(".text"); a.raw(f".globl {KN}"); a.raw(".p2align 8"); a.raw(f".type {KN},@function")
    a.label(KN)
    a("s_cmp_ge_u32 s2, 256"); a("s_cbranch_scc1 L_exit")
    if dbl or skew or diag == 4: a("s_memrealtime s[88:89]")
    a("s_load_dwordx16 s[16:31], s[0:1], 0")
    a("s_load_dwordx8 s[32:39], s[0:1], 64")
    a("v_lshrrev_b32 v1, 6, v0")
    a("v_and_b32 v0, 63, v0")
    a("v_readfirstlane_b32 s3, v1")
    if diag: a(f"v_mov_b32 v{SV}, 0")
    a("v_lshlrev_b32 v1, 4, v0")
    a("s_and_b32 s4, s2, 7"); a("s_lshl_b32 s4, s4, 5"); a("s_lshr_b32 s2, s2, 3"); a("s_or_b32 s2, s2, s4")
    a("s_lshr_b32 s4, s2, 4")
    if diag: a("s_mov_b32 s93, s3"); a("s_mov_b32 s94, 32")
    a("s_and_b32 s67, s2, 15"); a("s_lshl_b32 s67, s67, 4"); a("s_add_u32 s67, s67, s4")
    a("s_cmp_ge_u32 s3, 4"); a("s_cbranch_scc1 L_helper")

    R0 = 36
    ring = [8]
    def slot(ck, i): return R0 + 16 * (ck % ring[0]) + 4 * i
    def issue_chunk(ck, pacer=None, lo=0, hi=4):
        for i in range(lo, hi):
            if pacer and i % GR == 0: pacer(i)
            s = slot(ck, i)
            a(f"buffer_load_dwordx4 v[{s}:{s+3}], v1, s[8:11], s12 offen offset:{1024*i} {kvpol}")
        if hi == 4: a("s_add_u32 s12, s12, 0x4000"); a("s_and_b32 s12, s12, 0x3ffff")
    a("s_and_b32 s5, s2, 15")
    a("s_lshl_b32 s13, s4, 23"); a("s_lshl_b32 s14, s5, 18"); a("s_add_u32 s13, s13, s14")
    a(f"s_mul_i32 s12, s5, {stag*0x4000}"); a("s_and_b32 s12, s12, 0x3ffff")
    a("s_lshl_b32 s14, s3, 12"); a("s_add_u32 s12, s12, s14")
    a("s_mov_b32 s10, 0x40000"); a("s_mov_b32 s11, 0x20000")
    a("s_waitcnt lgkmcnt(0)")
    a("s_add_u32 s8, s18, s13"); a("s_addc_u32 s9, s19, 0")
    if diag == 4: a(f"v_writelane_b32 v{SV}, s88, 59")
    stamp("start")
    if bs: a("s_barrier")
    issue_chunk(0)
    if pre > 4: issue_chunk(1, None, 0, pre - 4)
    stamp("iss0")
    a(f"s_add_u32 s14, s14, {L_SC}")
    a("v_lshlrev_b32 v20, 2, v0"); a("v_add_u32 v20, s14, v20")
    a("v_and_b32 v21, 15, v0"); a("v_lshlrev_b32 v21, 4, v21")
    a("v_mov_b32 v22, 0"); a("v_mov_b32 v23, 1")
    stamp("s_issued")
    if not bs: a("s_barrier")
    a(f"s_mov_b32 s15, {modes[0]}")
    a(f"s_cmp_lt_u32 s67, {NWO+NFFN}"); a(f"s_cselect_b32 s15, {modes[2]}, s15")
    a(f"s_cmp_lt_u32 s67, {NWO}"); a(f"s_cselect_b32 s15, {modes[1]}, s15")
    a("s_mov_b32 s46, s15"); a("s_mov_b32 s47, 4"); a("v_mov_b32 v3, 0")
    def hint_read():
        if hint is not None: a(f"ds_read_b32 v2, v3 offset:{L_FL+28}")
    def hint_apply():
        if hint is None: return
        a("v_readfirstlane_b32 s45, v2")
        a("s_lshr_b32 s48, s45, 8"); a("s_and_b32 s45, s45, 3")
        a("s_cmp_lt_u32 s47, s48"); a("s_cselect_b32 s15, s45, s46")
        a("s_add_u32 s47, s47, 1")
    def hint_mark(off):
        if hint is None: return
        sk = L("hm")
        a("s_cmp_lg_u32 s6, 0"); a(f"s_cbranch_scc1 {sk}")
        a("s_mov_b64 exec, 1"); a(f"ds_add_u32 v22, v23 offset:{off}"); a("s_mov_b64 exec, -1")
        a.label(sk)
    def gtick(rd):
        if gov is None: return
        a("s_mov_b64 exec, 1"); a(f"ds_add_u32 v3, v23 offset:{L_FL+64}"); a("s_mov_b64 exec, -1")
        if rd: a(f"ds_read_b32 v2, v3 offset:{L_FL+28}")
    def gmode(rd, last=False):
        if gov is None or not rd: return
        a("s_waitcnt lgkmcnt(0)")
        a("v_readfirstlane_b32 s45, v2")
        a("s_sub_u32 s45, s45, 1"); a("s_cselect_b32 s15, s15, s45")
        if last: a("s_cmp_ge_u32 s6, s44"); a("s_cselect_b32 s15, 2, s15")
    def pace(i):
        go = L("go")
        a(f"s_waitcnt vmcnt({DS[2]-GR})")
        if DS[1] != DS[2] or DS[0] != DS[2]:
            a("s_cmp_ge_u32 s15, 2"); a(f"s_cbranch_scc1 {go}")
            a(f"s_waitcnt vmcnt({DS[1]-GR})")
            if DS[0] != DS[1]:
                a("s_cmp_ge_u32 s15, 1"); a(f"s_cbranch_scc1 {go}")
                a(f"s_waitcnt vmcnt({DS[0]-GR})")
            a.label(go)
    assert DS[2] <= 8
    for ck in range(1, F):
        if ck == 1 and pre == 8: continue
        issue_chunk(ck, lambda i: a(f"s_waitcnt vmcnt({(FD or DS[1])-GR})"), (pre - 4 if ck == 1 else 0))
        if ck in (1, 2, 4): stamp({1: "land0", 2: "land1", 4: "land3"}[ck])
    stamp("s_filled")
    lds_wait(22, L_FL + 4, 4, 8, 1)
    a(f"ds_read_b128 v[4:7], v21 offset:{L_Q}")
    a(f"ds_read_b128 v[16:19], v21 offset:{L_Q+256}")
    a("s_waitcnt lgkmcnt(0)")
    stamp("q_ready")
    def switch_point():
        a("s_cmp_eq_u32 s6, 3")
        a("s_cselect_b32 s8, s40, s8"); a("s_cselect_b32 s9, s41, s9")
        a("s_cselect_b32 s10, s43, s10")
    def proc_k(ck, q, off):
        for j in range(4):
            for i in range(4):
                a(f"v_dot2_f32_bf16 v{8+i}, v{slot(ck,i)+j}, v{q+j}, " + ("0" if j == 0 else f"v{8+i}"))
        a("v_add_f32_dpp v12, v8, v8 row_ror:8 row_mask:0xf bank_mask:0x3")
        a("s_nop 0")
        a("v_add_f32_dpp v13, v10, v10 row_ror:8 row_mask:0xf bank_mask:0x3")
        a("v_add_f32_dpp v12, v9, v9 row_ror:8 row_mask:0xf bank_mask:0xc")
        a("v_add_f32_dpp v13, v11, v11 row_ror:8 row_mask:0xf bank_mask:0xc")
        a("v_add_f32_dpp v14, v12, v12 row_half_mirror row_mask:0xf bank_mask:0x5")
        a("v_add_f32_dpp v14, v13, v13 row_half_mirror row_mask:0xf bank_mask:0xa")
        a(f"ds_write_b32 v20, v14 offset:{off}")
    n = F
    since = 9
    burst = 0
    for k in range(16):
        if n - ring[0] < k and n < 18 and (n - k <= 2 or since >= 2 or burst < 2):
            if n == 16: a("s_add_u32 s8, s8, 0x400000"); a("s_addc_u32 s9, s9, 0")
            issue_chunk(n, pace); n += 1; since = 0; burst += 1
            gtick(True); did = True
        else: did = False
        assert k <= n - 3
        proc_k(k, 4, 256 * k)
        gmode(did)
        since += 1
        if k % 4 == 3: prog()
    assert n == 18, n
    lds_signal(22, L_FL + 8, 23)
    stamp("ka_done")
    ring[0] = 4
    a("s_add_u32 s40, s20, s13"); a("s_addc_u32 s41, s21, 0"); a("s_mov_b32 s43, 0x40000")
    if not kdeep: a(f"s_mov_b32 s15, {modes[0]}")
    a("s_mov_b32 s6, 0")
    a.label("L_kiter")
    hint_read()
    for k in range(4):
        if k == 2: switch_point()
        issue_chunk(k + 2, pace)
        if k == 0 and hint is not None: a("s_waitcnt lgkmcnt(0)"); hint_apply()
        gtick(k % 2 == 0)
        proc_k(k, 16, 0x4000 + 256 * k)
        gmode(k % 2 == 0)
        if k == hk: hint_mark(L_FL + 32)
    prog()
    a("v_add_u32 v20, 0x400, v20")
    a("s_add_u32 s6, s6, 1"); a("s_cmp_lt_u32 s6, 4"); a("s_cbranch_scc1 L_kiter")
    lds_signal(22, L_FL + 12, 23)
    stamp("k_done")
    a("s_lshl_b32 s14, s3, 11"); a(f"s_add_u32 s14, s14, {L_PP}")
    a("v_lshlrev_b32 v20, 3, v0"); a("v_add_u32 v20, s14, v20")
    a("s_lshl_b32 s14, s3, 9"); a(f"s_add_u32 s14, s14, {L_OL}")
    a("v_and_b32 v21, 15, v0"); a("v_lshlrev_b32 v21, 5, v21"); a("v_lshrrev_b32 v8, 4, v0"); a("v_lshl_add_u32 v21, v8, 3, v21")
    a("v_add_u32 v21, s14, v21")
    a("s_add_u32 s40, s40, 0x400000"); a("s_addc_u32 s41, s41, 0")
    a("s_mov_b32 s7, 0"); a("s_mov_b32 s44, 99")
    a.label("L_vhead")
    lds_wait(22, L_FL + 16, 1, 8, 1)
    stamp("p_wait")
    for j in range(8): a(f"v_mov_b32 v{24+j}, 0")
    a("s_mov_b32 s6, 0")
    a.label("L_viter")
    a("ds_read_b64 v[32:33], v20")
    hint_read()
    if deep_until < 8 and gov is None:
        a("s_lshl_b32 s45, s7, 2"); a("s_add_u32 s45, s45, s6"); a(f"s_cmp_ge_u32 s45, {deep_until}"); a(f"s_cselect_b32 s15, {modes[0]}, s15")
    a("s_cmp_ge_u32 s6, s44"); a("s_cselect_b32 s15, 2, s15")
    for k in range(4):
        if k == 2: switch_point()
        if k >= 2:
            dr, go = L("drain"), L("drained")
            a("s_cmp_eq_u32 s10, 0"); a(f"s_cbranch_scc1 {dr}")
            issue_chunk(k + 2, pace)
            a(f"s_branch {go}")
            a.label(dr)
            a(f"s_waitcnt vmcnt({4*(3-k)})")
            a.label(go)
        else:
            issue_chunk(k + 2, pace)
        a("s_mov_b64 exec, 1"); a(f"ds_add_u32 v3, v23 offset:{L_FL+44}"); a("s_mov_b64 exec, -1")
        if k == 0:
            a("s_waitcnt lgkmcnt(0)")
            hint_apply()
            if hint is not None: a("s_cmp_ge_u32 s6, s44"); a("s_cselect_b32 s15, 2, s15")
        gtick(k % 2 == 0)
        for i in range(4):
            s = slot(k, i)
            c = ((i & 1) << 3) | ((i >> 1) << 2) | k
            for j in range(4):
                a(f"v_dot2c_f32_bf16_dpp v{24+2*j}, v32, v{s+j} row_newbcast:{c} {FULL}")
                a(f"v_dot2c_f32_bf16_dpp v{25+2*j}, v33, v{s+j} row_newbcast:{c} {FULL}")
        gmode(k % 2 == 0, True)
        if k == hk: hint_mark(L_FL + 36)
    prog()
    a("v_add_u32 v20, 0x200, v20")
    a("s_add_u32 s6, s6, 1"); a("s_cmp_lt_u32 s6, 4"); a("s_cbranch_scc1 L_viter")
    red_g8(list(range(24, 32)), 34)
    a("ds_write_b64 v21, v[34:35]")
    a("s_cmp_lg_u32 s7, 0"); a("s_cbranch_scc1 L_vend")
    lds_signal(22, L_FL + 24, 23)
    stamp("va_done")
    a("v_add_u32 v20, 0x1800, v20"); a("v_add_u32 v21, 0x800, v21"); a("v_mov_b32 v22, 4")
    a("s_mov_b32 s43, 0"); a("s_mov_b32 s7, 1"); a(f"s_mov_b32 s44, {lastit}")
    a("s_branch L_vhead")
    a.label("L_vend")
    a("s_mov_b64 exec, 1"); a(f"ds_add_u32 v3, v23 offset:{L_FL+48}"); a("s_mov_b64 exec, -1")
    stamp("v_done")
    a("s_branch L_fin")

    def ffn_index(d):
        a(f"s_sub_u32 {d}, s67, {NWO}")
    W0 = 64
    def load_weights(wpace=wpace, down=True, wo=True, fw=True, gu=True):
        if now or not (wo or fw): return
        ffn, done = L("ffnw"), L("wdone")
        cnt = [0]
        def ld(idx, off, pol=wpol):
            if wpace and cnt[0] >= wpace: a(f"s_waitcnt vmcnt({wpace-1})")
            cnt[0] += 1
            a(f"buffer_load_dwordx4 v[{W0+4*idx}:{W0+4*idx+3}], v2, s[44:47], s50 offen offset:{off} {pol}")
        a(f"s_cmp_ge_u32 s67, {NWO}"); a(f"s_cbranch_scc1 {ffn}")
        if not wo: a(f"s_branch {done}")
        a("s_mov_b32 s44, s24"); a("s_mov_b32 s45, s25"); a(f"s_mov_b32 s46, {4096*1280}"); a("s_mov_b32 s47, 0x20000")
        a("s_and_b32 s50, s67, 15"); a("s_lshl_b32 s50, s50, 3"); a("s_add_u32 s50, s50, s3"); a(f"s_mul_i32 s50, s50, {32*1280}")
        a("s_lshr_b32 s51, s67, 4"); a("s_lshl_b32 s51, s51, 7"); a("s_add_u32 s50, s50, s51")
        a("v_lshrrev_b32 v2, 3, v0"); a(f"v_mul_u32_u24 v2, {4*1280}, v2"); a("v_and_b32 v3, 7, v0"); a("v_lshl_add_u32 v2, v3, 4, v2")
        for t in range(4 if wo else 0): ld(t, t * 1280)
        a(f"s_branch {done}")
        a.label(ffn)
        cnt[0] = 0
        if not fw:
            a.label(done); return
        a(f"s_cmp_ge_u32 s67, {NWO+NFFN}"); a(f"s_cbranch_scc1 {done}")
        a("s_cmp_lt_u32 s3, 4"); a("s_cselect_b32 s44, s28, s30"); a("s_cselect_b32 s45, s29, s31")
        a(f"s_mov_b32 s46, {640*3456}"); a("s_mov_b32 s47, 0x20000")
        ffn_index("s52")
        a("s_and_b32 s50, s3, 3"); a(f"s_mul_i32 s50, s50, {160*3456}"); a("s_lshl_b32 s51, s52, 6"); a("s_add_u32 s50, s50, s51")
        a("v_lshrrev_b32 v2, 2, v0"); a(f"v_mul_u32_u24 v2, {10*3456}, v2"); a("v_and_b32 v3, 3, v0"); a("v_lshl_add_u32 v2, v3, 4, v2")
        gp = wpol if gupol is None else gupol
        if gu and rev:
            od, jn = L("odd"), L("join")
            a("s_bitcmp1_b32 s52, 0"); a(f"s_cbranch_scc1 {od}")
        for t in range(10 if gu else 0):
            if t and t % 2 == 0: a(f"s_add_u32 s50, s50, {2*3456}")
            ld(t, (t % 2) * 3456, gp)
        if gu and rev:
            a(f"s_branch {jn}")
            a.label(od)
            cnt[0] = 0
            a(f"s_add_u32 s50, s50, {8*3456}")
            for t in range(9, -1, -1):
                ld(t, (t % 2) * 3456, gp)
                if t and t % 2 == 0: a(f"s_sub_u32 s50, s50, {2*3456}")
            a.label(jn)
        if not down:
            a.label(done); return
        a("s_cmp_ge_u32 s3, 5"); a(f"s_cbranch_scc1 {done}")
        a("s_mov_b32 s44, s32"); a("s_mov_b32 s45, s33"); a(f"s_mov_b32 s46, {1728*1280}")
        a(f"s_mul_i32 s50, s52, {32*1280}"); a("s_lshl_b32 s51, s3, 8"); a("s_add_u32 s50, s50, s51")
        a("v_lshrrev_b32 v2, 4, v0"); a(f"v_mul_u32_u24 v2, {8*1280}, v2"); a("v_and_b32 v3, 15, v0"); a("v_lshl_add_u32 v2, v3, 4, v2")
        for t in range(8):
            if t == 4: a(f"s_add_u32 s50, s50, {4*1280}")
            ld(10 + t, (t % 4) * 1280)
        a.label(done)

    a.label("L_helper")
    a("s_sub_u32 s3, s3, 4")
    a("s_and_b32 s6, s2, 15")
    a("v_lshlrev_b32 v6, 2, v0")
    a("v_mov_b32 v14, 0"); a("v_mov_b32 v15, 1")
    a("s_mov_b32 s70, 0x05040100"); a("s_mov_b32 s71, 0x07060302")
    a("s_cmp_ge_u32 s3, 4"); a("s_cbranch_scc1 L_helper2")
    if prio: a(f"s_setprio {prio}")
    a("v_lshrrev_b32 v2, 3, v0")
    a("v_and_b32 v3, 7, v0")
    a("v_mul_u32_u24 v4, 5, v2")
    a("s_lshr_b32 s8, s6, 2"); a("s_lshl_b32 s8, s8, 2"); a("s_add_u32 s8, s8, s3"); a("s_mul_i32 s8, s8, 40")
    a("v_add_u32 v4, s8, v4")
    a("v_lshlrev_b32 v5, 13, v4"); a("v_lshl_add_u32 v5, v3, 4, v5")
    a("v_lshlrev_b32 v4, 1, v4")
    a("s_lshl_b32 s9, s4, 9"); a("s_and_b32 s10, s6, 3"); a("s_lshl_b32 s10, s10, 7"); a("s_add_u32 s9, s9, s10")
    a(f"s_mov_b32 s46, {640*8192}"); a("s_mov_b32 s47, 0x20000")
    a("s_waitcnt lgkmcnt(0)")
    stamp("start")
    a(f"s_add_u32 s74, s38, {WS_EP}"); a("s_addc_u32 s75, s39, 0")
    a("s_load_dword s15, s[74:75], 0")
    a("global_load_dwordx4 v[16:19], v1, s[16:17]"); a("global_load_dword v20, v6, s[16:17] offset:1024")
    for t in range(5): a(f"global_load_ushort v{21+t}, v4, s[16:17] offset:{2*t}")
    a("s_mov_b32 s44, s22"); a("s_mov_b32 s45, s23")
    for t in range(5):
        a(f"buffer_load_dwordx4 v[{64+4*t}:{64+4*t+3}], v5, s[44:47], s9 offen {wpol}")
        if t < 4: a("s_add_u32 s9, s9, 0x2000")
    a("s_barrier")
    a("v_lshlrev_b32 v12, 2, v2"); a("v_lshl_add_u32 v12, v3, 5, v12")
    a("s_lshl_b32 s12, s3, 8"); a("v_add_u32 v12, s12, v12")
    a("s_mov_b32 s62, 0xff00ff00"); a("s_mov_b32 s63, 0xff00ff00")
    stamp("h_issued")
    a("s_waitcnt vmcnt(5)")
    stamp("h_x")
    for i in range(5):
        a(f"v_and_b32 v{30+2*i+1}, 0xffff0000, v{16+i}"); a(f"v_lshlrev_b32 v{30+2*i}, 16, v{16+i}")
    ln_stats(list(range(30, 40)), 26, 27, 28, 29)
    for t in range(5):
        a(f"v_lshlrev_b32 v{21+t}, 16, v{21+t}"); a(f"v_sub_f32 v{21+t}, v{21+t}, v26"); rbf(21 + t, 21 + t)
        a(f"v_mul_f32 v{21+t}, v{21+t}, v27")
        a(f"v_cvt_pk_bf16_f32 v{30+t}, v{21+t}, 0"); a(f"v_cvt_pk_bf16_f32 v{35+t}, 0, v{21+t}")
    for j in range(8): a(f"v_mov_b32 v{40+j}, 0")
    stamp("h_ln")
    for t in range(5):
        a(f"s_waitcnt vmcnt({4-t})")
        for j in range(4):
            a(f"v_dot2c_f32_bf16 v{40+2*j}, v{30+t}, v{64+4*t+j}"); a(f"v_dot2c_f32_bf16 v{41+2*j}, v{35+t}, v{64+4*t+j}")
    red_g8(list(range(40, 48)), 48)
    a(f"v_add_f32_dpp v48, v48, v48 row_ror:8 {FULL}"); a(f"v_add_f32_dpp v49, v49, v49 row_ror:8 {FULL}")
    a("v_cndmask_b32 v48, v48, v49, s[62:63]")
    a(f"ds_write_b32 v12, v48 offset:{L_QS}")
    a("s_waitcnt lgkmcnt(0)")
    a("s_add_u32 s15, s15, 1")
    a("s_mov_b64 exec, 1"); a(f"ds_add_rtn_u32 v13, v14, v15 offset:{L_FL}"); a("s_mov_b64 exec, -1")
    a("v_lshrrev_b32 v10, 5, v0"); a(f"v_mul_u32_u24 v12, {8*MB}, v10"); a("v_and_b32 v11, 31, v0"); a("v_lshl_add_u32 v12, v11, 4, v12")
    a("s_lshl_b32 s12, s4, 4"); a("s_add_u32 s12, s12, s3"); a(f"s_mul_i32 s12, s12, {MB}"); a("v_add_u32 v12, s12, v12")
    a(f"v_add_u32 v9, {4*MB}, v12")
    a("s_waitcnt lgkmcnt(0)")
    a("v_readfirstlane_b32 s12, v13")
    stamp("h_dots")
    a("s_getreg_b32 s13, hwreg(HW_REG_XCC_ID, 0, 4)"); a("s_lshl_b32 s13, s13, 28"); a("s_xor_b32 s13, s13, s15")
    a(f"v_add_u32 v16, {L_QS}, v6")
    a(f"s_mul_i32 s14, s2, {MB}"); a("v_lshlrev_b32 v17, 3, v0"); a("v_add_u32 v17, s14, v17")
    def qpub(pol):
        a("ds_read2st64_b32 v[18:19], v16 offset0:0 offset1:1"); a("ds_read2st64_b32 v[20:21], v16 offset0:2 offset1:3")
        a("s_waitcnt lgkmcnt(0)")
        a("v_add_f32 v18, v18, v19"); a("v_add_f32 v20, v20, v21"); a("v_add_f32 v18, v18, v20"); a("v_mov_b32 v19, s13")
        a(f"global_store_dwordx2 v17, v[18:19], s[38:39] {pol}")
    a("s_cmp_lg_u32 s12, 3"); a("s_cbranch_scc1 L_qnopub")
    qpub("" if fastloc else "sc1")
    stamp("qp_pub")
    a.label("L_qnopub")
    a(f"s_mov_b32 s61, {SPIN}")
    a.label("L_qpoll")
    a("global_load_dwordx4 v[24:27], v12, s[38:39] sc1"); a("global_load_dwordx4 v[28:31], v9, s[38:39] sc1")
    a("s_waitcnt vmcnt(0)")
    for r in (25, 27, 29, 31): a(f"v_xor_b32 v{r}, s13, v{r}")
    a("v_or3_b32 v25, v25, v27, v29"); a("v_or_b32 v25, v25, v31"); a("v_and_b32 v27, 0x0fffffff, v25")
    a("v_cmp_ne_u32 vcc, 0, v27")
    a("s_cbranch_vccz L_qpolled")
    if sleep: a(f"s_sleep {sleep}")
    if fastloc:
        a(f"s_cmp_lg_u32 s61, {SPIN-QTO}"); a("s_cbranch_scc1 L_qagain")
        lds_wait(14, L_FL, 4, 8, 2)
        qpub("sc1")
        a.label("L_qagain")
    a("s_sub_u32 s61, s61, 1"); a("s_cbranch_scc0 L_qpoll")
    a.label("L_qpolled")
    if fastloc:
        a("v_cmp_ne_u32 vcc, 0, v25")
        a("s_cbranch_vccz L_qsame")
        lds_wait(14, L_FL, 4, 8, 2)
        qpub("sc1")
        a("s_branch L_qdiff")
        a.label("L_qsame")
        a("s_mov_b64 exec, 1"); a(f"ds_add_u32 v14, v15 offset:{L_FL+56}"); a("s_mov_b64 exec, -1")
        a.label("L_qdiff")
    stamp("q_got")
    a("v_add_f32 v24, v24, v28"); a("v_add_f32 v26, v26, v30")
    a("v_permlane32_swap_b32 v24, v26")
    a("v_add_f32 v24, v24, v26")
    a("v_cvt_pk_bf16_f32 v24, v24, v24")
    a("v_lshl_add_u32 v12, v11, 1, v10"); a("v_lshlrev_b32 v12, 1, v12")
    a("s_lshl_b32 s12, s3, 7"); a("v_add_u32 v12, s12, v12")
    a(f"ds_write_b16 v12, v24 offset:{L_Q}")
    lds_signal(14, L_FL + 4, 15)
    a(f"s_setprio {hprio}")
    a("s_branch L_weights")

    a.label("L_helper2")
    a(f"s_setprio {hprio}")
    a("s_cmp_lg_u32 s3, 4"); a("s_cbranch_scc1 L_noinit")
    a(f"ds_write_b32 v6, v14 offset:{L_FL}")
    a.label("L_noinit")
    a("s_waitcnt lgkmcnt(0)")
    stamp("start")
    a(f"s_add_u32 s74, s38, {WS_EP}"); a("s_addc_u32 s75, s39, 0")
    a("s_load_dword s15, s[74:75], 0")
    if codepf:
        a("s_cmp_lg_u32 s3, 5"); a("s_cbranch_scc1 L_nocpf")
        a("s_getpc_b64 s[12:13]")
        a.label("L_pc")
        a(f"s_sub_u32 s12, s12, L_pc-{KN}"); a("s_subb_u32 s13, s13, 0")
        a("s_lshr_b32 s11, s2, 3"); a("s_lshl_b32 s11, s11, 10"); a("v_add_u32 v16, s11, v1")
        a(f"v_min_u32 v16, L_exit-{KN}-12, v16")
        a("global_load_dwordx4 v[16:19], v16, s[12:13]")
        a.label("L_nocpf")
    if skew:
        a("s_cmp_lg_u32 s3, 4"); a("s_cbranch_scc1 L_nosk")
        a(f"s_mul_i32 s11, s2, {MB}"); a("v_mov_b32 v7, s11"); a("v_mov_b32 v8, s88")
        a("s_mov_b64 exec, 1"); a("global_store_dword v7, v8, s[38:39] offset:896 sc1"); a("s_mov_b64 exec, -1")
        a.label("L_nosk")
    a("s_cmp_lg_u32 s3, 6"); a("s_cbranch_scc1 L_clrdone")
    if noclear: a("s_branch L_clrdone")
    for r in range(8, 12): a(f"v_mov_b32 v{r}, -1")
    a(f"s_cmp_ge_u32 s67, {NWO}"); a("s_cbranch_scc1 L_clrffn")
    a("s_and_b32 s12, s67, 15"); a("s_mul_i32 s12, s12, 2560"); a("s_lshr_b32 s13, s67, 4"); a("s_lshl_b32 s13, s13, 8"); a("s_add_u32 s12, s12, s13")
    a(f"s_add_u32 s12, s12, {WS_YP}"); a("v_add_u32 v12, s12, v6")
    a("global_store_dword v12, v8, s[38:39] sc1")
    a("s_branch L_clrdone")
    a.label("L_clrffn")
    a(f"s_cmp_ge_u32 s67, {NWO+NFFN}"); a("s_cbranch_scc1 L_clrdone")
    ffn_index("s12"); a("s_mul_i32 s12, s12, 2560"); a(f"s_add_u32 s12, s12, {WS_FP}")
    a("v_add_u32 v12, s12, v1")
    a("global_store_dwordx4 v12, v[8:11], s[38:39] sc1"); a("global_store_dwordx4 v12, v[8:11], s[38:39] offset:1024 sc1")
    a("s_mov_b32 exec_hi, 0")
    a("global_store_dwordx4 v12, v[8:11], s[38:39] offset:2048 sc1")
    a("s_mov_b64 exec, -1")
    a.label("L_clrdone")
    a("s_barrier")
    if late_ffn is not None:
        a(f"s_cmp_lt_u32 s3, {early_from}"); a("s_cbranch_scc1 L_noearly")
        load_weights(epace, wo=False, down=False)
        a.label("L_noearly")
        if not down_late: load_weights(epace, wo=False, gu=False)
    else:
        load_weights(epace, wo=not late_wo)
    if tlb:
        a("s_cmp_lg_u32 s3, 5"); a("s_cbranch_scc1 L_notlb")
        a("s_add_u32 s12, s2, s4"); a("s_and_b32 s12, s12, 7"); a("s_and_b32 s13, s2, 8"); a("s_or_b32 s12, s12, s13")
        a("s_lshl_b32 s13, s4, 23"); a("s_lshl_b32 s12, s12, 18"); a("s_add_u32 s12, s12, s13")
        a("v_mov_b32 v16, s12"); a("v_add_u32 v17, 0x400000, v16")
        a("s_mov_b64 exec, 1")
        a("global_load_dword v18, v17, s[18:19] nt"); a("global_load_dword v19, v16, s[20:21] nt"); a("global_load_dword v20, v17, s[20:21] nt")
        a("s_mov_b64 exec, -1")
        a.label("L_notlb")
    a("s_waitcnt lgkmcnt(0)")
    a("s_add_u32 s15, s15, 1")
    a("s_cmp_lt_u32 s3, 6"); a("s_cbranch_scc1 L_weights_done")
    a("s_sub_u32 s7, s3, 6")
    a(f"s_mul_i32 s11, s2, {MB}"); a("v_add_u32 v7, s11, v1")
    a("s_cmp_lg_u32 s7, 0"); a("s_cbranch_scc1 L_nomark")
    a(f"s_cmp_ge_u32 s67, {NWO+NFFN}"); a("s_cbranch_scc1 L_nomark")
    a("s_waitcnt vmcnt(0)")
    a("v_mov_b32 v12, s15")
    a("s_mov_b64 exec, 1"); a(f"global_store_dword v7, v12, s[38:39] offset:{MB_MK} sc1"); a("s_mov_b64 exec, -1")
    a.label("L_nomark")
    lds_wait(14, L_FL + 4, 4, 8, 8)
    a(f"ds_read_b32 v8, v14 offset:{L_FL+56}"); a("s_waitcnt lgkmcnt(0)"); a("v_readfirstlane_b32 s66, v8")
    a("s_lshr_b32 s66, s66, 2")
    a("s_cmp_lg_u32 s7, 0"); a("s_cbranch_scc1 L_noclrO")
    for r in range(8, 12): a(f"v_mov_b32 v{r}, -1")
    pub2(f"global_store_dwordx4 v7, v[8:11], s[38:39] offset:{MB_O}")
    a.label("L_noclrO")
    a("s_lshl_b32 s12, s7, 2"); a("v_mov_b32 v13, s12")
    a("v_and_b32 v20, 3, v0"); a("v_lshlrev_b32 v20, 8, v20"); a("v_and_b32 v21, 60, v0"); a("v_lshl_add_u32 v20, v21, 2, v20")
    a("s_lshl_b32 s12, s7, 14"); a(f"s_add_u32 s12, s12, {L_SC}"); a("v_add_u32 v20, s12, v20")
    a("s_lshl_b32 s12, s7, 13"); a(f"s_add_u32 s12, s12, {L_PP}"); a("v_lshlrev_b32 v21, 3, v0"); a("v_add_u32 v21, s12, v21")
    a(f"s_mul_i32 s12, s4, {16*MB}"); a("s_lshl_b32 s13, s7, 7"); a("s_add_u32 s12, s12, s13")
    a("v_and_b32 v22, 15, v0"); a(f"v_mul_u32_u24 v22, {MB}, v22"); a("v_add_u32 v22, s12, v22")
    a(f"s_mul_i32 s13, s6, {MB}"); a("s_add_u32 s12, s12, s13"); a("v_mov_b32 v23, s12")
    a(f"s_mov_b32 s14, {LOG2E:#x}")
    lds_wait(13, L_FL + 8, 4, 8, 4)
    S = list(range(32, 48))
    for i in range(16):
        if i % 8 == 0:
            for u in range(8): a(f"ds_read_b128 v[{104+4*u}:{107+4*u}], v20 offset:{1024*(i+u)}")
        b = 104 + 4 * (i % 8)
        a(f"s_waitcnt lgkmcnt({7-i%8})")
        a(f"v_add_f32 v{b}, v{b}, v{b+1}"); a(f"v_add_f32 v{b+2}, v{b+2}, v{b+3}"); a(f"v_add_f32 v{S[i]}, v{b}, v{b+2}")
        rbf(S[i], S[i]); a(f"v_mul_f32 v{S[i]}, {SCALE:#x}, v{S[i]}"); rbf(S[i], S[i])
    a(f"v_max_f32 v28, v{S[0]}, v{S[1]}")
    for i in range(2, 16, 2): a(f"v_max3_f32 v28, v28, v{S[i]}, v{S[i+1]}")
    allred("v_max_f32", 28, 30)
    for i in range(16):
        a(f"v_sub_f32 v{104+i}, v{S[i]}, v28"); a(f"v_mul_f32 v{104+i}, s14, v{104+i}"); a(f"v_exp_f32 v{104+i}, v{104+i}")
    for st in (8, 4, 2):
        for i in range(st): a(f"v_add_f32 v{104+i}, v{104+i}, v{104+i+st}")
    a("v_add_f32 v29, v104, v105")
    allred("v_add_f32", 29, 30)
    a("v_mov_b32 v24, v28"); a("v_mov_b32 v25, s15"); a("v_mov_b32 v26, v29")
    a("v_mov_b32 v27, s15")
    a("s_waitcnt vmcnt(0)")
    a("s_mov_b64 exec, 1")
    pub2(f"global_store_dwordx4 v23, v[24:27], s[38:39] offset:{MB_ST}")
    a("s_mov_b64 exec, -1")
    stamp("st_pub")
    a(f"s_mov_b32 s60, {SPIN}")
    a.label("L_stpoll")
    a(f"global_load_dwordx4 v[16:19], v22, s[38:39] offset:{MB_ST} sc1")
    a("s_waitcnt vmcnt(0)")
    a("v_xor_b32 v17, s15, v17"); a("v_xor_b32 v19, s15, v19"); a("v_or_b32 v17, v17, v19")
    a("v_cmp_ne_u32 vcc, 0, v17")
    a("s_cbranch_vccz L_stpolled")
    a(f"s_sleep {ssleep}")
    a("s_sub_u32 s60, s60, 1"); a("s_cbranch_scc0 L_stpoll")
    a.label("L_stpolled")
    a("v_mov_b32 v24, v16"); a("v_mov_b32 v25, v18")
    a("v_mov_b32 v28, v24")
    rowred("v_max_f32", 28)
    a("v_sub_f32 v24, v24, v28"); a("v_mul_f32 v24, s14, v24"); a("v_exp_f32 v24, v24"); a("v_mul_f32 v29, v24, v25")
    rowred("v_add_f32", 29)
    a("v_rcp_f32 v29, v29")
    for i in range(16):
        a(f"v_sub_f32 v{S[i]}, v{S[i]}, v28"); a(f"v_mul_f32 v{S[i]}, s14, v{S[i]}"); a(f"v_exp_f32 v{S[i]}, v{S[i]}")
    for i in range(16):
        a(f"v_mul_f32 v{S[i]}, v{S[i]}, v29")
        a(f"v_cvt_pk_bf16_f32 v{104+2*i}, v{S[i]}, 0"); a(f"v_cvt_pk_bf16_f32 v{105+2*i}, 0, v{S[i]}")
        a(f"ds_write_b64 v21, v[{104+2*i}:{105+2*i}] offset:{512*i}")
    lds_signal(13, L_FL + 16, 15)
    stamp("p_ready")
    a("s_cmp_lg_u32 s3, 7"); a("s_cbranch_scc1 L_weights_done")
    a(f"s_cmp_ge_u32 s67, {NWO+NFFN}"); a("s_cbranch_scc1 L_weights_done")
    a(f"s_cmp_lt_u32 s67, {NWO}"); a("s_cbranch_scc1 L_weights_done")
    a(f"v_mul_u32_u24 v16, {MB}, v0")
    for i in range(1, 4): a(f"v_add_u32 v{16+i}, {64*MB*i:#x}, v16")
    a(f"s_mov_b32 s60, {SPIN}")
    a.label("L_marks")
    for i in range(4):
        a(f"global_load_dword v{20+i}, v{16+i}, s[38:39] offset:{MB_MK} sc1")
        a("s_waitcnt vmcnt(0)")
    for i in range(4):
        a(f"v_xor_b32 v{20+i}, s15, v{20+i}")
        m = 0
        for l in range(64):
            wid = 64 * i + l
            if 16 * (wid & 15) + (wid >> 4) < NWO + NFFN: m |= 1 << l
        a(f"s_mov_b32 s12, {m & 0xffffffff:#x}"); a(f"s_mov_b32 s13, {m >> 32:#x}")
        a(f"v_cndmask_b32 v{20+i}, 0, v{20+i}, s[12:13]")
    a("v_or3_b32 v20, v20, v21, v22"); a("v_or_b32 v20, v20, v23")
    a("v_cmp_ne_u32 vcc, 0, v20")
    a("s_cbranch_vccz L_marked")
    a("s_sleep 32")
    a("s_sub_u32 s60, s60, 1"); a("s_cbranch_scc0 L_marks")
    a.label("L_marked")
    lds_signal(14, L_FL + 52, 15)
    a("s_branch L_weights_done")

    a.label("L_weights")
    if late_ffn is None: load_weights(wo=not late_wo)
    else:
        if early_from < 4:
            a(f"s_cmp_lt_u32 s3, {early_from}"); a("s_cbranch_scc1 L_noearly2")
            load_weights(wo=False, down=False)
            a.label("L_noearly2")
        if not down_late: load_weights(wo=False, gu=False)
    a.label("L_weights_done")
    a(f"s_add_u32 s76, s38, {WS_YP}"); a("s_addc_u32 s77, s39, 0")
    a(f"s_add_u32 s78, s38, {WS_FP}"); a("s_addc_u32 s79, s39, 0")
    def osum(head, d):
        for w in range(4): a(f"ds_read_b64 v[{142+2*w}:{143+2*w}], v138 offset:{L_OL+2048*head+512*w}")
        a("s_waitcnt lgkmcnt(0)")
        a("v_pk_add_f32 v[142:143], v[142:143], v[144:145]"); a("v_pk_add_f32 v[146:147], v[146:147], v[148:149]")
        a(f"v_pk_add_f32 v[{d}:{d+1}], v[142:143], v[146:147]")
        guard([d, d + 1])
    def opub():
        osum(1, 142)
        with live():
            if fastloc:
                gl, dn = L("oglob"), L("odone")
                a("s_cmp_eq_u32 s66, 0"); a(f"s_cbranch_scc1 {gl}")
                a(f"global_store_dwordx2 v139, v[142:143], s[38:39] offset:{MB_O+512}")
                a(f"s_branch {dn}")
                a.label(gl)
            a(f"global_store_dwordx2 v139, v[142:143], s[38:39] offset:{MB_O+512} sc1")
            a(f"global_store_dwordx2 v139, v[140:141], s[38:39] offset:{MB_O} sc1")
            if fastloc: a.label(dn)
    a("v_lshlrev_b32 v138, 3, v0")
    a(f"s_mul_i32 s11, s2, {MB}"); a("v_add_u32 v139, s11, v138")
    if hint is not None:
        a("s_cmp_lg_u32 s3, 5"); a("s_cbranch_scc1 L_nohint")
        a("v_mul_u32_u24 v16, 37, v0"); a("v_add_u32 v16, s2, v16"); a("v_and_b32 v16, 255, v16"); a(f"v_mul_u32_u24 v16, {MB}, v16")
        for h in range(2):
            if hint[h] is None: continue
            nb0, kb, nt0, kt = hint[h]
            lds_wait(14, L_FL + 32 + 4 * h, 4, 8, 4)
            if hs == 32: a("s_mov_b32 exec_hi, 0")
            a(f"global_load_dword v17, v16, s[38:39] offset:{MB_ST+4+128*h} sc1")
            a("s_waitcnt vmcnt(0)")
            a("v_cmp_eq_u32 vcc, s15, v17")
            if hs == 32: a("s_mov_b64 exec, -1")
            a("s_bcnt1_i32_b64 s12, vcc")
            if hs == 32: a("s_lshl_b32 s12, s12, 1")
            if diag: a(f"v_writelane_b32 v{SV}, s12, {60+h}")
            it0 = (6 if hk >= 2 else 5) + 4 * h
            a("s_mov_b32 s13, 0")
            a(f"s_sub_i32 s61, s12, {nb0}"); a(f"s_mul_i32 s61, s61, {kb}"); a("s_ashr_i32 s61, s61, 4")
            a(f"s_add_u32 s62, s61, {it0}"); a("s_lshl_b32 s62, s62, 8"); a("s_or_b32 s62, s62, 2")
            a("s_cmp_gt_i32 s61, 0"); a("s_cselect_b32 s13, s62, s13")
            a(f"s_sub_i32 s61, {nt0}, s12"); a(f"s_mul_i32 s61, s61, {kt}"); a("s_ashr_i32 s61, s61, 4")
            a(f"s_add_u32 s62, s61, {it0}"); a("s_lshl_b32 s62, s62, 8")
            a("s_cmp_gt_i32 s61, 0"); a("s_cselect_b32 s13, s62, s13")
            a(f"s_sub_u32 s61, s67, {NWO}"); a(f"s_cmp_lt_u32 s61, {NFFN}"); a("s_cselect_b32 s13, 0, s13")
            a("v_mov_b32 v17, s13")
            a(f"ds_write_b32 v14, v17 offset:{L_FL+28}")
        a.label("L_nohint")
    if gov is not None:
        a("s_cmp_lg_u32 s3, 5"); a("s_cbranch_scc1 L_nogov")
        lds_wait(14, L_FL + 4, 4, 8, 8)
        a(f"ds_read_b32 v8, v14 offset:{L_FL+56}"); a("s_waitcnt lgkmcnt(0)"); a("v_readfirstlane_b32 s12, v8")
        a("s_cmp_lg_u32 s12, 4"); a("s_cbranch_scc1 L_nogov")
        a("s_lshr_b32 s12, s2, 5"); a("s_lshl_b32 s12, s12, 8"); a(f"s_add_u32 s12, s12, {WS_PG}")
        a("v_min_u32 v16, 32, v0"); a("v_lshlrev_b32 v16, 2, v16"); a("v_add_u32 v16, s12, v16")
        if xg:
            a("s_add_u32 s68, s12, 128"); a("v_mov_b32 v21, s68")
            a("v_and_b32 v22, 7, v0"); a(f"v_mul_u32_u24 v22, {MB}, v22"); a(f"v_add_u32 v22, {WS_XG:#x}, v22")
            a("s_lshr_b32 s69, s2, 5"); a(f"s_mul_i32 s68, s69, {MB}"); a(f"s_add_u32 s68, s68, {WS_XG}"); a("v_mov_b32 v23, s68")
            a("s_lshl_b32 s68, s15, 15"); a("s_mov_b32 s53, 0"); a("s_mov_b32 s73, 0")
        a("s_and_b32 s64, s2, 31"); a("s_lshl_b32 s13, s64, 2"); a("s_add_u32 s12, s12, s13"); a("v_mov_b32 v17, s12")
        a("s_lshl_b32 s13, s15, 10")
        a(f"s_sub_u32 s62, s67, {NWO}"); a(f"s_cmp_lt_u32 s62, {NFFN}"); a(f"s_cselect_b32 s65, 0, {gbias}"); a("s_add_u32 s65, s65, s13")
        a("s_mov_b32 s61, 4000")
        a.label("L_gov")
        a(f"ds_read_b32 v20, v14 offset:{L_FL+64}")
        a("s_waitcnt lgkmcnt(0)")
        a("v_add_u32 v19, s65, v20")
        a("s_mov_b64 exec, 1"); a("global_store_dword v17, v19, s[38:39]"); a("s_mov_b64 exec, -1")
        a("global_load_dword v18, v16, s[38:39] sc1")
        a("v_readfirstlane_b32 s62, v20")
        a(f"s_cmp_ge_u32 s62, {4*(18-F+16+26)}"); a("s_cbranch_scc1 L_nogov")
        a("s_waitcnt vmcnt(0)")
        if xg: a("v_readlane_b32 s72, v18, 32")
        a("v_subrev_u32 v18, s13, v18")
        a("v_cmp_le_u32 vcc, 0x400, v18")
        a("s_cmp_lg_u32 vcc_lo, 0"); a("s_cbranch_scc1 L_gov_next")
        a("v_readlane_b32 s62, v18, s64")
        rowred("v_add_u32", 18)
        a("s_lshl_b32 s62, s62, 5")
        a("v_readlane_b32 s63, v18, 0"); a("v_readlane_b32 s12, v18, 16")
        a("s_add_u32 s63, s63, s12"); a("s_sub_i32 s62, s62, s63")
        if xg:
            a("s_sub_u32 s72, s72, s68"); a("s_cmp_lt_u32 s72, 0x8000"); a("s_cselect_b32 s72, s72, 0x4000"); a("s_sub_i32 s72, s72, 0x4000")
            if xsh > 0: a(f"s_lshl_b32 s72, s72, {xsh}")
            if xsh < 0: a(f"s_ashr_i32 s72, s72, {-xsh}")
            a("s_add_i32 s62, s62, s72")
            a("s_cmp_lg_u32 s64, 15"); a("s_cbranch_scc1 L_notrep")
            if xper > 1: a(f"s_and_b32 s12, s61, {xper-1}"); a("s_cmp_lg_u32 s12, 0"); a("s_cbranch_scc1 L_notrep")
            for x in range(8): a(f"s_load_dword s{80+x}, s[74:75], {WS_XG-WS_EP+x*MB:#x} glc")
            a("s_add_u32 s12, s63, s68"); a("v_mov_b32 v25, s12")
            a("s_mov_b64 exec, 1"); a("global_store_dword v23, v25, s[38:39] sc1"); a("s_mov_b64 exec, -1")
            a("s_waitcnt lgkmcnt(0)")
            a("s_mov_b32 s12, 0"); a("s_mov_b32 s88, 0")
            for x in range(8):
                a(f"s_sub_u32 s{80+x}, s{80+x}, s68"); a(f"s_add_u32 s12, s12, s{80+x}"); a(f"s_max_u32 s88, s88, s{80+x}")
            a("s_mov_b32 s89, s73"); a("s_mov_b32 s73, s63")
            a("s_cmp_ge_u32 s88, 0x8000"); a("s_cbranch_scc1 L_notrep")
            a("s_lshr_b32 s12, s12, 3"); a("s_sub_i32 s12, s89, s12"); a(f"s_sub_i32 s12, s12, {32*xb}")
            a(f"s_sub_i32 s12, s12, s53"); a(f"s_ashr_i32 s12, s12, {xsm}"); a("s_add_i32 s53, s53, s12")
            a("s_add_u32 s12, s53, 0x4000"); a("s_add_u32 s12, s12, s68")
            a("v_mov_b32 v25, s12")
            a("s_mov_b64 exec, 1"); a("global_store_dword v21, v25, s[38:39]"); a("s_mov_b64 exec, -1")
            a.label("L_notrep")
        a("s_mov_b32 s63, 2")
        a(f"s_cmp_gt_i32 s62, {32*gov[1]}"); a("s_cselect_b32 s63, 1, s63")
        a(f"s_cmp_lt_i32 s62, {32*gov[0]}"); a("s_cselect_b32 s63, 3, s63")
        a("v_mov_b32 v18, s63")
        a(f"ds_write_b32 v14, v18 offset:{L_FL+28}")
        a.label("L_gov_next")
        a(f"s_sleep {gsleep}")
        a("s_sub_u32 s61, s61, 1"); a("s_cbranch_scc0 L_gov")
        a.label("L_nogov")
    a("s_cmp_lg_u32 s3, 7"); a("s_cbranch_scc1 L_noA")
    lds_wait(14, L_FL + 24, 4, 8, 8)
    osum(0, 140)
    if fastloc:
        a("s_cmp_eq_u32 s66, 0"); a("s_cbranch_scc1 L_noAloc")
        a(f"global_store_dwordx2 v139, v[140:141], s[38:39] offset:{MB_O}")
        a.label("L_noAloc")
    a("s_setprio 3")
    a.label("L_noA")
    a("s_waitcnt vmcnt(0)")
    stamp("w_done")
    def b5():
        sk = L("nopubB")
        with live(): lds_wait(14, L_FL + 48, 4, 150, 1)
        a("s_cmp_lg_u32 s3, 7"); a(f"s_cbranch_scc1 {sk}")
        opub()
        with live(): a(f"s_setprio {hprio}")
        a.label(sk)
        stamp("tail")
    ffn_index("s52")
    if warm:
        a("s_mov_b64 exec, 0")
        a(f"s_cmp_lt_u32 s67, {NWO}"); a("s_cbranch_scc1 L_wo_go")
        a(f"s_cmp_lt_u32 s67, {NWO+NFFN}"); a("s_cbranch_scc1 L_ffn_go")
        a("s_branch L_none_go")
        a.label("L_warmed")
        a("s_mov_b64 exec, -1")
    a(f"s_cmp_lt_u32 s67, {NWO}"); a("s_cbranch_scc1 L_wo")
    a(f"s_cmp_lt_u32 s67, {NWO+NFFN}"); a("s_cbranch_scc1 L_ffn")
    a.label("L_none_go")
    a("s_cmp_lg_u32 s3, 7"); a("s_cbranch_scc1 L_tend")
    if coarse:
        with live(): lds_wait(14, L_FL + 44, 4 * 27, 150, 24)
    b5()
    a("s_branch L_tend")

    a.label("L_wo")
    a("s_and_b32 s50, s67, 15"); a(f"s_mul_i32 s12, s50, {16*MB}"); a("s_lshl_b32 s13, s3, 7"); a("s_add_u32 s12, s12, s13")
    a("v_and_b32 v3, 7, v0"); a(f"v_mul_u32_u24 v2, {2*MB}, v3"); a("v_lshrrev_b32 v4, 3, v0"); a("v_lshl_add_u32 v2, v4, 4, v2"); a("v_add_u32 v2, s12, v2")
    a(f"v_add_u32 v8, {MB}, v2")
    a("v_lshrrev_b32 v5, 4, v0"); a("v_lshlrev_b32 v5, 3, v5"); a("v_lshl_add_u32 v5, v3, 5, v5")
    a("s_lshl_b32 s13, s3, 8"); a("v_add_u32 v5, s13, v5")
    a("s_mul_i32 s12, s50, 2560"); a("s_lshr_b32 s13, s67, 4"); a("s_lshl_b32 s13, s13, 8"); a("s_add_u32 s12, s12, s13"); a("v_add_u32 v7, s12, v6")
    a(f"v_add_u32 v6, {L_YL}, v6")
    for j in range(8): a(f"v_mov_b32 v{40+j}, 0")
    if late_wo:
        a("s_mov_b32 s44, s24"); a("s_mov_b32 s45, s25"); a(f"s_mov_b32 s46, {4096*1280}"); a("s_mov_b32 s47, 0x20000")
        a("s_lshl_b32 s50, s50, 3"); a("s_add_u32 s50, s50, s3"); a(f"s_mul_i32 s50, s50, {32*1280}")
        a("s_lshr_b32 s51, s67, 4"); a("s_lshl_b32 s51, s51, 7"); a("s_add_u32 s50, s50, s51")
        a(f"v_mul_u32_u24 v9, {4*1280}, v4"); a("v_lshl_add_u32 v9, v3, 4, v9")
    if coarse: lds_wait(14, L_FL + 44, 4 * (min(wo_at, wo_atA or 99) - 3), 150, 24)
    a(f"s_cmp_lt_u32 s3, 4"); a(f"s_cselect_b32 s53, {wo_atA or wo_at}, {wo_at}"); a("s_lshl_b32 s53, s53, 2")
    if nbr:
        a("s_add_u32 s54, s50, 128"); a("s_sub_u32 s55, s50, 1152"); a(f"s_cmp_lt_u32 s67, {NWO-16}"); a("s_cselect_b32 s54, s54, s55")
    a.label("L_wo_go")
    if late_wo and not now:
        with live():
            lds_wait(14, L_FL + 44, "s53", 150, 2)
            for t in range(4): a(f"buffer_load_dwordx4 v[{W0+4*t}:{W0+4*t+3}], v9, s[44:47], s50 offen offset:{t*1280} {wpol}")
    b5()
    a("s_waitcnt vmcnt(0)")
    PW = pair_perm([[W0 + 4 * t + j for j in range(4)] for t in range(4)], 136)
    nbr_done = [False]
    def io(v, d): return (lambda: a(f"global_load_dwordx4 v[{d}:{d+3}], v{v}, s[38:39] offset:{MB_O} sc1"), range(d, d + 4))
    def so():
        for j in range(4): a(f"v_add_f32 v{16+j}, v{24+j}, v{28+j}")
    with live(): spoll([io(2, 24), io(8, 28)], so, range(16, 20), 14, first=pfirst)
    stamp("e1")
    for pat in ("quad_perm:[1,0,3,2]", "quad_perm:[2,3,0,1]", "row_half_mirror"):
        for j in range(4): a(f"v_add_f32_dpp v{16+j}, v{16+j}, v{16+j} {pat} {FULL}")
    for i in range(2): a(f"v_cvt_pk_bf16_f32 v{32+i}, v{16+2*i}, v{17+2*i}")
    for i in range(2):
        for j in range(8): a(f"v_dot2c_f32_bf16 v{40+j}, v{32+i}, v{PW[i][j]}")
    red_g8(list(range(40, 48)), 48)
    a(f"v_add_f32_dpp v48, v48, v48 row_ror:8 {FULL}"); a(f"v_add_f32_dpp v49, v49, v49 row_ror:8 {FULL}")
    a(f"ds_write_b64 v5, v[48:49] offset:{L_YL}")
    a("s_waitcnt lgkmcnt(0)")
    with live(): a("s_barrier")
    a("s_cmp_lg_u32 s3, 0"); a("s_cbranch_scc1 L_tend")
    for w in range(4): a(f"ds_read2st64_b32 v[{16+2*w}:{17+2*w}], v6 offset0:{2*w} offset1:{2*w+1}")
    a("s_waitcnt lgkmcnt(0)")
    a("v_pk_add_f32 v[16:17], v[16:17], v[18:19]"); a("v_pk_add_f32 v[20:21], v[20:21], v[22:23]"); a("v_pk_add_f32 v[16:17], v[16:17], v[20:21]")
    a("v_add_f32 v16, v16, v17")
    guard([16])
    with live():
        a("global_store_dword v7, v16, s[76:77] sc1")
        if wb:
            sk = L("nowb")
            a("s_cmp_ge_u32 s67, 16"); a(f"s_cbranch_scc1 {sk}")
            a("buffer_wbl2 sc1")
            a.label(sk)
    stamp("y_pub")
    a("s_branch L_tend")

    a.label("L_ffn")
    fast_late = late_ffn is not None and not down_late and not rev
    if late_ffn is not None and not fast_late:
        a("s_cmp_eq_u32 s3, 7"); a("s_cbranch_scc1 L_ffn_have")
        if late_ffn <= 32: lds_wait(14, L_FL + 44, 4 * late_ffn, 8, 4)
        else: lds_wait(14, L_FL + 48, 4, 8, 2); a("s_sleep 3")
        a(f"s_cmp_ge_u32 s3, {early_from}"); a("s_cbranch_scc1 L_ffn_gu")
        load_weights(lpace, wo=False, down=False)
        a.label("L_ffn_gu")
        if down_late: load_weights(lpace, wo=False, gu=False)
        a.label("L_ffn_have")
    a("v_lshrrev_b32 v2, 4, v0"); a("v_and_b32 v3, 15, v0")
    a("s_min_u32 s12, s3, 4"); a("s_lshl_b32 s12, s12, 8")
    a("v_lshrrev_b32 v5, 1, v2"); a("v_lshlrev_b32 v5, 7, v5"); a("v_lshl_add_u32 v5, v3, 3, v5")
    a("v_and_b32 v4, 1, v2"); a("v_lshl_add_u32 v5, v4, 2, v5"); a("v_add_u32 v5, s12, v5")
    a("global_load_dword v11, v5, s[16:17]")
    a("s_lshl_b32 s12, s3, 9")
    a("v_mul_u32_u24 v4, 10240, v2"); a("v_lshl_add_u32 v4, v3, 4, v4"); a("v_add_u32 v4, s12, v4")
    a("v_add_u32 v62, 5120, v4")
    a("v_lshlrev_b32 v5, 1, v5")
    a("s_lshl_b32 s13, s3, 3"); a("v_mov_b32 v6, s13"); a("v_mov_b32 v63, 0")
    a("v_lshrrev_b32 v7, 2, v0"); a("v_mul_u32_u24 v7, 40, v7"); a("s_and_b32 s13, s3, 3"); a("s_mul_i32 s13, s13, 640"); a("v_add_u32 v7, s13, v7")
    a("v_and_b32 v8, 3, v0"); a("v_lshlrev_b32 v8, 5, v8"); a("v_lshl_add_u32 v8, v2, 3, v8"); a("s_lshl_b32 s13, s3, 7"); a("v_add_u32 v8, s13, v8")
    a("v_and_b32 v9, 7, v0"); a("v_lshl_add_u32 v9, v2, 3, v9"); a("v_lshlrev_b32 v9, 2, v9"); a(f"v_add_u32 v9, {L_GU}, v9")
    a("s_mul_i32 s13, s52, 2560"); a("s_add_u32 s13, s13, s12"); a("v_lshlrev_b32 v10, 3, v0"); a("v_add_u32 v10, s13, v10")
    for j in range(8): a(f"v_mov_b32 v{52+j}, 0")
    a(f"s_mov_b32 s14, {LOG2E:#x}")
    lds_wait(14, L_FL + 52, 1, 150, 8)
    if fast_late:
        PD = pair_perm([[W0 + 40 + 4 * t + j for j in range(4)] for t in range(8)], 137)
        a("s_cmp_lt_u32 s3, 4"); a("s_cselect_b32 s44, s28, s30"); a("s_cselect_b32 s45, s29, s31")
        a(f"s_mov_b32 s46, {640*3456}"); a("s_mov_b32 s47, 0x20000")
        a("s_and_b32 s50, s3, 3"); a(f"s_mul_i32 s50, s50, {160*3456}"); a("s_lshl_b32 s51, s52, 6"); a("s_add_u32 s50, s50, s51")
        for i in range(1, 5): a(f"s_add_u32 s{80+i}, s50, {2*3456*i}")
        a("v_lshrrev_b32 v15, 2, v0"); a(f"v_mul_u32_u24 v15, {10*3456}, v15"); a("v_and_b32 v1, 3, v0"); a("v_lshl_add_u32 v15, v1, 4, v15")
    if coarse: lds_wait(14, L_FL + 44, 4 * (min(late_ffn or 30, 30) - 3), 150, 24)
    a.label("L_ffn_go")
    if fast_late and not now:
        a(f"s_cmp_ge_u32 s3, {early_from}"); a("s_cbranch_scc1 L_ffn_have")
        with live():
            if late_ffn <= 32: lds_wait(14, L_FL + 44, 4 * late_ffn, 150, 2)
            else: lds_wait(14, L_FL + 48, 4, 150, 2); a("s_sleep 3")
        for t in range(10):
            if t % 4 == 0: lv = live(); lv.__enter__()
            if lpace and t >= lpace: a(f"s_waitcnt vmcnt({lpace-1})")
            a(f"buffer_load_dwordx4 v[{W0+4*t}:{W0+4*t+3}], v15, s[44:47], " + ("s50" if t < 2 else f"s{80+t//2}") + f" offen offset:{(t%2)*3456} {wpol if gupol is None else gupol}")
            if t % 4 == 3 or t == 9: lv.__exit__()
        a.label("L_ffn_have")
    b5()
    a("s_waitcnt vmcnt(0)")
    stamp("x1")
    a("v_and_b32 v13, 0xffff0000, v11"); a("v_lshlrev_b32 v12, 16, v11")
    PG = pair_perm([[W0 + 4 * t + j for j in range(4)] for t in range(10)], 136)
    if not fast_late: PD = pair_perm([[W0 + 40 + 4 * t + j for j in range(4)] for t in range(8)], 137)
    a("s_cmp_ge_u32 s3, 5"); a("s_cbranch_scc1 L_h_wait")
    YI = [140, 148, 156, 24]
    HV = 40
    def iy(u):
        v, o = (4, 62)[u // 2], 2560 * (u % 2)
        return (lambda: (a(f"global_load_dwordx4 v[{YI[u]}:{YI[u]+3}], v{v}, s[76:77] offset:{o} sc1"),
                         a(f"global_load_dwordx4 v[{YI[u]+4}:{YI[u]+7}], v{v}, s[76:77] offset:{o+256} sc1")), range(YI[u], YI[u] + 8))
    def sy():
        for j in range(0, 8, 2):
            a(f"v_pk_add_f32 v[{16+j}:{17+j}], v[{YI[0]+j}:{YI[0]+j+1}], v[{YI[1]+j}:{YI[1]+j+1}]")
            a(f"v_pk_add_f32 v[{32+j}:{33+j}], v[{YI[2]+j}:{YI[2]+j+1}], v[{YI[3]+j}:{YI[3]+j+1}]")
        for j in range(0, 8, 2): a(f"v_pk_add_f32 v[{16+j}:{17+j}], v[{16+j}:{17+j}], v[{32+j}:{33+j}]")
    with live(): spoll([iy(u) for u in range(4)], sy, range(16, 24), 14, first=pfirst)
    stamp("e2")
    red_g8(list(range(16, 24)), 32)
    a("v_cvt_pk_bf16_f32 v34, v32, v33"); a("v_lshlrev_b32 v32, 16, v34"); a("v_and_b32 v33, 0xffff0000, v34")
    a("v_pk_add_f32 v[32:33], v[32:33], v[12:13]")
    a("v_cvt_pk_bf16_f32 v34, v32, v33"); a("v_lshlrev_b32 v32, 16, v34"); a("v_and_b32 v33, 0xffff0000, v34")
    a(f"ds_write_b64 v5, v[32:33] offset:{L_H}")
    a("v_readfirstlane_b32 s12, v32")
    a("v_subrev_f32 v34, s12, v32"); a("v_subrev_f32 v35, s12, v33")
    a("v_add_f32 v36, v34, v35"); a("v_mul_f32 v37, v34, v34"); a("v_fmac_f32 v37, v35, v35")
    for r in (8, 4, 2, 1):
        a(f"v_add_f32_dpp v36, v36, v36 row_ror:{r} {FULL}"); a(f"v_add_f32_dpp v37, v37, v37 row_ror:{r} {FULL}")
    a("v_permlane16_swap_b32 v36, v37")
    a("v_add_f32 v36, v36, v37")
    a("v_mov_b32 v37, v36"); a("v_permlane32_swap_b32 v36, v37"); a("v_add_f32 v36, v36, v37")
    a("v_mov_b32 v37, v36"); a("v_permlane16_swap_b32 v36, v37")
    a("v_mul_f32 v38, 0x3c000000, v36")
    a("v_fma_f32 v39, -v38, v36, v37"); a("v_add_f32 v38, s12, v38")
    a(f"ds_write_b64 v6, v[38:39] offset:{L_ST}")
    a("s_waitcnt lgkmcnt(0)")
    a.label("L_h_wait")
    with live(): a("s_barrier")
    a(f"ds_read_b128 v[32:35], v63 offset:{L_ST}"); a(f"ds_read_b128 v[36:39], v63 offset:{L_ST+16}"); a(f"ds_read_b64 v[22:23], v63 offset:{L_ST+32}")
    for i in range(5): a(f"ds_read_b64 v[{HV+2*i}:{HV+1+2*i}], v7 offset:{L_H+8*i}")
    a("s_waitcnt lgkmcnt(5)")
    a("v_pk_add_f32 v[50:51], v[32:33], v[34:35]"); a("v_pk_add_f32 v[60:61], v[36:37], v[38:39]")
    a("v_pk_add_f32 v[50:51], v[50:51], v[22:23]"); a("v_pk_add_f32 v[50:51], v[50:51], v[60:61]")
    a("v_mul_f32 v50, 0x3e4ccccd, v50")
    for i, r in enumerate((32, 34, 36, 38, 22)): a(f"v_sub_f32 v{r}, v{r}, v50")
    rbf(50, 50)
    var = ["v_mul_f32 v60, v32, v32"] + [f"v_fmac_f32 v60, v{r}, v{r}" for r in (34, 36, 38, 22)] + [
        "v_fmac_f32 v51, 0x43000000, v60", f"v_mul_f32 v61, {INV640:#x}, v51",
        "v_cvt_pk_bf16_f32 v61, v61, v61", "v_and_b32 v61, 0xffff0000, v61", f"v_add_f32 v61, {EPS:#x}, v61",
        "v_cvt_pk_bf16_f32 v61, v61, v61", "v_and_b32 v61, 0xffff0000, v61", "v_sqrt_f32 v61, v61",
        "v_cvt_pk_bf16_f32 v61, v61, v61", "v_and_b32 v61, 0xffff0000, v61", "v_rcp_f32 v61, v61"]
    cen = [f"v_pk_add_f32 v[{HV+2*i}:{HV+1+2*i}], v[{HV+2*i}:{HV+1+2*i}], v[50:51] op_sel_hi:[1,0] neg_lo:[0,1] neg_hi:[0,1]" for i in range(5)]
    cen += [f"v_cvt_pk_bf16_f32 v{16+i}, v{HV+2*i}, v{HV+1+2*i}" for i in range(5)]
    for i in range(5): cen += [f"v_lshlrev_b32 v{HV+2*i}, 16, v{16+i}", f"v_and_b32 v{HV+1+2*i}, 0xffff0000, v{16+i}"]
    a("s_waitcnt lgkmcnt(0)")
    while var or cen:
        if var: a(var.pop(0))
        if cen: a(cen.pop(0))
    for i in range(5): a(f"v_pk_mul_f32 v[{HV+2*i}:{HV+1+2*i}], v[{HV+2*i}:{HV+1+2*i}], v[60:61] op_sel:[0,1] op_sel_hi:[1,1]")
    for i in range(5): a(f"v_cvt_pk_bf16_f32 v{16+i}, v{HV+2*i}, v{HV+1+2*i}")
    for i in range(5):
        for j in range(8):
            if i == 0: a(f"v_dot2_f32_bf16 v{40+j}, v{16+i}, v{PG[i][j]}, 0")
            else: a(f"v_dot2c_f32_bf16 v{40+j}, v{16+i}, v{PG[i][j]}")
    red_g8(list(range(40, 48)), 48)
    for r in (8, 4):
        a(f"v_add_f32_dpp v48, v48, v48 row_ror:{r} {FULL}"); a(f"v_add_f32_dpp v49, v49, v49 row_ror:{r} {FULL}")
    a(f"ds_write_b64 v8, v[48:49] offset:{L_GU}")
    a("s_waitcnt lgkmcnt(0)")
    with live(): a("s_barrier")
    stamp("gu")
    a("s_cmp_ge_u32 s3, 5"); a("s_cbranch_scc1 L_final")
    for w in range(4): a(f"ds_read2_b32 v[{16+2*w}:{17+2*w}], v9 offset0:{64*w} offset1:{64*w+32}")
    a("s_waitcnt lgkmcnt(0)")
    a("v_add_f32 v16, v16, v17"); a("v_add_f32 v18, v18, v19"); a("v_add_f32 v20, v20, v21"); a("v_add_f32 v22, v22, v23")
    a("v_add_f32 v16, v16, v18"); a("v_add_f32 v20, v20, v22")
    rbf(16, 16); rbf(20, 20)
    a("v_mul_f32 v17, s14, v16"); a("v_exp_f32 v17, -v17"); a("v_add_f32 v17, 1.0, v17"); a("v_rcp_f32 v17, v17")
    a("v_mul_f32 v16, v16, v17"); rbf(16, 16)
    a("v_mul_f32 v16, v16, v20")
    a(f"v_mov_b32_dpp v17, v16 quad_perm:[1,0,3,2] {FULL}")
    a("v_cvt_pk_bf16_f32 v16, v16, v17")
    for i in range(4):
        for j in range(8): a(f"v_dot2c_f32_bf16_dpp v{52+j}, v16, v{PD[i][j]} row_newbcast:{2*i} {FULL}")
    red_g8(list(range(52, 60)), 60)
    guard([60, 61])
    with live(): a("global_store_dwordx2 v10, v[60:61], s[78:79] sc1")
    stamp("f_pub")
    a("s_branch L_tend")
    a.label("L_final")
    a("s_cmp_lg_u32 s3, 5"); a("s_cbranch_scc1 L_tend")
    a(f"s_cmp_ge_u32 s52, {NFIN}"); a("s_cbranch_scc1 L_tend")
    a("s_mov_b32 s44, s78"); a("s_mov_b32 s45, s79"); a(f"s_mov_b32 s46, {NFFN*2560}"); a("s_mov_b32 s47, 0x20000")
    a("v_lshrrev_b32 v4, 3, v0"); a("v_mul_u32_u24 v4, 2560, v4"); a("v_and_b32 v5, 7, v0"); a("v_lshl_add_u32 v4, v5, 4, v4")
    a("s_lshl_b32 s12, s52, 7"); a("v_add_u32 v4, s12, v4")
    a("v_lshl_add_u32 v5, v5, 2, v2"); a("v_and_b32 v6, 1, v5"); a("v_lshrrev_b32 v5, 1, v5"); a("v_lshl_add_u32 v5, v5, 3, v6")
    a("s_lshr_b32 s12, s52, 2"); a("s_lshl_b32 s12, s12, 7"); a("s_and_b32 s13, s52, 3"); a("s_lshl_b32 s13, s13, 1"); a("s_add_u32 s12, s12, s13")
    a("v_add_u32 v5, s12, v5")
    a("v_lshlrev_b32 v6, 2, v5"); a("v_lshlrev_b32 v5, 1, v5")
    a(f"ds_read_b32 v7, v6 offset:{L_H}")
    for i in range(1, 7): a(f"s_mov_b32 s{80+i}, {8*2560*i}")
    def i3(i):
        return (lambda: a(f"buffer_load_dwordx4 v[{104+4*i}:{107+4*i}], v4, s[44:47], " + ("0" if i == 0 else f"s{80+i}") + " offen sc1"), range(104 + 4 * i, 108 + 4 * i))
    def s3():
        for j in (0, 2):
            a(f"v_pk_add_f32 v[{16+j}:{17+j}], v[{104+j}:{105+j}], v[{108+j}:{109+j}]")
            a(f"v_pk_add_f32 v[{20+j}:{21+j}], v[{112+j}:{113+j}], v[{116+j}:{117+j}]")
            a(f"v_pk_add_f32 v[{24+j}:{25+j}], v[{120+j}:{121+j}], v[{124+j}:{125+j}]")
        for j in (0, 2):
            a(f"v_pk_add_f32 v[{16+j}:{17+j}], v[{16+j}:{17+j}], v[{20+j}:{21+j}]")
            a(f"v_pk_add_f32 v[{24+j}:{25+j}], v[{24+j}:{25+j}], v[{128+j}:{129+j}]")
        for j in (0, 2): a(f"v_pk_add_f32 v[{16+j}:{17+j}], v[{16+j}:{17+j}], v[{24+j}:{25+j}]")
    with live():
        if e3d == 1: spoll([i3(i) for i in range(7)], s3, range(16, 20), 14)
        else:
            a(f"s_mov_b32 s60, {SPIN}")
            for d in range(e3d):
                for i in range(7): i3(i)[0]()
                if d < e3d - 1: a("s_sleep 1")
            a.label("L_e3p")
            a(f"s_waitcnt vmcnt({7*(e3d-1)})")
            s3(); umax(14, range(16, 20))
            a("v_cmp_eq_u32 vcc, -1, v14"); a("s_cbranch_vccz L_e3d")
            a("s_mov_b64 exec, vcc")
            for i in range(7): i3(i)[0]()
            a("s_mov_b64 exec, -1")
            a("s_sub_u32 s60, s60, 1"); a("s_cbranch_scc0 L_e3p")
            a.label("L_e3d")
    stamp("e3")
    red_g4([16, 17, 18, 19], 20)
    a(f"v_add_f32_dpp v20, v20, v20 row_ror:8 {FULL}")
    rbf(20, 20)
    a("s_waitcnt lgkmcnt(0)")
    a("v_add_f32 v20, v20, v7")
    a("v_cvt_pk_bf16_f32 v20, v20, v20")
    if warm: a("s_cbranch_execz L_warmed")
    a("s_mov_b32 s12, 0x00ff00ff"); a("s_mov_b32 s13, 0x00ff00ff"); a("s_mov_b64 exec, s[12:13]")
    a(f"global_store_short v5, v20, s[34:35] {outpol}")
    a("s_cmp_lg_u32 s52, 0"); a("s_cbranch_scc1 L_noep")
    a("s_mov_b64 exec, 1")
    a(f"v_mov_b32 v5, {WS_EP:#x}"); a("v_mov_b32 v6, s15")
    a(f"global_store_dword v5, v6, s[38:39] {outpol}")
    if skew:
        a("s_mov_b64 exec, -1")
        a(f"v_mul_u32_u24 v16, {MB}, v0")
        for i in range(1, 4): a(f"v_add_u32 v{16+i}, {64*MB*i:#x}, v16")
        for i in range(4): a(f"global_load_dword v{20+i}, v{16+i}, s[38:39] offset:896 sc1")
        a("s_waitcnt vmcnt(0)")
        for i in range(4): a(f"v_subrev_u32 v{20+i}, s88, v{20+i}")
        a("v_max_i32 v24, v20, v21"); a("v_max3_i32 v24, v24, v22, v23"); a("v_min_i32 v25, v20, v21"); a("v_min3_i32 v25, v25, v22, v23")
        allred("v_max_i32", 24, 26); allred("v_min_i32", 25, 26)
        a("v_readfirstlane_b32 s92, v24"); a("v_readfirstlane_b32 s93, v25")
        if skew == 2: a("s_mov_b32 s92, 0")
        a("s_sub_u32 s92, s92, s93"); a("s_min_u32 s92, s92, 5000"); a("s_mul_i32 s92, s92, 20")
        a("s_memrealtime s[90:91]"); a("s_waitcnt lgkmcnt(0)"); a("s_add_u32 s92, s92, s90"); a("s_mov_b32 s60, 100000")
        a.label("L_dbl")
        a("s_memrealtime s[90:91]"); a("s_waitcnt lgkmcnt(0)"); a("s_sub_u32 s93, s90, s92"); a("s_cmp_ge_i32 s93, 0"); a("s_cbranch_scc1 L_noep")
        a("s_sub_u32 s60, s60, 1"); a("s_cbranch_scc0 L_dbl")
    if dbl:
        a("s_memrealtime s[90:91]"); a("s_waitcnt lgkmcnt(0)")
        a("s_sub_u32 s92, s90, s88"); a(f"s_mul_i32 s92, s92, {dbl}"); a("s_add_u32 s92, s92, s90"); a("s_mov_b32 s60, 100000")
        a.label("L_dbl")
        a("s_memrealtime s[90:91]"); a("s_waitcnt lgkmcnt(0)"); a("s_sub_u32 s93, s90, s92"); a("s_cmp_ge_i32 s93, 0"); a("s_cbranch_scc1 L_noep")
        a("s_sub_u32 s60, s60, 1"); a("s_cbranch_scc0 L_dbl")
    a.label("L_noep")
    a("s_mov_b64 exec, -1")
    stamp("out")
    a.label("L_tend")
    if warm: a("s_cbranch_execz L_warmed")
    a.label("L_fin")
    dump_stamps()
    a.label("L_exit")
    a("s_endpgm")
    nv = 168
    a.raw('.section .rodata,"a"'); a.raw(".p2align 6"); a.raw(f".amdhsa_kernel {KN}")
    a.raw(f"  .amdhsa_next_free_vgpr {nv}"); a.raw("  .amdhsa_next_free_sgpr 96"); a.raw(f"  .amdhsa_accum_offset {nv}")
    a.raw("  .amdhsa_group_segment_fixed_size 0"); a.raw("  .amdhsa_kernarg_size 96"); a.raw("  .amdhsa_user_sgpr_count 2")
    a.raw("  .amdhsa_user_sgpr_kernarg_segment_ptr 1"); a.raw("  .amdhsa_system_sgpr_workgroup_id_x 1")
    a.raw("  .amdhsa_float_denorm_mode_32 3")
    a.raw(".end_amdhsa_kernel")
    return a.text(), stampn

if __name__ == "__main__":
    out = sys.argv[1] if len(sys.argv) > 1 else "sequential_preLN__mha_block_cached__swiglu_ffn__decode.s"
    kw = eval("dict(%s)" % sys.argv[2]) if len(sys.argv) > 2 else {}
    t, st = gen(**kw)
    open(out, "w").write(t)
    print("wrote", out, len(t.splitlines()), "lines", st)
```

```python
import sys
sys.path.insert(0, "work")
from asmlib import Asm

KN = "sequential_preLN__mha_block_cached__swiglu_ffn__decode_kernel"
HEADER = open("sequential_preLN__mha_block_cached__swiglu_ffn__decode.s.ref").read().split("; Override launch")[0]

MB = 4352
MB_ST = 512
MB_MK = 768
MB_O = 1024
WS_EP = 0x110000
WS_PG = 0x118000
WS_YP = 0x120000
WS_FP = 0x130000
F_QARR, F_QGOT, F_KDONE, F_PRDY, F_OA, F_MODE, F_TICK, F_OB, F_MARK, F_SAME, F_PUB = 0, 4, 8, 16, 24, 28, 44, 48, 52, 56, 60
L_Q = 256
L_QS = 768
L_SC = 2048
L_PP = L_SC + 32768
L_OL = L_PP + 16384
L_YL = L_OL + 4096
L_H = L_YL + 2048
L_GU = L_H + 2560
L_ST = L_GU + 1024
L_END = L_ST + 64
NWO, NFFN, NFIN = 160, 54, 20
NWAVE = 12
SPIN = 400000
LSPIN = 4000000
LOG2E = 0x3fb8aa3b
SCALE = 0x3db504f3
INV640 = 0x3acccccd
EPS = 0x3727c5ac
FULL = "row_mask:0xf bank_mask:0xf"

DOC = """;
;  * Every bf16 rounding of the reference is reproduced (LN steps, q, scores twice, p, o, attention output, h, g, silu, u, act, down).
;    producer wrote earlier in this launch.  The 16 workgroups of a head pair find out at run time (XCC id inside the q tags) whether
"""

def gen(diag=False, dbl=0, DS=(5, 6, 8), F=6, hprio=1, stag=2, QTO=12, gov=(-1, 4), gsleep=2, gbias=8, wo_at=30, ffn_at=32, lastit=3,
        early1=False, early2=False, probe=0):
    a = Asm()
    c = a.comment
    uid = [0]
    def L(n):
        uid[0] += 1
        return f"L_{n}_{uid[0]}"
    stampn = {}
    SV = 166
    T0 = 18 - F + 16
    def stamp(name):
        if not diag: return
        if diag == 1 and name not in ("start", "v_done", "out"): return
        i = stampn.setdefault(name, len(stampn))
        sk = L("st"); a(f"s_cbranch_execz {sk}")
        a("s_memrealtime s[90:91]"); a("s_waitcnt lgkmcnt(0)"); a(f"v_writelane_b32 v{SV}, s90, {i}")
        a.label(sk)
    class live:
        def __enter__(s_): s_.l = L("live"); a(f"s_cbranch_execz {s_.l}")
        def __exit__(s_, *x): a.label(s_.l)
    def lane0(ins): a("s_mov_b64 exec, 1"); a(ins); a("s_mov_b64 exec, -1")
    def rbf(dst, src):
        a(f"v_cvt_pk_bf16_f32 v{dst}, v{src}, v{src}"); a(f"v_and_b32 v{dst}, 0xffff0000, v{dst}")
    def rowred(op, v):
        for r in (8, 4, 2, 1): a(f"{op}_dpp v{v}, v{v}, v{v} row_ror:{r} {FULL}")
    def allred(op, v, t):
        rowred(op, v)
        a(f"v_mov_b32 v{t}, v{v}"); a(f"v_permlane16_swap_b32 v{v}, v{t}"); a(f"{op} v{v}, v{v}, v{t}")
        a(f"v_mov_b32 v{t}, v{v}"); a(f"v_permlane32_swap_b32 v{v}, v{t}"); a(f"{op} v{v}, v{v}, v{t}")
    def red_g8(r, dst):
        for j in range(4): a(f"v_permlane32_swap_b32 v{r[j]}, v{r[j+4]}")
        for j in range(4): a(f"v_add_f32 v{r[j]}, v{r[j]}, v{r[j+4]}")
        a(f"v_permlane16_swap_b32 v{r[0]}, v{r[2]}"); a(f"v_permlane16_swap_b32 v{r[1]}, v{r[3]}")
        a(f"v_add_f32 v{dst}, v{r[0]}, v{r[2]}"); a(f"v_add_f32 v{dst+1}, v{r[1]}, v{r[3]}")
    def red_g4(r, dst):
        a(f"v_permlane32_swap_b32 v{r[0]}, v{r[2]}"); a(f"v_permlane32_swap_b32 v{r[1]}, v{r[3]}")
        a(f"v_add_f32 v{r[0]}, v{r[0]}, v{r[2]}"); a(f"v_add_f32 v{r[1]}, v{r[1]}, v{r[3]}")
        a(f"v_permlane16_swap_b32 v{r[0]}, v{r[1]}")
        a(f"v_add_f32 v{dst}, v{r[0]}, v{r[1]}")
    def guard(regs):
        for r in regs: a(f"v_min_u32 v{r}, -2, v{r}")
    def umax(t, rs):
        rs = list(rs)
        a(f"v_max3_u32 v{t}, v{rs[0]}, v{rs[1]}, v{rs[2]}"); rs = rs[3:]
        while len(rs) >= 2: a(f"v_max3_u32 v{t}, v{t}, v{rs[0]}, v{rs[1]}"); rs = rs[2:]
        if rs: a(f"v_max_u32 v{t}, v{t}, v{rs[0]}")
    def spoll(groups, sums, outs, t, issued=False):
        top, done = L("spoll"), L("spolled")
        a(f"s_mov_b32 s60, {SPIN}")
        if not issued:
            for g, _ in groups: g()
        a.label(top)
        a("s_waitcnt vmcnt(0)")
        sums(); umax(t, outs)
        a(f"v_cmp_eq_u32 vcc, -1, v{t}"); a(f"s_cbranch_vccz {done}")
        for g, rs in groups:
            sk = L("gsk")
            umax(t, rs)
            a(f"v_cmp_eq_u32 vcc, -1, v{t}"); a(f"s_cbranch_vccz {sk}")
            a("s_mov_b64 exec, vcc"); g(); a("s_mov_b64 exec, -1")
            a.label(sk)
        a("s_sub_u32 s60, s60, 1"); a(f"s_cbranch_scc0 {top}")
        a("s_waitcnt vmcnt(0)")
        a.label(done)
    def pub2(ins):
        gl, dn = L("glob"), L("pubd")
        a("s_cmp_eq_u32 s66, 0"); a(f"s_cbranch_scc1 {gl}")
        a(ins); a(f"s_branch {dn}")
        a.label(gl); a(ins + " sc1"); a.label(dn)
    def lds_wait(vaddr, off, val, t, slp):
        top, done = L("lw"), L("lwd")
        a(f"s_mov_b32 s60, {LSPIN}")
        a.label(top)
        a(f"ds_read_b32 v{t}, v{vaddr} offset:{off}"); a("s_waitcnt lgkmcnt(0)")
        a(f"v_cmp_gt_u32 vcc, {val}, v{t}"); a(f"s_cbranch_vccz {done}")
        a(f"s_sleep {slp}")
        a("s_sub_u32 s60, s60, 1"); a(f"s_cbranch_scc0 {top}")
        a.label(done)
    def lds_signal(vaddr, off, one):
        a("s_waitcnt lgkmcnt(0)"); lane0(f"ds_add_u32 v{vaddr}, v{one} offset:{off}")
    def pair_perm(W, spare):
        out = []
        for t in range(0, len(W), 2):
            cols = []
            for j in range(4):
                A_, B_ = W[t][j], W[t + 1][j]
                a(f"v_perm_b32 v{spare}, v{B_}, v{A_}, s70"); a(f"v_perm_b32 v{B_}, v{B_}, v{A_}, s71")
                cols += [spare, B_]; spare = A_
            out.append(cols)
        return out

    a.raw(HEADER.rstrip("\n"))
    a.raw(f"; @launch grid=(256,1,1) block=({64*NWAVE},1,1) lds={L_END}")
    a.raw(DOC.rstrip("\n"))
    a.raw('.amdgcn_target "amdgcn-amd-amdhsa--gfx950"')
    a.raw(".text"); a.raw(f".globl {KN}"); a.raw(".p2align 8"); a.raw(f".type {KN},@function")
    a.label(KN)
    a("s_cmp_ge_u32 s2, 256"); a("s_cbranch_scc1 L_exit")
    if dbl: a("s_memrealtime s[88:89]")
    a("s_load_dwordx16 s[16:31], s[0:1], 0"); a("s_load_dwordx8 s[32:39], s[0:1], 64")
    a("v_lshrrev_b32 v1, 6, v0"); a("v_and_b32 v0, 63, v0"); a("v_readfirstlane_b32 s3, v1")
    if diag: a(f"v_mov_b32 v{SV}, 0")
    a("v_lshlrev_b32 v1, 4, v0")
    c("logical id: round-robin placement deals the 16 workgroups of a head pair to one XCD (speed only); s4 = pair, s67 = role id")
    a("s_and_b32 s4, s2, 7"); a("s_lshl_b32 s4, s4, 5"); a("s_lshr_b32 s2, s2, 3"); a("s_or_b32 s2, s2, s4")
    a("s_lshr_b32 s4, s2, 4")
    if diag: a("s_mov_b32 s93, s3")
    a("s_and_b32 s67, s2, 15"); a("s_lshl_b32 s67, s67, 4"); a("s_add_u32 s67, s67, s4")
    a("s_cmp_ge_u32 s3, 4"); a("s_cbranch_scc1 L_helper")

    c("================= streamers =================")
    R0 = 36
    ring = [8]
    def slot(ck, i): return R0 + 16 * (ck % ring[0]) + 4 * i
    def issue_chunk(ck, pacer=None, lo=0, hi=4):
        for i in range(lo, hi):
            if pacer: pacer()
            s = slot(ck, i)
            a(f"buffer_load_dwordx4 v[{s}:{s+3}], v1, s[8:11], s12 offen offset:{1024*i} nt")
        if hi == 4: a("s_add_u32 s12, s12, 0x4000"); a("s_and_b32 s12, s12, 0x3ffff")
    a("s_and_b32 s5, s2, 15")
    a("s_lshl_b32 s13, s4, 23"); a("s_lshl_b32 s14, s5, 18"); a("s_add_u32 s13, s13, s14")
    a(f"s_mul_i32 s12, s5, {stag*0x4000}"); a("s_and_b32 s12, s12, 0x3ffff")
    a("s_lshl_b32 s14, s3, 12"); a("s_add_u32 s12, s12, s14")
    a("s_mov_b32 s10, 0x40000"); a("s_mov_b32 s11, 0x20000")
    a("s_waitcnt lgkmcnt(0)")
    a("s_add_u32 s8, s18, s13"); a("s_addc_u32 s9, s19, 0")
    stamp("start")
    issue_chunk(0); issue_chunk(1, None, 0, 2)
    a(f"s_add_u32 s14, s14, {L_SC}")
    a("v_lshlrev_b32 v20, 2, v0"); a("v_add_u32 v20, s14, v20")
    a("v_and_b32 v21, 15, v0"); a("v_lshlrev_b32 v21, 4, v21")
    a("v_mov_b32 v22, 0"); a("v_mov_b32 v23, 1"); a("v_mov_b32 v3, 0")
    a("s_barrier")
    a(f"s_sub_u32 s15, s67, {NWO}"); a(f"s_cmp_lt_u32 s15, {NFFN}"); a("s_cselect_b32 s15, 2, 1")
    def tick(rd):
        lane0(f"ds_add_u32 v3, v23 offset:{F_TICK}")
        if rd: a(f"ds_read_b32 v2, v3 offset:{F_MODE}")
    def gmode(rd, last=False):
        if not rd: return
        a("s_waitcnt lgkmcnt(0)"); a("v_readfirstlane_b32 s45, v2")
        a("s_sub_u32 s45, s45, 1"); a("s_cselect_b32 s15, s15, s45")
        if last: a("s_cmp_ge_u32 s6, s44"); a("s_cselect_b32 s15, 2, s15")
    def pace():
        go = L("go")
        a(f"s_waitcnt vmcnt({DS[2]-1})"); a("s_cmp_ge_u32 s15, 2"); a(f"s_cbranch_scc1 {go}")
        a(f"s_waitcnt vmcnt({DS[1]-1})"); a("s_cmp_ge_u32 s15, 1"); a(f"s_cbranch_scc1 {go}")
        a(f"s_waitcnt vmcnt({DS[0]-1})")
        a.label(go)
    assert DS[2] <= 8
    c("run ahead until q is there")
    for ck in range(1, F): issue_chunk(ck, lambda: a(f"s_waitcnt vmcnt({DS[1]-1})"), (2 if ck == 1 else 0))
    lds_wait(22, F_QGOT, 4, 8, 1)
    a(f"ds_read_b128 v[4:7], v21 offset:{L_Q}"); a(f"ds_read_b128 v[16:19], v21 offset:{L_Q+256}")
    a("s_waitcnt lgkmcnt(0)")
    def switch_point():
        a("s_cmp_eq_u32 s6, 3")
        a("s_cselect_b32 s8, s40, s8"); a("s_cselect_b32 s9, s41, s9"); a("s_cselect_b32 s10, s43, s10")
    def proc_k(ck, q, off):
        for j in range(4):
            for i in range(4):
                a(f"v_dot2_f32_bf16 v{8+i}, v{slot(ck,i)+j}, v{q+j}, " + ("0" if j == 0 else f"v{8+i}"))
        a("v_add_f32_dpp v12, v8, v8 row_ror:8 row_mask:0xf bank_mask:0x3")
        a("v_add_f32_dpp v13, v10, v10 row_ror:8 row_mask:0xf bank_mask:0x3")
        a("v_add_f32_dpp v12, v9, v9 row_ror:8 row_mask:0xf bank_mask:0xc")
        a("v_add_f32_dpp v13, v11, v11 row_ror:8 row_mask:0xf bank_mask:0xc")
        a("v_add_f32_dpp v14, v12, v12 row_half_mirror row_mask:0xf bank_mask:0x5")
        a("v_add_f32_dpp v14, v13, v13 row_half_mirror row_mask:0xf bank_mask:0xa")
        a(f"ds_write_b32 v20, v14 offset:{off}")
    c("K of head A: the look-ahead shrinks to 2 chunks; once chunk n is issued at most 8 loads are out, so chunk n-2 has landed")
    n, since, burst = F, 9, 0
    for k in range(16):
        did = n - ring[0] < k and n < 18 and (n - k <= 2 or since >= 2 or burst < 2)
        if did:
            if n == 16: a("s_add_u32 s8, s8, 0x400000"); a("s_addc_u32 s9, s9, 0")
            issue_chunk(n, pace); n += 1; since = 0; burst += 1
            tick(True)
        assert k <= n - 3
        proc_k(k, 4, 256 * k)
        gmode(did)
        since += 1
    assert n == 18
    lds_signal(22, F_KDONE, 23)
    ring[0] = 4
    c("K of head B")
    a("s_add_u32 s40, s20, s13"); a("s_addc_u32 s41, s21, 0"); a("s_mov_b32 s43, 0x40000")
    a("s_mov_b32 s6, 0")
    a.label("L_kiter")
    for k in range(4):
        if k == 2: switch_point()
        issue_chunk(k + 2, pace)
        tick(k % 2 == 0)
        proc_k(k, 16, 0x4000 + 256 * k)
        gmode(k % 2 == 0)
    a("v_add_u32 v20, 0x400, v20")
    a("s_add_u32 s6, s6, 1"); a("s_cmp_lt_u32 s6, 4"); a("s_cbranch_scc1 L_kiter")
    lds_signal(22, F_KDONE + 4, 23)
    c("V of head A, then of head B")
    a("s_lshl_b32 s14, s3, 11"); a(f"s_add_u32 s14, s14, {L_PP}")
    a("v_lshlrev_b32 v20, 3, v0"); a("v_add_u32 v20, s14, v20")
    a("s_lshl_b32 s14, s3, 9"); a(f"s_add_u32 s14, s14, {L_OL}")
    a("v_and_b32 v21, 15, v0"); a("v_lshlrev_b32 v21, 5, v21"); a("v_lshrrev_b32 v8, 4, v0"); a("v_lshl_add_u32 v21, v8, 3, v21")
    a("v_add_u32 v21, s14, v21")
    a("s_add_u32 s40, s40, 0x400000"); a("s_addc_u32 s41, s41, 0")
    a("s_mov_b32 s7, 0"); a("s_mov_b32 s44, 99")
    a.label("L_vhead")
    lds_wait(22, F_PRDY, 1, 8, 1)
    for j in range(8): a(f"v_mov_b32 v{24+j}, 0")
    a("s_mov_b32 s6, 0")
    a.label("L_viter")
    a("ds_read_b64 v[32:33], v20")
    a("s_cmp_ge_u32 s6, s44"); a("s_cselect_b32 s15, 2, s15")
    for k in range(4):
        if k == 2: switch_point()
        if k >= 2:
            dr, go = L("drain"), L("drained")
            a("s_cmp_eq_u32 s10, 0"); a(f"s_cbranch_scc1 {dr}")
            issue_chunk(k + 2, pace)
            a(f"s_branch {go}")
            a.label(dr); a(f"s_waitcnt vmcnt({4*(3-k)})"); a.label(go)
        else:
            issue_chunk(k + 2, pace)
        if k == 0: a("s_waitcnt lgkmcnt(0)")
        tick(k % 2 == 0)
        for i in range(4):
            s = slot(k, i)
            ln = ((i & 1) << 3) | ((i >> 1) << 2) | k
            for j in range(4):
                a(f"v_dot2c_f32_bf16_dpp v{24+2*j}, v32, v{s+j} row_newbcast:{ln} {FULL}")
                a(f"v_dot2c_f32_bf16_dpp v{25+2*j}, v33, v{s+j} row_newbcast:{ln} {FULL}")
        gmode(k % 2 == 0, True)
    a("v_add_u32 v20, 0x200, v20")
    a("s_add_u32 s6, s6, 1"); a("s_cmp_lt_u32 s6, 4"); a("s_cbranch_scc1 L_viter")
    red_g8(list(range(24, 32)), 34)
    a("ds_write_b64 v21, v[34:35]")
    a("s_cmp_lg_u32 s7, 0"); a("s_cbranch_scc1 L_vend")
    lds_signal(22, F_OA, 23)
    a("v_add_u32 v20, 0x1800, v20"); a("v_add_u32 v21, 0x800, v21"); a("v_mov_b32 v22, 4")
    a("s_mov_b32 s43, 0"); a("s_mov_b32 s7, 1"); a(f"s_mov_b32 s44, {lastit}")
    a("s_branch L_vhead")
    a.label("L_vend")
    lane0(f"ds_add_u32 v3, v23 offset:{F_OB}")
    stamp("v_done")
    a("s_branch L_fin")

    W0 = 64
    def gu_setup(vreg, tmp):
        a("s_cmp_lt_u32 s3, 4"); a("s_cselect_b32 s44, s28, s30"); a("s_cselect_b32 s45, s29, s31")
        a(f"s_mov_b32 s46, {640*3456}"); a("s_mov_b32 s47, 0x20000")
        a("s_and_b32 s50, s3, 3"); a(f"s_mul_i32 s50, s50, {160*3456}"); a("s_lshl_b32 s51, s52, 6"); a("s_add_u32 s50, s50, s51")
        for i in range(1, 5): a(f"s_add_u32 s{80+i}, s50, {2*3456*i}")
        a(f"v_lshrrev_b32 v{vreg}, 2, v0"); a(f"v_mul_u32_u24 v{vreg}, {10*3456}, v{vreg}"); a(f"v_and_b32 v{tmp}, 3, v0"); a(f"v_lshl_add_u32 v{vreg}, v{tmp}, 4, v{vreg}")
    def gu_load(t, vreg):
        a(f"buffer_load_dwordx4 v[{W0+4*t}:{W0+4*t+3}], v{vreg}, s[44:47], " + ("s50" if t < 2 else f"s{80+t//2}") + f" offen offset:{(t%2)*3456} nt")
    c("================= helpers =================")
    a.label("L_helper")
    a("s_sub_u32 s3, s3, 4"); a("s_and_b32 s6, s2, 15"); a(f"s_sub_u32 s52, s67, {NWO}")
    a("v_lshlrev_b32 v6, 2, v0"); a("v_mov_b32 v14, 0"); a("v_mov_b32 v15, 1")
    a("s_mov_b32 s70, 0x05040100"); a("s_mov_b32 s71, 0x07060302")
    a("s_cmp_ge_u32 s3, 4"); a("s_cbranch_scc1 L_helper2")
    c("---- helpers 0-3: LN(x), 160 rows x 64 columns of wq per workgroup, exchange inside the pair group ----")
    a("s_setprio 3")
    a("v_lshrrev_b32 v2, 3, v0"); a("v_and_b32 v3, 7, v0"); a("v_mul_u32_u24 v4, 5, v2")
    a("s_lshr_b32 s8, s6, 2"); a("s_lshl_b32 s8, s8, 2"); a("s_add_u32 s8, s8, s3"); a("s_mul_i32 s8, s8, 40")
    a("v_add_u32 v4, s8, v4")
    a("v_lshlrev_b32 v5, 13, v4"); a("v_lshl_add_u32 v5, v3, 4, v5"); a("v_lshlrev_b32 v4, 1, v4")
    a("s_lshl_b32 s9, s4, 9"); a("s_and_b32 s10, s6, 3"); a("s_lshl_b32 s10, s10, 7"); a("s_add_u32 s9, s9, s10")
    a(f"s_mov_b32 s46, {640*8192}"); a("s_mov_b32 s47, 0x20000")
    a("s_waitcnt lgkmcnt(0)")
    stamp("start")
    a(f"s_add_u32 s74, s38, {WS_EP}"); a("s_addc_u32 s75, s39, 0"); a("s_load_dword s15, s[74:75], 0")
    a("global_load_dwordx4 v[16:19], v1, s[16:17]"); a("global_load_dword v20, v6, s[16:17] offset:1024")
    for t in range(5): a(f"global_load_ushort v{21+t}, v4, s[16:17] offset:{2*t}")
    a("s_mov_b32 s44, s22"); a("s_mov_b32 s45, s23")
    for t in range(5):
        a(f"buffer_load_dwordx4 v[{64+4*t}:{64+4*t+3}], v5, s[44:47], s9 offen nt")
        if t < 4: a("s_add_u32 s9, s9, 0x2000")
    a("s_barrier")
    a("v_lshlrev_b32 v12, 2, v2"); a("v_lshl_add_u32 v12, v3, 5, v12")
    a("s_lshl_b32 s12, s3, 8"); a("v_add_u32 v12, s12, v12")
    a("s_mov_b32 s62, 0xff00ff00"); a("s_mov_b32 s63, 0xff00ff00")
    a("s_waitcnt vmcnt(5)")
    for i in range(5): a(f"v_and_b32 v{30+2*i+1}, 0xffff0000, v{16+i}"); a(f"v_lshlrev_b32 v{30+2*i}, 16, v{16+i}")
    X = list(range(30, 40))
    a("v_add_f32 v26, v30, v31")
    for r in X[2:]: a(f"v_add_f32 v26, v26, v{r}")
    allred("v_add_f32", 26, 28)
    a(f"v_mul_f32 v26, {INV640:#x}, v26")
    for i, r in enumerate(X):
        a(f"v_sub_f32 v28, v{r}, v26"); a("v_mul_f32 v27, v28, v28" if i == 0 else "v_fmac_f32 v27, v28, v28")
    allred("v_add_f32", 27, 28)
    a(f"v_mul_f32 v27, {INV640:#x}, v27"); rbf(27, 27); rbf(26, 26)
    a(f"v_add_f32 v27, {EPS:#x}, v27"); rbf(27, 27); a("v_sqrt_f32 v27, v27"); rbf(27, 27); a("v_rcp_f32 v27, v27")
    for t in range(5):
        a(f"v_lshlrev_b32 v{21+t}, 16, v{21+t}"); a(f"v_sub_f32 v{21+t}, v{21+t}, v26"); rbf(21 + t, 21 + t)
        a(f"v_mul_f32 v{21+t}, v{21+t}, v27")
        a(f"v_cvt_pk_bf16_f32 v{30+t}, v{21+t}, 0"); a(f"v_cvt_pk_bf16_f32 v{35+t}, 0, v{21+t}")
    for j in range(8): a(f"v_mov_b32 v{40+j}, 0")
    for t in range(5):
        a(f"s_waitcnt vmcnt({4-t})")
        for j in range(4):
            a(f"v_dot2c_f32_bf16 v{40+2*j}, v{30+t}, v{64+4*t+j}"); a(f"v_dot2c_f32_bf16 v{41+2*j}, v{35+t}, v{64+4*t+j}")
    red_g8(list(range(40, 48)), 48)
    a(f"v_add_f32_dpp v48, v48, v48 row_ror:8 {FULL}"); a(f"v_add_f32_dpp v49, v49, v49 row_ror:8 {FULL}")
    a("v_cndmask_b32 v48, v48, v49, s[62:63]")
    a(f"ds_write_b32 v12, v48 offset:{L_QS}")
    a("s_waitcnt lgkmcnt(0)")
    a("s_add_u32 s15, s15, 1")
    lane0(f"ds_add_rtn_u32 v13, v14, v15 offset:{F_QARR}")
    a("v_lshrrev_b32 v10, 5, v0"); a(f"v_mul_u32_u24 v12, {8*MB}, v10"); a("v_and_b32 v11, 31, v0"); a("v_lshl_add_u32 v12, v11, 4, v12")
    a("s_lshl_b32 s12, s4, 4"); a("s_add_u32 s12, s12, s3"); a(f"s_mul_i32 s12, s12, {MB}"); a("v_add_u32 v12, s12, v12")
    a(f"v_add_u32 v9, {4*MB}, v12")
    a("s_getreg_b32 s13, hwreg(HW_REG_XCC_ID, 0, 4)"); a("s_lshl_b32 s13, s13, 28"); a("s_xor_b32 s13, s13, s15")
    a(f"v_add_u32 v16, {L_QS}, v6")
    a(f"s_mul_i32 s14, s2, {MB}"); a("v_lshlrev_b32 v17, 3, v0"); a("v_add_u32 v17, s14, v17")
    a("s_waitcnt lgkmcnt(0)")
    a("v_readfirstlane_b32 s12, v13")
    def qpub(pol):
        a("ds_read2st64_b32 v[18:19], v16 offset0:0 offset1:1"); a("ds_read2st64_b32 v[20:21], v16 offset0:2 offset1:3")
        a("s_waitcnt lgkmcnt(0)")
        a("v_add_f32 v18, v18, v19"); a("v_add_f32 v20, v20, v21"); a("v_add_f32 v18, v18, v20"); a("v_mov_b32 v19, s13")
        a(f"global_store_dwordx2 v17, v[18:19], s[38:39]{pol}")
    a("s_cmp_lg_u32 s12, 3"); a("s_cbranch_scc1 L_qnopub")
    c("the last of the four waves publishes; first try: through this XCD's L2 only")
    qpub("")
    a.label("L_qnopub")
    a(f"s_mov_b32 s61, {SPIN}")
    a.label("L_qpoll")
    a("global_load_dwordx4 v[24:27], v12, s[38:39] sc1"); a("global_load_dwordx4 v[28:31], v9, s[38:39] sc1")
    a("s_waitcnt vmcnt(0)")
    for r in (25, 27, 29, 31): a(f"v_xor_b32 v{r}, s13, v{r}")
    a("v_or3_b32 v25, v25, v27, v29"); a("v_or_b32 v25, v25, v31"); a("v_and_b32 v27, 0x0fffffff, v25")
    a("v_cmp_ne_u32 vcc, 0, v27"); a("s_cbranch_vccz L_qpolled")
    a("s_sleep 1")
    a(f"s_cmp_lg_u32 s61, {SPIN-QTO}"); a("s_cbranch_scc1 L_qagain")
    c("still incomplete: a member may sit on another XCD, so publish for the whole device")
    lds_wait(14, F_QARR, 4, 8, 2); qpub(" sc1")
    a.label("L_qagain")
    a("s_sub_u32 s61, s61, 1"); a("s_cbranch_scc0 L_qpoll")
    a.label("L_qpolled")
    a("v_cmp_ne_u32 vcc, 0, v25"); a("s_cbranch_vccz L_qsame")
    c("a member does sit on another XCD")
    lds_wait(14, F_QARR, 4, 8, 2); qpub(" sc1")
    a("s_branch L_qdiff")
    a.label("L_qsame")
    lane0(f"ds_add_u32 v14, v15 offset:{F_SAME}")
    a.label("L_qdiff")
    a("v_add_f32 v24, v24, v28"); a("v_add_f32 v26, v26, v30")
    a("v_permlane32_swap_b32 v24, v26"); a("v_add_f32 v24, v24, v26"); a("v_cvt_pk_bf16_f32 v24, v24, v24")
    a("v_lshl_add_u32 v12, v11, 1, v10"); a("v_lshlrev_b32 v12, 1, v12")
    a("s_lshl_b32 s12, s3, 7"); a("v_add_u32 v12, s12, v12")
    a(f"ds_write_b16 v12, v24 offset:{L_Q}")
    lds_signal(14, F_QGOT, 15)
    a(f"s_setprio {hprio}")
    a("s_branch L_down")

    c("---- helpers 4-7 ----")
    a.label("L_helper2")
    a(f"s_setprio {hprio}")
    a("s_cmp_lg_u32 s3, 4"); a("s_cbranch_scc1 L_noinit")
    a("ds_write_b32 v6, v14")
    a.label("L_noinit")
    a("s_waitcnt lgkmcnt(0)")
    stamp("start")
    a(f"s_add_u32 s74, s38, {WS_EP}"); a("s_addc_u32 s75, s39, 0"); a("s_load_dword s15, s[74:75], 0")
    a("s_cmp_lg_u32 s3, 6"); a("s_cbranch_scc1 L_clrdone")
    c("helper 6 marks the device-wide words this workgroup will publish as empty")
    for r in range(8, 12): a(f"v_mov_b32 v{r}, -1")
    a(f"s_cmp_ge_u32 s67, {NWO}"); a("s_cbranch_scc1 L_clrffn")
    a("s_mul_i32 s12, s4, 2560"); a("s_lshl_b32 s13, s6, 8"); a("s_add_u32 s12, s12, s13")
    a(f"s_add_u32 s12, s12, {WS_YP}"); a("v_add_u32 v12, s12, v6")
    a("global_store_dword v12, v8, s[38:39] sc1")
    a("s_branch L_clrdone")
    a.label("L_clrffn")
    a(f"s_cmp_ge_u32 s52, {NFFN}"); a("s_cbranch_scc1 L_clrdone")
    a("s_mul_i32 s12, s52, 2560"); a(f"s_add_u32 s12, s12, {WS_FP}"); a("v_add_u32 v12, s12, v1")
    a("global_store_dwordx4 v12, v[8:11], s[38:39] sc1"); a("global_store_dwordx4 v12, v[8:11], s[38:39] offset:1024 sc1")
    a("s_mov_b32 exec_hi, 0"); a("global_store_dwordx4 v12, v[8:11], s[38:39] offset:2048 sc1"); a("s_mov_b64 exec, -1")
    a.label("L_clrdone")
    a("s_barrier")
    a("s_waitcnt lgkmcnt(0)")
    a("s_add_u32 s15, s15, 1")
    a("s_cmp_eq_u32 s3, 4"); a("s_cbranch_scc1 L_down")
    a("s_cmp_eq_u32 s3, 5"); a("s_cbranch_scc1 L_roles")
    a(f"s_mul_i32 s11, s2, {MB}"); a("v_add_u32 v7, s11, v1")
    a("s_sub_u32 s7, s3, 6")
    a("s_cmp_lg_u32 s7, 0"); a("s_cbranch_scc1 L_h7")
    a(f"s_cmp_ge_u32 s67, {NWO+NFFN}"); a("s_cbranch_scc1 L_stats")
    a("s_waitcnt vmcnt(0)"); a("v_mov_b32 v12, s15")
    lane0(f"global_store_dword v7, v12, s[38:39] offset:{MB_MK} sc1")
    a("s_branch L_stats")
    a.label("L_h7")
    c("helper 7 (the publisher at the end) takes its w_up rows now")
    a(f"s_cmp_ge_u32 s52, {NFFN}"); a("s_cbranch_scc1 L_stats")
    gu_setup(2, 3)
    for t in range(10):
        if t >= 2: a("s_waitcnt vmcnt(1)")
        gu_load(t, 2)
    c("---- helpers 6, 7: softmax of head A, B ----")
    a.label("L_stats")
    lds_wait(14, F_QGOT, 4, 8, 8)
    a(f"ds_read_b32 v8, v14 offset:{F_SAME}"); a("s_waitcnt lgkmcnt(0)"); a("v_readfirstlane_b32 s66, v8")
    a("s_lshr_b32 s66, s66, 2")
    a("s_cmp_lg_u32 s7, 0"); a("s_cbranch_scc1 L_noclrO")
    for r in range(8, 12): a(f"v_mov_b32 v{r}, -1")
    pub2(f"global_store_dwordx4 v7, v[8:11], s[38:39] offset:{MB_O}")
    a.label("L_noclrO")
    a("s_lshl_b32 s12, s7, 2"); a("v_mov_b32 v13, s12")
    a("v_and_b32 v20, 3, v0"); a("v_lshlrev_b32 v20, 8, v20"); a("v_and_b32 v21, 60, v0"); a("v_lshl_add_u32 v20, v21, 2, v20")
    a("s_lshl_b32 s12, s7, 14"); a(f"s_add_u32 s12, s12, {L_SC}"); a("v_add_u32 v20, s12, v20")
    a("s_lshl_b32 s12, s7, 13"); a(f"s_add_u32 s12, s12, {L_PP}"); a("v_lshlrev_b32 v21, 3, v0"); a("v_add_u32 v21, s12, v21")
    a(f"s_mul_i32 s12, s4, {16*MB}"); a("s_lshl_b32 s13, s7, 7"); a("s_add_u32 s12, s12, s13")
    a("v_and_b32 v22, 15, v0"); a(f"v_mul_u32_u24 v22, {MB}, v22"); a("v_add_u32 v22, s12, v22")
    a(f"s_mul_i32 s13, s6, {MB}"); a("s_add_u32 s12, s12, s13"); a("v_mov_b32 v23, s12")
    a(f"s_mov_b32 s14, {LOG2E:#x}")
    lds_wait(13, F_KDONE, 4, 8, 4)
    S = list(range(32, 48))
    for i in range(16):
        if i % 8 == 0:
            for u in range(8): a(f"ds_read_b128 v[{104+4*u}:{107+4*u}], v20 offset:{1024*(i+u)}")
        b = 104 + 4 * (i % 8)
        a(f"s_waitcnt lgkmcnt({7-i%8})")
        a(f"v_add_f32 v{b}, v{b}, v{b+1}"); a(f"v_add_f32 v{b+2}, v{b+2}, v{b+3}"); a(f"v_add_f32 v{S[i]}, v{b}, v{b+2}")
        if probe < 2: rbf(S[i], S[i])
        a(f"v_mul_f32 v{S[i]}, {SCALE:#x}, v{S[i]}")
        if probe < 2: rbf(S[i], S[i])
    a(f"v_max_f32 v28, v{S[0]}, v{S[1]}")
    for i in range(2, 16, 2): a(f"v_max3_f32 v28, v28, v{S[i]}, v{S[i+1]}")
    allred("v_max_f32", 28, 30)
    for i in range(16):
        a(f"v_sub_f32 v{104+i}, v{S[i]}, v28"); a(f"v_mul_f32 v{104+i}, s14, v{104+i}"); a(f"v_exp_f32 v{104+i}, v{104+i}")
    for st in (8, 4, 2):
        for i in range(st): a(f"v_add_f32 v{104+i}, v{104+i}, v{104+i+st}")
    a("v_add_f32 v29, v104, v105")
    allred("v_add_f32", 29, 30)
    a("v_mov_b32 v24, v28"); a("v_mov_b32 v25, s15"); a("v_mov_b32 v26, v29"); a("v_mov_b32 v27, s15")
    c("helper 6: the empty marks of the o slot have landed before this tagged word goes out")
    a("s_waitcnt vmcnt(0)")
    a("s_mov_b64 exec, 1"); pub2(f"global_store_dwordx4 v23, v[24:27], s[38:39] offset:{MB_ST}"); a("s_mov_b64 exec, -1")
    a(f"s_mov_b32 s60, {SPIN}")
    a.label("L_stpoll")
    a(f"global_load_dwordx4 v[16:19], v22, s[38:39] offset:{MB_ST} sc1")
    a("s_waitcnt vmcnt(0)")
    a("v_xor_b32 v17, s15, v17"); a("v_xor_b32 v19, s15, v19"); a("v_or_b32 v17, v17, v19")
    a("v_cmp_ne_u32 vcc, 0, v17"); a("s_cbranch_vccz L_stpolled")
    a("s_sleep 4")
    a("s_sub_u32 s60, s60, 1"); a("s_cbranch_scc0 L_stpoll")
    a.label("L_stpolled")
    c("max and sum of the whole row, then p = bf16(exp(s - max) / sum) in both halves of a dword pair")
    a("v_mov_b32 v28, v16")
    rowred("v_max_f32", 28)
    a("v_sub_f32 v24, v16, v28"); a("v_mul_f32 v24, s14, v24"); a("v_exp_f32 v24, v24"); a("v_mul_f32 v29, v24, v18")
    rowred("v_add_f32", 29)
    a("v_rcp_f32 v29, v29")
    if probe == 1: a("v_mul_f32 v29, 0x3f802000, v29")
    for i in range(16):
        a(f"v_sub_f32 v{S[i]}, v{S[i]}, v28"); a(f"v_mul_f32 v{S[i]}, s14, v{S[i]}"); a(f"v_exp_f32 v{S[i]}, v{S[i]}")
    for i in range(16):
        a(f"v_mul_f32 v{S[i]}, v{S[i]}, v29")
        a(f"v_cvt_pk_bf16_f32 v{104+2*i}, v{S[i]}, 0"); a(f"v_cvt_pk_bf16_f32 v{105+2*i}, 0, v{S[i]}")
        a(f"ds_write_b64 v21, v[{104+2*i}:{105+2*i}] offset:{512*i}")
    lds_signal(13, F_PRDY, 15)
    a("s_cmp_lg_u32 s3, 6"); a("s_cbranch_scc1 L_roles")
    a(f"s_cmp_ge_u32 s52, {NFFN}"); a("s_cbranch_scc1 L_roles")
    c("ffn workgroups: every producer of YP / FP has put its empty marks in place")
    a(f"v_mul_u32_u24 v16, {MB}, v0")
    for i in range(1, 4): a(f"v_add_u32 v{16+i}, {64*MB*i:#x}, v16")
    a(f"s_mov_b32 s60, {SPIN}")
    a.label("L_marks")
    for i in range(4):
        a(f"global_load_dword v{20+i}, v{16+i}, s[38:39] offset:{MB_MK} sc1"); a("s_waitcnt vmcnt(0)")
    for i in range(4):
        a(f"v_xor_b32 v{20+i}, s15, v{20+i}")
        m = sum(1 << l for l in range(64) if 16 * ((64 * i + l) & 15) + ((64 * i + l) >> 4) < NWO + NFFN)
        a(f"s_mov_b32 s12, {m & 0xffffffff:#x}"); a(f"s_mov_b32 s13, {m >> 32:#x}")
        a(f"v_cndmask_b32 v{20+i}, 0, v{20+i}, s[12:13]")
    a("v_or3_b32 v20, v20, v21, v22"); a("v_or_b32 v20, v20, v23")
    a("v_cmp_ne_u32 vcc, 0, v20"); a("s_cbranch_vccz L_marked")
    a("s_sleep 32")
    a("s_sub_u32 s60, s60, 1"); a("s_cbranch_scc0 L_marks")
    a.label("L_marked")
    lds_signal(14, F_MARK, 15)
    a("s_branch L_roles")

    c("---- helpers 0-4 of the ffn workgroups: w_down rows, one load at a time ----")
    a.label("L_down")
    a(f"s_cmp_ge_u32 s52, {NFFN}"); a("s_cbranch_scc1 L_roles")
    a("s_mov_b32 s44, s32"); a("s_mov_b32 s45, s33"); a(f"s_mov_b32 s46, {1728*1280}"); a("s_mov_b32 s47, 0x20000")
    a(f"s_mul_i32 s50, s52, {32*1280}"); a("s_lshl_b32 s51, s3, 8"); a("s_add_u32 s50, s50, s51")
    a("v_lshrrev_b32 v2, 4, v0"); a(f"v_mul_u32_u24 v2, {8*1280}, v2"); a("v_and_b32 v3, 15, v0"); a("v_lshl_add_u32 v2, v3, 4, v2")
    for t in range(8):
        if t == 4: a(f"s_add_u32 s50, s50, {4*1280}")
        if t: a("s_waitcnt vmcnt(0)")
        a(f"buffer_load_dwordx4 v[{W0+40+4*t}:{W0+43+4*t}], v2, s[44:47], s50 offen offset:{(t%4)*1280} nt")

    c("================= roles =================")
    a.label("L_roles")
    a(f"s_add_u32 s76, s38, {WS_YP}"); a("s_addc_u32 s77, s39, 0")
    a(f"s_add_u32 s78, s38, {WS_FP}"); a("s_addc_u32 s79, s39, 0")
    a("v_lshlrev_b32 v138, 3, v0"); a(f"s_mul_i32 s11, s2, {MB}"); a("v_add_u32 v139, s11, v138")
    a("s_waitcnt vmcnt(0)")
    c("walk this wave's tail code once with EXEC = 0 (every memory access, wait and barrier is branched over) to have it in the I-cache")
    a("s_mov_b64 exec, 0")
    a(f"s_cmp_lt_u32 s67, {NWO}"); a("s_cbranch_scc1 L_wo_go")
    a(f"s_cmp_lt_u32 s52, {NFFN}"); a("s_cbranch_scc1 L_ffn_go")
    a("s_branch L_none_go")
    a.label("L_warmed")
    a("s_mov_b64 exec, -1")
    def osum(head, d):
        for w in range(4): a(f"ds_read_b64 v[{142+2*w}:{143+2*w}], v138 offset:{L_OL+2048*head+512*w}")
        a("s_waitcnt lgkmcnt(0)")
        a("v_pk_add_f32 v[142:143], v[142:143], v[144:145]"); a("v_pk_add_f32 v[146:147], v[146:147], v[148:149]")
        a(f"v_pk_add_f32 v[{d}:{d+1}], v[142:143], v[146:147]")
        guard([d, d + 1])
    c("helper 5: compare this workgroup's progress with its XCD neighbours' and set the streamers' prefetch depth (a hint only)")
    a("s_cmp_lg_u32 s3, 5"); a("s_cbranch_scc1 L_nogov")
    lds_wait(14, F_QGOT, 4, 8, 8)
    a(f"ds_read_b32 v8, v14 offset:{F_SAME}"); a("s_waitcnt lgkmcnt(0)"); a("v_readfirstlane_b32 s12, v8")
    a("s_cmp_lg_u32 s12, 4"); a("s_cbranch_scc1 L_nogov")
    a("s_lshr_b32 s12, s2, 5"); a("s_lshl_b32 s12, s12, 8"); a(f"s_add_u32 s12, s12, {WS_PG}")
    a("v_and_b32 v16, 31, v0"); a("v_lshlrev_b32 v16, 2, v16"); a("v_add_u32 v16, s12, v16")
    a("s_and_b32 s64, s2, 31"); a("s_lshl_b32 s13, s64, 2"); a("s_add_u32 s12, s12, s13"); a("v_mov_b32 v17, s12")
    a("s_lshl_b32 s13, s15, 10")
    a(f"s_cmp_lt_u32 s52, {NFFN}"); a(f"s_cselect_b32 s65, 0, {gbias}"); a("s_add_u32 s65, s65, s13")
    a("s_mov_b32 s61, 4000")
    a.label("L_gov")
    a(f"ds_read_b32 v20, v14 offset:{F_TICK}"); a("s_waitcnt lgkmcnt(0)")
    a("v_add_u32 v19, s65, v20")
    lane0("global_store_dword v17, v19, s[38:39]")
    a("global_load_dword v18, v16, s[38:39] sc1")
    a("v_readfirstlane_b32 s62, v20")
    a("s_waitcnt vmcnt(0)")
    a(f"s_cmp_ge_u32 s62, {4*(T0+26)}"); a("s_cbranch_scc1 L_nogov")
    a("v_subrev_u32 v18, s13, v18")
    a("v_cmp_le_u32 vcc, 0x400, v18"); a("s_cbranch_vccnz L_gov_next")
    a("v_readlane_b32 s62, v18, s64")
    rowred("v_add_u32", 18)
    a("s_lshl_b32 s62, s62, 5")
    a("v_readlane_b32 s63, v18, 0"); a("v_readlane_b32 s12, v18, 16")
    a("s_add_u32 s63, s63, s12"); a("s_sub_i32 s62, s62, s63")
    a("s_mov_b32 s63, 2")
    a(f"s_cmp_gt_i32 s62, {32*gov[1]}"); a("s_cselect_b32 s63, 1, s63")
    a(f"s_cmp_lt_i32 s62, {32*gov[0]}"); a("s_cselect_b32 s63, 3, s63")
    a("v_mov_b32 v18, s63"); a(f"ds_write_b32 v14, v18 offset:{F_MODE}")
    a.label("L_gov_next")
    a(f"s_sleep {gsleep}")
    a("s_sub_u32 s61, s61, 1"); a("s_cbranch_scc0 L_gov")
    a.label("L_nogov")
    c("helper 7: this workgroup's o of head A")
    a("s_cmp_lg_u32 s3, 7"); a("s_cbranch_scc1 L_noA")
    lds_wait(14, F_OA, 4, 8, 8)
    osum(0, 140)
    a("s_cmp_eq_u32 s66, 0"); a("s_cbranch_scc1 L_noAloc")
    a(f"global_store_dwordx2 v139, v[140:141], s[38:39] offset:{MB_O}")
    a.label("L_noAloc")
    a("s_setprio 3")
    a.label("L_noA")
    def opub():
        with live(): lds_wait(14, F_OB, 4, 150, 1)
        osum(1, 142)
        with live():
            gl, dn = L("oglob"), L("odone")
            a("s_cmp_eq_u32 s66, 0"); a(f"s_cbranch_scc1 {gl}")
            a(f"global_store_dwordx2 v139, v[142:143], s[38:39] offset:{MB_O+512}")
            a(f"s_branch {dn}")
            a.label(gl)
            a(f"global_store_dwordx2 v139, v[142:143], s[38:39] offset:{MB_O+512} sc1")
            a(f"global_store_dwordx2 v139, v[140:141], s[38:39] offset:{MB_O} sc1")
            a.label(dn)
            a("v_mov_b32 v150, 1"); a(f"ds_write_b32 v14, v150 offset:{F_PUB}")
            a(f"s_setprio {hprio}")
        stamp("tail")
    a(f"s_cmp_lt_u32 s67, {NWO}"); a("s_cbranch_scc1 L_wo")
    a(f"s_cmp_lt_u32 s52, {NFFN}"); a("s_cbranch_scc1 L_ffn")
    a.label("L_none_go")
    a("s_cmp_lg_u32 s3, 7"); a("s_cbranch_scc1 L_tend")
    with live(): lds_wait(14, F_TICK, 4 * (T0 + 27), 150, 24)
    opub()
    a("s_branch L_tend")

    c("---- wo role: 256 rows (this pair's heads) x 64 columns ----")
    a.label("L_wo")
    a(f"s_mul_i32 s12, s4, {16*MB}"); a("s_lshl_b32 s13, s3, 7"); a("s_add_u32 s12, s12, s13")
    a("v_and_b32 v3, 7, v0"); a(f"v_mul_u32_u24 v2, {2*MB}, v3"); a("v_lshrrev_b32 v4, 3, v0"); a("v_lshl_add_u32 v2, v4, 4, v2"); a("v_add_u32 v2, s12, v2")
    a(f"v_add_u32 v8, {MB}, v2")
    a("v_lshrrev_b32 v5, 4, v0"); a("v_lshlrev_b32 v5, 3, v5"); a("v_lshl_add_u32 v5, v3, 5, v5")
    a("s_lshl_b32 s13, s3, 8"); a("v_add_u32 v5, s13, v5")
    a("s_mul_i32 s12, s4, 2560"); a("s_lshl_b32 s13, s6, 8"); a("s_add_u32 s12, s12, s13"); a("v_add_u32 v7, s12, v6")
    a(f"v_add_u32 v6, {L_YL}, v6")
    for j in range(8): a(f"v_mov_b32 v{40+j}, 0")
    a("s_mov_b32 s44, s24"); a("s_mov_b32 s45, s25"); a(f"s_mov_b32 s46, {4096*1280}"); a("s_mov_b32 s47, 0x20000")
    a("s_lshl_b32 s50, s4, 3"); a("s_add_u32 s50, s50, s3"); a(f"s_mul_i32 s50, s50, {32*1280}")
    a("s_lshl_b32 s51, s6, 7"); a("s_add_u32 s50, s50, s51")
    a(f"v_mul_u32_u24 v9, {4*1280}, v4"); a("v_lshl_add_u32 v9, v3, 4, v9")
    lds_wait(14, F_TICK, 4 * (T0 + wo_at - 3), 150, 24)
    a.label("L_wo_go")
    c("the weights are fetched once the streamers' last loads are out")
    with live():
        lds_wait(14, F_TICK, 4 * (T0 + wo_at), 150, 2)
        for t in range(4): a(f"buffer_load_dwordx4 v[{W0+4*t}:{W0+4*t+3}], v9, s[44:47], s50 offen offset:{t*1280} nt")
    a("s_cmp_lg_u32 s3, 7"); a("s_cbranch_scc1 L_wo_np")
    opub()
    a("s_branch L_wo_p")
    a.label("L_wo_np")
    with live(): lds_wait(14, F_PUB, 1, 150, 1)
    a.label("L_wo_p")
    def io(v, d): return (lambda: a(f"global_load_dwordx4 v[{d}:{d+3}], v{v}, s[38:39] offset:{MB_O} sc1"), range(d, d + 4))
    def so():
        for j in range(4): a(f"v_add_f32 v{16+j}, v{24+j}, v{28+j}")
    G1 = [io(2, 24), io(8, 28)]
    if early1:
        with live():
            for g, _ in G1: g()
    a(f"s_waitcnt vmcnt({2 if early1 else 0})")
    PW = pair_perm([[W0 + 4 * t + j for j in range(4)] for t in range(4)], 136)
    with live(): spoll(G1, so, range(16, 20), 14, issued=early1)
    stamp("e1")
    for pat in ("quad_perm:[1,0,3,2]", "quad_perm:[2,3,0,1]", "row_half_mirror"):
        for j in range(4): a(f"v_add_f32_dpp v{16+j}, v{16+j}, v{16+j} {pat} {FULL}")
    for i in range(2): a(f"v_cvt_pk_bf16_f32 v{32+i}, v{16+2*i}, v{17+2*i}")
    for i in range(2):
        for j in range(8): a(f"v_dot2c_f32_bf16 v{40+j}, v{32+i}, v{PW[i][j]}")
    red_g8(list(range(40, 48)), 48)
    a(f"v_add_f32_dpp v48, v48, v48 row_ror:8 {FULL}"); a(f"v_add_f32_dpp v49, v49, v49 row_ror:8 {FULL}")
    a(f"ds_write_b64 v5, v[48:49] offset:{L_YL}")
    a("s_waitcnt lgkmcnt(0)")
    with live(): a("s_barrier")
    a("s_cmp_lg_u32 s3, 0"); a("s_cbranch_scc1 L_tend")
    for w in range(4): a(f"ds_read2st64_b32 v[{16+2*w}:{17+2*w}], v6 offset0:{2*w} offset1:{2*w+1}")
    a("s_waitcnt lgkmcnt(0)")
    a("v_pk_add_f32 v[16:17], v[16:17], v[18:19]"); a("v_pk_add_f32 v[20:21], v[20:21], v[22:23]"); a("v_pk_add_f32 v[16:17], v[16:17], v[20:21]")
    a("v_add_f32 v16, v16, v17")
    guard([16])
    with live(): a("global_store_dword v7, v16, s[76:77] sc1")
    stamp("y_pub")
    a("s_branch L_tend")

    c("---- ffn role: 32 columns of w_gate / w_up, 32 rows of w_down ----")
    a.label("L_ffn")
    a("v_lshrrev_b32 v2, 4, v0"); a("v_and_b32 v3, 15, v0")
    a("s_min_u32 s12, s3, 4"); a("s_lshl_b32 s12, s12, 8")
    a("v_lshrrev_b32 v5, 1, v2"); a("v_lshlrev_b32 v5, 7, v5"); a("v_lshl_add_u32 v5, v3, 3, v5")
    a("v_and_b32 v4, 1, v2"); a("v_lshl_add_u32 v5, v4, 2, v5"); a("v_add_u32 v5, s12, v5")
    a("global_load_dword v11, v5, s[16:17]")
    a("s_lshl_b32 s12, s3, 9")
    a("v_mul_u32_u24 v4, 10240, v2"); a("v_lshl_add_u32 v4, v3, 4, v4"); a("v_add_u32 v4, s12, v4"); a("v_add_u32 v62, 5120, v4")
    a("v_lshlrev_b32 v5, 1, v5")
    a("s_lshl_b32 s13, s3, 3"); a("v_mov_b32 v6, s13"); a("v_mov_b32 v63, 0")
    a("v_lshrrev_b32 v7, 2, v0"); a("v_mul_u32_u24 v7, 40, v7"); a("s_and_b32 s13, s3, 3"); a("s_mul_i32 s13, s13, 640"); a("v_add_u32 v7, s13, v7")
    a("v_and_b32 v8, 3, v0"); a("v_lshlrev_b32 v8, 5, v8"); a("v_lshl_add_u32 v8, v2, 3, v8"); a("s_lshl_b32 s13, s3, 7"); a("v_add_u32 v8, s13, v8")
    a("v_and_b32 v9, 7, v0"); a("v_lshl_add_u32 v9, v2, 3, v9"); a("v_lshlrev_b32 v9, 2, v9"); a(f"v_add_u32 v9, {L_GU}, v9")
    a("s_mul_i32 s13, s52, 2560"); a("s_add_u32 s13, s13, s12"); a("v_lshlrev_b32 v10, 3, v0"); a("v_add_u32 v10, s13, v10")
    for j in range(8): a(f"v_mov_b32 v{52+j}, 0")
    a(f"s_mov_b32 s14, {LOG2E:#x}")
    PD = pair_perm([[W0 + 40 + 4 * t + j for j in range(4)] for t in range(8)], 137)
    gu_setup(15, 1)
    lds_wait(14, F_MARK, 1, 150, 8)
    a("s_waitcnt vmcnt(0)")
    a("v_and_b32 v13, 0xffff0000, v11"); a("v_lshlrev_b32 v12, 16, v11")
    lds_wait(14, F_TICK, 4 * (T0 + 27), 150, 24)
    YI = [140, 148, 156, 24]
    HV = 40
    def iy(u):
        v, o = (4, 62)[u // 2], 2560 * (u % 2)
        return (lambda: (a(f"global_load_dwordx4 v[{YI[u]}:{YI[u]+3}], v{v}, s[76:77] offset:{o} sc1"),
                         a(f"global_load_dwordx4 v[{YI[u]+4}:{YI[u]+7}], v{v}, s[76:77] offset:{o+256} sc1")), range(YI[u], YI[u] + 8))
    G2 = [iy(u) for u in range(4)]
    a.label("L_ffn_go")
    a("s_cmp_eq_u32 s3, 7"); a("s_cbranch_scc1 L_ffn_pub")
    with live(): lds_wait(14, F_TICK, 4 * (T0 + ffn_at), 150, 2)
    for t0 in (0, 4, 8):
        with live():
            for t in range(t0, min(t0 + 4, 10)): gu_load(t, 15)
    if early2:
        a("s_cmp_ge_u32 s3, 5"); a("s_cbranch_scc1 L_ffn_w0")
        with live():
            for g, _ in G2: g()
        a("s_waitcnt vmcnt(8)")
        a("s_branch L_ffn_have")
    else:
        a("s_branch L_ffn_w0")
    a.label("L_ffn_pub")
    opub()
    a.label("L_ffn_w0")
    a("s_waitcnt vmcnt(0)")
    a.label("L_ffn_have")
    stamp("x1")
    PG = pair_perm([[W0 + 4 * t + j for j in range(4)] for t in range(10)], 136)
    a("s_cmp_ge_u32 s3, 5"); a("s_cbranch_scc1 L_h_wait")
    def sy():
        for j in range(0, 8, 2):
            a(f"v_pk_add_f32 v[{16+j}:{17+j}], v[{YI[0]+j}:{YI[0]+j+1}], v[{YI[1]+j}:{YI[1]+j+1}]")
            a(f"v_pk_add_f32 v[{32+j}:{33+j}], v[{YI[2]+j}:{YI[2]+j+1}], v[{YI[3]+j}:{YI[3]+j+1}]")
        for j in range(0, 8, 2): a(f"v_pk_add_f32 v[{16+j}:{17+j}], v[{16+j}:{17+j}], v[{32+j}:{33+j}]")
    with live(): spoll(G2, sy, range(16, 24), 14, issued=early2)
    stamp("e2")
    c("h = bf16(x + bf16(attention output)); mean and centred sum of squares of this wave's 128 values (shifted by one of them)")
    red_g8(list(range(16, 24)), 32)
    a("v_cvt_pk_bf16_f32 v34, v32, v33"); a("v_lshlrev_b32 v32, 16, v34"); a("v_and_b32 v33, 0xffff0000, v34")
    a("v_pk_add_f32 v[32:33], v[32:33], v[12:13]")
    a("v_cvt_pk_bf16_f32 v34, v32, v33"); a("v_lshlrev_b32 v32, 16, v34"); a("v_and_b32 v33, 0xffff0000, v34")
    a(f"ds_write_b64 v5, v[32:33] offset:{L_H}")
    a("v_readfirstlane_b32 s12, v32")
    a("v_subrev_f32 v34, s12, v32"); a("v_subrev_f32 v35, s12, v33")
    a("v_add_f32 v36, v34, v35"); a("v_mul_f32 v37, v34, v34"); a("v_fmac_f32 v37, v35, v35")
    for r in (8, 4, 2, 1):
        a(f"v_add_f32_dpp v36, v36, v36 row_ror:{r} {FULL}"); a(f"v_add_f32_dpp v37, v37, v37 row_ror:{r} {FULL}")
    a("v_permlane16_swap_b32 v36, v37"); a("v_add_f32 v36, v36, v37")
    a("v_mov_b32 v37, v36"); a("v_permlane32_swap_b32 v36, v37"); a("v_add_f32 v36, v36, v37")
    a("v_mov_b32 v37, v36"); a("v_permlane16_swap_b32 v36, v37")
    a("v_mul_f32 v38, 0x3c000000, v36")
    a("v_fma_f32 v39, -v38, v36, v37"); a("v_add_f32 v38, s12, v38")
    a(f"ds_write_b64 v6, v[38:39] offset:{L_ST}")
    a("s_waitcnt lgkmcnt(0)")
    a.label("L_h_wait")
    with live(): a("s_barrier")
    c("combine the five (mean, M2) pairs, normalise this lane's 10 rows, gate / up dot products")
    a(f"ds_read_b128 v[32:35], v63 offset:{L_ST}"); a(f"ds_read_b128 v[36:39], v63 offset:{L_ST+16}"); a(f"ds_read_b64 v[22:23], v63 offset:{L_ST+32}")
    for i in range(5): a(f"ds_read_b64 v[{HV+2*i}:{HV+1+2*i}], v7 offset:{L_H+8*i}")
    a("s_waitcnt lgkmcnt(5)")
    a("v_pk_add_f32 v[50:51], v[32:33], v[34:35]"); a("v_pk_add_f32 v[60:61], v[36:37], v[38:39]")
    a("v_pk_add_f32 v[50:51], v[50:51], v[22:23]"); a("v_pk_add_f32 v[50:51], v[50:51], v[60:61]")
    a("v_mul_f32 v50, 0x3e4ccccd, v50")
    for r in (32, 34, 36, 38, 22): a(f"v_sub_f32 v{r}, v{r}, v50")
    rbf(50, 50)
    var = ["v_mul_f32 v60, v32, v32"] + [f"v_fmac_f32 v60, v{r}, v{r}" for r in (34, 36, 38, 22)] + [
        "v_fmac_f32 v51, 0x43000000, v60", f"v_mul_f32 v61, {INV640:#x}, v51",
        "v_cvt_pk_bf16_f32 v61, v61, v61", "v_and_b32 v61, 0xffff0000, v61", f"v_add_f32 v61, {EPS:#x}, v61",
        "v_cvt_pk_bf16_f32 v61, v61, v61", "v_and_b32 v61, 0xffff0000, v61", "v_sqrt_f32 v61, v61",
        "v_cvt_pk_bf16_f32 v61, v61, v61", "v_and_b32 v61, 0xffff0000, v61", "v_rcp_f32 v61, v61"]
    cen = [f"v_pk_add_f32 v[{HV+2*i}:{HV+1+2*i}], v[{HV+2*i}:{HV+1+2*i}], v[50:51] op_sel_hi:[1,0] neg_lo:[0,1] neg_hi:[0,1]" for i in range(5)]
    cen += [f"v_cvt_pk_bf16_f32 v{16+i}, v{HV+2*i}, v{HV+1+2*i}" for i in range(5)]
    for i in range(5): cen += [f"v_lshlrev_b32 v{HV+2*i}, 16, v{16+i}", f"v_and_b32 v{HV+1+2*i}, 0xffff0000, v{16+i}"]
    a("s_waitcnt lgkmcnt(0)")
    while var or cen:
        if var: a(var.pop(0))
        if cen: a(cen.pop(0))
    for i in range(5): a(f"v_pk_mul_f32 v[{HV+2*i}:{HV+1+2*i}], v[{HV+2*i}:{HV+1+2*i}], v[60:61] op_sel:[0,1] op_sel_hi:[1,1]")
    for i in range(5): a(f"v_cvt_pk_bf16_f32 v{16+i}, v{HV+2*i}, v{HV+1+2*i}")
    for i in range(5):
        for j in range(8):
            if i == 0: a(f"v_dot2_f32_bf16 v{40+j}, v{16+i}, v{PG[i][j]}, 0")
            else: a(f"v_dot2c_f32_bf16 v{40+j}, v{16+i}, v{PG[i][j]}")
    red_g8(list(range(40, 48)), 48)
    for r in (8, 4):
        a(f"v_add_f32_dpp v48, v48, v48 row_ror:{r} {FULL}"); a(f"v_add_f32_dpp v49, v49, v49 row_ror:{r} {FULL}")
    a(f"ds_write_b64 v8, v[48:49] offset:{L_GU}")
    a("s_waitcnt lgkmcnt(0)")
    with live(): a("s_barrier")
    stamp("gu")
    a("s_cmp_ge_u32 s3, 5"); a("s_cbranch_scc1 L_final")
    c("act = bf16(bf16(silu(g)) * u), then this workgroup's 32 rows of w_down")
    for w in range(4): a(f"ds_read2_b32 v[{16+2*w}:{17+2*w}], v9 offset0:{32*w} offset1:{32*w+128}")
    a("s_waitcnt lgkmcnt(0)")
    a("v_pk_add_f32 v[16:17], v[16:17], v[18:19]"); a("v_pk_add_f32 v[20:21], v[20:21], v[22:23]"); a("v_pk_add_f32 v[16:17], v[16:17], v[20:21]")
    a("v_cvt_pk_bf16_f32 v20, v16, v17"); a("v_lshlrev_b32 v16, 16, v20"); a("v_mul_f32 v17, s14, v16"); a("v_exp_f32 v17, -v17")
    a("v_and_b32 v20, 0xffff0000, v20"); a("v_add_f32 v17, 1.0, v17"); a("v_rcp_f32 v17, v17")
    a("v_mul_f32 v16, v16, v17"); rbf(16, 16)
    a("v_mul_f32 v16, v16, v20")
    a(f"v_mov_b32_dpp v17, v16 quad_perm:[1,0,3,2] {FULL}")
    a("v_cvt_pk_bf16_f32 v16, v16, v17")
    for i in range(4):
        for j in range(8): a(f"v_dot2c_f32_bf16_dpp v{52+j}, v16, v{PD[i][j]} row_newbcast:{2*i} {FULL}")
    red_g8(list(range(52, 60)), 60)
    guard([60, 61])
    with live(): a("global_store_dwordx2 v10, v[60:61], s[78:79] sc1")
    stamp("f_pub")
    a("s_branch L_tend")
    c("---- final sum: helper 5 of the first 20 ffn workgroups, 32 outputs each ----")
    a.label("L_final")
    a("s_cmp_lg_u32 s3, 5"); a("s_cbranch_scc1 L_tend")
    a(f"s_cmp_ge_u32 s52, {NFIN}"); a("s_cbranch_scc1 L_tend")
    a("s_mov_b32 s44, s78"); a("s_mov_b32 s45, s79"); a(f"s_mov_b32 s46, {NFFN*2560}"); a("s_mov_b32 s47, 0x20000")
    a("v_lshrrev_b32 v4, 3, v0"); a("v_mul_u32_u24 v4, 2560, v4"); a("v_and_b32 v5, 7, v0"); a("v_lshl_add_u32 v4, v5, 4, v4")
    a("s_lshl_b32 s12, s52, 7"); a("v_add_u32 v4, s12, v4")
    a("v_lshl_add_u32 v5, v5, 2, v2"); a("v_and_b32 v6, 1, v5"); a("v_lshrrev_b32 v5, 1, v5"); a("v_lshl_add_u32 v5, v5, 3, v6")
    a("s_lshr_b32 s12, s52, 2"); a("s_lshl_b32 s12, s12, 7"); a("s_and_b32 s13, s52, 3"); a("s_lshl_b32 s13, s13, 1"); a("s_add_u32 s12, s12, s13")
    a("v_add_u32 v5, s12, v5")
    a("v_lshlrev_b32 v6, 2, v5"); a("v_lshlrev_b32 v5, 1, v5")
    a(f"ds_read_b32 v7, v6 offset:{L_H}")
    for i in range(1, 7): a(f"s_mov_b32 s{80+i}, {8*2560*i}")
    a("s_mov_b32 s12, 0x00ff00ff"); a("s_mov_b32 s13, 0x00ff00ff")
    def i3(i):
        return (lambda: a(f"buffer_load_dwordx4 v[{104+4*i}:{107+4*i}], v4, s[44:47], " + ("0" if i == 0 else f"s{80+i}") + " offen sc1"), range(104 + 4 * i, 108 + 4 * i))
    def s3():
        for j in (0, 2):
            a(f"v_pk_add_f32 v[{16+j}:{17+j}], v[{104+j}:{105+j}], v[{108+j}:{109+j}]")
            a(f"v_pk_add_f32 v[{20+j}:{21+j}], v[{112+j}:{113+j}], v[{116+j}:{117+j}]")
            a(f"v_pk_add_f32 v[{24+j}:{25+j}], v[{120+j}:{121+j}], v[{124+j}:{125+j}]")
        for j in (0, 2):
            a(f"v_pk_add_f32 v[{16+j}:{17+j}], v[{16+j}:{17+j}], v[{20+j}:{21+j}]")
            a(f"v_pk_add_f32 v[{24+j}:{25+j}], v[{24+j}:{25+j}], v[{128+j}:{129+j}]")
        for j in (0, 2): a(f"v_pk_add_f32 v[{16+j}:{17+j}], v[{16+j}:{17+j}], v[{24+j}:{25+j}]")
    with live(): spoll([i3(i) for i in range(7)], s3, range(16, 20), 14)
    stamp("e3")
    red_g4([16, 17, 18, 19], 20)
    a(f"v_add_f32_dpp v20, v20, v20 row_ror:8 {FULL}")
    rbf(20, 20)
    a("s_waitcnt lgkmcnt(0)")
    a("v_add_f32 v20, v20, v7"); a("v_cvt_pk_bf16_f32 v20, v20, v20")
    a("s_cbranch_execz L_warmed")
    a("s_mov_b64 exec, s[12:13]")
    a("global_store_short v5, v20, s[34:35]")
    a("s_cmp_lg_u32 s52, 0"); a("s_cbranch_scc1 L_noep")
    c("every workgroup has long read the epoch word: leave this launch's tag there")
    a("s_mov_b64 exec, 1")
    a(f"v_mov_b32 v5, {WS_EP:#x}"); a("v_mov_b32 v6, s15")
    a("global_store_dword v5, v6, s[38:39]")
    if dbl:
        a("s_memrealtime s[90:91]"); a("s_waitcnt lgkmcnt(0)")
        a("s_sub_u32 s92, s90, s88"); a(f"s_mul_i32 s92, s92, {dbl}"); a("s_add_u32 s92, s92, s90"); a("s_mov_b32 s60, 100000")
        a.label("L_dbl")
        a("s_memrealtime s[90:91]"); a("s_waitcnt lgkmcnt(0)"); a("s_sub_u32 s93, s90, s92"); a("s_cmp_ge_i32 s93, 0"); a("s_cbranch_scc1 L_noep")
        a("s_sub_u32 s60, s60, 1"); a("s_cbranch_scc0 L_dbl")
    a.label("L_noep")
    a("s_mov_b64 exec, -1")
    stamp("out")
    a.label("L_tend")
    a("s_cbranch_execz L_warmed")
    a.label("L_fin")
    if diag:
        a("s_add_u32 s90, s38, 0x10000000"); a("s_addc_u32 s91, s39, 0")
        a(f"s_mul_i32 s92, s2, {NWAVE}"); a("s_add_u32 s92, s92, s93"); a("s_lshl_b32 s92, s92, 8")
        a(f"v_lshlrev_b32 v{SV+1}, 2, v0"); a(f"v_add_u32 v{SV+1}, s92, v{SV+1}")
        a(f"global_store_dword v{SV+1}, v{SV}, s[90:91]")
    a.label("L_exit")
    a("s_endpgm")
    nv = 168
    a.raw('.section .rodata,"a"'); a.raw(".p2align 6"); a.raw(f".amdhsa_kernel {KN}")
    a.raw(f"  .amdhsa_next_free_vgpr {nv}"); a.raw("  .amdhsa_next_free_sgpr 96"); a.raw(f"  .amdhsa_accum_offset {nv}")
    a.raw("  .amdhsa_group_segment_fixed_size 0"); a.raw("  .amdhsa_kernarg_size 96"); a.raw("  .amdhsa_user_sgpr_count 2")
    a.raw("  .amdhsa_user_sgpr_kernarg_segment_ptr 1"); a.raw("  .amdhsa_system_sgpr_workgroup_id_x 1")
    a.raw("  .amdhsa_float_denorm_mode_32 3")
    a.raw(".end_amdhsa_kernel")
    return a.text(), stampn

if __name__ == "__main__":
    out = sys.argv[1]
    kw = eval("dict(%s)" % sys.argv[2]) if len(sys.argv) > 2 else {}
    t, st = gen(**kw)
    open(out, "w").write(t)
    print("wrote", out, len(t.splitlines()), "lines", st)
```

```python
import sys
sys.path.insert(0, "work")
from asmlib import Asm

KN = "sequential_preLN__mha_block_cached__swiglu_ffn__decode_kernel"
HEADER = open("sequential_preLN__mha_block_cached__swiglu_ffn__decode.s.ref").read().split("; Override launch")[0]

MB = 4352
MB_ST = 512
MB_MK = 768
MB_O = 1024
WS_EP = 0x110000
WS_PG = 0x118000
WS_YP = 0x120000
WS_FP = 0x130000
F_QARR, F_QGOT, F_KDONE, F_PRDY, F_OA, F_MODE, F_TICK, F_OB, F_MARK, F_SAME, F_PUB, F_FACK = 0, 4, 8, 16, 24, 28, 44, 48, 52, 56, 60, 64
L_Q = 256
L_QS = 768
L_SC = 2048
L_PP = L_SC + 32768
L_OL = L_PP + 16384
L_YL = L_OL + 4096
L_H = L_YL + 2048
L_GU = L_H + 2560
L_ST = L_GU + 1024
L_CS = L_ST + 64
L_T = L_CS + 1024
L_END = L_T + 320
NWO, NFFN, NFIN = 160, 54, 20
NWAVE = 12
SPIN = 400000
LSPIN = 4000000
LOG2E = 0x3fb8aa3b
SCALE = 0x3db504f3
INV640 = 0x3acccccd
EPS = 0x3727c5ac
FULL = "row_mask:0xf bank_mask:0xf"

DOC = """;
;  * Every bf16 rounding of the reference is reproduced (LN steps, q, scores twice, p, o, attention output, h, g, silu, u, act, down).
;    producer wrote earlier in this launch.  The 16 workgroups of a head pair find out at run time (XCC id inside the q tags) whether
"""

def gen(diag=False, dbl=0, DS=(5, 6, 8), F=6, hprio=1, stag=2, QTO=12, gov=(-1, 4), gsleep=2, gbias=8, wo_at=31, ffn_at=32, lastit=3,
        early1=False, pre1=True, preA=20, touchB=False, e3ack=1, sprio=1, swap=True, gupol='nt', early2=False, probe=0, fold=True):
    a = Asm()
    c = a.comment
    uid = [0]
    def L(n):
        uid[0] += 1
        return f"L_{n}_{uid[0]}"
    stampn = {}
    SV = 166
    T0 = 18 - F + 16
    def stamp(name):
        if not diag: return
        if diag == 1 and name not in ("start", "v_done", "out"): return
        i = stampn.setdefault(name, len(stampn))
        sk = L("st"); a(f"s_cbranch_execz {sk}")
        a("s_memrealtime s[90:91]"); a("s_waitcnt lgkmcnt(0)"); a(f"v_writelane_b32 v{SV}, s90, {i}")
        a.label(sk)
    class live:
        def __enter__(s_): s_.l = L("live"); a(f"s_cbranch_execz {s_.l}")
        def __exit__(s_, *x): a.label(s_.l)
    def lane0(ins): a("s_mov_b64 exec, 1"); a(ins); a("s_mov_b64 exec, -1")
    def rbf(dst, src):
        a(f"v_cvt_pk_bf16_f32 v{dst}, v{src}, v{src}"); a(f"v_and_b32 v{dst}, 0xffff0000, v{dst}")
    def rowred(op, v):
        for r in (8, 4, 2, 1): a(f"{op}_dpp v{v}, v{v}, v{v} row_ror:{r} {FULL}")
    def allred(op, v, t):
        rowred(op, v)
        a(f"v_mov_b32 v{t}, v{v}"); a(f"v_permlane16_swap_b32 v{v}, v{t}"); a(f"{op} v{v}, v{v}, v{t}")
        a(f"v_mov_b32 v{t}, v{v}"); a(f"v_permlane32_swap_b32 v{v}, v{t}"); a(f"{op} v{v}, v{v}, v{t}")
    def red_g8(r, dst):
        for j in range(4): a(f"v_permlane32_swap_b32 v{r[j]}, v{r[j+4]}")
        for j in range(4): a(f"v_add_f32 v{r[j]}, v{r[j]}, v{r[j+4]}")
        a(f"v_permlane16_swap_b32 v{r[0]}, v{r[2]}"); a(f"v_permlane16_swap_b32 v{r[1]}, v{r[3]}")
        a(f"v_add_f32 v{dst}, v{r[0]}, v{r[2]}"); a(f"v_add_f32 v{dst+1}, v{r[1]}, v{r[3]}")
    def red_g4(r, dst):
        a(f"v_permlane32_swap_b32 v{r[0]}, v{r[2]}"); a(f"v_permlane32_swap_b32 v{r[1]}, v{r[3]}")
        a(f"v_add_f32 v{r[0]}, v{r[0]}, v{r[2]}"); a(f"v_add_f32 v{r[1]}, v{r[1]}, v{r[3]}")
        a(f"v_permlane16_swap_b32 v{r[0]}, v{r[1]}")
        a(f"v_add_f32 v{dst}, v{r[0]}, v{r[1]}")
    def guard(regs):
        for r in regs: a(f"v_min_u32 v{r}, -2, v{r}")
    def umax(t, rs):
        rs = list(rs)
        a(f"v_max3_u32 v{t}, v{rs[0]}, v{rs[1]}, v{rs[2]}"); rs = rs[3:]
        while len(rs) >= 2: a(f"v_max3_u32 v{t}, v{t}, v{rs[0]}, v{rs[1]}"); rs = rs[2:]
        if rs: a(f"v_max_u32 v{t}, v{t}, v{rs[0]}")
    def spoll(groups, sums, outs, t, issued=False):
        top, done = L("spoll"), L("spolled")
        a(f"s_mov_b32 s60, {SPIN}")
        if not issued:
            for g, _ in groups: g()
        a.label(top)
        a("s_waitcnt vmcnt(0)")
        sums(); umax(t, outs)
        a(f"v_cmp_eq_u32 vcc, -1, v{t}"); a(f"s_cbranch_vccz {done}")
        for g, rs in groups:
            sk = L("gsk")
            umax(t, rs)
            a(f"v_cmp_eq_u32 vcc, -1, v{t}"); a(f"s_cbranch_vccz {sk}")
            a("s_mov_b64 exec, vcc"); g(); a("s_mov_b64 exec, -1")
            a.label(sk)
        a("s_sub_u32 s60, s60, 1"); a(f"s_cbranch_scc0 {top}")
        a("s_waitcnt vmcnt(0)")
        a.label(done)
    def pub2(ins):
        gl, dn = L("glob"), L("pubd")
        a("s_cmp_eq_u32 s66, 0"); a(f"s_cbranch_scc1 {gl}")
        a(ins); a(f"s_branch {dn}")
        a.label(gl); a(ins + " sc1"); a.label(dn)
    def lds_wait(vaddr, off, val, t, slp):
        top, done = L("lw"), L("lwd")
        a(f"s_mov_b32 s60, {LSPIN}")
        a.label(top)
        a(f"ds_read_b32 v{t}, v{vaddr} offset:{off}"); a("s_waitcnt lgkmcnt(0)")
        a(f"v_cmp_gt_u32 vcc, {val}, v{t}"); a(f"s_cbranch_vccz {done}")
        if slp: a(f"s_sleep {slp}")
        a("s_sub_u32 s60, s60, 1"); a(f"s_cbranch_scc0 {top}")
        a.label(done)
    def lds_signal(vaddr, off, one):
        a("s_waitcnt lgkmcnt(0)"); lane0(f"ds_add_u32 v{vaddr}, v{one} offset:{off}")
    def pair_perm(W, spare, before=None, after=None):
        out = []
        for t in range(0, len(W), 2):
            cols = []
            if before: before(t // 2)
            for j in range(4):
                A_, B_ = W[t][j], W[t + 1][j]
                a(f"v_perm_b32 v{spare}, v{B_}, v{A_}, s70"); a(f"v_perm_b32 v{B_}, v{B_}, v{A_}, s71")
                cols += [spare, B_]; spare = A_
            out.append(cols)
            if after: after(t // 2, cols)
        return out

    a.raw(HEADER.rstrip("\n"))
    a.raw(f"; @launch grid=(256,1,1) block=({64*NWAVE},1,1) lds={L_END}")
    a.raw(DOC.rstrip("\n"))
    a.raw('.amdgcn_target "amdgcn-amd-amdhsa--gfx950"')
    a.raw(".text"); a.raw(f".globl {KN}"); a.raw(".p2align 8"); a.raw(f".type {KN},@function")
    a.label(KN)
    a("s_cmp_ge_u32 s2, 256"); a("s_cbranch_scc1 L_exit")
    if dbl: a("s_memrealtime s[88:89]")
    a("s_load_dwordx16 s[16:31], s[0:1], 0"); a("s_load_dwordx8 s[32:39], s[0:1], 64")
    a("v_lshrrev_b32 v1, 6, v0"); a("v_and_b32 v0, 63, v0"); a("v_readfirstlane_b32 s3, v1")
    if diag: a(f"v_mov_b32 v{SV}, 0")
    a("v_lshlrev_b32 v1, 4, v0")
    c("logical id: round-robin placement deals the 16 workgroups of a head pair to one XCD (speed only); s4 = pair, s67 = role id")
    a("s_and_b32 s4, s2, 7"); a("s_lshl_b32 s4, s4, 5"); a("s_lshr_b32 s2, s2, 3"); a("s_or_b32 s2, s2, s4")
    a("s_lshr_b32 s4, s2, 4")
    if diag: a("s_mov_b32 s93, s3")
    a("s_and_b32 s67, s2, 15"); a("s_lshl_b32 s67, s67, 4"); a("s_add_u32 s67, s67, s4")
    a("s_cmp_ge_u32 s3, 4"); a("s_cbranch_scc1 L_helper")

    c("================= streamers =================")
    R0 = 36
    ring = [8]
    def slot(ck, i): return R0 + 16 * (ck % ring[0]) + 4 * i
    def issue_chunk(ck, pacer=None, lo=0, hi=4):
        for i in range(lo, hi):
            if pacer: pacer()
            s = slot(ck, i)
            a(f"buffer_load_dwordx4 v[{s}:{s+3}], v1, s[8:11], s12 offen offset:{1024*i} nt")
        if hi == 4: a("s_add_u32 s12, s12, 0x4000"); a("s_and_b32 s12, s12, 0x3ffff")
    a("s_and_b32 s5, s2, 15")
    a("s_lshl_b32 s13, s4, 23"); a("s_lshl_b32 s14, s5, 18"); a("s_add_u32 s13, s13, s14")
    a(f"s_mul_i32 s12, s5, {stag*0x4000}"); a("s_and_b32 s12, s12, 0x3ffff")
    a("s_lshl_b32 s14, s3, 12"); a("s_add_u32 s12, s12, s14")
    a("s_mov_b32 s10, 0x40000"); a("s_mov_b32 s11, 0x20000")
    a("s_waitcnt lgkmcnt(0)")
    a("s_add_u32 s8, s18, s13"); a("s_addc_u32 s9, s19, 0")
    stamp("start")
    issue_chunk(0); issue_chunk(1, None, 0, 2)
    a(f"s_add_u32 s14, s14, {L_SC}")
    a("v_lshlrev_b32 v20, 2, v0"); a("v_add_u32 v20, s14, v20")
    a("v_and_b32 v21, 15, v0"); a("v_lshlrev_b32 v21, 4, v21")
    a("v_mov_b32 v22, 0"); a("v_mov_b32 v23, 1"); a("v_mov_b32 v3, 0")
    a("s_barrier")
    a(f"s_sub_u32 s15, s67, {NWO}"); a(f"s_cmp_lt_u32 s15, {NFFN}"); a("s_cselect_b32 s15, 2, 1")
    def tick(rd):
        lane0(f"ds_add_u32 v3, v23 offset:{F_TICK}")
        if rd: a(f"ds_read_b32 v2, v3 offset:{F_MODE}")
    def gmode(rd, last=False):
        if not rd: return
        a("s_waitcnt lgkmcnt(0)"); a("v_readfirstlane_b32 s45, v2")
        a("s_sub_u32 s45, s45, 1"); a("s_cselect_b32 s15, s15, s45")
        if last: a("s_cmp_ge_u32 s6, s44"); a("s_cselect_b32 s15, 2, s15")
    def pace():
        go = L("go")
        a(f"s_waitcnt vmcnt({DS[2]-1})"); a("s_cmp_ge_u32 s15, 2"); a(f"s_cbranch_scc1 {go}")
        a(f"s_waitcnt vmcnt({DS[1]-1})"); a("s_cmp_ge_u32 s15, 1"); a(f"s_cbranch_scc1 {go}")
        a(f"s_waitcnt vmcnt({DS[0]-1})")
        a.label(go)
    assert DS[2] <= 8
    c("run ahead until q is there")
    for ck in range(1, F): issue_chunk(ck, lambda: a(f"s_waitcnt vmcnt({DS[1]-1})"), (2 if ck == 1 else 0))
    lds_wait(22, F_QGOT, 4, 8, 1)
    a(f"ds_read_b128 v[4:7], v21 offset:{L_Q}"); a(f"ds_read_b128 v[16:19], v21 offset:{L_Q+256}")
    a("s_waitcnt lgkmcnt(0)")
    def switch_point():
        a("s_cmp_eq_u32 s6, 3")
        a("s_cselect_b32 s8, s40, s8"); a("s_cselect_b32 s9, s41, s9"); a("s_cselect_b32 s10, s43, s10")
    def proc_k(ck, q, off):
        for j in range(4):
            for i in range(4):
                a(f"v_dot2_f32_bf16 v{8+i}, v{slot(ck,i)+j}, v{q+j}, " + ("0" if j == 0 else f"v{8+i}"))
        a("v_add_f32_dpp v12, v8, v8 row_ror:8 row_mask:0xf bank_mask:0x3")
        a("v_add_f32_dpp v13, v10, v10 row_ror:8 row_mask:0xf bank_mask:0x3")
        a("v_add_f32_dpp v12, v9, v9 row_ror:8 row_mask:0xf bank_mask:0xc")
        a("v_add_f32_dpp v13, v11, v11 row_ror:8 row_mask:0xf bank_mask:0xc")
        a("v_add_f32_dpp v14, v12, v12 row_half_mirror row_mask:0xf bank_mask:0x5")
        a("v_add_f32_dpp v14, v13, v13 row_half_mirror row_mask:0xf bank_mask:0xa")
        a(f"ds_write_b32 v20, v14 offset:{off}")
    c("K of head A: the look-ahead shrinks to 2 chunks; once chunk n is issued at most 8 loads are out, so chunk n-2 has landed")
    n, since, burst = F, 9, 0
    for k in range(16):
        did = n - ring[0] < k and n < 18 and (n - k <= 2 or since >= 2 or burst < 2)
        if did:
            if n == 16: a("s_add_u32 s8, s8, 0x400000"); a("s_addc_u32 s9, s9, 0")
            issue_chunk(n, pace); n += 1; since = 0; burst += 1
            tick(True)
        assert k <= n - 3
        proc_k(k, 4, 256 * k)
        gmode(did)
        since += 1
    assert n == 18
    lds_signal(22, F_KDONE, 23)
    ring[0] = 4
    c("K of head B")
    a("s_add_u32 s40, s20, s13"); a("s_addc_u32 s41, s21, 0"); a("s_mov_b32 s43, 0x40000")
    a("s_mov_b32 s6, 0")
    a.label("L_kiter")
    for k in range(4):
        if k == 2: switch_point()
        issue_chunk(k + 2, pace)
        tick(k % 2 == 0)
        proc_k(k, 16, 0x4000 + 256 * k)
        gmode(k % 2 == 0)
    a("v_add_u32 v20, 0x400, v20")
    a("s_add_u32 s6, s6, 1"); a("s_cmp_lt_u32 s6, 4"); a("s_cbranch_scc1 L_kiter")
    lds_signal(22, F_KDONE + 4, 23)
    c("V of head A, then of head B")
    a("s_lshl_b32 s14, s3, 11"); a(f"s_add_u32 s14, s14, {L_PP}")
    a("v_lshlrev_b32 v20, 3, v0"); a("v_add_u32 v20, s14, v20")
    a("s_lshl_b32 s14, s3, 9"); a(f"s_add_u32 s14, s14, {L_OL}")
    a("v_and_b32 v21, 15, v0"); a("v_lshlrev_b32 v21, 5, v21"); a("v_lshrrev_b32 v8, 4, v0"); a("v_lshl_add_u32 v21, v8, 3, v21")
    a("v_add_u32 v21, s14, v21")
    a("s_add_u32 s40, s40, 0x400000"); a("s_addc_u32 s41, s41, 0")
    a("s_mov_b32 s7, 0"); a("s_mov_b32 s44, 99")
    a.label("L_vhead")
    lds_wait(22, F_PRDY, 1, 8, 1)
    for j in range(8): a(f"v_mov_b32 v{24+j}, 0")
    a("s_mov_b32 s6, 0")
    a.label("L_viter")
    a("ds_read_b64 v[32:33], v20")
    a("s_cmp_ge_u32 s6, s44"); a("s_cselect_b32 s15, 2, s15")
    for k in range(4):
        if k == 2: switch_point()
        if k >= 2:
            dr, go = L("drain"), L("drained")
            a("s_cmp_eq_u32 s10, 0"); a(f"s_cbranch_scc1 {dr}")
            issue_chunk(k + 2, pace)
            a(f"s_branch {go}")
            a.label(dr); a(f"s_waitcnt vmcnt({4*(3-k)})"); a.label(go)
        else:
            issue_chunk(k + 2, pace)
        if k == 0: a("s_waitcnt lgkmcnt(0)")
        tick(k % 2 == 0)
        for i in range(4):
            s = slot(k, i)
            ln = ((i & 1) << 3) | ((i >> 1) << 2) | k
            for j in range(4):
                a(f"v_dot2c_f32_bf16_dpp v{24+2*j}, v32, v{s+j} row_newbcast:{ln} {FULL}")
                a(f"v_dot2c_f32_bf16_dpp v{25+2*j}, v33, v{s+j} row_newbcast:{ln} {FULL}")
        gmode(k % 2 == 0, True)
    a("v_add_u32 v20, 0x200, v20")
    a("s_add_u32 s6, s6, 1"); a("s_cmp_lt_u32 s6, 4"); a("s_cbranch_scc1 L_viter")
    red_g8(list(range(24, 32)), 34)
    a("ds_write_b64 v21, v[34:35]")
    a("s_cmp_lg_u32 s7, 0"); a("s_cbranch_scc1 L_vend")
    lds_signal(22, F_OA, 23)
    a("v_add_u32 v20, 0x1800, v20"); a("v_add_u32 v21, 0x800, v21"); a("v_mov_b32 v22, 4")
    a("s_mov_b32 s43, 0"); a("s_mov_b32 s7, 1"); a(f"s_mov_b32 s44, {lastit}")
    a("s_branch L_vhead")
    a.label("L_vend")
    lane0(f"ds_add_u32 v3, v23 offset:{F_OB}")
    stamp("v_done")
    if fold:
        a(f"s_sub_u32 s12, s67, {NWO}"); a(f"s_cmp_ge_u32 s12, {NFFN}"); a("s_cbranch_scc1 L_fin")
        a("s_cmp_eq_u32 s3, 0"); a("s_cbranch_scc1 L_lnstat")
    a("s_branch L_fin")

    W0 = 64
    def gu_setup(vreg, tmp):
        a("s_cmp_lt_u32 s53, 4"); a("s_cselect_b32 s44, s28, s30"); a("s_cselect_b32 s45, s29, s31")
        a(f"s_mov_b32 s46, {640*3456}"); a("s_mov_b32 s47, 0x20000")
        a("s_and_b32 s50, s3, 3"); a(f"s_mul_i32 s50, s50, {160*3456}"); a("s_lshl_b32 s51, s52, 6"); a("s_add_u32 s50, s50, s51")
        for i in range(1, 5): a(f"s_add_u32 s{80+i}, s50, {2*3456*i}")
        a(f"v_lshrrev_b32 v{vreg}, 2, v0"); a(f"v_mul_u32_u24 v{vreg}, {10*3456}, v{vreg}"); a(f"v_and_b32 v{tmp}, 3, v0"); a(f"v_lshl_add_u32 v{vreg}, v{tmp}, 4, v{vreg}")
    def gu_load(t, vreg):
        a(f"buffer_load_dwordx4 v[{W0+4*t}:{W0+4*t+3}], v{vreg}, s[44:47], " + ("s50" if t < 2 else f"s{80+t//2}") + f" offen offset:{(t%2)*3456} {gupol}")
    c("================= helpers =================")
    a.label("L_helper")
    a("s_sub_u32 s3, s3, 4"); a("s_and_b32 s6, s2, 15"); a(f"s_sub_u32 s52, s67, {NWO}")
    if swap: a("s_and_b32 s53, s52, 1"); a("s_lshl_b32 s53, s53, 2"); a("s_xor_b32 s53, s53, s3")
    else: a("s_mov_b32 s53, s3")
    a("v_lshlrev_b32 v6, 2, v0"); a("v_mov_b32 v14, 0"); a("v_mov_b32 v15, 1")
    a("s_mov_b32 s70, 0x05040100"); a("s_mov_b32 s71, 0x07060302")
    a("s_cmp_ge_u32 s3, 4"); a("s_cbranch_scc1 L_helper2")
    c("---- helpers 0-3: LN(x), 160 rows x 64 columns of wq per workgroup, exchange inside the pair group ----")
    a("s_setprio 3")
    a("v_lshrrev_b32 v2, 3, v0"); a("v_and_b32 v3, 7, v0"); a("v_mul_u32_u24 v4, 5, v2")
    a("s_lshr_b32 s8, s6, 2"); a("s_lshl_b32 s8, s8, 2"); a("s_add_u32 s8, s8, s3"); a("s_mul_i32 s8, s8, 40")
    a("v_add_u32 v4, s8, v4")
    a("v_lshlrev_b32 v5, 13, v4"); a("v_lshl_add_u32 v5, v3, 4, v5"); a("v_lshlrev_b32 v4, 1, v4")
    a("s_lshl_b32 s9, s4, 9"); a("s_and_b32 s10, s6, 3"); a("s_lshl_b32 s10, s10, 7"); a("s_add_u32 s9, s9, s10")
    a(f"s_mov_b32 s46, {640*8192}"); a("s_mov_b32 s47, 0x20000")
    a("s_waitcnt lgkmcnt(0)")
    stamp("start")
    a(f"s_add_u32 s74, s38, {WS_EP}"); a("s_addc_u32 s75, s39, 0"); a("s_load_dword s15, s[74:75], 0")
    a("global_load_dwordx4 v[16:19], v1, s[16:17]"); a("global_load_dword v20, v6, s[16:17] offset:1024")
    for t in range(5): a(f"global_load_ushort v{21+t}, v4, s[16:17] offset:{2*t}")
    a("s_mov_b32 s44, s22"); a("s_mov_b32 s45, s23")
    for t in range(5):
        a(f"buffer_load_dwordx4 v[{64+4*t}:{64+4*t+3}], v5, s[44:47], s9 offen nt")
        if t < 4: a("s_add_u32 s9, s9, 0x2000")
    a("s_barrier")
    a("v_lshlrev_b32 v12, 2, v2"); a("v_lshl_add_u32 v12, v3, 5, v12")
    a("s_lshl_b32 s12, s3, 8"); a("v_add_u32 v12, s12, v12")
    a("s_mov_b32 s62, 0xff00ff00"); a("s_mov_b32 s63, 0xff00ff00")
    a("s_waitcnt vmcnt(5)")
    for i in range(5): a(f"v_and_b32 v{30+2*i+1}, 0xffff0000, v{16+i}"); a(f"v_lshlrev_b32 v{30+2*i}, 16, v{16+i}")
    X = list(range(30, 40))
    a("v_add_f32 v26, v30, v31")
    for r in X[2:]: a(f"v_add_f32 v26, v26, v{r}")
    allred("v_add_f32", 26, 28)
    a(f"v_mul_f32 v26, {INV640:#x}, v26")
    for i, r in enumerate(X):
        a(f"v_sub_f32 v28, v{r}, v26"); a("v_mul_f32 v27, v28, v28" if i == 0 else "v_fmac_f32 v27, v28, v28")
    allred("v_add_f32", 27, 28)
    a(f"v_mul_f32 v27, {INV640:#x}, v27"); rbf(27, 27); rbf(26, 26)
    a(f"v_add_f32 v27, {EPS:#x}, v27"); rbf(27, 27); a("v_sqrt_f32 v27, v27"); rbf(27, 27); a("v_rcp_f32 v27, v27")
    for t in range(5):
        a(f"v_lshlrev_b32 v{21+t}, 16, v{21+t}"); a(f"v_sub_f32 v{21+t}, v{21+t}, v26"); rbf(21 + t, 21 + t)
        a(f"v_mul_f32 v{21+t}, v{21+t}, v27")
        a(f"v_cvt_pk_bf16_f32 v{30+t}, v{21+t}, 0"); a(f"v_cvt_pk_bf16_f32 v{35+t}, 0, v{21+t}")
    for j in range(8): a(f"v_mov_b32 v{40+j}, 0")
    for t in range(5):
        a(f"s_waitcnt vmcnt({4-t})")
        for j in range(4):
            a(f"v_dot2c_f32_bf16 v{40+2*j}, v{30+t}, v{64+4*t+j}"); a(f"v_dot2c_f32_bf16 v{41+2*j}, v{35+t}, v{64+4*t+j}")
    red_g8(list(range(40, 48)), 48)
    a(f"v_add_f32_dpp v48, v48, v48 row_ror:8 {FULL}"); a(f"v_add_f32_dpp v49, v49, v49 row_ror:8 {FULL}")
    a("v_cndmask_b32 v48, v48, v49, s[62:63]")
    a(f"ds_write_b32 v12, v48 offset:{L_QS}")
    a("s_waitcnt lgkmcnt(0)")
    a("s_add_u32 s15, s15, 1")
    lane0(f"ds_add_rtn_u32 v13, v14, v15 offset:{F_QARR}")
    a("v_lshrrev_b32 v10, 5, v0"); a(f"v_mul_u32_u24 v12, {8*MB}, v10"); a("v_and_b32 v11, 31, v0"); a("v_lshl_add_u32 v12, v11, 4, v12")
    a("s_lshl_b32 s12, s4, 4"); a("s_add_u32 s12, s12, s3"); a(f"s_mul_i32 s12, s12, {MB}"); a("v_add_u32 v12, s12, v12")
    a(f"v_add_u32 v9, {4*MB}, v12")
    a("s_getreg_b32 s13, hwreg(HW_REG_XCC_ID, 0, 4)"); a("s_lshl_b32 s13, s13, 28"); a("s_xor_b32 s13, s13, s15")
    a(f"v_add_u32 v16, {L_QS}, v6")
    a(f"s_mul_i32 s14, s2, {MB}"); a("v_lshlrev_b32 v17, 3, v0"); a("v_add_u32 v17, s14, v17")
    a("s_waitcnt lgkmcnt(0)")
    a("v_readfirstlane_b32 s12, v13")
    def qpub(pol):
        a("ds_read2st64_b32 v[18:19], v16 offset0:0 offset1:1"); a("ds_read2st64_b32 v[20:21], v16 offset0:2 offset1:3")
        a("s_waitcnt lgkmcnt(0)")
        a("v_add_f32 v18, v18, v19"); a("v_add_f32 v20, v20, v21"); a("v_add_f32 v18, v18, v20"); a("v_mov_b32 v19, s13")
        a(f"global_store_dwordx2 v17, v[18:19], s[38:39]{pol}")
    a("s_cmp_lg_u32 s12, 3"); a("s_cbranch_scc1 L_qnopub")
    c("the last of the four waves publishes; first try: through this XCD's L2 only")
    qpub("")
    a.label("L_qnopub")
    a(f"s_mov_b32 s61, {SPIN}")
    a.label("L_qpoll")
    a("global_load_dwordx4 v[24:27], v12, s[38:39] sc1"); a("global_load_dwordx4 v[28:31], v9, s[38:39] sc1")
    a("s_waitcnt vmcnt(0)")
    for r in (25, 27, 29, 31): a(f"v_xor_b32 v{r}, s13, v{r}")
    a("v_or3_b32 v25, v25, v27, v29"); a("v_or_b32 v25, v25, v31"); a("v_and_b32 v27, 0x0fffffff, v25")
    a("v_cmp_ne_u32 vcc, 0, v27"); a("s_cbranch_vccz L_qpolled")
    a("s_sleep 1")
    a(f"s_cmp_lg_u32 s61, {SPIN-QTO}"); a("s_cbranch_scc1 L_qagain")
    c("still incomplete: a member may sit on another XCD, so publish for the whole device")
    lds_wait(14, F_QARR, 4, 8, 2); qpub(" sc1")
    a.label("L_qagain")
    a("s_sub_u32 s61, s61, 1"); a("s_cbranch_scc0 L_qpoll")
    a.label("L_qpolled")
    a("v_cmp_ne_u32 vcc, 0, v25"); a("s_cbranch_vccz L_qsame")
    c("a member does sit on another XCD")
    lds_wait(14, F_QARR, 4, 8, 2); qpub(" sc1")
    a("s_branch L_qdiff")
    a.label("L_qsame")
    lane0(f"ds_add_u32 v14, v15 offset:{F_SAME}")
    a.label("L_qdiff")
    a("v_add_f32 v24, v24, v28"); a("v_add_f32 v26, v26, v30")
    a("v_permlane32_swap_b32 v24, v26"); a("v_add_f32 v24, v24, v26"); a("v_cvt_pk_bf16_f32 v24, v24, v24")
    a("v_lshl_add_u32 v12, v11, 1, v10"); a("v_lshlrev_b32 v12, 1, v12")
    a("s_lshl_b32 s12, s3, 7"); a("v_add_u32 v12, s12, v12")
    a(f"ds_write_b16 v12, v24 offset:{L_Q}")
    lds_signal(14, F_QGOT, 15)
    a(f"s_setprio {hprio}")
    a("s_branch L_down")

    c("---- helpers 4-7 ----")
    a.label("L_helper2")
    a(f"s_setprio {hprio}")
    a("s_cmp_lg_u32 s3, 4"); a("s_cbranch_scc1 L_noinit")
    a("ds_write_b32 v6, v14")
    a.label("L_noinit")
    a("s_waitcnt lgkmcnt(0)")
    stamp("start")
    a(f"s_add_u32 s74, s38, {WS_EP}"); a("s_addc_u32 s75, s39, 0"); a("s_load_dword s15, s[74:75], 0")
    a("s_cmp_lg_u32 s3, 6"); a("s_cbranch_scc1 L_clrdone")
    c("helper 6 marks the device-wide words this workgroup will publish as empty")
    for r in range(8, 12): a(f"v_mov_b32 v{r}, -1")
    a(f"s_cmp_ge_u32 s67, {NWO}"); a("s_cbranch_scc1 L_clrffn")
    a("s_mul_i32 s12, s4, 2560"); a("s_lshl_b32 s13, s6, 8"); a("s_add_u32 s12, s12, s13")
    a(f"s_add_u32 s12, s12, {WS_YP}"); a("v_add_u32 v12, s12, v6")
    a("global_store_dword v12, v8, s[38:39] sc1")
    a("s_branch L_clrdone")
    a.label("L_clrffn")
    a(f"s_cmp_ge_u32 s52, {NFFN}"); a("s_cbranch_scc1 L_clrdone")
    a("s_mul_i32 s12, s52, 2560"); a(f"s_add_u32 s12, s12, {WS_FP}"); a("v_add_u32 v12, s12, v1")
    a("global_store_dwordx4 v12, v[8:11], s[38:39] sc1"); a("global_store_dwordx4 v12, v[8:11], s[38:39] offset:1024 sc1")
    a("s_mov_b32 exec_hi, 0"); a("global_store_dwordx4 v12, v[8:11], s[38:39] offset:2048 sc1"); a("s_mov_b64 exec, -1")
    a.label("L_clrdone")
    a("s_barrier")
    a("s_waitcnt lgkmcnt(0)")
    a("s_add_u32 s15, s15, 1")
    a("s_cmp_eq_u32 s3, 4"); a("s_cbranch_scc1 L_down")
    a("s_cmp_eq_u32 s3, 5"); a("s_cbranch_scc1 L_roles")
    a(f"s_mul_i32 s11, s2, {MB}"); a("v_add_u32 v7, s11, v1")
    a("s_sub_u32 s7, s3, 6")
    a("s_cmp_lg_u32 s7, 0"); a("s_cbranch_scc1 L_h7")
    a(f"s_cmp_ge_u32 s67, {NWO+NFFN}"); a("s_cbranch_scc1 L_stats")
    a("s_waitcnt vmcnt(0)"); a("v_mov_b32 v12, s15")
    lane0(f"global_store_dword v7, v12, s[38:39] offset:{MB_MK} sc1")
    a("s_branch L_stats")
    a.label("L_h7")
    c("helper 7 (the publisher at the end) takes its w_up rows now")
    a(f"s_cmp_ge_u32 s52, {NFFN}"); a("s_cbranch_scc1 L_stats")
    gu_setup(2, 3)
    for t in range(10):
        if t >= 2: a("s_waitcnt vmcnt(1)")
        gu_load(t, 2)
    c("---- helpers 6, 7: softmax of head A, B ----")
    a.label("L_stats")
    lds_wait(14, F_QGOT, 4, 8, 8)
    a(f"ds_read_b32 v8, v14 offset:{F_SAME}"); a("s_waitcnt lgkmcnt(0)"); a("v_readfirstlane_b32 s66, v8")
    a("s_lshr_b32 s66, s66, 2")
    a("s_cmp_lg_u32 s7, 0"); a("s_cbranch_scc1 L_noclrO")
    for r in range(8, 12): a(f"v_mov_b32 v{r}, -1")
    pub2(f"global_store_dwordx4 v7, v[8:11], s[38:39] offset:{MB_O}")
    a.label("L_noclrO")
    a("s_lshl_b32 s12, s7, 2"); a("v_mov_b32 v13, s12")
    a("v_and_b32 v20, 3, v0"); a("v_lshlrev_b32 v20, 8, v20"); a("v_and_b32 v21, 60, v0"); a("v_lshl_add_u32 v20, v21, 2, v20")
    a("s_lshl_b32 s12, s7, 14"); a(f"s_add_u32 s12, s12, {L_SC}"); a("v_add_u32 v20, s12, v20")
    a("s_lshl_b32 s12, s7, 13"); a(f"s_add_u32 s12, s12, {L_PP}"); a("v_lshlrev_b32 v21, 3, v0"); a("v_add_u32 v21, s12, v21")
    a(f"s_mul_i32 s12, s4, {16*MB}"); a("s_lshl_b32 s13, s7, 7"); a("s_add_u32 s12, s12, s13")
    a("v_and_b32 v22, 15, v0"); a(f"v_mul_u32_u24 v22, {MB}, v22"); a("v_add_u32 v22, s12, v22")
    a(f"s_mul_i32 s13, s6, {MB}"); a("s_add_u32 s12, s12, s13"); a("v_mov_b32 v23, s12")
    a(f"s_mov_b32 s14, {LOG2E:#x}")
    lds_wait(13, F_KDONE, 4, 8, 4)
    S = list(range(32, 48))
    for i in range(16):
        if i % 8 == 0:
            for u in range(8): a(f"ds_read_b128 v[{104+4*u}:{107+4*u}], v20 offset:{1024*(i+u)}")
        b = 104 + 4 * (i % 8)
        a(f"s_waitcnt lgkmcnt({7-i%8})")
        a(f"v_add_f32 v{b}, v{b}, v{b+1}"); a(f"v_add_f32 v{b+2}, v{b+2}, v{b+3}"); a(f"v_add_f32 v{S[i]}, v{b}, v{b+2}")
        if probe < 2: rbf(S[i], S[i])
        a(f"v_mul_f32 v{S[i]}, {SCALE:#x}, v{S[i]}")
        if probe < 2: rbf(S[i], S[i])
    a(f"v_max_f32 v28, v{S[0]}, v{S[1]}")
    for i in range(2, 16, 2): a(f"v_max3_f32 v28, v28, v{S[i]}, v{S[i+1]}")
    allred("v_max_f32", 28, 30)
    for i in range(16):
        a(f"v_sub_f32 v{104+i}, v{S[i]}, v28"); a(f"v_mul_f32 v{104+i}, s14, v{104+i}"); a(f"v_exp_f32 v{104+i}, v{104+i}")
    for st in (8, 4, 2):
        for i in range(st): a(f"v_add_f32 v{104+i}, v{104+i}, v{104+i+st}")
    a("v_add_f32 v29, v104, v105")
    allred("v_add_f32", 29, 30)
    a("v_mov_b32 v24, v28"); a("v_mov_b32 v25, s15"); a("v_mov_b32 v26, v29"); a("v_mov_b32 v27, s15")
    c("helper 6: the empty marks of the o slot have landed before this tagged word goes out")
    a("s_waitcnt vmcnt(0)")
    a("s_mov_b64 exec, 1"); pub2(f"global_store_dwordx4 v23, v[24:27], s[38:39] offset:{MB_ST}"); a("s_mov_b64 exec, -1")
    a(f"s_mov_b32 s60, {SPIN}")
    a.label("L_stpoll")
    a(f"global_load_dwordx4 v[16:19], v22, s[38:39] offset:{MB_ST} sc1")
    a("s_waitcnt vmcnt(0)")
    a("v_xor_b32 v17, s15, v17"); a("v_xor_b32 v19, s15, v19"); a("v_or_b32 v17, v17, v19")
    a("v_cmp_ne_u32 vcc, 0, v17"); a("s_cbranch_vccz L_stpolled")
    a("s_sleep 4")
    a("s_sub_u32 s60, s60, 1"); a("s_cbranch_scc0 L_stpoll")
    a.label("L_stpolled")
    c("max and sum of the whole row, then p = bf16(exp(s - max) / sum) in both halves of a dword pair")
    a("v_mov_b32 v28, v16")
    rowred("v_max_f32", 28)
    a("v_sub_f32 v24, v16, v28"); a("v_mul_f32 v24, s14, v24"); a("v_exp_f32 v24, v24"); a("v_mul_f32 v29, v24, v18")
    rowred("v_add_f32", 29)
    a("v_rcp_f32 v29, v29")
    if probe == 1: a("v_mul_f32 v29, 0x3f802000, v29")
    for i in range(16):
        a(f"v_sub_f32 v{S[i]}, v{S[i]}, v28"); a(f"v_mul_f32 v{S[i]}, s14, v{S[i]}"); a(f"v_exp_f32 v{S[i]}, v{S[i]}")
    for i in range(16):
        a(f"v_mul_f32 v{S[i]}, v{S[i]}, v29")
        a(f"v_cvt_pk_bf16_f32 v{104+2*i}, v{S[i]}, 0"); a(f"v_cvt_pk_bf16_f32 v{105+2*i}, 0, v{S[i]}")
        a(f"ds_write_b64 v21, v[{104+2*i}:{105+2*i}] offset:{512*i}")
    lds_signal(13, F_PRDY, 15)
    a("s_cmp_lg_u32 s3, 6"); a("s_cbranch_scc1 L_roles")
    a(f"s_cmp_ge_u32 s52, {NFFN}"); a("s_cbranch_scc1 L_roles")
    c("ffn workgroups: every producer of YP / FP has put its empty marks in place")
    a(f"v_mul_u32_u24 v16, {MB}, v0")
    for i in range(1, 4): a(f"v_add_u32 v{16+i}, {64*MB*i:#x}, v16")
    a(f"s_mov_b32 s60, {SPIN}")
    a.label("L_marks")
    for i in range(4):
        a(f"global_load_dword v{20+i}, v{16+i}, s[38:39] offset:{MB_MK} sc1"); a("s_waitcnt vmcnt(0)")
    for i in range(4):
        a(f"v_xor_b32 v{20+i}, s15, v{20+i}")
        m = sum(1 << l for l in range(64) if 16 * ((64 * i + l) & 15) + ((64 * i + l) >> 4) < NWO + NFFN)
        a(f"s_mov_b32 s12, {m & 0xffffffff:#x}"); a(f"s_mov_b32 s13, {m >> 32:#x}")
        a(f"v_cndmask_b32 v{20+i}, 0, v{20+i}, s[12:13]")
    a("v_or3_b32 v20, v20, v21, v22"); a("v_or_b32 v20, v20, v23")
    a("v_cmp_ne_u32 vcc, 0, v20"); a("s_cbranch_vccz L_marked")
    a("s_sleep 32")
    a("s_sub_u32 s60, s60, 1"); a("s_cbranch_scc0 L_marks")
    a.label("L_marked")
    lds_signal(14, F_MARK, 15)
    a("s_branch L_roles")

    c("---- helpers 0-4 of the ffn workgroups: w_down rows, one load at a time ----")
    a.label("L_down")
    a(f"s_cmp_ge_u32 s52, {NFFN}"); a("s_cbranch_scc1 L_roles")
    a("s_mov_b32 s44, s32"); a("s_mov_b32 s45, s33"); a(f"s_mov_b32 s46, {1728*1280}"); a("s_mov_b32 s47, 0x20000")
    a(f"s_mul_i32 s50, s52, {32*1280}"); a("s_lshl_b32 s51, s3, 8"); a("s_add_u32 s50, s50, s51")
    a("v_lshrrev_b32 v2, 4, v0"); a(f"v_mul_u32_u24 v2, {8*1280}, v2"); a("v_and_b32 v3, 15, v0"); a("v_lshl_add_u32 v2, v3, 4, v2")
    for t in range(8):
        if t == 4: a(f"s_add_u32 s50, s50, {4*1280}")
        if t: a("s_waitcnt vmcnt(0)")
        a(f"buffer_load_dwordx4 v[{W0+40+4*t}:{W0+43+4*t}], v2, s[44:47], s50 offen offset:{(t%4)*1280} nt")

    c("================= roles =================")
    a.label("L_roles")
    a(f"s_add_u32 s76, s38, {WS_YP}"); a("s_addc_u32 s77, s39, 0")
    a(f"s_add_u32 s78, s38, {WS_FP}"); a("s_addc_u32 s79, s39, 0")
    a("v_lshlrev_b32 v138, 3, v0"); a(f"s_mul_i32 s11, s2, {MB}"); a("v_add_u32 v139, s11, v138")
    a("s_waitcnt vmcnt(0)")
    c("walk this wave's tail code once with EXEC = 0 (every memory access, wait and barrier is branched over) to have it in the I-cache")
    a("s_mov_b64 exec, 0")
    a(f"s_cmp_lt_u32 s67, {NWO}"); a("s_cbranch_scc1 L_wo_go")
    a(f"s_cmp_lt_u32 s52, {NFFN}"); a("s_cbranch_scc1 L_ffn_go")
    a("s_branch L_none_go")
    a.label("L_warmed")
    a("s_mov_b64 exec, -1")
    def osum(head, d):
        for w in range(4): a(f"ds_read_b64 v[{142+2*w}:{143+2*w}], v138 offset:{L_OL+2048*head+512*w}")
        a("s_waitcnt lgkmcnt(0)")
        a("v_pk_add_f32 v[142:143], v[142:143], v[144:145]"); a("v_pk_add_f32 v[146:147], v[146:147], v[148:149]")
        a(f"v_pk_add_f32 v[{d}:{d+1}], v[142:143], v[146:147]")
        guard([d, d + 1])
    c("helper 5: compare this workgroup's progress with its XCD neighbours' and set the streamers' prefetch depth (a hint only)")
    a("s_cmp_lg_u32 s3, 5"); a("s_cbranch_scc1 L_nogov")
    lds_wait(14, F_QGOT, 4, 8, 8)
    a(f"ds_read_b32 v8, v14 offset:{F_SAME}"); a("s_waitcnt lgkmcnt(0)"); a("v_readfirstlane_b32 s12, v8")
    a("s_cmp_lg_u32 s12, 4"); a("s_cbranch_scc1 L_nogov")
    a("s_lshr_b32 s12, s2, 5"); a("s_lshl_b32 s12, s12, 8"); a(f"s_add_u32 s12, s12, {WS_PG}")
    a("v_and_b32 v16, 31, v0"); a("v_lshlrev_b32 v16, 2, v16"); a("v_add_u32 v16, s12, v16")
    a("s_and_b32 s64, s2, 31"); a("s_lshl_b32 s13, s64, 2"); a("s_add_u32 s12, s12, s13"); a("v_mov_b32 v17, s12")
    a("s_lshl_b32 s13, s15, 10")
    a(f"s_cmp_lt_u32 s52, {NFFN}"); a(f"s_cselect_b32 s65, 0, {gbias}"); a("s_add_u32 s65, s65, s13")
    a("s_mov_b32 s61, 4000")
    a.label("L_gov")
    a(f"ds_read_b32 v20, v14 offset:{F_TICK}"); a("s_waitcnt lgkmcnt(0)")
    a("v_add_u32 v19, s65, v20")
    lane0("global_store_dword v17, v19, s[38:39]")
    a("global_load_dword v18, v16, s[38:39] sc1")
    a("v_readfirstlane_b32 s62, v20")
    a("s_waitcnt vmcnt(0)")
    a(f"s_cmp_ge_u32 s62, {4*(T0+26)}"); a("s_cbranch_scc1 L_nogov")
    a("v_subrev_u32 v18, s13, v18")
    a("v_cmp_le_u32 vcc, 0x400, v18"); a("s_cbranch_vccnz L_gov_next")
    a("v_readlane_b32 s62, v18, s64")
    rowred("v_add_u32", 18)
    a("s_lshl_b32 s62, s62, 5")
    a("v_readlane_b32 s63, v18, 0"); a("v_readlane_b32 s12, v18, 16")
    a("s_add_u32 s63, s63, s12"); a("s_sub_i32 s62, s62, s63")
    a("s_mov_b32 s63, 2")
    a(f"s_cmp_gt_i32 s62, {32*gov[1]}"); a("s_cselect_b32 s63, 1, s63")
    a(f"s_cmp_lt_i32 s62, {32*gov[0]}"); a("s_cselect_b32 s63, 3, s63")
    a("v_mov_b32 v18, s63"); a(f"ds_write_b32 v14, v18 offset:{F_MODE}")
    a.label("L_gov_next")
    a(f"s_sleep {gsleep}")
    a("s_sub_u32 s61, s61, 1"); a("s_cbranch_scc0 L_gov")
    a.label("L_nogov")
    c("helper 7: this workgroup's o of head A")
    a("s_cmp_lg_u32 s3, 7"); a("s_cbranch_scc1 L_noA")
    lds_wait(14, F_OA, 4, 8, 8)
    osum(0, 140)
    a("s_cmp_eq_u32 s66, 0"); a("s_cbranch_scc1 L_noAloc")
    a(f"global_store_dwordx2 v139, v[140:141], s[38:39] offset:{MB_O}")
    a.label("L_noAloc")
    a("s_setprio 3")
    a.label("L_noA")
    def opub():
        with live(): lds_wait(14, F_OB, 4, 150, 1)
        osum(1, 142)
        with live():
            gl, dn = L("oglob"), L("odone")
            a("s_cmp_eq_u32 s66, 0"); a(f"s_cbranch_scc1 {gl}")
            a(f"global_store_dwordx2 v139, v[142:143], s[38:39] offset:{MB_O+512}")
            a(f"s_branch {dn}")
            a.label(gl)
            a(f"global_store_dwordx2 v139, v[142:143], s[38:39] offset:{MB_O+512} sc1")
            a(f"global_store_dwordx2 v139, v[140:141], s[38:39] offset:{MB_O} sc1")
            a.label(dn)
            a("v_mov_b32 v150, 1"); a(f"ds_write_b32 v14, v150 offset:{F_PUB}")
            a(f"s_setprio {hprio}")
        stamp("tail")
    a(f"s_cmp_lt_u32 s67, {NWO}"); a("s_cbranch_scc1 L_wo")
    a(f"s_cmp_lt_u32 s52, {NFFN}"); a("s_cbranch_scc1 L_ffn")
    a.label("L_none_go")
    a("s_cmp_lg_u32 s3, 7"); a("s_cbranch_scc1 L_tend")
    with live(): lds_wait(14, F_TICK, 4 * (T0 + 27), 150, 24)
    opub()
    a("s_branch L_tend")

    c("---- wo role: 256 rows (this pair's heads) x 64 columns ----")
    a.label("L_wo")
    a(f"s_mul_i32 s12, s4, {16*MB}"); a("s_lshl_b32 s13, s3, 7"); a("s_add_u32 s12, s12, s13")
    a("v_and_b32 v3, 7, v0"); a(f"v_mul_u32_u24 v2, {2*MB}, v3"); a("v_lshrrev_b32 v4, 3, v0"); a("v_lshl_add_u32 v2, v4, 4, v2"); a("v_add_u32 v2, s12, v2")
    a(f"v_add_u32 v8, {MB}, v2")
    a("v_lshrrev_b32 v5, 4, v0"); a("v_lshlrev_b32 v5, 3, v5"); a("v_lshl_add_u32 v5, v3, 5, v5")
    a("s_lshl_b32 s13, s3, 8"); a("v_add_u32 v5, s13, v5")
    a("s_mul_i32 s12, s4, 2560"); a("s_lshl_b32 s13, s6, 8"); a("s_add_u32 s12, s12, s13"); a("v_add_u32 v7, s12, v6")
    a(f"v_add_u32 v6, {L_YL}, v6")
    for j in range(8): a(f"v_mov_b32 v{40+j}, 0")
    a("s_mov_b32 s44, s24"); a("s_mov_b32 s45, s25"); a(f"s_mov_b32 s46, {4096*1280}"); a("s_mov_b32 s47, 0x20000")
    a("s_lshl_b32 s50, s4, 3"); a("s_add_u32 s50, s50, s3"); a(f"s_mul_i32 s50, s50, {32*1280}")
    a("s_lshl_b32 s51, s6, 7"); a("s_add_u32 s50, s50, s51")
    a(f"v_mul_u32_u24 v9, {4*1280}, v4"); a("v_lshl_add_u32 v9, v3, 4, v9")
    def io(v, d): return (lambda: a(f"global_load_dwordx4 v[{d}:{d+3}], v{v}, s[38:39] offset:{MB_O} sc1"), range(d, d + 4))
    if preA:
        a("s_cmp_ge_u32 s3, 4"); a("s_cbranch_scc1 L_nopreA")
        lds_wait(14, F_TICK, 4 * (T0 + preA), 150, 24)
        for g, _ in (io(2, 24), io(8, 28)): g(); a("s_waitcnt vmcnt(0)")
        a.label("L_nopreA")
    lds_wait(14, F_TICK, 4 * (T0 + wo_at - 3), 150, 24)
    if preA and touchB:
        a("s_cmp_lg_u32 s3, 4"); a("s_cbranch_scc1 L_notouch")
        a("v_lshrrev_b32 v10, 2, v0"); a(f"v_mul_u32_u24 v10, {MB}, v10"); a("v_and_b32 v11, 3, v0"); a("v_lshl_add_u32 v10, v11, 7, v10")
        a(f"s_mul_i32 s12, s4, {16*MB}"); a("v_add_u32 v10, s12, v10")
        a(f"global_load_dword v11, v10, s[38:39] offset:{MB_O+512} sc1")
        a.label("L_notouch")
    a.label("L_wo_go")
    c("the weights are fetched once the streamers' last loads are out")
    G1 = [io(2, 24), io(8, 28)]
    if preA: pre1, early1 = False, True
    with live():
        if pre1:
            for g, _ in G1: g()
        lds_wait(14, F_TICK, 4 * (T0 + wo_at), 150, 2)
        for t in range(4): a(f"buffer_load_dwordx4 v[{W0+4*t}:{W0+4*t+3}], v9, s[44:47], s50 offen offset:{t*1280} nt")
    a("s_cmp_lg_u32 s3, 7"); a("s_cbranch_scc1 L_wo_np")
    opub()
    a("s_branch L_wo_p")
    a.label("L_wo_np")
    with live(): lds_wait(14, F_PUB, 1, 150, 1)
    a.label("L_wo_p")
    def so():
        for j in range(4): a(f"v_add_f32 v{16+j}, v{24+j}, v{28+j}")
    if early1:
        a("s_cmp_lt_u32 s3, 4"); a("s_cbranch_scc1 L_wo_a")
        with live():
            for g, _ in G1: g()
        a("s_waitcnt vmcnt(2)"); a("s_branch L_wo_b")
        a.label("L_wo_a")
    a("s_waitcnt vmcnt(0)")
    a.label("L_wo_b")
    PW = pair_perm([[W0 + 4 * t + j for j in range(4)] for t in range(4)], 136)
    with live(): spoll(G1, so, range(16, 20), 14, issued=(pre1 or bool(preA)))
    stamp("e1")
    for pat in ("quad_perm:[1,0,3,2]", "quad_perm:[2,3,0,1]", "row_half_mirror"):
        for j in range(4): a(f"v_add_f32_dpp v{16+j}, v{16+j}, v{16+j} {pat} {FULL}")
    for i in range(2): a(f"v_cvt_pk_bf16_f32 v{32+i}, v{16+2*i}, v{17+2*i}")
    for i in range(2):
        for j in range(8): a(f"v_dot2c_f32_bf16 v{40+j}, v{32+i}, v{PW[i][j]}")
    red_g8(list(range(40, 48)), 48)
    a(f"v_add_f32_dpp v48, v48, v48 row_ror:8 {FULL}"); a(f"v_add_f32_dpp v49, v49, v49 row_ror:8 {FULL}")
    a(f"ds_write_b64 v5, v[48:49] offset:{L_YL}")
    a("s_waitcnt lgkmcnt(0)")
    with live(): a("s_barrier")
    a("s_cmp_lg_u32 s3, 0"); a("s_cbranch_scc1 L_tend")
    for w in range(4): a(f"ds_read2st64_b32 v[{16+2*w}:{17+2*w}], v6 offset0:{2*w} offset1:{2*w+1}")
    a("s_waitcnt lgkmcnt(0)")
    a("v_pk_add_f32 v[16:17], v[16:17], v[18:19]"); a("v_pk_add_f32 v[20:21], v[20:21], v[22:23]"); a("v_pk_add_f32 v[16:17], v[16:17], v[20:21]")
    a("v_add_f32 v16, v16, v17")
    guard([16])
    with live(): a("global_store_dword v7, v16, s[76:77] sc1")
    stamp("y_pub")
    a("s_branch L_tend")

    c("---- ffn role: 32 columns of w_gate / w_up, 32 rows of w_down ----")
    a.label("L_ffn")
    a("v_lshrrev_b32 v2, 4, v0"); a("v_and_b32 v3, 15, v0")
    a("s_min_u32 s12, s3, 4"); a("s_lshl_b32 s12, s12, 8")
    a("v_lshrrev_b32 v5, 1, v2"); a("v_lshlrev_b32 v5, 7, v5"); a("v_lshl_add_u32 v5, v3, 3, v5")
    a("v_and_b32 v4, 1, v2"); a("v_lshl_add_u32 v5, v4, 2, v5"); a("v_add_u32 v5, s12, v5")
    a("global_load_dword v11, v5, s[16:17]")
    a("s_lshl_b32 s12, s3, 9")
    a("v_mul_u32_u24 v4, 10240, v2"); a("v_lshl_add_u32 v4, v3, 4, v4"); a("v_add_u32 v4, s12, v4"); a("v_add_u32 v62, 5120, v4")
    if fold:
        a("v_mov_b32 v63, 0"); a("v_mov_b32 v6, 0x3f803f80")
        a("v_lshrrev_b32 v7, 2, v0"); a("v_mul_u32_u24 v7, 20, v7"); a("s_and_b32 s13, s3, 3"); a("s_mul_i32 s13, s13, 320"); a(f"s_add_u32 s13, s13, {L_H}"); a("v_add_u32 v7, s13, v7")
    else:
        a("v_lshlrev_b32 v5, 1, v5")
        a("s_lshl_b32 s13, s3, 3"); a("v_mov_b32 v6, s13"); a("v_mov_b32 v63, 0")
        a("v_lshrrev_b32 v7, 2, v0"); a("v_mul_u32_u24 v7, 40, v7"); a("s_and_b32 s13, s3, 3"); a("s_mul_i32 s13, s13, 640"); a("v_add_u32 v7, s13, v7")
    a("v_and_b32 v8, 3, v0"); a("v_lshlrev_b32 v8, 5, v8"); a("v_lshl_add_u32 v8, v2, 3, v8"); a("s_lshl_b32 s13, s53, 7"); a("v_add_u32 v8, s13, v8")
    a("v_and_b32 v9, 7, v0"); a("v_lshl_add_u32 v9, v2, 3, v9"); a("v_lshlrev_b32 v9, 2, v9"); a(f"v_add_u32 v9, {L_GU}, v9")
    a("s_mul_i32 s13, s52, 2560"); a("s_add_u32 s13, s13, s12"); a("v_lshlrev_b32 v10, 3, v0"); a("v_add_u32 v10, s13, v10")
    if fold: a(f"v_add_u32 v3, {L_T-L_GU}, v9")
    for j in range(8): a(f"v_mov_b32 v{52+j}, 0")
    a(f"s_mov_b32 s14, {LOG2E:#x}")
    PD = pair_perm([[W0 + 40 + 4 * t + j for j in range(4)] for t in range(8)], 137)
    gu_setup(15, 1)
    lds_wait(14, F_MARK, 1, 150, 8)
    a("s_waitcnt vmcnt(0)")
    a("v_and_b32 v13, 0xffff0000, v11"); a("v_lshlrev_b32 v12, 16, v11")
    lds_wait(14, F_TICK, 4 * (T0 + 27), 150, 24)
    YI = [140, 148, 156, 24]
    HV = 40
    def iy(u):
        v, o = (4, 62)[u // 2], 2560 * (u % 2)
        return (lambda: (a(f"global_load_dwordx4 v[{YI[u]}:{YI[u]+3}], v{v}, s[76:77] offset:{o} sc1"),
                         a(f"global_load_dwordx4 v[{YI[u]+4}:{YI[u]+7}], v{v}, s[76:77] offset:{o+256} sc1")), range(YI[u], YI[u] + 8))
    G2 = [iy(u) for u in range(4)]
    a.label("L_ffn_go")
    a("s_cmp_eq_u32 s3, 7"); a("s_cbranch_scc1 L_ffn_pub")
    with live(): lds_wait(14, F_TICK, 4 * (T0 + ffn_at), 150, 2)
    for t0 in (0, 4, 8):
        with live():
            for t in range(t0, min(t0 + 4, 10)): gu_load(t, 15)
    a("s_branch L_ffn_w0")
    a.label("L_ffn_pub")
    opub()
    a.label("L_ffn_w0")
    a.label("L_ffn_have")
    def dots(i, src, cols):
        for j in range(8):
            if i == 0: a(f"v_dot2_f32_bf16 v{40+j}, v{src}, v{cols[j]}, 0")
            else: a(f"v_dot2c_f32_bf16 v{40+j}, v{src}, v{cols[j]}")
    def gred():
        red_g8(list(range(40, 48)), 48)
        for r in (8, 4):
            a(f"v_add_f32_dpp v48, v48, v48 row_ror:{r} {FULL}"); a(f"v_add_f32_dpp v49, v49, v49 row_ror:{r} {FULL}")
    def gemv(src):
        for i in range(5): dots(i, src(i), PG[i])
        gred()
    def landed(i):
        a(f"s_waitcnt vmcnt({8-2*i})")
        if i == 4:
            stamp("x1")
            a("s_cmp_ge_u32 s3, 5"); a("s_cbranch_scc1 L_nopoll")
            with live():
                for g, _ in G2: g()
            a.label("L_nopoll")
    if fold: c("as the rows land: pair them up and sum the columns, LN(h) @ W = (h @ W - mean * colsum(W)) / std")
    PG = pair_perm([[W0 + 4 * t + j for j in range(4)] for t in range(10)], 136, landed, (lambda i, cols: dots(i, 6, cols)) if fold else None)
    if fold:
        gred()
        a(f"ds_write_b64 v8, v[48:49] offset:{L_CS}")
        a("s_waitcnt lgkmcnt(0)")
    a("s_cmp_ge_u32 s3, 5"); a("s_cbranch_scc1 L_h_wait")
    def sy():
        for j in range(0, 8, 2):
            a(f"v_pk_add_f32 v[{16+j}:{17+j}], v[{YI[0]+j}:{YI[0]+j+1}], v[{YI[1]+j}:{YI[1]+j+1}]")
            a(f"v_pk_add_f32 v[{32+j}:{33+j}], v[{YI[2]+j}:{YI[2]+j+1}], v[{YI[3]+j}:{YI[3]+j+1}]")
        for j in range(0, 8, 2): a(f"v_pk_add_f32 v[{16+j}:{17+j}], v[{16+j}:{17+j}], v[{32+j}:{33+j}]")
    with live(): spoll(G2, sy, range(16, 24), 14, issued=True)
    stamp("e2")
    c("h = bf16(x + bf16(attention output)); mean and centred sum of squares of this wave's 128 values (shifted by one of them)")
    red_g8(list(range(16, 24)), 32)
    a("v_cvt_pk_bf16_f32 v34, v32, v33"); a("v_lshlrev_b32 v32, 16, v34"); a("v_and_b32 v33, 0xffff0000, v34")
    a("v_pk_add_f32 v[32:33], v[32:33], v[12:13]")
    if fold:
        a("v_cvt_pk_bf16_f32 v34, v32, v33")
        a(f"ds_write_b32 v5, v34 offset:{L_H}")
        a("s_waitcnt lgkmcnt(0)")
        a.label("L_h_wait")
        with live(): a("s_barrier")
        a("ds_read2_b32 v[16:17], v7 offset0:0 offset1:1"); a("ds_read2_b32 v[18:19], v7 offset0:2 offset1:3"); a("ds_read_b32 v20, v7 offset:16")
        a("s_waitcnt lgkmcnt(0)")
    else:
        a("v_cvt_pk_bf16_f32 v34, v32, v33"); a("v_lshlrev_b32 v32, 16, v34"); a("v_and_b32 v33, 0xffff0000, v34")
        a(f"ds_write_b64 v5, v[32:33] offset:{L_H}")
        a("v_readfirstlane_b32 s12, v32")
        a("v_subrev_f32 v34, s12, v32"); a("v_subrev_f32 v35, s12, v33")
        a("v_add_f32 v36, v34, v35"); a("v_mul_f32 v37, v34, v34"); a("v_fmac_f32 v37, v35, v35")
        for r in (8, 4, 2, 1):
            a(f"v_add_f32_dpp v36, v36, v36 row_ror:{r} {FULL}"); a(f"v_add_f32_dpp v37, v37, v37 row_ror:{r} {FULL}")
        a("v_permlane16_swap_b32 v36, v37"); a("v_add_f32 v36, v36, v37")
        a("v_mov_b32 v37, v36"); a("v_permlane32_swap_b32 v36, v37"); a("v_add_f32 v36, v36, v37")
        a("v_mov_b32 v37, v36"); a("v_permlane16_swap_b32 v36, v37")
        a("v_mul_f32 v38, 0x3c000000, v36")
        a("v_fma_f32 v39, -v38, v36, v37"); a("v_add_f32 v38, s12, v38")
        a(f"ds_write_b64 v6, v[38:39] offset:{L_ST}")
        a("s_waitcnt lgkmcnt(0)")
        a.label("L_h_wait")
        with live(): a("s_barrier")
        c("combine the five (mean, M2) pairs, normalise this lane's 10 rows, gate / up dot products")
        a(f"ds_read_b128 v[32:35], v63 offset:{L_ST}"); a(f"ds_read_b128 v[36:39], v63 offset:{L_ST+16}"); a(f"ds_read_b64 v[22:23], v63 offset:{L_ST+32}")
        for i in range(5): a(f"ds_read_b64 v[{HV+2*i}:{HV+1+2*i}], v7 offset:{L_H+8*i}")
        a("s_waitcnt lgkmcnt(5)")
        a("v_pk_add_f32 v[50:51], v[32:33], v[34:35]"); a("v_pk_add_f32 v[60:61], v[36:37], v[38:39]")
        a("v_pk_add_f32 v[50:51], v[50:51], v[22:23]"); a("v_pk_add_f32 v[50:51], v[50:51], v[60:61]")
        a("v_mul_f32 v50, 0x3e4ccccd, v50")
        for r in (32, 34, 36, 38, 22): a(f"v_sub_f32 v{r}, v{r}, v50")
        rbf(50, 50)
        var = ["v_mul_f32 v60, v32, v32"] + [f"v_fmac_f32 v60, v{r}, v{r}" for r in (34, 36, 38, 22)] + [
            "v_fmac_f32 v51, 0x43000000, v60", f"v_mul_f32 v61, {INV640:#x}, v51",
            "v_cvt_pk_bf16_f32 v61, v61, v61", "v_and_b32 v61, 0xffff0000, v61", f"v_add_f32 v61, {EPS:#x}, v61",
            "v_cvt_pk_bf16_f32 v61, v61, v61", "v_and_b32 v61, 0xffff0000, v61", "v_sqrt_f32 v61, v61",
            "v_cvt_pk_bf16_f32 v61, v61, v61", "v_and_b32 v61, 0xffff0000, v61", "v_rcp_f32 v61, v61"]
        cen = [f"v_pk_add_f32 v[{HV+2*i}:{HV+1+2*i}], v[{HV+2*i}:{HV+1+2*i}], v[50:51] op_sel_hi:[1,0] neg_lo:[0,1] neg_hi:[0,1]" for i in range(5)]
        cen += [f"v_cvt_pk_bf16_f32 v{16+i}, v{HV+2*i}, v{HV+1+2*i}" for i in range(5)]
        for i in range(5): cen += [f"v_lshlrev_b32 v{HV+2*i}, 16, v{16+i}", f"v_and_b32 v{HV+1+2*i}, 0xffff0000, v{16+i}"]
        a("s_waitcnt lgkmcnt(0)")
        while var or cen:
            if var: a(var.pop(0))
            if cen: a(cen.pop(0))
        for i in range(5): a(f"v_pk_mul_f32 v[{HV+2*i}:{HV+1+2*i}], v[{HV+2*i}:{HV+1+2*i}], v[60:61] op_sel:[0,1] op_sel_hi:[1,1]")
        for i in range(5): a(f"v_cvt_pk_bf16_f32 v{16+i}, v{HV+2*i}, v{HV+1+2*i}")
    gemv(lambda i: 16 + i)
    a(f"ds_write_b64 v8, v[48:49] offset:{L_GU}")
    a("s_waitcnt lgkmcnt(0)")
    with live(): a("s_barrier")
    stamp("gu")
    a("s_cmp_ge_u32 s3, 5"); a("s_cbranch_scc1 L_final")
    c("act = bf16(bf16(silu(g)) * u), then this workgroup's 32 rows of w_down")
    for w in range(4): a(f"ds_read2_b32 v[{16+2*w}:{17+2*w}], v9 offset0:{32*w} offset1:{32*w+128}")
    if fold: a(f"ds_read2_b32 v[32:33], v3 offset0:0 offset1:32"); a(f"ds_read_b32 v34, v63 offset:{L_T+256}")
    a("s_waitcnt lgkmcnt(0)")
    a("v_pk_add_f32 v[16:17], v[16:17], v[18:19]"); a("v_pk_add_f32 v[20:21], v[20:21], v[22:23]")
    if fold: a("v_pk_add_f32 v[16:17], v[16:17], v[32:33] neg_lo:[0,1] neg_hi:[0,1]")
    a("v_pk_add_f32 v[16:17], v[16:17], v[20:21]")
    if fold: a("v_pk_mul_f32 v[16:17], v[16:17], v[34:35] op_sel_hi:[1,0]")
    a("v_cvt_pk_bf16_f32 v20, v16, v17"); a("v_lshlrev_b32 v16, 16, v20"); a("v_mul_f32 v17, s14, v16"); a("v_exp_f32 v17, -v17")
    a("v_and_b32 v20, 0xffff0000, v20"); a("v_add_f32 v17, 1.0, v17"); a("v_rcp_f32 v17, v17")
    a("v_mul_f32 v16, v16, v17"); rbf(16, 16)
    a("v_mul_f32 v16, v16, v20")
    a(f"v_mov_b32_dpp v17, v16 quad_perm:[1,0,3,2] {FULL}")
    a("v_cvt_pk_bf16_f32 v16, v16, v17")
    for i in range(4):
        for j in range(8): a(f"v_dot2c_f32_bf16_dpp v{52+j}, v16, v{PD[i][j]} row_newbcast:{2*i} {FULL}")
    red_g8(list(range(52, 60)), 60)
    guard([60, 61])
    with live():
        a("global_store_dwordx2 v10, v[60:61], s[78:79] sc1")
        if e3ack: a("v_mov_b32 v16, 1"); a("s_waitcnt vmcnt(0)"); a(f"ds_write_b32 v63, v16 offset:{F_FACK}")
    stamp("f_pub")
    a("s_branch L_tend")
    c("---- final sum: helper 5 of the first 20 ffn workgroups, 32 outputs each ----")
    a.label("L_final")
    if fold:
        a("s_cmp_lg_u32 s3, 6"); a("s_cbranch_scc1 L_final5"); a("s_cbranch_execz L_lnstat"); a("s_branch L_fin")
        c("---- streamer 0 of an ffn workgroup: mean and 1/std of h next to the dot products ----")
        a.label("L_lnstat")
        a("v_lshlrev_b32 v24, 2, v0"); a(f"v_add_u32 v25, {L_H}, v24")
        a("v_lshrrev_b32 v26, 5, v0"); a("v_mul_u32_u24 v26, 384, v26"); a("v_add_u32 v26, v26, v24"); a(f"v_add_u32 v26, {L_CS}, v26")
        with live(): a(f"s_setprio {sprio}"); a("s_barrier")
        a("ds_read2st64_b32 v[16:17], v25 offset0:0 offset1:1"); a("ds_read2st64_b32 v[18:19], v25 offset0:2 offset1:3"); a("ds_read_b32 v20, v25 offset:1024")
        a("ds_read2_b32 v[28:29], v26 offset0:0 offset1:32"); a("ds_read2_b32 v[30:31], v26 offset0:64 offset1:96")
        a("s_waitcnt lgkmcnt(2)")
        a("v_readfirstlane_b32 s12, v16")
        for i in range(5): a(f"v_lshlrev_b32 v{40+2*i}, 16, v{16+i}"); a(f"v_and_b32 v{41+2*i}, 0xffff0000, v{16+i}")
        a("s_lshl_b32 s12, s12, 16"); a("s_mov_b32 s13, s12")
        for i in range(5): a(f"v_pk_add_f32 v[{40+2*i}:{41+2*i}], v[{40+2*i}:{41+2*i}], s[12:13] neg_lo:[0,1] neg_hi:[0,1]")
        a("v_pk_add_f32 v[32:33], v[40:41], v[42:43]"); a("v_pk_mul_f32 v[34:35], v[40:41], v[40:41]")
        a("v_pk_add_f32 v[36:37], v[44:45], v[46:47]"); a("v_pk_fma_f32 v[34:35], v[42:43], v[42:43], v[34:35]")
        a("v_pk_add_f32 v[32:33], v[32:33], v[48:49]"); a("v_pk_fma_f32 v[34:35], v[44:45], v[44:45], v[34:35]")
        a("v_pk_add_f32 v[32:33], v[32:33], v[36:37]"); a("v_pk_fma_f32 v[34:35], v[46:47], v[46:47], v[34:35]")
        a("v_add_f32 v36, v32, v33"); a("v_pk_fma_f32 v[34:35], v[48:49], v[48:49], v[34:35]")
        a("s_waitcnt lgkmcnt(0)")
        a("v_pk_add_f32 v[28:29], v[28:29], v[30:31]"); a("v_add_f32 v37, v34, v35"); a("v_add_f32 v28, v28, v29")
        for r in (8, 4, 2, 1):
            a(f"v_add_f32_dpp v36, v36, v36 row_ror:{r} {FULL}"); a(f"v_add_f32_dpp v37, v37, v37 row_ror:{r} {FULL}")
        a("v_permlane16_swap_b32 v36, v37"); a("v_add_f32 v36, v36, v37")
        a("v_mov_b32 v37, v36"); a("v_permlane32_swap_b32 v36, v37"); a("v_add_f32 v36, v36, v37")
        a("v_mov_b32 v37, v36"); a("v_permlane16_swap_b32 v36, v37")
        a(f"v_mul_f32 v38, {INV640:#x}, v36")
        a("v_fma_f32 v39, -v38, v36, v37"); a("v_add_f32 v38, s12, v38"); a(f"v_mul_f32 v39, {INV640:#x}, v39")
        a("v_cvt_pk_bf16_f32 v39, v38, v39"); a("v_lshlrev_b32 v38, 16, v39"); a("v_and_b32 v39, 0xffff0000, v39")
        a("v_mul_f32 v28, v28, v38"); a(f"v_add_f32 v39, {EPS:#x}, v39")
        a(f"ds_write_b32 v24, v28 offset:{L_T}")
        rbf(39, 39); a("v_sqrt_f32 v39, v39"); a("v_mov_b32 v27, 0"); rbf(39, 39); a("v_rcp_f32 v39, v39")
        a("s_nop 0")
        a(f"ds_write_b32 v27, v39 offset:{L_T+256}")
        a("s_waitcnt lgkmcnt(0)")
        with live(): a("s_barrier")
        a("s_branch L_tend")
        a.label("L_final5")
    a("s_cmp_lg_u32 s3, 5"); a("s_cbranch_scc1 L_tend")
    a(f"s_cmp_ge_u32 s52, {NFIN}"); a("s_cbranch_scc1 L_tend")
    a("s_mov_b32 s44, s78"); a("s_mov_b32 s45, s79"); a(f"s_mov_b32 s46, {NFFN*2560}"); a("s_mov_b32 s47, 0x20000")
    a("v_lshrrev_b32 v4, 3, v0"); a("v_mul_u32_u24 v4, 2560, v4"); a("v_and_b32 v5, 7, v0"); a("v_lshl_add_u32 v4, v5, 4, v4")
    a("s_lshl_b32 s12, s52, 7"); a("v_add_u32 v4, s12, v4")
    a("v_lshl_add_u32 v5, v5, 2, v2"); a("v_and_b32 v6, 1, v5"); a("v_lshrrev_b32 v5, 1, v5"); a("v_lshl_add_u32 v5, v5, 3, v6")
    a("s_lshr_b32 s12, s52, 2"); a("s_lshl_b32 s12, s12, 7"); a("s_and_b32 s13, s52, 3"); a("s_lshl_b32 s13, s13, 1"); a("s_add_u32 s12, s12, s13")
    a("v_add_u32 v5, s12, v5")
    a("v_lshlrev_b32 v6, 2, v5"); a("v_lshlrev_b32 v5, 1, v5")
    if fold: a(f"ds_read_u16 v7, v5 offset:{L_H}")
    else: a(f"ds_read_b32 v7, v6 offset:{L_H}")
    for i in range(1, 7): a(f"s_mov_b32 s{80+i}, {8*2560*i}")
    a("s_mov_b32 s12, 0x00ff00ff"); a("s_mov_b32 s13, 0x00ff00ff")
    a("s_waitcnt lgkmcnt(0)")
    if fold: a("v_lshlrev_b32 v7, 16, v7")
    def i3(i):
        return (lambda: a(f"buffer_load_dwordx4 v[{104+4*i}:{107+4*i}], v4, s[44:47], " + ("0" if i == 0 else f"s{80+i}") + " offen sc1"), range(104 + 4 * i, 108 + 4 * i))
    def s3():
        for j in (0, 2):
            a(f"v_pk_add_f32 v[{16+j}:{17+j}], v[{104+j}:{105+j}], v[{108+j}:{109+j}]")
            a(f"v_pk_add_f32 v[{20+j}:{21+j}], v[{112+j}:{113+j}], v[{116+j}:{117+j}]")
            a(f"v_pk_add_f32 v[{24+j}:{25+j}], v[{120+j}:{121+j}], v[{124+j}:{125+j}]")
        for j in (0, 2):
            a(f"v_pk_add_f32 v[{16+j}:{17+j}], v[{16+j}:{17+j}], v[{20+j}:{21+j}]")
            a(f"v_pk_add_f32 v[{24+j}:{25+j}], v[{24+j}:{25+j}], v[{128+j}:{129+j}]")
        for j in (0, 2): a(f"v_pk_add_f32 v[{16+j}:{17+j}], v[{16+j}:{17+j}], v[{24+j}:{25+j}]")
    with live():
        if e3ack:
            c("first look once a store of this workgroup has been acknowledged: lines nobody has cached yet are written faster")
            lds_wait(63, F_FACK, 1, 150, 0)
        spoll([i3(i) for i in range(7)], s3, range(16, 20), 14)
    stamp("e3")
    red_g4([16, 17, 18, 19], 20)
    a(f"v_add_f32_dpp v20, v20, v20 row_ror:8 {FULL}")
    rbf(20, 20)
    a("v_add_f32 v20, v20, v7"); a("v_cvt_pk_bf16_f32 v20, v20, v20")
    a("s_cbranch_execz L_warmed")
    a("s_mov_b64 exec, s[12:13]")
    a("global_store_short v5, v20, s[34:35]")
    a("s_cmp_lg_u32 s52, 0"); a("s_cbranch_scc1 L_noep")
    c("every workgroup has long read the epoch word: leave this launch's tag there")
    a("s_mov_b64 exec, 1")
    a(f"v_mov_b32 v5, {WS_EP:#x}"); a("v_mov_b32 v6, s15")
    a("global_store_dword v5, v6, s[38:39]")
    if dbl:
        a("s_memrealtime s[90:91]"); a("s_waitcnt lgkmcnt(0)")
        a("s_sub_u32 s92, s90, s88"); a(f"s_mul_i32 s92, s92, {dbl}"); a("s_add_u32 s92, s92, s90"); a("s_mov_b32 s60, 100000")
        a.label("L_dbl")
        a("s_memrealtime s[90:91]"); a("s_waitcnt lgkmcnt(0)"); a("s_sub_u32 s93, s90, s92"); a("s_cmp_ge_i32 s93, 0"); a("s_cbranch_scc1 L_noep")
        a("s_sub_u32 s60, s60, 1"); a("s_cbranch_scc0 L_dbl")
    a.label("L_noep")
    a("s_mov_b64 exec, -1")
    stamp("out")
    a.label("L_tend")
    a("s_cbranch_execz L_warmed")
    a.label("L_fin")
    if diag:
        a("s_add_u32 s90, s38, 0x10000000"); a("s_addc_u32 s91, s39, 0")
        a(f"s_mul_i32 s92, s2, {NWAVE}"); a("s_add_u32 s92, s92, s93"); a("s_lshl_b32 s92, s92, 8")
        a(f"v_lshlrev_b32 v{SV+1}, 2, v0"); a(f"v_add_u32 v{SV+1}, s92, v{SV+1}")
        a(f"global_store_dword v{SV+1}, v{SV}, s[90:91]")
    a.label("L_exit")
    a("s_endpgm")
    nv = 168
    a.raw('.section .rodata,"a"'); a.raw(".p2align 6"); a.raw(f".amdhsa_kernel {KN}")
    a.raw(f"  .amdhsa_next_free_vgpr {nv}"); a.raw("  .amdhsa_next_free_sgpr 96"); a.raw(f"  .amdhsa_accum_offset {nv}")
    a.raw("  .amdhsa_group_segment_fixed_size 0"); a.raw("  .amdhsa_kernarg_size 96"); a.raw("  .amdhsa_user_sgpr_count 2")
    a.raw("  .amdhsa_user_sgpr_kernarg_segment_ptr 1"); a.raw("  .amdhsa_system_sgpr_workgroup_id_x 1")
    a.raw("  .amdhsa_float_denorm_mode_32 3")
    a.raw(".end_amdhsa_kernel")
    return a.text(), stampn

if __name__ == "__main__":
    out = sys.argv[1]
    kw = eval("dict(%s)" % sys.argv[2]) if len(sys.argv) > 2 else {}
    t, st = gen(**kw)
    open(out, "w").write(t)
    print("wrote", out, len(t.splitlines()), "lines", st)
```

```python
import sys
sys.path.insert(0, "work")
from asmlib import Asm

KN = "sequential_preLN__mha_block_cached__swiglu_ffn__decode_kernel"
HEADER = open("sequential_preLN__mha_block_cached__swiglu_ffn__decode.s.ref").read().split("; Override launch")[0]

MB = 4352
MB_ST = 512
MB_MK = 768
MB_O = 1024
WS_EP = 0x110000
WS_PG = 0x118000
WS_YP = 0x120000
WS_FP = 0x130000
F_QARR, F_QGOT, F_KDONE, F_PRDY, F_OA, F_MODE, F_TICK, F_OB, F_MARK, F_SAME, F_PUB, F_FACK = 0, 4, 8, 16, 24, 28, 44, 48, 52, 56, 60, 64
L_Q = 256
L_QS = 768
L_SC = 2048
L_PP = L_SC + 32768
L_OL = L_PP + 16384
L_YL = L_OL + 4096
L_H = L_YL + 2048
L_GU = L_H + 2560
L_ST = L_GU + 1024
L_CS = L_ST + 64
L_T = L_CS + 1024
L_END = L_T + 320
NWO, NFFN, NFIN = 160, 54, 20
NWAVE = 12
SPIN = 400000
LSPIN = 4000000
LOG2E = 0x3fb8aa3b
SCALE = 0x3db504f3
INV640 = 0x3acccccd
EPS = 0x3727c5ac
FULL = "row_mask:0xf bank_mask:0xf"

DOC = """;
;  * The bf16 roundings of the reference are reproduced (first LN, q, scores twice, p, o, attention output, h, mean / var / std, g, silu,
;    producer wrote earlier in this launch.  The 16 workgroups of a head pair find out at run time (XCC id inside the q tags) whether
"""

def gen(diag=False, dbl=0, DS=(5, 6, 8), F=6, hprio=1, stag=2, QTO=12, gov=(-1, 4), gsleep=2, gbias=8, wo_at=31, ffn_at=32, lastit=3,
        early1=False, pre1=True, preA=20, touchB=False, e3ack=1, sprio=1, swap=True, gupol='', pw2=0, pw3=0, early2=False, probe=0, fold=True):
    a = Asm()
    c = a.comment
    uid = [0]
    def L(n):
        uid[0] += 1
        return f"L_{n}_{uid[0]}"
    stampn = {}
    SV = 166
    T0 = 18 - F + 16
    def stamp(name):
        if not diag: return
        if diag == 1 and name not in ("start", "v_done", "out"): return
        i = stampn.setdefault(name, len(stampn))
        sk = L("st"); a(f"s_cbranch_execz {sk}")
        a("s_memrealtime s[90:91]"); a("s_waitcnt lgkmcnt(0)"); a(f"v_writelane_b32 v{SV}, s90, {i}")
        a.label(sk)
    class live:
        def __enter__(s_): s_.l = L("live"); a(f"s_cbranch_execz {s_.l}")
        def __exit__(s_, *x): a.label(s_.l)
    def lane0(ins): a("s_mov_b64 exec, 1"); a(ins); a("s_mov_b64 exec, -1")
    def rbf(dst, src):
        a(f"v_cvt_pk_bf16_f32 v{dst}, v{src}, v{src}"); a(f"v_and_b32 v{dst}, 0xffff0000, v{dst}")
    def rowred(op, v):
        for r in (8, 4, 2, 1): a(f"{op}_dpp v{v}, v{v}, v{v} row_ror:{r} {FULL}")
    def allred(op, v, t):
        rowred(op, v)
        a(f"v_mov_b32 v{t}, v{v}"); a(f"v_permlane16_swap_b32 v{v}, v{t}"); a(f"{op} v{v}, v{v}, v{t}")
        a(f"v_mov_b32 v{t}, v{v}"); a(f"v_permlane32_swap_b32 v{v}, v{t}"); a(f"{op} v{v}, v{v}, v{t}")
    def red_g8(r, dst):
        for j in range(4): a(f"v_permlane32_swap_b32 v{r[j]}, v{r[j+4]}")
        for j in range(4): a(f"v_add_f32 v{r[j]}, v{r[j]}, v{r[j+4]}")
        a(f"v_permlane16_swap_b32 v{r[0]}, v{r[2]}"); a(f"v_permlane16_swap_b32 v{r[1]}, v{r[3]}")
        a(f"v_add_f32 v{dst}, v{r[0]}, v{r[2]}"); a(f"v_add_f32 v{dst+1}, v{r[1]}, v{r[3]}")
    def red_g4(r, dst):
        a(f"v_permlane32_swap_b32 v{r[0]}, v{r[2]}"); a(f"v_permlane32_swap_b32 v{r[1]}, v{r[3]}")
        a(f"v_add_f32 v{r[0]}, v{r[0]}, v{r[2]}"); a(f"v_add_f32 v{r[1]}, v{r[1]}, v{r[3]}")
        a(f"v_permlane16_swap_b32 v{r[0]}, v{r[1]}")
        a(f"v_add_f32 v{dst}, v{r[0]}, v{r[1]}")
    def guard(regs):
        for r in regs: a(f"v_min_u32 v{r}, -2, v{r}")
    def umax(t, rs):
        rs = list(rs)
        a(f"v_max3_u32 v{t}, v{rs[0]}, v{rs[1]}, v{rs[2]}"); rs = rs[3:]
        while len(rs) >= 2: a(f"v_max3_u32 v{t}, v{t}, v{rs[0]}, v{rs[1]}"); rs = rs[2:]
        if rs: a(f"v_max_u32 v{t}, v{t}, v{rs[0]}")
    def spoll(groups, sums, outs, t, issued=False, pw=0):
        top, done = L("spoll"), L("spolled")
        a(f"s_mov_b32 s60, {SPIN}")
        if not issued:
            for g, _ in groups: g()
        if pw: a("s_waitcnt vmcnt(0)")
        a.label(top)
        a(f"s_waitcnt vmcnt({pw})")
        sums(); umax(t, outs)
        a(f"v_cmp_eq_u32 vcc, -1, v{t}"); a(f"s_cbranch_vccz {done}")
        for g, rs in groups:
            sk = L("gsk")
            umax(t, rs)
            a(f"v_cmp_eq_u32 vcc, -1, v{t}"); a(f"s_cbranch_vccz {sk}")
            a("s_mov_b64 exec, vcc"); g(); a("s_mov_b64 exec, -1")
            a.label(sk)
        a("s_sub_u32 s60, s60, 1"); a(f"s_cbranch_scc0 {top}")
        a("s_waitcnt vmcnt(0)")
        a.label(done)
    def pub2(ins):
        gl, dn = L("glob"), L("pubd")
        a("s_cmp_eq_u32 s66, 0"); a(f"s_cbranch_scc1 {gl}")
        a(ins); a(f"s_branch {dn}")
        a.label(gl); a(ins + " sc1"); a.label(dn)
    def lds_wait(vaddr, off, val, t, slp):
        top, done = L("lw"), L("lwd")
        a(f"s_mov_b32 s60, {LSPIN}")
        a.label(top)
        a(f"ds_read_b32 v{t}, v{vaddr} offset:{off}"); a("s_waitcnt lgkmcnt(0)")
        a(f"v_cmp_gt_u32 vcc, {val}, v{t}"); a(f"s_cbranch_vccz {done}")
        if slp: a(f"s_sleep {slp}")
        a("s_sub_u32 s60, s60, 1"); a(f"s_cbranch_scc0 {top}")
        a.label(done)
    def lds_signal(vaddr, off, one):
        a("s_waitcnt lgkmcnt(0)"); lane0(f"ds_add_u32 v{vaddr}, v{one} offset:{off}")
    def pair_perm(W, spare, before=None, after=None):
        out = []
        for t in range(0, len(W), 2):
            cols = []
            if before: before(t // 2)
            for j in range(4):
                A_, B_ = W[t][j], W[t + 1][j]
                a(f"v_perm_b32 v{spare}, v{B_}, v{A_}, s70"); a(f"v_perm_b32 v{B_}, v{B_}, v{A_}, s71")
                cols += [spare, B_]; spare = A_
            out.append(cols)
            if after: after(t // 2, cols)
        return out

    a.raw(HEADER.rstrip("\n"))
    a.raw(f"; @launch grid=(256,1,1) block=({64*NWAVE},1,1) lds={L_END}")
    a.raw(DOC.rstrip("\n"))
    a.raw('.amdgcn_target "amdgcn-amd-amdhsa--gfx950"')
    a.raw(".text"); a.raw(f".globl {KN}"); a.raw(".p2align 8"); a.raw(f".type {KN},@function")
    a.label(KN)
    a("s_cmp_ge_u32 s2, 256"); a("s_cbranch_scc1 L_exit")
    if dbl: a("s_memrealtime s[88:89]")
    a("s_load_dwordx16 s[16:31], s[0:1], 0"); a("s_load_dwordx8 s[32:39], s[0:1], 64")
    a("v_lshrrev_b32 v1, 6, v0"); a("v_and_b32 v0, 63, v0"); a("v_readfirstlane_b32 s3, v1")
    if diag: a(f"v_mov_b32 v{SV}, 0")
    a("v_lshlrev_b32 v1, 4, v0")
    c("logical id: round-robin placement deals the 16 workgroups of a head pair to one XCD (speed only); s4 = pair, s67 = role id")
    a("s_and_b32 s4, s2, 7"); a("s_lshl_b32 s4, s4, 5"); a("s_lshr_b32 s2, s2, 3"); a("s_or_b32 s2, s2, s4")
    a("s_lshr_b32 s4, s2, 4")
    if diag: a("s_mov_b32 s93, s3")
    a("s_and_b32 s67, s2, 15"); a("s_lshl_b32 s67, s67, 4"); a("s_add_u32 s67, s67, s4")
    a("s_cmp_ge_u32 s3, 4"); a("s_cbranch_scc1 L_helper")

    c("================= streamers =================")
    R0 = 36
    ring = [8]
    def slot(ck, i): return R0 + 16 * (ck % ring[0]) + 4 * i
    def issue_chunk(ck, pacer=None, lo=0, hi=4):
        for i in range(lo, hi):
            if pacer: pacer()
            s = slot(ck, i)
            a(f"buffer_load_dwordx4 v[{s}:{s+3}], v1, s[8:11], s12 offen offset:{1024*i} nt")
        if hi == 4: a("s_add_u32 s12, s12, 0x4000"); a("s_and_b32 s12, s12, 0x3ffff")
    a("s_and_b32 s5, s2, 15")
    a("s_lshl_b32 s13, s4, 23"); a("s_lshl_b32 s14, s5, 18"); a("s_add_u32 s13, s13, s14")
    a(f"s_mul_i32 s12, s5, {stag*0x4000}"); a("s_and_b32 s12, s12, 0x3ffff")
    a("s_lshl_b32 s14, s3, 12"); a("s_add_u32 s12, s12, s14")
    a("s_mov_b32 s10, 0x40000"); a("s_mov_b32 s11, 0x20000")
    a("s_waitcnt lgkmcnt(0)")
    a("s_add_u32 s8, s18, s13"); a("s_addc_u32 s9, s19, 0")
    stamp("start")
    issue_chunk(0); issue_chunk(1, None, 0, 2)
    a(f"s_add_u32 s14, s14, {L_SC}")
    a("v_lshlrev_b32 v20, 2, v0"); a("v_add_u32 v20, s14, v20")
    a("v_and_b32 v21, 15, v0"); a("v_lshlrev_b32 v21, 4, v21")
    a("v_mov_b32 v22, 0"); a("v_mov_b32 v23, 1"); a("v_mov_b32 v3, 0")
    a("s_barrier")
    a(f"s_sub_u32 s15, s67, {NWO}"); a(f"s_cmp_lt_u32 s15, {NFFN}"); a("s_cselect_b32 s15, 2, 1")
    def tick(rd):
        lane0(f"ds_add_u32 v3, v23 offset:{F_TICK}")
        if rd: a(f"ds_read_b32 v2, v3 offset:{F_MODE}")
    def gmode(rd, last=False):
        if not rd: return
        a("s_waitcnt lgkmcnt(0)"); a("v_readfirstlane_b32 s45, v2")
        a("s_sub_u32 s45, s45, 1"); a("s_cselect_b32 s15, s15, s45")
        if last: a("s_cmp_ge_u32 s6, s44"); a("s_cselect_b32 s15, 2, s15")
    def pace():
        go = L("go")
        a(f"s_waitcnt vmcnt({DS[2]-1})"); a("s_cmp_ge_u32 s15, 2"); a(f"s_cbranch_scc1 {go}")
        a(f"s_waitcnt vmcnt({DS[1]-1})"); a("s_cmp_ge_u32 s15, 1"); a(f"s_cbranch_scc1 {go}")
        a(f"s_waitcnt vmcnt({DS[0]-1})")
        a.label(go)
    assert DS[2] <= 8
    c("run ahead until q is there")
    for ck in range(1, F): issue_chunk(ck, lambda: a(f"s_waitcnt vmcnt({DS[1]-1})"), (2 if ck == 1 else 0))
    lds_wait(22, F_QGOT, 4, 8, 1)
    a(f"ds_read_b128 v[4:7], v21 offset:{L_Q}"); a(f"ds_read_b128 v[16:19], v21 offset:{L_Q+256}")
    a("s_waitcnt lgkmcnt(0)")
    def switch_point():
        a("s_cmp_eq_u32 s6, 3")
        a("s_cselect_b32 s8, s40, s8"); a("s_cselect_b32 s9, s41, s9"); a("s_cselect_b32 s10, s43, s10")
    def proc_k(ck, q, off):
        for j in range(4):
            for i in range(4):
                a(f"v_dot2_f32_bf16 v{8+i}, v{slot(ck,i)+j}, v{q+j}, " + ("0" if j == 0 else f"v{8+i}"))
        a("v_add_f32_dpp v12, v8, v8 row_ror:8 row_mask:0xf bank_mask:0x3")
        a("v_add_f32_dpp v13, v10, v10 row_ror:8 row_mask:0xf bank_mask:0x3")
        a("v_add_f32_dpp v12, v9, v9 row_ror:8 row_mask:0xf bank_mask:0xc")
        a("v_add_f32_dpp v13, v11, v11 row_ror:8 row_mask:0xf bank_mask:0xc")
        a("v_add_f32_dpp v14, v12, v12 row_half_mirror row_mask:0xf bank_mask:0x5")
        a("v_add_f32_dpp v14, v13, v13 row_half_mirror row_mask:0xf bank_mask:0xa")
        a(f"ds_write_b32 v20, v14 offset:{off}")
    c("K of head A: the look-ahead shrinks to 2 chunks; once chunk n is issued at most 8 loads are out, so chunk n-2 has landed")
    n, since, burst = F, 9, 0
    for k in range(16):
        did = n - ring[0] < k and n < 18 and (n - k <= 2 or since >= 2 or burst < 2)
        if did:
            if n == 16: a("s_add_u32 s8, s8, 0x400000"); a("s_addc_u32 s9, s9, 0")
            issue_chunk(n, pace); n += 1; since = 0; burst += 1
            tick(True)
        assert k <= n - 3
        proc_k(k, 4, 256 * k)
        gmode(did)
        since += 1
    assert n == 18
    lds_signal(22, F_KDONE, 23)
    ring[0] = 4
    c("K of head B")
    a("s_add_u32 s40, s20, s13"); a("s_addc_u32 s41, s21, 0"); a("s_mov_b32 s43, 0x40000")
    a("s_mov_b32 s6, 0")
    a.label("L_kiter")
    for k in range(4):
        if k == 2: switch_point()
        issue_chunk(k + 2, pace)
        tick(k % 2 == 0)
        proc_k(k, 16, 0x4000 + 256 * k)
        gmode(k % 2 == 0)
    a("v_add_u32 v20, 0x400, v20")
    a("s_add_u32 s6, s6, 1"); a("s_cmp_lt_u32 s6, 4"); a("s_cbranch_scc1 L_kiter")
    lds_signal(22, F_KDONE + 4, 23)
    c("V of head A, then of head B")
    a("s_lshl_b32 s14, s3, 11"); a(f"s_add_u32 s14, s14, {L_PP}")
    a("v_lshlrev_b32 v20, 3, v0"); a("v_add_u32 v20, s14, v20")
    a("s_lshl_b32 s14, s3, 9"); a(f"s_add_u32 s14, s14, {L_OL}")
    a("v_and_b32 v21, 15, v0"); a("v_lshlrev_b32 v21, 5, v21"); a("v_lshrrev_b32 v8, 4, v0"); a("v_lshl_add_u32 v21, v8, 3, v21")
    a("v_add_u32 v21, s14, v21")
    a("s_add_u32 s40, s40, 0x400000"); a("s_addc_u32 s41, s41, 0")
    a("s_mov_b32 s7, 0"); a("s_mov_b32 s44, 99")
    a.label("L_vhead")
    lds_wait(22, F_PRDY, 1, 8, 1)
    for j in range(8): a(f"v_mov_b32 v{24+j}, 0")
    a("s_mov_b32 s6, 0")
    a.label("L_viter")
    a("ds_read_b64 v[32:33], v20")
    a("s_cmp_ge_u32 s6, s44"); a("s_cselect_b32 s15, 2, s15")
    for k in range(4):
        if k == 2: switch_point()
        if k >= 2:
            dr, go = L("drain"), L("drained")
            a("s_cmp_eq_u32 s10, 0"); a(f"s_cbranch_scc1 {dr}")
            issue_chunk(k + 2, pace)
            a(f"s_branch {go}")
            a.label(dr); a(f"s_waitcnt vmcnt({4*(3-k)})"); a.label(go)
        else:
            issue_chunk(k + 2, pace)
        if k == 0: a("s_waitcnt lgkmcnt(0)")
        tick(k % 2 == 0)
        for i in range(4):
            s = slot(k, i)
            ln = ((i & 1) << 3) | ((i >> 1) << 2) | k
            for j in range(4):
                a(f"v_dot2c_f32_bf16_dpp v{24+2*j}, v32, v{s+j} row_newbcast:{ln} {FULL}")
                a(f"v_dot2c_f32_bf16_dpp v{25+2*j}, v33, v{s+j} row_newbcast:{ln} {FULL}")
        gmode(k % 2 == 0, True)
    a("v_add_u32 v20, 0x200, v20")
    a("s_add_u32 s6, s6, 1"); a("s_cmp_lt_u32 s6, 4"); a("s_cbranch_scc1 L_viter")
    red_g8(list(range(24, 32)), 34)
    a("ds_write_b64 v21, v[34:35]")
    a("s_cmp_lg_u32 s7, 0"); a("s_cbranch_scc1 L_vend")
    lds_signal(22, F_OA, 23)
    a("v_add_u32 v20, 0x1800, v20"); a("v_add_u32 v21, 0x800, v21"); a("v_mov_b32 v22, 4")
    a("s_mov_b32 s43, 0"); a("s_mov_b32 s7, 1"); a(f"s_mov_b32 s44, {lastit}")
    a("s_branch L_vhead")
    a.label("L_vend")
    lane0(f"ds_add_u32 v3, v23 offset:{F_OB}")
    stamp("v_done")
    if fold:
        a(f"s_sub_u32 s12, s67, {NWO}"); a(f"s_cmp_ge_u32 s12, {NFFN}"); a("s_cbranch_scc1 L_fin")
        a("s_cmp_eq_u32 s3, 0"); a("s_cbranch_scc1 L_lnstat")
    a("s_branch L_fin")

    W0 = 64
    def gu_setup(vreg, tmp):
        a("s_cmp_lt_u32 s53, 4"); a("s_cselect_b32 s44, s28, s30"); a("s_cselect_b32 s45, s29, s31")
        a(f"s_mov_b32 s46, {640*3456}"); a("s_mov_b32 s47, 0x20000")
        a("s_and_b32 s50, s3, 3"); a(f"s_mul_i32 s50, s50, {160*3456}"); a("s_lshl_b32 s51, s52, 6"); a("s_add_u32 s50, s50, s51")
        for i in range(1, 5): a(f"s_add_u32 s{80+i}, s50, {2*3456*i}")
        a(f"v_lshrrev_b32 v{vreg}, 2, v0"); a(f"v_mul_u32_u24 v{vreg}, {10*3456}, v{vreg}"); a(f"v_and_b32 v{tmp}, 3, v0"); a(f"v_lshl_add_u32 v{vreg}, v{tmp}, 4, v{vreg}")
    def gu_load(t, vreg):
        a(f"buffer_load_dwordx4 v[{W0+4*t}:{W0+4*t+3}], v{vreg}, s[44:47], " + ("s50" if t < 2 else f"s{80+t//2}") + f" offen offset:{(t%2)*3456} {gupol}")
    c("================= helpers =================")
    a.label("L_helper")
    a("s_sub_u32 s3, s3, 4"); a("s_and_b32 s6, s2, 15"); a(f"s_sub_u32 s52, s67, {NWO}")
    if swap: a("s_and_b32 s53, s52, 1"); a("s_lshl_b32 s53, s53, 2"); a("s_xor_b32 s53, s53, s3")
    else: a("s_mov_b32 s53, s3")
    a("v_lshlrev_b32 v6, 2, v0"); a("v_mov_b32 v14, 0"); a("v_mov_b32 v15, 1")
    a("s_mov_b32 s70, 0x05040100"); a("s_mov_b32 s71, 0x07060302")
    a("s_cmp_ge_u32 s3, 4"); a("s_cbranch_scc1 L_helper2")
    c("---- helpers 0-3: LN(x), 160 rows x 64 columns of wq per workgroup, exchange inside the pair group ----")
    a("s_setprio 3")
    a("v_lshrrev_b32 v2, 3, v0"); a("v_and_b32 v3, 7, v0"); a("v_mul_u32_u24 v4, 5, v2")
    a("s_lshr_b32 s8, s6, 2"); a("s_lshl_b32 s8, s8, 2"); a("s_add_u32 s8, s8, s3"); a("s_mul_i32 s8, s8, 40")
    a("v_add_u32 v4, s8, v4")
    a("v_lshlrev_b32 v5, 13, v4"); a("v_lshl_add_u32 v5, v3, 4, v5"); a("v_lshlrev_b32 v4, 1, v4")
    a("s_lshl_b32 s9, s4, 9"); a("s_and_b32 s10, s6, 3"); a("s_lshl_b32 s10, s10, 7"); a("s_add_u32 s9, s9, s10")
    a(f"s_mov_b32 s46, {640*8192}"); a("s_mov_b32 s47, 0x20000")
    a("s_waitcnt lgkmcnt(0)")
    stamp("start")
    a(f"s_add_u32 s74, s38, {WS_EP}"); a("s_addc_u32 s75, s39, 0"); a("s_load_dword s15, s[74:75], 0")
    a("global_load_dwordx4 v[16:19], v1, s[16:17]"); a("global_load_dword v20, v6, s[16:17] offset:1024")
    for t in range(5): a(f"global_load_ushort v{21+t}, v4, s[16:17] offset:{2*t}")
    a("s_mov_b32 s44, s22"); a("s_mov_b32 s45, s23")
    for t in range(5):
        a(f"buffer_load_dwordx4 v[{64+4*t}:{64+4*t+3}], v5, s[44:47], s9 offen nt")
        if t < 4: a("s_add_u32 s9, s9, 0x2000")
    a("s_barrier")
    a("v_lshlrev_b32 v12, 2, v2"); a("v_lshl_add_u32 v12, v3, 5, v12")
    a("s_lshl_b32 s12, s3, 8"); a("v_add_u32 v12, s12, v12")
    a("s_mov_b32 s62, 0xff00ff00"); a("s_mov_b32 s63, 0xff00ff00")
    a("s_waitcnt vmcnt(5)")
    for i in range(5): a(f"v_and_b32 v{30+2*i+1}, 0xffff0000, v{16+i}"); a(f"v_lshlrev_b32 v{30+2*i}, 16, v{16+i}")
    X = list(range(30, 40))
    a("v_add_f32 v26, v30, v31")
    for r in X[2:]: a(f"v_add_f32 v26, v26, v{r}")
    allred("v_add_f32", 26, 28)
    a(f"v_mul_f32 v26, {INV640:#x}, v26")
    for i, r in enumerate(X):
        a(f"v_sub_f32 v28, v{r}, v26"); a("v_mul_f32 v27, v28, v28" if i == 0 else "v_fmac_f32 v27, v28, v28")
    allred("v_add_f32", 27, 28)
    a(f"v_mul_f32 v27, {INV640:#x}, v27"); rbf(27, 27); rbf(26, 26)
    a(f"v_add_f32 v27, {EPS:#x}, v27"); rbf(27, 27); a("v_sqrt_f32 v27, v27"); rbf(27, 27); a("v_rcp_f32 v27, v27")
    for t in range(5):
        a(f"v_lshlrev_b32 v{21+t}, 16, v{21+t}"); a(f"v_sub_f32 v{21+t}, v{21+t}, v26"); rbf(21 + t, 21 + t)
        a(f"v_mul_f32 v{21+t}, v{21+t}, v27")
        a(f"v_cvt_pk_bf16_f32 v{30+t}, v{21+t}, 0"); a(f"v_cvt_pk_bf16_f32 v{35+t}, 0, v{21+t}")
    for j in range(8): a(f"v_mov_b32 v{40+j}, 0")
    for t in range(5):
        a(f"s_waitcnt vmcnt({4-t})")
        for j in range(4):
            a(f"v_dot2c_f32_bf16 v{40+2*j}, v{30+t}, v{64+4*t+j}"); a(f"v_dot2c_f32_bf16 v{41+2*j}, v{35+t}, v{64+4*t+j}")
    red_g8(list(range(40, 48)), 48)
    a(f"v_add_f32_dpp v48, v48, v48 row_ror:8 {FULL}"); a(f"v_add_f32_dpp v49, v49, v49 row_ror:8 {FULL}")
    a("v_cndmask_b32 v48, v48, v49, s[62:63]")
    a(f"ds_write_b32 v12, v48 offset:{L_QS}")
    a("s_waitcnt lgkmcnt(0)")
    a("s_add_u32 s15, s15, 1")
    lane0(f"ds_add_rtn_u32 v13, v14, v15 offset:{F_QARR}")
    a("v_lshrrev_b32 v10, 5, v0"); a(f"v_mul_u32_u24 v12, {8*MB}, v10"); a("v_and_b32 v11, 31, v0"); a("v_lshl_add_u32 v12, v11, 4, v12")
    a("s_lshl_b32 s12, s4, 4"); a("s_add_u32 s12, s12, s3"); a(f"s_mul_i32 s12, s12, {MB}"); a("v_add_u32 v12, s12, v12")
    a(f"v_add_u32 v9, {4*MB}, v12")
    a("s_getreg_b32 s13, hwreg(HW_REG_XCC_ID, 0, 4)"); a("s_lshl_b32 s13, s13, 28"); a("s_xor_b32 s13, s13, s15")
    a(f"v_add_u32 v16, {L_QS}, v6")
    a(f"s_mul_i32 s14, s2, {MB}"); a("v_lshlrev_b32 v17, 3, v0"); a("v_add_u32 v17, s14, v17")
    a("s_waitcnt lgkmcnt(0)")
    a("v_readfirstlane_b32 s12, v13")
    def qpub(pol):
        a("ds_read2st64_b32 v[18:19], v16 offset0:0 offset1:1"); a("ds_read2st64_b32 v[20:21], v16 offset0:2 offset1:3")
        a("s_waitcnt lgkmcnt(0)")
        a("v_add_f32 v18, v18, v19"); a("v_add_f32 v20, v20, v21"); a("v_add_f32 v18, v18, v20"); a("v_mov_b32 v19, s13")
        a(f"global_store_dwordx2 v17, v[18:19], s[38:39]{pol}")
    a("s_cmp_lg_u32 s12, 3"); a("s_cbranch_scc1 L_qnopub")
    c("the last of the four waves publishes; first try: through this XCD's L2 only")
    qpub("")
    a.label("L_qnopub")
    a(f"s_mov_b32 s61, {SPIN}")
    a.label("L_qpoll")
    a("global_load_dwordx4 v[24:27], v12, s[38:39] sc1"); a("global_load_dwordx4 v[28:31], v9, s[38:39] sc1")
    a("s_waitcnt vmcnt(0)")
    for r in (25, 27, 29, 31): a(f"v_xor_b32 v{r}, s13, v{r}")
    a("v_or3_b32 v25, v25, v27, v29"); a("v_or_b32 v25, v25, v31"); a("v_and_b32 v27, 0x0fffffff, v25")
    a("v_cmp_ne_u32 vcc, 0, v27"); a("s_cbranch_vccz L_qpolled")
    a("s_sleep 1")
    a(f"s_cmp_lg_u32 s61, {SPIN-QTO}"); a("s_cbranch_scc1 L_qagain")
    c("still incomplete: a member may sit on another XCD, so publish for the whole device")
    lds_wait(14, F_QARR, 4, 8, 2); qpub(" sc1")
    a.label("L_qagain")
    a("s_sub_u32 s61, s61, 1"); a("s_cbranch_scc0 L_qpoll")
    a.label("L_qpolled")
    a("v_cmp_ne_u32 vcc, 0, v25"); a("s_cbranch_vccz L_qsame")
    c("a member does sit on another XCD")
    lds_wait(14, F_QARR, 4, 8, 2); qpub(" sc1")
    a("s_branch L_qdiff")
    a.label("L_qsame")
    lane0(f"ds_add_u32 v14, v15 offset:{F_SAME}")
    a.label("L_qdiff")
    a("v_add_f32 v24, v24, v28"); a("v_add_f32 v26, v26, v30")
    a("v_permlane32_swap_b32 v24, v26"); a("v_add_f32 v24, v24, v26"); a("v_cvt_pk_bf16_f32 v24, v24, v24")
    a("v_lshl_add_u32 v12, v11, 1, v10"); a("v_lshlrev_b32 v12, 1, v12")
    a("s_lshl_b32 s12, s3, 7"); a("v_add_u32 v12, s12, v12")
    a(f"ds_write_b16 v12, v24 offset:{L_Q}")
    lds_signal(14, F_QGOT, 15)
    a(f"s_setprio {hprio}")
    a("s_branch L_down")

    c("---- helpers 4-7 ----")
    a.label("L_helper2")
    a(f"s_setprio {hprio}")
    a("s_cmp_lg_u32 s3, 4"); a("s_cbranch_scc1 L_noinit")
    a("ds_write_b32 v6, v14")
    a.label("L_noinit")
    a("s_waitcnt lgkmcnt(0)")
    stamp("start")
    a(f"s_add_u32 s74, s38, {WS_EP}"); a("s_addc_u32 s75, s39, 0"); a("s_load_dword s15, s[74:75], 0")
    a("s_cmp_lg_u32 s3, 6"); a("s_cbranch_scc1 L_clrdone")
    c("helper 6 marks the device-wide words this workgroup will publish as empty")
    for r in range(8, 12): a(f"v_mov_b32 v{r}, -1")
    a(f"s_cmp_ge_u32 s67, {NWO}"); a("s_cbranch_scc1 L_clrffn")
    a("s_mul_i32 s12, s4, 2560"); a("s_lshl_b32 s13, s6, 8"); a("s_add_u32 s12, s12, s13")
    a(f"s_add_u32 s12, s12, {WS_YP}"); a("v_add_u32 v12, s12, v6")
    a("global_store_dword v12, v8, s[38:39] sc1")
    a("s_branch L_clrdone")
    a.label("L_clrffn")
    a(f"s_cmp_ge_u32 s52, {NFFN}"); a("s_cbranch_scc1 L_clrdone")
    a("s_mul_i32 s12, s52, 2560"); a(f"s_add_u32 s12, s12, {WS_FP}"); a("v_add_u32 v12, s12, v1")
    a("global_store_dwordx4 v12, v[8:11], s[38:39] sc1"); a("global_store_dwordx4 v12, v[8:11], s[38:39] offset:1024 sc1")
    a("s_mov_b32 exec_hi, 0"); a("global_store_dwordx4 v12, v[8:11], s[38:39] offset:2048 sc1"); a("s_mov_b64 exec, -1")
    a.label("L_clrdone")
    a("s_barrier")
    a("s_waitcnt lgkmcnt(0)")
    a("s_add_u32 s15, s15, 1")
    a("s_cmp_eq_u32 s3, 4"); a("s_cbranch_scc1 L_down")
    a("s_cmp_eq_u32 s3, 5"); a("s_cbranch_scc1 L_roles")
    a(f"s_mul_i32 s11, s2, {MB}"); a("v_add_u32 v7, s11, v1")
    a("s_sub_u32 s7, s3, 6")
    a("s_cmp_lg_u32 s7, 0"); a("s_cbranch_scc1 L_h7")
    a(f"s_cmp_ge_u32 s67, {NWO+NFFN}"); a("s_cbranch_scc1 L_stats")
    a("s_waitcnt vmcnt(0)"); a("v_mov_b32 v12, s15")
    lane0(f"global_store_dword v7, v12, s[38:39] offset:{MB_MK} sc1")
    a("s_branch L_stats")
    a.label("L_h7")
    c("helper 7 (the publisher at the end) takes its w_up rows now")
    a(f"s_cmp_ge_u32 s52, {NFFN}"); a("s_cbranch_scc1 L_stats")
    gu_setup(2, 3)
    for t in range(10):
        if t >= 2: a("s_waitcnt vmcnt(1)")
        gu_load(t, 2)
    c("---- helpers 6, 7: softmax of head A, B ----")
    a.label("L_stats")
    lds_wait(14, F_QGOT, 4, 8, 8)
    a(f"ds_read_b32 v8, v14 offset:{F_SAME}"); a("s_waitcnt lgkmcnt(0)"); a("v_readfirstlane_b32 s66, v8")
    a("s_lshr_b32 s66, s66, 2")
    a("s_cmp_lg_u32 s7, 0"); a("s_cbranch_scc1 L_noclrO")
    for r in range(8, 12): a(f"v_mov_b32 v{r}, -1")
    pub2(f"global_store_dwordx4 v7, v[8:11], s[38:39] offset:{MB_O}")
    a.label("L_noclrO")
    a("s_lshl_b32 s12, s7, 2"); a("v_mov_b32 v13, s12")
    a("v_and_b32 v20, 3, v0"); a("v_lshlrev_b32 v20, 8, v20"); a("v_and_b32 v21, 60, v0"); a("v_lshl_add_u32 v20, v21, 2, v20")
    a("s_lshl_b32 s12, s7, 14"); a(f"s_add_u32 s12, s12, {L_SC}"); a("v_add_u32 v20, s12, v20")
    a("s_lshl_b32 s12, s7, 13"); a(f"s_add_u32 s12, s12, {L_PP}"); a("v_lshlrev_b32 v21, 3, v0"); a("v_add_u32 v21, s12, v21")
    a(f"s_mul_i32 s12, s4, {16*MB}"); a("s_lshl_b32 s13, s7, 7"); a("s_add_u32 s12, s12, s13")
    a("v_and_b32 v22, 15, v0"); a(f"v_mul_u32_u24 v22, {MB}, v22"); a("v_add_u32 v22, s12, v22")
    a(f"s_mul_i32 s13, s6, {MB}"); a("s_add_u32 s12, s12, s13"); a("v_mov_b32 v23, s12")
    a(f"s_mov_b32 s14, {LOG2E:#x}")
    lds_wait(13, F_KDONE, 4, 8, 4)
    S = list(range(32, 48))
    for i in range(16):
        if i % 8 == 0:
            for u in range(8): a(f"ds_read_b128 v[{104+4*u}:{107+4*u}], v20 offset:{1024*(i+u)}")
        b = 104 + 4 * (i % 8)
        a(f"s_waitcnt lgkmcnt({7-i%8})")
        a(f"v_add_f32 v{b}, v{b}, v{b+1}"); a(f"v_add_f32 v{b+2}, v{b+2}, v{b+3}"); a(f"v_add_f32 v{S[i]}, v{b}, v{b+2}")
        if probe < 2: rbf(S[i], S[i])
        a(f"v_mul_f32 v{S[i]}, {SCALE:#x}, v{S[i]}")
        if probe < 2: rbf(S[i], S[i])
    a(f"v_max_f32 v28, v{S[0]}, v{S[1]}")
    for i in range(2, 16, 2): a(f"v_max3_f32 v28, v28, v{S[i]}, v{S[i+1]}")
    allred("v_max_f32", 28, 30)
    for i in range(16):
        a(f"v_sub_f32 v{104+i}, v{S[i]}, v28"); a(f"v_mul_f32 v{104+i}, s14, v{104+i}"); a(f"v_exp_f32 v{104+i}, v{104+i}")
    for st in (8, 4, 2):
        for i in range(st): a(f"v_add_f32 v{104+i}, v{104+i}, v{104+i+st}")
    a("v_add_f32 v29, v104, v105")
    allred("v_add_f32", 29, 30)
    a("v_mov_b32 v24, v28"); a("v_mov_b32 v25, s15"); a("v_mov_b32 v26, v29"); a("v_mov_b32 v27, s15")
    c("helper 6: the empty marks of the o slot have landed before this tagged word goes out")
    a("s_waitcnt vmcnt(0)")
    a("s_mov_b64 exec, 1"); pub2(f"global_store_dwordx4 v23, v[24:27], s[38:39] offset:{MB_ST}"); a("s_mov_b64 exec, -1")
    a(f"s_mov_b32 s60, {SPIN}")
    a.label("L_stpoll")
    a(f"global_load_dwordx4 v[16:19], v22, s[38:39] offset:{MB_ST} sc1")
    a("s_waitcnt vmcnt(0)")
    a("v_xor_b32 v17, s15, v17"); a("v_xor_b32 v19, s15, v19"); a("v_or_b32 v17, v17, v19")
    a("v_cmp_ne_u32 vcc, 0, v17"); a("s_cbranch_vccz L_stpolled")
    a("s_sleep 4")
    a("s_sub_u32 s60, s60, 1"); a("s_cbranch_scc0 L_stpoll")
    a.label("L_stpolled")
    c("max and sum of the whole row, then p = bf16(exp(s - max) / sum) in both halves of a dword pair")
    a("v_mov_b32 v28, v16")
    rowred("v_max_f32", 28)
    a("v_sub_f32 v24, v16, v28"); a("v_mul_f32 v24, s14, v24"); a("v_exp_f32 v24, v24"); a("v_mul_f32 v29, v24, v18")
    rowred("v_add_f32", 29)
    a("v_rcp_f32 v29, v29")
    if probe == 1: a("v_mul_f32 v29, 0x3f802000, v29")
    for i in range(16):
        a(f"v_sub_f32 v{S[i]}, v{S[i]}, v28"); a(f"v_mul_f32 v{S[i]}, s14, v{S[i]}"); a(f"v_exp_f32 v{S[i]}, v{S[i]}")
    for i in range(16):
        a(f"v_mul_f32 v{S[i]}, v{S[i]}, v29")
        a(f"v_cvt_pk_bf16_f32 v{104+2*i}, v{S[i]}, 0"); a(f"v_cvt_pk_bf16_f32 v{105+2*i}, 0, v{S[i]}")
        a(f"ds_write_b64 v21, v[{104+2*i}:{105+2*i}] offset:{512*i}")
    lds_signal(13, F_PRDY, 15)
    a("s_cmp_lg_u32 s3, 6"); a("s_cbranch_scc1 L_roles")
    a(f"s_cmp_ge_u32 s52, {NFFN}"); a("s_cbranch_scc1 L_roles")
    c("ffn workgroups: every producer of YP / FP has put its empty marks in place")
    a(f"v_mul_u32_u24 v16, {MB}, v0")
    for i in range(1, 4): a(f"v_add_u32 v{16+i}, {64*MB*i:#x}, v16")
    a(f"s_mov_b32 s60, {SPIN}")
    a.label("L_marks")
    for i in range(4):
        a(f"global_load_dword v{20+i}, v{16+i}, s[38:39] offset:{MB_MK} sc1"); a("s_waitcnt vmcnt(0)")
    for i in range(4):
        a(f"v_xor_b32 v{20+i}, s15, v{20+i}")
        m = sum(1 << l for l in range(64) if 16 * ((64 * i + l) & 15) + ((64 * i + l) >> 4) < NWO + NFFN)
        a(f"s_mov_b32 s12, {m & 0xffffffff:#x}"); a(f"s_mov_b32 s13, {m >> 32:#x}")
        a(f"v_cndmask_b32 v{20+i}, 0, v{20+i}, s[12:13]")
    a("v_or3_b32 v20, v20, v21, v22"); a("v_or_b32 v20, v20, v23")
    a("v_cmp_ne_u32 vcc, 0, v20"); a("s_cbranch_vccz L_marked")
    a("s_sleep 32")
    a("s_sub_u32 s60, s60, 1"); a("s_cbranch_scc0 L_marks")
    a.label("L_marked")
    lds_signal(14, F_MARK, 15)
    a("s_branch L_roles")

    c("---- helpers 0-4 of the ffn workgroups: w_down rows, one load at a time ----")
    a.label("L_down")
    a(f"s_cmp_ge_u32 s52, {NFFN}"); a("s_cbranch_scc1 L_roles")
    a("s_mov_b32 s44, s32"); a("s_mov_b32 s45, s33"); a(f"s_mov_b32 s46, {1728*1280}"); a("s_mov_b32 s47, 0x20000")
    a(f"s_mul_i32 s50, s52, {32*1280}"); a("s_lshl_b32 s51, s3, 8"); a("s_add_u32 s50, s50, s51")
    a("v_lshrrev_b32 v2, 4, v0"); a(f"v_mul_u32_u24 v2, {8*1280}, v2"); a("v_and_b32 v3, 15, v0"); a("v_lshl_add_u32 v2, v3, 4, v2")
    for t in range(8):
        if t == 4: a(f"s_add_u32 s50, s50, {4*1280}")
        if t: a("s_waitcnt vmcnt(0)")
        a(f"buffer_load_dwordx4 v[{W0+40+4*t}:{W0+43+4*t}], v2, s[44:47], s50 offen offset:{(t%4)*1280} nt")

    c("================= roles =================")
    a.label("L_roles")
    a(f"s_add_u32 s76, s38, {WS_YP}"); a("s_addc_u32 s77, s39, 0")
    a(f"s_add_u32 s78, s38, {WS_FP}"); a("s_addc_u32 s79, s39, 0")
    a("v_lshlrev_b32 v138, 3, v0"); a(f"s_mul_i32 s11, s2, {MB}"); a("v_add_u32 v139, s11, v138")
    a("s_waitcnt vmcnt(0)")
    c("walk this wave's tail code once with EXEC = 0 (every memory access, wait and barrier is branched over) to have it in the I-cache")
    a("s_mov_b64 exec, 0")
    a(f"s_cmp_lt_u32 s67, {NWO}"); a("s_cbranch_scc1 L_wo_go")
    a(f"s_cmp_lt_u32 s52, {NFFN}"); a("s_cbranch_scc1 L_ffn_go")
    a("s_branch L_none_go")
    a.label("L_warmed")
    a("s_mov_b64 exec, -1")
    def osum(head, d):
        for w in range(4): a(f"ds_read_b64 v[{142+2*w}:{143+2*w}], v138 offset:{L_OL+2048*head+512*w}")
        a("s_waitcnt lgkmcnt(0)")
        a("v_pk_add_f32 v[142:143], v[142:143], v[144:145]"); a("v_pk_add_f32 v[146:147], v[146:147], v[148:149]")
        a(f"v_pk_add_f32 v[{d}:{d+1}], v[142:143], v[146:147]")
        guard([d, d + 1])
    c("helper 5: compare this workgroup's progress with its XCD neighbours' and set the streamers' prefetch depth (a hint only)")
    a("s_cmp_lg_u32 s3, 5"); a("s_cbranch_scc1 L_nogov")
    lds_wait(14, F_QGOT, 4, 8, 8)
    a(f"ds_read_b32 v8, v14 offset:{F_SAME}"); a("s_waitcnt lgkmcnt(0)"); a("v_readfirstlane_b32 s12, v8")
    a("s_cmp_lg_u32 s12, 4"); a("s_cbranch_scc1 L_nogov")
    a("s_lshr_b32 s12, s2, 5"); a("s_lshl_b32 s12, s12, 8"); a(f"s_add_u32 s12, s12, {WS_PG}")
    a("v_and_b32 v16, 31, v0"); a("v_lshlrev_b32 v16, 2, v16"); a("v_add_u32 v16, s12, v16")
    a("s_and_b32 s64, s2, 31"); a("s_lshl_b32 s13, s64, 2"); a("s_add_u32 s12, s12, s13"); a("v_mov_b32 v17, s12")
    a("s_lshl_b32 s13, s15, 10")
    a(f"s_cmp_lt_u32 s52, {NFFN}"); a(f"s_cselect_b32 s65, 0, {gbias}"); a("s_add_u32 s65, s65, s13")
    a("s_mov_b32 s61, 4000")
    a.label("L_gov")
    a(f"ds_read_b32 v20, v14 offset:{F_TICK}"); a("s_waitcnt lgkmcnt(0)")
    a("v_add_u32 v19, s65, v20")
    lane0("global_store_dword v17, v19, s[38:39]")
    a("global_load_dword v18, v16, s[38:39] sc1")
    a("v_readfirstlane_b32 s62, v20")
    a("s_waitcnt vmcnt(0)")
    a(f"s_cmp_ge_u32 s62, {4*(T0+26)}"); a("s_cbranch_scc1 L_nogov")
    a("v_subrev_u32 v18, s13, v18")
    a("v_cmp_le_u32 vcc, 0x400, v18"); a("s_cbranch_vccnz L_gov_next")
    a("v_readlane_b32 s62, v18, s64")
    rowred("v_add_u32", 18)
    a("s_lshl_b32 s62, s62, 5")
    a("v_readlane_b32 s63, v18, 0"); a("v_readlane_b32 s12, v18, 16")
    a("s_add_u32 s63, s63, s12"); a("s_sub_i32 s62, s62, s63")
    a("s_mov_b32 s63, 2")
    a(f"s_cmp_gt_i32 s62, {32*gov[1]}"); a("s_cselect_b32 s63, 1, s63")
    a(f"s_cmp_lt_i32 s62, {32*gov[0]}"); a("s_cselect_b32 s63, 3, s63")
    a("v_mov_b32 v18, s63"); a(f"ds_write_b32 v14, v18 offset:{F_MODE}")
    a.label("L_gov_next")
    a(f"s_sleep {gsleep}")
    a("s_sub_u32 s61, s61, 1"); a("s_cbranch_scc0 L_gov")
    a.label("L_nogov")
    c("helper 7: this workgroup's o of head A")
    a("s_cmp_lg_u32 s3, 7"); a("s_cbranch_scc1 L_noA")
    lds_wait(14, F_OA, 4, 8, 8)
    osum(0, 140)
    a("s_cmp_eq_u32 s66, 0"); a("s_cbranch_scc1 L_noAloc")
    a(f"global_store_dwordx2 v139, v[140:141], s[38:39] offset:{MB_O}")
    a.label("L_noAloc")
    a("s_setprio 3")
    a.label("L_noA")
    def opub():
        with live(): lds_wait(14, F_OB, 4, 150, 1)
        osum(1, 142)
        with live():
            gl, dn = L("oglob"), L("odone")
            a("s_cmp_eq_u32 s66, 0"); a(f"s_cbranch_scc1 {gl}")
            a(f"global_store_dwordx2 v139, v[142:143], s[38:39] offset:{MB_O+512}")
            a(f"s_branch {dn}")
            a.label(gl)
            a(f"global_store_dwordx2 v139, v[142:143], s[38:39] offset:{MB_O+512} sc1")
            a(f"global_store_dwordx2 v139, v[140:141], s[38:39] offset:{MB_O} sc1")
            a.label(dn)
            a("v_mov_b32 v150, 1"); a(f"ds_write_b32 v14, v150 offset:{F_PUB}")
            a(f"s_setprio {hprio}")
        stamp("tail")
    a(f"s_cmp_lt_u32 s67, {NWO}"); a("s_cbranch_scc1 L_wo")
    a(f"s_cmp_lt_u32 s52, {NFFN}"); a("s_cbranch_scc1 L_ffn")
    a.label("L_none_go")
    a("s_cmp_lg_u32 s3, 7"); a("s_cbranch_scc1 L_tend")
    with live(): lds_wait(14, F_TICK, 4 * (T0 + 27), 150, 24)
    opub()
    a("s_branch L_tend")

    c("---- wo role: 256 rows (this pair's heads) x 64 columns ----")
    a.label("L_wo")
    a(f"s_mul_i32 s12, s4, {16*MB}"); a("s_lshl_b32 s13, s3, 7"); a("s_add_u32 s12, s12, s13")
    a("v_and_b32 v3, 7, v0"); a(f"v_mul_u32_u24 v2, {2*MB}, v3"); a("v_lshrrev_b32 v4, 3, v0"); a("v_lshl_add_u32 v2, v4, 4, v2"); a("v_add_u32 v2, s12, v2")
    a(f"v_add_u32 v8, {MB}, v2")
    a("v_lshrrev_b32 v5, 4, v0"); a("v_lshlrev_b32 v5, 3, v5"); a("v_lshl_add_u32 v5, v3, 5, v5")
    a("s_lshl_b32 s13, s3, 8"); a("v_add_u32 v5, s13, v5")
    a("s_mul_i32 s12, s4, 2560"); a("s_lshl_b32 s13, s6, 8"); a("s_add_u32 s12, s12, s13"); a("v_add_u32 v7, s12, v6")
    a(f"v_add_u32 v6, {L_YL}, v6")
    for j in range(8): a(f"v_mov_b32 v{40+j}, 0")
    a("s_mov_b32 s44, s24"); a("s_mov_b32 s45, s25"); a(f"s_mov_b32 s46, {4096*1280}"); a("s_mov_b32 s47, 0x20000")
    a("s_lshl_b32 s50, s4, 3"); a("s_add_u32 s50, s50, s3"); a(f"s_mul_i32 s50, s50, {32*1280}")
    a("s_lshl_b32 s51, s6, 7"); a("s_add_u32 s50, s50, s51")
    a(f"v_mul_u32_u24 v9, {4*1280}, v4"); a("v_lshl_add_u32 v9, v3, 4, v9")
    def io(v, d): return (lambda: a(f"global_load_dwordx4 v[{d}:{d+3}], v{v}, s[38:39] offset:{MB_O} sc1"), range(d, d + 4))
    if preA:
        a("s_cmp_ge_u32 s3, 4"); a("s_cbranch_scc1 L_nopreA")
        lds_wait(14, F_TICK, 4 * (T0 + preA), 150, 24)
        for g, _ in (io(2, 24), io(8, 28)): g(); a("s_waitcnt vmcnt(0)")
        a.label("L_nopreA")
    lds_wait(14, F_TICK, 4 * (T0 + wo_at - 3), 150, 24)
    if preA and touchB:
        a("s_cmp_lg_u32 s3, 4"); a("s_cbranch_scc1 L_notouch")
        a("v_lshrrev_b32 v10, 2, v0"); a(f"v_mul_u32_u24 v10, {MB}, v10"); a("v_and_b32 v11, 3, v0"); a("v_lshl_add_u32 v10, v11, 7, v10")
        a(f"s_mul_i32 s12, s4, {16*MB}"); a("v_add_u32 v10, s12, v10")
        a(f"global_load_dword v11, v10, s[38:39] offset:{MB_O+512} sc1")
        a.label("L_notouch")
    a.label("L_wo_go")
    c("the weights are fetched once the streamers' last loads are out")
    G1 = [io(2, 24), io(8, 28)]
    if preA: pre1, early1 = False, True
    with live():
        if pre1:
            for g, _ in G1: g()
        lds_wait(14, F_TICK, 4 * (T0 + wo_at), 150, 2)
        for t in range(4): a(f"buffer_load_dwordx4 v[{W0+4*t}:{W0+4*t+3}], v9, s[44:47], s50 offen offset:{t*1280} nt")
    a("s_cmp_lg_u32 s3, 7"); a("s_cbranch_scc1 L_wo_np")
    opub()
    a("s_branch L_wo_p")
    a.label("L_wo_np")
    with live(): lds_wait(14, F_PUB, 1, 150, 1)
    a.label("L_wo_p")
    def so():
        for j in range(4): a(f"v_add_f32 v{16+j}, v{24+j}, v{28+j}")
    if early1:
        a("s_cmp_lt_u32 s3, 4"); a("s_cbranch_scc1 L_wo_a")
        with live():
            for g, _ in G1: g()
        a("s_waitcnt vmcnt(2)"); a("s_branch L_wo_b")
        a.label("L_wo_a")
    a("s_waitcnt vmcnt(0)")
    a.label("L_wo_b")
    PW = pair_perm([[W0 + 4 * t + j for j in range(4)] for t in range(4)], 136)
    with live(): spoll(G1, so, range(16, 20), 14, issued=(pre1 or bool(preA)))
    stamp("e1")
    for pat in ("quad_perm:[1,0,3,2]", "quad_perm:[2,3,0,1]", "row_half_mirror"):
        for j in range(4): a(f"v_add_f32_dpp v{16+j}, v{16+j}, v{16+j} {pat} {FULL}")
    for i in range(2): a(f"v_cvt_pk_bf16_f32 v{32+i}, v{16+2*i}, v{17+2*i}")
    for i in range(2):
        for j in range(8): a(f"v_dot2c_f32_bf16 v{40+j}, v{32+i}, v{PW[i][j]}")
    red_g8(list(range(40, 48)), 48)
    a(f"v_add_f32_dpp v48, v48, v48 row_ror:8 {FULL}"); a(f"v_add_f32_dpp v49, v49, v49 row_ror:8 {FULL}")
    a(f"ds_write_b64 v5, v[48:49] offset:{L_YL}")
    a("s_waitcnt lgkmcnt(0)")
    with live(): a("s_barrier")
    a("s_cmp_lg_u32 s3, 0"); a("s_cbranch_scc1 L_tend")
    for w in range(4): a(f"ds_read2st64_b32 v[{16+2*w}:{17+2*w}], v6 offset0:{2*w} offset1:{2*w+1}")
    a("s_waitcnt lgkmcnt(0)")
    a("v_pk_add_f32 v[16:17], v[16:17], v[18:19]"); a("v_pk_add_f32 v[20:21], v[20:21], v[22:23]"); a("v_pk_add_f32 v[16:17], v[16:17], v[20:21]")
    a("v_add_f32 v16, v16, v17")
    guard([16])
    with live(): a("global_store_dword v7, v16, s[76:77] sc1")
    stamp("y_pub")
    a("s_branch L_tend")

    c("---- ffn role: 32 columns of w_gate / w_up, 32 rows of w_down ----")
    a.label("L_ffn")
    a("v_lshrrev_b32 v2, 4, v0"); a("v_and_b32 v3, 15, v0")
    a("s_min_u32 s12, s3, 4"); a("s_lshl_b32 s12, s12, 8")
    a("v_lshrrev_b32 v5, 1, v2"); a("v_lshlrev_b32 v5, 7, v5"); a("v_lshl_add_u32 v5, v3, 3, v5")
    a("v_and_b32 v4, 1, v2"); a("v_lshl_add_u32 v5, v4, 2, v5"); a("v_add_u32 v5, s12, v5")
    a("global_load_dword v11, v5, s[16:17]")
    a("s_lshl_b32 s12, s3, 9")
    a("v_mul_u32_u24 v4, 10240, v2"); a("v_lshl_add_u32 v4, v3, 4, v4"); a("v_add_u32 v4, s12, v4"); a("v_add_u32 v62, 5120, v4")
    if fold:
        a("v_mov_b32 v63, 0"); a("v_mov_b32 v6, 0x3f803f80")
        a("v_lshrrev_b32 v7, 2, v0"); a("v_mul_u32_u24 v7, 20, v7"); a("s_and_b32 s13, s3, 3"); a("s_mul_i32 s13, s13, 320"); a(f"s_add_u32 s13, s13, {L_H}"); a("v_add_u32 v7, s13, v7")
    else:
        a("v_lshlrev_b32 v5, 1, v5")
        a("s_lshl_b32 s13, s3, 3"); a("v_mov_b32 v6, s13"); a("v_mov_b32 v63, 0")
        a("v_lshrrev_b32 v7, 2, v0"); a("v_mul_u32_u24 v7, 40, v7"); a("s_and_b32 s13, s3, 3"); a("s_mul_i32 s13, s13, 640"); a("v_add_u32 v7, s13, v7")
    a("v_and_b32 v8, 3, v0"); a("v_lshlrev_b32 v8, 5, v8"); a("v_lshl_add_u32 v8, v2, 3, v8"); a("s_lshl_b32 s13, s53, 7"); a("v_add_u32 v8, s13, v8")
    a("v_and_b32 v9, 7, v0"); a("v_lshl_add_u32 v9, v2, 3, v9"); a("v_lshlrev_b32 v9, 2, v9"); a(f"v_add_u32 v9, {L_GU}, v9")
    a("s_mul_i32 s13, s52, 2560"); a("s_add_u32 s13, s13, s12"); a("v_lshlrev_b32 v10, 3, v0"); a("v_add_u32 v10, s13, v10")
    if fold: a(f"v_add_u32 v3, {L_T-L_GU}, v9")
    for j in range(8): a(f"v_mov_b32 v{52+j}, 0")
    a(f"s_mov_b32 s14, {LOG2E:#x}")
    PD = pair_perm([[W0 + 40 + 4 * t + j for j in range(4)] for t in range(8)], 137)
    gu_setup(15, 1)
    lds_wait(14, F_MARK, 1, 150, 8)
    a("s_waitcnt vmcnt(0)")
    a("v_and_b32 v13, 0xffff0000, v11"); a("v_lshlrev_b32 v12, 16, v11")
    lds_wait(14, F_TICK, 4 * (T0 + 27), 150, 24)
    YI = [140, 148, 156, 24]
    HV = 40
    def iy(u):
        v, o = (4, 62)[u // 2], 2560 * (u % 2)
        return (lambda: (a(f"global_load_dwordx4 v[{YI[u]}:{YI[u]+3}], v{v}, s[76:77] offset:{o} sc1"),
                         a(f"global_load_dwordx4 v[{YI[u]+4}:{YI[u]+7}], v{v}, s[76:77] offset:{o+256} sc1")), range(YI[u], YI[u] + 8))
    G2 = [iy(u) for u in range(4)]
    a.label("L_ffn_go")
    a("s_cmp_eq_u32 s3, 7"); a("s_cbranch_scc1 L_ffn_pub")
    with live(): lds_wait(14, F_TICK, 4 * (T0 + ffn_at), 150, 2)
    for t0 in (0, 4, 8):
        with live():
            for t in range(t0, min(t0 + 4, 10)): gu_load(t, 15)
    a("s_branch L_ffn_w0")
    a.label("L_ffn_pub")
    opub()
    a.label("L_ffn_w0")
    a.label("L_ffn_have")
    def dots(i, src, cols):
        for j in range(8):
            if i == 0: a(f"v_dot2_f32_bf16 v{40+j}, v{src}, v{cols[j]}, 0")
            else: a(f"v_dot2c_f32_bf16 v{40+j}, v{src}, v{cols[j]}")
    def gred():
        red_g8(list(range(40, 48)), 48)
        for r in (8, 4):
            a(f"v_add_f32_dpp v48, v48, v48 row_ror:{r} {FULL}"); a(f"v_add_f32_dpp v49, v49, v49 row_ror:{r} {FULL}")
    def gemv(src):
        for i in range(5): dots(i, src(i), PG[i])
        gred()
    def landed(i):
        a(f"s_waitcnt vmcnt({8-2*i})")
        if i == 4:
            stamp("x1")
            a("s_cmp_ge_u32 s3, 5"); a("s_cbranch_scc1 L_nopoll")
            with live():
                for g, _ in G2: g()
            a.label("L_nopoll")
    if fold: c("as the rows land: pair them up and sum the columns, LN(h) @ W = (h @ W - mean * colsum(W)) / std")
    PG = pair_perm([[W0 + 4 * t + j for j in range(4)] for t in range(10)], 136, landed, (lambda i, cols: dots(i, 6, cols)) if fold else None)
    if fold:
        gred()
        a(f"ds_write_b64 v8, v[48:49] offset:{L_CS}")
        a("s_waitcnt lgkmcnt(0)")
    a("s_cmp_ge_u32 s3, 5"); a("s_cbranch_scc1 L_h_wait")
    def sy():
        for j in range(0, 8, 2):
            a(f"v_pk_add_f32 v[{16+j}:{17+j}], v[{YI[0]+j}:{YI[0]+j+1}], v[{YI[1]+j}:{YI[1]+j+1}]")
            a(f"v_pk_add_f32 v[{32+j}:{33+j}], v[{YI[2]+j}:{YI[2]+j+1}], v[{YI[3]+j}:{YI[3]+j+1}]")
        for j in range(0, 8, 2): a(f"v_pk_add_f32 v[{16+j}:{17+j}], v[{16+j}:{17+j}], v[{32+j}:{33+j}]")
    with live(): spoll(G2, sy, range(16, 24), 14, issued=True, pw=pw2)
    stamp("e2")
    c("h = bf16(x + bf16(attention output))")
    red_g8(list(range(16, 24)), 32)
    a("v_cvt_pk_bf16_f32 v34, v32, v33"); a("v_lshlrev_b32 v32, 16, v34"); a("v_and_b32 v33, 0xffff0000, v34")
    a("v_pk_add_f32 v[32:33], v[32:33], v[12:13]")
    if fold:
        a("v_cvt_pk_bf16_f32 v34, v32, v33")
        a(f"ds_write_b32 v5, v34 offset:{L_H}")
        a("s_waitcnt lgkmcnt(0)")
        a.label("L_h_wait")
        with live(): a("s_barrier")
        a("ds_read2_b32 v[16:17], v7 offset0:0 offset1:1"); a("ds_read2_b32 v[18:19], v7 offset0:2 offset1:3"); a("ds_read_b32 v20, v7 offset:16")
        a("s_waitcnt lgkmcnt(0)")
    else:
        a("v_cvt_pk_bf16_f32 v34, v32, v33"); a("v_lshlrev_b32 v32, 16, v34"); a("v_and_b32 v33, 0xffff0000, v34")
        a(f"ds_write_b64 v5, v[32:33] offset:{L_H}")
        a("v_readfirstlane_b32 s12, v32")
        a("v_subrev_f32 v34, s12, v32"); a("v_subrev_f32 v35, s12, v33")
        a("v_add_f32 v36, v34, v35"); a("v_mul_f32 v37, v34, v34"); a("v_fmac_f32 v37, v35, v35")
        for r in (8, 4, 2, 1):
            a(f"v_add_f32_dpp v36, v36, v36 row_ror:{r} {FULL}"); a(f"v_add_f32_dpp v37, v37, v37 row_ror:{r} {FULL}")
        a("v_permlane16_swap_b32 v36, v37"); a("v_add_f32 v36, v36, v37")
        a("v_mov_b32 v37, v36"); a("v_permlane32_swap_b32 v36, v37"); a("v_add_f32 v36, v36, v37")
        a("v_mov_b32 v37, v36"); a("v_permlane16_swap_b32 v36, v37")
        a("v_mul_f32 v38, 0x3c000000, v36")
        a("v_fma_f32 v39, -v38, v36, v37"); a("v_add_f32 v38, s12, v38")
        a(f"ds_write_b64 v6, v[38:39] offset:{L_ST}")
        a("s_waitcnt lgkmcnt(0)")
        a.label("L_h_wait")
        with live(): a("s_barrier")
        c("combine the five (mean, M2) pairs, normalise this lane's 10 rows, gate / up dot products")
        a(f"ds_read_b128 v[32:35], v63 offset:{L_ST}"); a(f"ds_read_b128 v[36:39], v63 offset:{L_ST+16}"); a(f"ds_read_b64 v[22:23], v63 offset:{L_ST+32}")
        for i in range(5): a(f"ds_read_b64 v[{HV+2*i}:{HV+1+2*i}], v7 offset:{L_H+8*i}")
        a("s_waitcnt lgkmcnt(5)")
        a("v_pk_add_f32 v[50:51], v[32:33], v[34:35]"); a("v_pk_add_f32 v[60:61], v[36:37], v[38:39]")
        a("v_pk_add_f32 v[50:51], v[50:51], v[22:23]"); a("v_pk_add_f32 v[50:51], v[50:51], v[60:61]")
        a("v_mul_f32 v50, 0x3e4ccccd, v50")
        for r in (32, 34, 36, 38, 22): a(f"v_sub_f32 v{r}, v{r}, v50")
        rbf(50, 50)
        var = ["v_mul_f32 v60, v32, v32"] + [f"v_fmac_f32 v60, v{r}, v{r}" for r in (34, 36, 38, 22)] + [
            "v_fmac_f32 v51, 0x43000000, v60", f"v_mul_f32 v61, {INV640:#x}, v51",
            "v_cvt_pk_bf16_f32 v61, v61, v61", "v_and_b32 v61, 0xffff0000, v61", f"v_add_f32 v61, {EPS:#x}, v61",
            "v_cvt_pk_bf16_f32 v61, v61, v61", "v_and_b32 v61, 0xffff0000, v61", "v_sqrt_f32 v61, v61",
            "v_cvt_pk_bf16_f32 v61, v61, v61", "v_and_b32 v61, 0xffff0000, v61", "v_rcp_f32 v61, v61"]
        cen = [f"v_pk_add_f32 v[{HV+2*i}:{HV+1+2*i}], v[{HV+2*i}:{HV+1+2*i}], v[50:51] op_sel_hi:[1,0] neg_lo:[0,1] neg_hi:[0,1]" for i in range(5)]
        cen += [f"v_cvt_pk_bf16_f32 v{16+i}, v{HV+2*i}, v{HV+1+2*i}" for i in range(5)]
        for i in range(5): cen += [f"v_lshlrev_b32 v{HV+2*i}, 16, v{16+i}", f"v_and_b32 v{HV+1+2*i}, 0xffff0000, v{16+i}"]
        a("s_waitcnt lgkmcnt(0)")
        while var or cen:
            if var: a(var.pop(0))
            if cen: a(cen.pop(0))
        for i in range(5): a(f"v_pk_mul_f32 v[{HV+2*i}:{HV+1+2*i}], v[{HV+2*i}:{HV+1+2*i}], v[60:61] op_sel:[0,1] op_sel_hi:[1,1]")
        for i in range(5): a(f"v_cvt_pk_bf16_f32 v{16+i}, v{HV+2*i}, v{HV+1+2*i}")
    gemv(lambda i: 16 + i)
    a(f"ds_write_b64 v8, v[48:49] offset:{L_GU}")
    a("s_waitcnt lgkmcnt(0)")
    with live(): a("s_barrier")
    stamp("gu")
    a("s_cmp_ge_u32 s3, 5"); a("s_cbranch_scc1 L_final")
    c("act = bf16(bf16(silu(g)) * u), then this workgroup's 32 rows of w_down")
    for w in range(4): a(f"ds_read2_b32 v[{16+2*w}:{17+2*w}], v9 offset0:{32*w} offset1:{32*w+128}")
    if fold: a(f"ds_read2_b32 v[32:33], v3 offset0:0 offset1:32"); a(f"ds_read_b32 v34, v63 offset:{L_T+256}")
    a("s_waitcnt lgkmcnt(0)")
    a("v_pk_add_f32 v[16:17], v[16:17], v[18:19]"); a("v_pk_add_f32 v[20:21], v[20:21], v[22:23]")
    if fold: a("v_pk_add_f32 v[16:17], v[16:17], v[32:33] neg_lo:[0,1] neg_hi:[0,1]")
    a("v_pk_add_f32 v[16:17], v[16:17], v[20:21]")
    if fold: a("v_pk_mul_f32 v[16:17], v[16:17], v[34:35] op_sel_hi:[1,0]")
    a("v_cvt_pk_bf16_f32 v20, v16, v17"); a("v_lshlrev_b32 v16, 16, v20"); a("v_mul_f32 v17, s14, v16"); a("v_exp_f32 v17, -v17")
    a("v_and_b32 v20, 0xffff0000, v20"); a("v_add_f32 v17, 1.0, v17"); a("v_rcp_f32 v17, v17")
    a("v_mul_f32 v16, v16, v17"); rbf(16, 16)
    a("v_mul_f32 v16, v16, v20")
    a(f"v_mov_b32_dpp v17, v16 quad_perm:[1,0,3,2] {FULL}")
    a("v_cvt_pk_bf16_f32 v16, v16, v17")
    for i in range(4):
        for j in range(8): a(f"v_dot2c_f32_bf16_dpp v{52+j}, v16, v{PD[i][j]} row_newbcast:{2*i} {FULL}")
    red_g8(list(range(52, 60)), 60)
    guard([60, 61])
    with live():
        a("global_store_dwordx2 v10, v[60:61], s[78:79] sc1")
        if e3ack: a("v_mov_b32 v16, 1"); a("s_waitcnt vmcnt(0)"); a(f"ds_write_b32 v63, v16 offset:{F_FACK}")
    stamp("f_pub")
    a("s_branch L_tend")
    c("---- final sum: helper 5 of the first 20 ffn workgroups, 32 outputs each ----")
    a.label("L_final")
    if fold:
        a("s_cmp_lg_u32 s3, 6"); a("s_cbranch_scc1 L_final5"); a("s_cbranch_execz L_lnstat"); a("s_branch L_fin")
        c("---- streamer 0 of an ffn workgroup: mean and 1/std of h next to the dot products ----")
        a.label("L_lnstat")
        a("v_lshlrev_b32 v24, 2, v0"); a(f"v_add_u32 v25, {L_H}, v24")
        a("v_lshrrev_b32 v26, 5, v0"); a("v_mul_u32_u24 v26, 384, v26"); a("v_add_u32 v26, v26, v24"); a(f"v_add_u32 v26, {L_CS}, v26")
        with live(): a(f"s_setprio {sprio}"); a("s_barrier")
        a("ds_read2st64_b32 v[16:17], v25 offset0:0 offset1:1"); a("ds_read2st64_b32 v[18:19], v25 offset0:2 offset1:3"); a("ds_read_b32 v20, v25 offset:1024")
        a("ds_read2_b32 v[28:29], v26 offset0:0 offset1:32"); a("ds_read2_b32 v[30:31], v26 offset0:64 offset1:96")
        a("s_waitcnt lgkmcnt(2)")
        a("v_readfirstlane_b32 s12, v16")
        for i in range(5): a(f"v_lshlrev_b32 v{40+2*i}, 16, v{16+i}"); a(f"v_and_b32 v{41+2*i}, 0xffff0000, v{16+i}")
        a("s_lshl_b32 s12, s12, 16"); a("s_mov_b32 s13, s12")
        for i in range(5): a(f"v_pk_add_f32 v[{40+2*i}:{41+2*i}], v[{40+2*i}:{41+2*i}], s[12:13] neg_lo:[0,1] neg_hi:[0,1]")
        a("v_pk_add_f32 v[32:33], v[40:41], v[42:43]"); a("v_pk_mul_f32 v[34:35], v[40:41], v[40:41]")
        a("v_pk_add_f32 v[36:37], v[44:45], v[46:47]"); a("v_pk_fma_f32 v[34:35], v[42:43], v[42:43], v[34:35]")
        a("v_pk_add_f32 v[32:33], v[32:33], v[48:49]"); a("v_pk_fma_f32 v[34:35], v[44:45], v[44:45], v[34:35]")
        a("v_pk_add_f32 v[32:33], v[32:33], v[36:37]"); a("v_pk_fma_f32 v[34:35], v[46:47], v[46:47], v[34:35]")
        a("v_add_f32 v36, v32, v33"); a("v_pk_fma_f32 v[34:35], v[48:49], v[48:49], v[34:35]")
        a("s_waitcnt lgkmcnt(0)")
        a("v_pk_add_f32 v[28:29], v[28:29], v[30:31]"); a("v_add_f32 v37, v34, v35"); a("v_add_f32 v28, v28, v29")
        for r in (8, 4, 2, 1):
            a(f"v_add_f32_dpp v36, v36, v36 row_ror:{r} {FULL}"); a(f"v_add_f32_dpp v37, v37, v37 row_ror:{r} {FULL}")
        a("v_permlane16_swap_b32 v36, v37"); a("v_add_f32 v36, v36, v37")
        a("v_mov_b32 v37, v36"); a("v_permlane32_swap_b32 v36, v37"); a("v_add_f32 v36, v36, v37")
        a("v_mov_b32 v37, v36"); a("v_permlane16_swap_b32 v36, v37")
        a(f"v_mul_f32 v38, {INV640:#x}, v36")
        a("v_fma_f32 v39, -v38, v36, v37"); a("v_add_f32 v38, s12, v38"); a(f"v_mul_f32 v39, {INV640:#x}, v39")
        a("v_cvt_pk_bf16_f32 v39, v38, v39"); a("v_lshlrev_b32 v38, 16, v39"); a("v_and_b32 v39, 0xffff0000, v39")
        a("v_mul_f32 v28, v28, v38"); a(f"v_add_f32 v39, {EPS:#x}, v39")
        a(f"ds_write_b32 v24, v28 offset:{L_T}")
        rbf(39, 39); a("v_sqrt_f32 v39, v39"); a("v_mov_b32 v27, 0"); rbf(39, 39); a("v_rcp_f32 v39, v39")
        a("s_nop 0")
        a(f"ds_write_b32 v27, v39 offset:{L_T+256}")
        a("s_waitcnt lgkmcnt(0)")
        with live(): a("s_barrier")
        a("s_branch L_tend")
        a.label("L_final5")
    a("s_cmp_lg_u32 s3, 5"); a("s_cbranch_scc1 L_tend")
    a(f"s_cmp_ge_u32 s52, {NFIN}"); a("s_cbranch_scc1 L_tend")
    a("s_mov_b32 s44, s78"); a("s_mov_b32 s45, s79"); a(f"s_mov_b32 s46, {NFFN*2560}"); a("s_mov_b32 s47, 0x20000")
    a("v_lshrrev_b32 v4, 3, v0"); a("v_mul_u32_u24 v4, 2560, v4"); a("v_and_b32 v5, 7, v0"); a("v_lshl_add_u32 v4, v5, 4, v4")
    a("s_lshl_b32 s12, s52, 7"); a("v_add_u32 v4, s12, v4")
    a("v_lshl_add_u32 v5, v5, 2, v2"); a("v_and_b32 v6, 1, v5"); a("v_lshrrev_b32 v5, 1, v5"); a("v_lshl_add_u32 v5, v5, 3, v6")
    a("s_lshr_b32 s12, s52, 2"); a("s_lshl_b32 s12, s12, 7"); a("s_and_b32 s13, s52, 3"); a("s_lshl_b32 s13, s13, 1"); a("s_add_u32 s12, s12, s13")
    a("v_add_u32 v5, s12, v5")
    a("v_lshlrev_b32 v6, 2, v5"); a("v_lshlrev_b32 v5, 1, v5")
    if fold: a(f"ds_read_u16 v7, v5 offset:{L_H}")
    else: a(f"ds_read_b32 v7, v6 offset:{L_H}")
    for i in range(1, 7): a(f"s_mov_b32 s{80+i}, {8*2560*i}")
    a("s_mov_b32 s12, 0x00ff00ff"); a("s_mov_b32 s13, 0x00ff00ff")
    a("s_waitcnt lgkmcnt(0)")
    if fold: a("v_lshlrev_b32 v7, 16, v7")
    def i3(i):
        return (lambda: a(f"buffer_load_dwordx4 v[{104+4*i}:{107+4*i}], v4, s[44:47], " + ("0" if i == 0 else f"s{80+i}") + " offen sc1"), range(104 + 4 * i, 108 + 4 * i))
    def s3():
        for j in (0, 2):
            a(f"v_pk_add_f32 v[{16+j}:{17+j}], v[{104+j}:{105+j}], v[{108+j}:{109+j}]")
            a(f"v_pk_add_f32 v[{20+j}:{21+j}], v[{112+j}:{113+j}], v[{116+j}:{117+j}]")
            a(f"v_pk_add_f32 v[{24+j}:{25+j}], v[{120+j}:{121+j}], v[{124+j}:{125+j}]")
        for j in (0, 2):
            a(f"v_pk_add_f32 v[{16+j}:{17+j}], v[{16+j}:{17+j}], v[{20+j}:{21+j}]")
            a(f"v_pk_add_f32 v[{24+j}:{25+j}], v[{24+j}:{25+j}], v[{128+j}:{129+j}]")
        for j in (0, 2): a(f"v_pk_add_f32 v[{16+j}:{17+j}], v[{16+j}:{17+j}], v[{24+j}:{25+j}]")
    with live():
        if e3ack:
            c("first look once a store of this workgroup has been acknowledged: lines nobody has cached yet are written faster")
            lds_wait(63, F_FACK, 1, 150, 0)
        spoll([i3(i) for i in range(7)], s3, range(16, 20), 14, pw=pw3)
    stamp("e3")
    red_g4([16, 17, 18, 19], 20)
    a(f"v_add_f32_dpp v20, v20, v20 row_ror:8 {FULL}")
    rbf(20, 20)
    a("v_add_f32 v20, v20, v7"); a("v_cvt_pk_bf16_f32 v20, v20, v20")
    a("s_cbranch_execz L_warmed")
    a("s_mov_b64 exec, s[12:13]")
    a("global_store_short v5, v20, s[34:35]")
    a("s_cmp_lg_u32 s52, 0"); a("s_cbranch_scc1 L_noep")
    c("every workgroup has long read the epoch word: leave this launch's tag there")
    a("s_mov_b64 exec, 1")
    a(f"v_mov_b32 v5, {WS_EP:#x}"); a("v_mov_b32 v6, s15")
    a("global_store_dword v5, v6, s[38:39]")
    if dbl:
        a("s_memrealtime s[90:91]"); a("s_waitcnt lgkmcnt(0)")
        a("s_sub_u32 s92, s90, s88"); a(f"s_mul_i32 s92, s92, {dbl}"); a("s_add_u32 s92, s92, s90"); a("s_mov_b32 s60, 100000")
        a.label("L_dbl")
        a("s_memrealtime s[90:91]"); a("s_waitcnt lgkmcnt(0)"); a("s_sub_u32 s93, s90, s92"); a("s_cmp_ge_i32 s93, 0"); a("s_cbranch_scc1 L_noep")
        a("s_sub_u32 s60, s60, 1"); a("s_cbranch_scc0 L_dbl")
    a.label("L_noep")
    a("s_mov_b64 exec, -1")
    stamp("out")
    a.label("L_tend")
    a("s_cbranch_execz L_warmed")
    a.label("L_fin")
    if diag:
        a("s_add_u32 s90, s38, 0x10000000"); a("s_addc_u32 s91, s39, 0")
        a(f"s_mul_i32 s92, s2, {NWAVE}"); a("s_add_u32 s92, s92, s93"); a("s_lshl_b32 s92, s92, 8")
        a(f"v_lshlrev_b32 v{SV+1}, 2, v0"); a(f"v_add_u32 v{SV+1}, s92, v{SV+1}")
        a(f"global_store_dword v{SV+1}, v{SV}, s[90:91]")
    a.label("L_exit")
    a("s_endpgm")
    nv = 168
    a.raw('.section .rodata,"a"'); a.raw(".p2align 6"); a.raw(f".amdhsa_kernel {KN}")
    a.raw(f"  .amdhsa_next_free_vgpr {nv}"); a.raw("  .amdhsa_next_free_sgpr 96"); a.raw(f"  .amdhsa_accum_offset {nv}")
    a.raw("  .amdhsa_group_segment_fixed_size 0"); a.raw("  .amdhsa_kernarg_size 96"); a.raw("  .amdhsa_user_sgpr_count 2")
    a.raw("  .amdhsa_user_sgpr_kernarg_segment_ptr 1"); a.raw("  .amdhsa_system_sgpr_workgroup_id_x 1")
    a.raw("  .amdhsa_float_denorm_mode_32 3")
    a.raw(".end_amdhsa_kernel")
    return a.text(), stampn

if __name__ == "__main__":
    out = sys.argv[1]
    kw = eval("dict(%s)" % sys.argv[2]) if len(sys.argv) > 2 else {}
    t, st = gen(**kw)
    open(out, "w").write(t)
    print("wrote", out, len(t.splitlines()), "lines", st)
```

```python
import sys
sys.path.insert(0, "work")
from asmlib import Asm

KN = "sequential_preLN__mha_block_cached__swiglu_ffn__decode_kernel"
HEADER = open("sequential_preLN__mha_block_cached__swiglu_ffn__decode.s.ref").read().split("; Override launch")[0]

MB = 4352
MB_ST = 512
MB_MK = 768
MB_O = 1024
WS_EP = 0x110000
WS_PG = 0x118000
WS_YP = 0x120000
WS_FP = 0x130000
F_QARR, F_QGOT, F_KDONE, F_PRDY, F_OA, F_MODE, F_TICK, F_OB, F_MARK, F_SAME, F_PUB, F_FACK = 0, 4, 8, 16, 24, 28, 44, 48, 52, 56, 60, 64
L_Q = 256
L_QS = 768
L_SC = 2048
L_PP = L_SC + 32768
L_OL = L_PP + 16384
L_YL = L_OL + 4096
L_H = L_YL + 2048
L_GU = L_H + 2560
L_ST = L_GU + 1024
L_CS = L_ST + 64
L_T = L_CS + 1024
L_END = L_T + 320
NWO, NFFN, NFIN = 160, 54, 20
NWAVE = 12
SPIN = 400000
LSPIN = 4000000
LOG2E = 0x3fb8aa3b
SCALE = 0x3db504f3
INV640 = 0x3acccccd
EPS = 0x3727c5ac
FULL = "row_mask:0xf bank_mask:0xf"

DOC = """;
;  * The bf16 roundings of the reference are reproduced (first LN, q, scores twice, p, o, attention output, h, mean / var / std, g, silu,
;    producer wrote earlier in this launch.  The 16 workgroups of a head pair find out at run time (XCC id inside the q tags) whether
"""

def gen(diag=False, dbl=0, DS=(5, 6, 7), F=6, hprio=1, stag=2, QTO=12, gov=(-1, 4), gsleep=2, gbias=8, wo_at=31, ffn_at=32, lastit=3,
        early1=False, pre1=True, preA=20, touchB=False, e3ack=1, sprio=1, swap=True, gupol='', pw2=0, pw3=0, FD=None, lateclr=False, oclr0=False, noclr=0, dr=0, pre=6, early2=False, probe=0, fold=True):
    a = Asm()
    c = a.comment
    uid = [0]
    def L(n):
        uid[0] += 1
        return f"L_{n}_{uid[0]}"
    stampn = {}
    SV = 166
    T0 = 18 - F + 16
    def stamp(name):
        if not diag: return
        if diag == 1 and name not in ("start", "v_done", "out"): return
        i = stampn.setdefault(name, len(stampn))
        sk = L("st"); a(f"s_cbranch_execz {sk}")
        a("s_memrealtime s[90:91]"); a("s_waitcnt lgkmcnt(0)"); a(f"v_writelane_b32 v{SV}, s90, {i}")
        a.label(sk)
    class live:
        def __enter__(s_): s_.l = L("live"); a(f"s_cbranch_execz {s_.l}")
        def __exit__(s_, *x): a.label(s_.l)
    def lane0(ins): a("s_mov_b64 exec, 1"); a(ins); a("s_mov_b64 exec, -1")
    def rbf(dst, src):
        a(f"v_cvt_pk_bf16_f32 v{dst}, v{src}, v{src}"); a(f"v_and_b32 v{dst}, 0xffff0000, v{dst}")
    def rowred(op, v):
        for r in (8, 4, 2, 1): a(f"{op}_dpp v{v}, v{v}, v{v} row_ror:{r} {FULL}")
    def allred(op, v, t):
        rowred(op, v)
        a(f"v_mov_b32 v{t}, v{v}"); a(f"v_permlane16_swap_b32 v{v}, v{t}"); a(f"{op} v{v}, v{v}, v{t}")
        a(f"v_mov_b32 v{t}, v{v}"); a(f"v_permlane32_swap_b32 v{v}, v{t}"); a(f"{op} v{v}, v{v}, v{t}")
    def red_g8(r, dst):
        for j in range(4): a(f"v_permlane32_swap_b32 v{r[j]}, v{r[j+4]}")
        for j in range(4): a(f"v_add_f32 v{r[j]}, v{r[j]}, v{r[j+4]}")
        a(f"v_permlane16_swap_b32 v{r[0]}, v{r[2]}"); a(f"v_permlane16_swap_b32 v{r[1]}, v{r[3]}")
        a(f"v_add_f32 v{dst}, v{r[0]}, v{r[2]}"); a(f"v_add_f32 v{dst+1}, v{r[1]}, v{r[3]}")
    def red_g4(r, dst):
        a(f"v_permlane32_swap_b32 v{r[0]}, v{r[2]}"); a(f"v_permlane32_swap_b32 v{r[1]}, v{r[3]}")
        a(f"v_add_f32 v{r[0]}, v{r[0]}, v{r[2]}"); a(f"v_add_f32 v{r[1]}, v{r[1]}, v{r[3]}")
        a(f"v_permlane16_swap_b32 v{r[0]}, v{r[1]}")
        a(f"v_add_f32 v{dst}, v{r[0]}, v{r[1]}")
    def guard(regs):
        for r in regs: a(f"v_min_u32 v{r}, -2, v{r}")
    def umax(t, rs):
        rs = list(rs)
        a(f"v_max3_u32 v{t}, v{rs[0]}, v{rs[1]}, v{rs[2]}"); rs = rs[3:]
        while len(rs) >= 2: a(f"v_max3_u32 v{t}, v{t}, v{rs[0]}, v{rs[1]}"); rs = rs[2:]
        if rs: a(f"v_max_u32 v{t}, v{t}, v{rs[0]}")
    def spoll(groups, sums, outs, t, issued=False, pw=0):
        top, done = L("spoll"), L("spolled")
        a(f"s_mov_b32 s60, {SPIN}")
        if not issued:
            for g, _ in groups: g()
        if pw: a("s_waitcnt vmcnt(0)")
        a.label(top)
        a(f"s_waitcnt vmcnt({pw})")
        sums(); umax(t, outs)
        a(f"v_cmp_eq_u32 vcc, -1, v{t}"); a(f"s_cbranch_vccz {done}")
        for g, rs in groups:
            sk = L("gsk")
            umax(t, rs)
            a(f"v_cmp_eq_u32 vcc, -1, v{t}"); a(f"s_cbranch_vccz {sk}")
            a("s_mov_b64 exec, vcc"); g(); a("s_mov_b64 exec, -1")
            a.label(sk)
        a("s_sub_u32 s60, s60, 1"); a(f"s_cbranch_scc0 {top}")
        a("s_waitcnt vmcnt(0)")
        a.label(done)
    def pub2(ins):
        gl, dn = L("glob"), L("pubd")
        a("s_cmp_eq_u32 s66, 0"); a(f"s_cbranch_scc1 {gl}")
        a(ins); a(f"s_branch {dn}")
        a.label(gl); a(ins + " sc1"); a.label(dn)
    def lds_wait(vaddr, off, val, t, slp):
        top, done = L("lw"), L("lwd")
        a(f"s_mov_b32 s60, {LSPIN}")
        a.label(top)
        a(f"ds_read_b32 v{t}, v{vaddr} offset:{off}"); a("s_waitcnt lgkmcnt(0)")
        a(f"v_cmp_gt_u32 vcc, {val}, v{t}"); a(f"s_cbranch_vccz {done}")
        if slp: a(f"s_sleep {slp}")
        a("s_sub_u32 s60, s60, 1"); a(f"s_cbranch_scc0 {top}")
        a.label(done)
    def lds_signal(vaddr, off, one):
        a("s_waitcnt lgkmcnt(0)"); lane0(f"ds_add_u32 v{vaddr}, v{one} offset:{off}")
    def pair_perm(W, spare, before=None, after=None):
        out = []
        for t in range(0, len(W), 2):
            cols = []
            if before: before(t // 2)
            for j in range(4):
                A_, B_ = W[t][j], W[t + 1][j]
                a(f"v_perm_b32 v{spare}, v{B_}, v{A_}, s70"); a(f"v_perm_b32 v{B_}, v{B_}, v{A_}, s71")
                cols += [spare, B_]; spare = A_
            out.append(cols)
            if after: after(t // 2, cols)
        return out

    a.raw(HEADER.rstrip("\n"))
    a.raw(f"; @launch grid=(256,1,1) block=({64*NWAVE},1,1) lds={L_END}")
    a.raw(DOC.rstrip("\n"))
    a.raw('.amdgcn_target "amdgcn-amd-amdhsa--gfx950"')
    a.raw(".text"); a.raw(f".globl {KN}"); a.raw(".p2align 8"); a.raw(f".type {KN},@function")
    a.label(KN)
    a("s_cmp_ge_u32 s2, 256"); a("s_cbranch_scc1 L_exit")
    if dbl: a("s_memrealtime s[88:89]")
    a("s_load_dwordx16 s[16:31], s[0:1], 0"); a("s_load_dwordx8 s[32:39], s[0:1], 64")
    a("v_lshrrev_b32 v1, 6, v0"); a("v_and_b32 v0, 63, v0"); a("v_readfirstlane_b32 s3, v1")
    if diag: a(f"v_mov_b32 v{SV}, 0")
    a("v_lshlrev_b32 v1, 4, v0")
    c("logical id: round-robin placement deals the 16 workgroups of a head pair to one XCD (speed only); s4 = pair, s67 = role id")
    a("s_and_b32 s4, s2, 7"); a("s_lshl_b32 s4, s4, 5"); a("s_lshr_b32 s2, s2, 3"); a("s_or_b32 s2, s2, s4")
    a("s_lshr_b32 s4, s2, 4")
    if diag: a("s_mov_b32 s93, s3")
    a("s_and_b32 s67, s2, 15"); a("s_lshl_b32 s67, s67, 4"); a("s_add_u32 s67, s67, s4")
    a("s_cmp_ge_u32 s3, 4"); a("s_cbranch_scc1 L_helper")

    c("================= streamers =================")
    R0 = 36
    ring = [8]
    def slot(ck, i): return R0 + 16 * (ck % ring[0]) + 4 * i
    def issue_chunk(ck, pacer=None, lo=0, hi=4):
        for i in range(lo, hi):
            if pacer: pacer()
            s = slot(ck, i)
            a(f"buffer_load_dwordx4 v[{s}:{s+3}], v1, s[8:11], s12 offen offset:{1024*i} nt")
        if hi == 4: a("s_add_u32 s12, s12, 0x4000"); a("s_and_b32 s12, s12, 0x3ffff")
    a("s_and_b32 s5, s2, 15")
    a("s_lshl_b32 s13, s4, 23"); a("s_lshl_b32 s14, s5, 18"); a("s_add_u32 s13, s13, s14")
    a(f"s_mul_i32 s12, s5, {stag*0x4000}"); a("s_and_b32 s12, s12, 0x3ffff")
    a("s_lshl_b32 s14, s3, 12"); a("s_add_u32 s12, s12, s14")
    a("s_mov_b32 s10, 0x40000"); a("s_mov_b32 s11, 0x20000")
    a("s_waitcnt lgkmcnt(0)")
    a("s_add_u32 s8, s18, s13"); a("s_addc_u32 s9, s19, 0")
    stamp("start")
    issue_chunk(0); issue_chunk(1, None, 0, pre - 4)
    a(f"s_add_u32 s14, s14, {L_SC}")
    a("v_lshlrev_b32 v20, 2, v0"); a("v_add_u32 v20, s14, v20")
    a("v_and_b32 v21, 15, v0"); a("v_lshlrev_b32 v21, 4, v21")
    a("v_mov_b32 v22, 0"); a("v_mov_b32 v23, 1"); a("v_mov_b32 v3, 0")
    a("s_barrier")
    a(f"s_sub_u32 s15, s67, {NWO}"); a(f"s_cmp_lt_u32 s15, {NFFN}"); a("s_cselect_b32 s15, 2, 1")
    def tick(rd):
        lane0(f"ds_add_u32 v3, v23 offset:{F_TICK}")
        if rd: a(f"ds_read_b32 v2, v3 offset:{F_MODE}")
    def gmode(rd, last=False):
        if not rd: return
        a("s_waitcnt lgkmcnt(0)"); a("v_readfirstlane_b32 s45, v2")
        a("s_sub_u32 s45, s45, 1"); a("s_cselect_b32 s15, s15, s45")
        if last: a("s_cmp_ge_u32 s6, s44"); a("s_cselect_b32 s15, 2, s15")
    def pace():
        go = L("go")
        a(f"s_waitcnt vmcnt({DS[2]-1})"); a("s_cmp_ge_u32 s15, 2"); a(f"s_cbranch_scc1 {go}")
        a(f"s_waitcnt vmcnt({DS[1]-1})"); a("s_cmp_ge_u32 s15, 1"); a(f"s_cbranch_scc1 {go}")
        a(f"s_waitcnt vmcnt({DS[0]-1})")
        a.label(go)
    assert DS[2] <= 8
    c("run ahead until q is there")
    for ck in range(1, F): issue_chunk(ck, lambda: a(f"s_waitcnt vmcnt({(FD or DS[1])-1})"), (pre - 4 if ck == 1 else 0))
    lds_wait(22, F_QGOT, 4, 8, 1)
    a(f"ds_read_b128 v[4:7], v21 offset:{L_Q}"); a(f"ds_read_b128 v[16:19], v21 offset:{L_Q+256}")
    a("s_waitcnt lgkmcnt(0)")
    def switch_point():
        a("s_cmp_eq_u32 s6, 3")
        a("s_cselect_b32 s8, s40, s8"); a("s_cselect_b32 s9, s41, s9"); a("s_cselect_b32 s10, s43, s10")
    def proc_k(ck, q, off):
        for j in range(4):
            for i in range(4):
                a(f"v_dot2_f32_bf16 v{8+i}, v{slot(ck,i)+j}, v{q+j}, " + ("0" if j == 0 else f"v{8+i}"))
        a("v_add_f32_dpp v12, v8, v8 row_ror:8 row_mask:0xf bank_mask:0x3")
        a("v_add_f32_dpp v13, v10, v10 row_ror:8 row_mask:0xf bank_mask:0x3")
        a("v_add_f32_dpp v12, v9, v9 row_ror:8 row_mask:0xf bank_mask:0xc")
        a("v_add_f32_dpp v13, v11, v11 row_ror:8 row_mask:0xf bank_mask:0xc")
        a("v_add_f32_dpp v14, v12, v12 row_half_mirror row_mask:0xf bank_mask:0x5")
        a("v_add_f32_dpp v14, v13, v13 row_half_mirror row_mask:0xf bank_mask:0xa")
        a(f"ds_write_b32 v20, v14 offset:{off}")
    c("K of head A: the look-ahead shrinks to 2 chunks; once chunk n is issued at most 8 loads are out, so chunk n-2 has landed")
    n, since, burst = F, 9, 0
    for k in range(16):
        did = n - ring[0] < k and n < 18 and (n - k <= 2 or since >= 2 or burst < 2)
        if did:
            if n == 16: a("s_add_u32 s8, s8, 0x400000"); a("s_addc_u32 s9, s9, 0")
            issue_chunk(n, pace); n += 1; since = 0; burst += 1
            tick(True)
        assert k <= n - 3
        proc_k(k, 4, 256 * k)
        gmode(did)
        since += 1
    assert n == 18
    lds_signal(22, F_KDONE, 23)
    if dr & 1: a("s_waitcnt vmcnt(0)")
    ring[0] = 4
    c("K of head B")
    a("s_add_u32 s40, s20, s13"); a("s_addc_u32 s41, s21, 0"); a("s_mov_b32 s43, 0x40000")
    a("s_mov_b32 s6, 0")
    a.label("L_kiter")
    for k in range(4):
        if k == 2: switch_point()
        issue_chunk(k + 2, pace)
        tick(k % 2 == 0)
        proc_k(k, 16, 0x4000 + 256 * k)
        gmode(k % 2 == 0)
    a("v_add_u32 v20, 0x400, v20")
    a("s_add_u32 s6, s6, 1"); a("s_cmp_lt_u32 s6, 4"); a("s_cbranch_scc1 L_kiter")
    lds_signal(22, F_KDONE + 4, 23)
    c("V of head A, then of head B")
    a("s_lshl_b32 s14, s3, 11"); a(f"s_add_u32 s14, s14, {L_PP}")
    a("v_lshlrev_b32 v20, 3, v0"); a("v_add_u32 v20, s14, v20")
    a("s_lshl_b32 s14, s3, 9"); a(f"s_add_u32 s14, s14, {L_OL}")
    a("v_and_b32 v21, 15, v0"); a("v_lshlrev_b32 v21, 5, v21"); a("v_lshrrev_b32 v8, 4, v0"); a("v_lshl_add_u32 v21, v8, 3, v21")
    a("v_add_u32 v21, s14, v21")
    a("s_add_u32 s40, s40, 0x400000"); a("s_addc_u32 s41, s41, 0")
    a("s_mov_b32 s7, 0"); a("s_mov_b32 s44, 99")
    a.label("L_vhead")
    lds_wait(22, F_PRDY, 1, 8, 1)
    if dr & 2: a("s_waitcnt vmcnt(0)")
    for j in range(8): a(f"v_mov_b32 v{24+j}, 0")
    a("s_mov_b32 s6, 0")
    a.label("L_viter")
    if dr & 4: a("s_waitcnt vmcnt(0)")
    a("ds_read_b64 v[32:33], v20")
    a("s_cmp_ge_u32 s6, s44"); a("s_cselect_b32 s15, 2, s15")
    for k in range(4):
        if k == 2: switch_point()
        if k >= 2:
            dr, go = L("drain"), L("drained")
            a("s_cmp_eq_u32 s10, 0"); a(f"s_cbranch_scc1 {dr}")
            issue_chunk(k + 2, pace)
            a(f"s_branch {go}")
            a.label(dr); a(f"s_waitcnt vmcnt({4*(3-k)})"); a.label(go)
        else:
            issue_chunk(k + 2, pace)
        if k == 0: a("s_waitcnt lgkmcnt(0)")
        tick(k % 2 == 0)
        for i in range(4):
            s = slot(k, i)
            ln = ((i & 1) << 3) | ((i >> 1) << 2) | k
            for j in range(4):
                a(f"v_dot2c_f32_bf16_dpp v{24+2*j}, v32, v{s+j} row_newbcast:{ln} {FULL}")
                a(f"v_dot2c_f32_bf16_dpp v{25+2*j}, v33, v{s+j} row_newbcast:{ln} {FULL}")
        gmode(k % 2 == 0, True)
    a("v_add_u32 v20, 0x200, v20")
    a("s_add_u32 s6, s6, 1"); a("s_cmp_lt_u32 s6, 4"); a("s_cbranch_scc1 L_viter")
    red_g8(list(range(24, 32)), 34)
    a("ds_write_b64 v21, v[34:35]")
    a("s_cmp_lg_u32 s7, 0"); a("s_cbranch_scc1 L_vend")
    lds_signal(22, F_OA, 23)
    a("v_add_u32 v20, 0x1800, v20"); a("v_add_u32 v21, 0x800, v21"); a("v_mov_b32 v22, 4")
    a("s_mov_b32 s43, 0"); a("s_mov_b32 s7, 1"); a(f"s_mov_b32 s44, {lastit}")
    a("s_branch L_vhead")
    a.label("L_vend")
    lane0(f"ds_add_u32 v3, v23 offset:{F_OB}")
    stamp("v_done")
    if fold:
        a(f"s_sub_u32 s12, s67, {NWO}"); a(f"s_cmp_ge_u32 s12, {NFFN}"); a("s_cbranch_scc1 L_fin")
        a("s_cmp_eq_u32 s3, 0"); a("s_cbranch_scc1 L_lnstat")
    a("s_branch L_fin")

    W0 = 64
    def gu_setup(vreg, tmp):
        a("s_cmp_lt_u32 s53, 4"); a("s_cselect_b32 s44, s28, s30"); a("s_cselect_b32 s45, s29, s31")
        a(f"s_mov_b32 s46, {640*3456}"); a("s_mov_b32 s47, 0x20000")
        a("s_and_b32 s50, s3, 3"); a(f"s_mul_i32 s50, s50, {160*3456}"); a("s_lshl_b32 s51, s52, 6"); a("s_add_u32 s50, s50, s51")
        for i in range(1, 5): a(f"s_add_u32 s{80+i}, s50, {2*3456*i}")
        a(f"v_lshrrev_b32 v{vreg}, 2, v0"); a(f"v_mul_u32_u24 v{vreg}, {10*3456}, v{vreg}"); a(f"v_and_b32 v{tmp}, 3, v0"); a(f"v_lshl_add_u32 v{vreg}, v{tmp}, 4, v{vreg}")
    def gu_load(t, vreg):
        a(f"buffer_load_dwordx4 v[{W0+4*t}:{W0+4*t+3}], v{vreg}, s[44:47], " + ("s50" if t < 2 else f"s{80+t//2}") + f" offen offset:{(t%2)*3456} {gupol}")
    c("================= helpers =================")
    a.label("L_helper")
    a("s_sub_u32 s3, s3, 4"); a("s_and_b32 s6, s2, 15"); a(f"s_sub_u32 s52, s67, {NWO}")
    if swap: a("s_and_b32 s53, s52, 1"); a("s_lshl_b32 s53, s53, 2"); a("s_xor_b32 s53, s53, s3")
    else: a("s_mov_b32 s53, s3")
    a("v_lshlrev_b32 v6, 2, v0"); a("v_mov_b32 v14, 0"); a("v_mov_b32 v15, 1")
    a("s_mov_b32 s70, 0x05040100"); a("s_mov_b32 s71, 0x07060302")
    a("s_cmp_ge_u32 s3, 4"); a("s_cbranch_scc1 L_helper2")
    c("---- helpers 0-3: LN(x), 160 rows x 64 columns of wq per workgroup, exchange inside the pair group ----")
    a("s_setprio 3")
    a("v_lshrrev_b32 v2, 3, v0"); a("v_and_b32 v3, 7, v0"); a("v_mul_u32_u24 v4, 5, v2")
    a("s_lshr_b32 s8, s6, 2"); a("s_lshl_b32 s8, s8, 2"); a("s_add_u32 s8, s8, s3"); a("s_mul_i32 s8, s8, 40")
    a("v_add_u32 v4, s8, v4")
    a("v_lshlrev_b32 v5, 13, v4"); a("v_lshl_add_u32 v5, v3, 4, v5"); a("v_lshlrev_b32 v4, 1, v4")
    a("s_lshl_b32 s9, s4, 9"); a("s_and_b32 s10, s6, 3"); a("s_lshl_b32 s10, s10, 7"); a("s_add_u32 s9, s9, s10")
    a(f"s_mov_b32 s46, {640*8192}"); a("s_mov_b32 s47, 0x20000")
    a("s_waitcnt lgkmcnt(0)")
    stamp("start")
    a(f"s_add_u32 s74, s38, {WS_EP}"); a("s_addc_u32 s75, s39, 0"); a("s_load_dword s15, s[74:75], 0")
    a("global_load_dwordx4 v[16:19], v1, s[16:17]"); a("global_load_dword v20, v6, s[16:17] offset:1024")
    for t in range(5): a(f"global_load_ushort v{21+t}, v4, s[16:17] offset:{2*t}")
    a("s_mov_b32 s44, s22"); a("s_mov_b32 s45, s23")
    for t in range(5):
        a(f"buffer_load_dwordx4 v[{64+4*t}:{64+4*t+3}], v5, s[44:47], s9 offen nt")
        if t < 4: a("s_add_u32 s9, s9, 0x2000")
    a("s_barrier")
    a("v_lshlrev_b32 v12, 2, v2"); a("v_lshl_add_u32 v12, v3, 5, v12")
    a("s_lshl_b32 s12, s3, 8"); a("v_add_u32 v12, s12, v12")
    a("s_mov_b32 s62, 0xff00ff00"); a("s_mov_b32 s63, 0xff00ff00")
    a("s_waitcnt vmcnt(5)")
    for i in range(5): a(f"v_and_b32 v{30+2*i+1}, 0xffff0000, v{16+i}"); a(f"v_lshlrev_b32 v{30+2*i}, 16, v{16+i}")
    X = list(range(30, 40))
    a("v_add_f32 v26, v30, v31")
    for r in X[2:]: a(f"v_add_f32 v26, v26, v{r}")
    allred("v_add_f32", 26, 28)
    a(f"v_mul_f32 v26, {INV640:#x}, v26")
    for i, r in enumerate(X):
        a(f"v_sub_f32 v28, v{r}, v26"); a("v_mul_f32 v27, v28, v28" if i == 0 else "v_fmac_f32 v27, v28, v28")
    allred("v_add_f32", 27, 28)
    a(f"v_mul_f32 v27, {INV640:#x}, v27"); rbf(27, 27); rbf(26, 26)
    a(f"v_add_f32 v27, {EPS:#x}, v27"); rbf(27, 27); a("v_sqrt_f32 v27, v27"); rbf(27, 27); a("v_rcp_f32 v27, v27")
    for t in range(5):
        a(f"v_lshlrev_b32 v{21+t}, 16, v{21+t}"); a(f"v_sub_f32 v{21+t}, v{21+t}, v26"); rbf(21 + t, 21 + t)
        a(f"v_mul_f32 v{21+t}, v{21+t}, v27")
        a(f"v_cvt_pk_bf16_f32 v{30+t}, v{21+t}, 0"); a(f"v_cvt_pk_bf16_f32 v{35+t}, 0, v{21+t}")
    for j in range(8): a(f"v_mov_b32 v{40+j}, 0")
    for t in range(5):
        a(f"s_waitcnt vmcnt({4-t})")
        for j in range(4):
            a(f"v_dot2c_f32_bf16 v{40+2*j}, v{30+t}, v{64+4*t+j}"); a(f"v_dot2c_f32_bf16 v{41+2*j}, v{35+t}, v{64+4*t+j}")
    red_g8(list(range(40, 48)), 48)
    a(f"v_add_f32_dpp v48, v48, v48 row_ror:8 {FULL}"); a(f"v_add_f32_dpp v49, v49, v49 row_ror:8 {FULL}")
    a("v_cndmask_b32 v48, v48, v49, s[62:63]")
    a(f"ds_write_b32 v12, v48 offset:{L_QS}")
    a("s_waitcnt lgkmcnt(0)")
    a("s_add_u32 s15, s15, 1")
    lane0(f"ds_add_rtn_u32 v13, v14, v15 offset:{F_QARR}")
    a("v_lshrrev_b32 v10, 5, v0"); a(f"v_mul_u32_u24 v12, {8*MB}, v10"); a("v_and_b32 v11, 31, v0"); a("v_lshl_add_u32 v12, v11, 4, v12")
    a("s_lshl_b32 s12, s4, 4"); a("s_add_u32 s12, s12, s3"); a(f"s_mul_i32 s12, s12, {MB}"); a("v_add_u32 v12, s12, v12")
    a(f"v_add_u32 v9, {4*MB}, v12")
    a("s_getreg_b32 s13, hwreg(HW_REG_XCC_ID, 0, 4)"); a("s_lshl_b32 s13, s13, 28"); a("s_xor_b32 s13, s13, s15")
    a(f"v_add_u32 v16, {L_QS}, v6")
    a(f"s_mul_i32 s14, s2, {MB}"); a("v_lshlrev_b32 v17, 3, v0"); a("v_add_u32 v17, s14, v17")
    a("s_waitcnt lgkmcnt(0)")
    a("v_readfirstlane_b32 s12, v13")
    def qpub(pol):
        a("ds_read2st64_b32 v[18:19], v16 offset0:0 offset1:1"); a("ds_read2st64_b32 v[20:21], v16 offset0:2 offset1:3")
        a("s_waitcnt lgkmcnt(0)")
        a("v_add_f32 v18, v18, v19"); a("v_add_f32 v20, v20, v21"); a("v_add_f32 v18, v18, v20"); a("v_mov_b32 v19, s13")
        a(f"global_store_dwordx2 v17, v[18:19], s[38:39]{pol}")
    a("s_cmp_lg_u32 s12, 3"); a("s_cbranch_scc1 L_qnopub")
    c("the last of the four waves publishes; first try: through this XCD's L2 only")
    qpub("")
    a.label("L_qnopub")
    a(f"s_mov_b32 s61, {SPIN}")
    a.label("L_qpoll")
    a("global_load_dwordx4 v[24:27], v12, s[38:39] sc1"); a("global_load_dwordx4 v[28:31], v9, s[38:39] sc1")
    a("s_waitcnt vmcnt(0)")
    for r in (25, 27, 29, 31): a(f"v_xor_b32 v{r}, s13, v{r}")
    a("v_or3_b32 v25, v25, v27, v29"); a("v_or_b32 v25, v25, v31"); a("v_and_b32 v27, 0x0fffffff, v25")
    a("v_cmp_ne_u32 vcc, 0, v27"); a("s_cbranch_vccz L_qpolled")
    a("s_sleep 1")
    a(f"s_cmp_lg_u32 s61, {SPIN-QTO}"); a("s_cbranch_scc1 L_qagain")
    c("still incomplete: a member may sit on another XCD, so publish for the whole device")
    lds_wait(14, F_QARR, 4, 8, 2); qpub(" sc1")
    a.label("L_qagain")
    a("s_sub_u32 s61, s61, 1"); a("s_cbranch_scc0 L_qpoll")
    a.label("L_qpolled")
    a("v_cmp_ne_u32 vcc, 0, v25"); a("s_cbranch_vccz L_qsame")
    c("a member does sit on another XCD")
    lds_wait(14, F_QARR, 4, 8, 2); qpub(" sc1")
    a("s_branch L_qdiff")
    a.label("L_qsame")
    lane0(f"ds_add_u32 v14, v15 offset:{F_SAME}")
    a.label("L_qdiff")
    a("v_add_f32 v24, v24, v28"); a("v_add_f32 v26, v26, v30")
    a("v_permlane32_swap_b32 v24, v26"); a("v_add_f32 v24, v24, v26"); a("v_cvt_pk_bf16_f32 v24, v24, v24")
    a("v_lshl_add_u32 v12, v11, 1, v10"); a("v_lshlrev_b32 v12, 1, v12")
    a("s_lshl_b32 s12, s3, 7"); a("v_add_u32 v12, s12, v12")
    a(f"ds_write_b16 v12, v24 offset:{L_Q}")
    lds_signal(14, F_QGOT, 15)
    a(f"s_setprio {hprio}")
    a("s_branch L_down")

    c("---- helpers 4-7 ----")
    a.label("L_helper2")
    a(f"s_setprio {hprio}")
    a("s_cmp_lg_u32 s3, 4"); a("s_cbranch_scc1 L_noinit")
    a("ds_write_b32 v6, v14")
    a.label("L_noinit")
    a("s_waitcnt lgkmcnt(0)")
    stamp("start")
    a(f"s_add_u32 s74, s38, {WS_EP}"); a("s_addc_u32 s75, s39, 0"); a("s_load_dword s15, s[74:75], 0")
    def clears():
        a("s_cmp_lg_u32 s3, 6"); a("s_cbranch_scc1 L_clrdone")
        c("helper 6 marks the untagged words this workgroup will publish as empty")
        for r in range(8, 12): a(f"v_mov_b32 v{r}, -1")
        if oclr0:
            a(f"s_mul_i32 s11, s2, {MB}"); a("v_add_u32 v7, s11, v1")
            a(f"global_store_dwordx4 v7, v[8:11], s[38:39] offset:{MB_O} sc1")
        a(f"s_cmp_ge_u32 s67, {NWO}"); a("s_cbranch_scc1 L_clrffn")
        a("s_mul_i32 s12, s4, 2560"); a("s_lshl_b32 s13, s6, 8"); a("s_add_u32 s12, s12, s13")
        a(f"s_add_u32 s12, s12, {WS_YP}"); a("v_add_u32 v12, s12, v6")
        if noclr < 2: a("global_store_dword v12, v8, s[38:39] sc1")
        a("s_branch L_clrdone")
        a.label("L_clrffn")
        if noclr: a("s_branch L_clrdone")
        a(f"s_cmp_ge_u32 s52, {NFFN}"); a("s_cbranch_scc1 L_clrdone")
        a("s_mul_i32 s12, s52, 2560"); a(f"s_add_u32 s12, s12, {WS_FP}"); a("v_add_u32 v12, s12, v1")
        a("global_store_dwordx4 v12, v[8:11], s[38:39] sc1"); a("global_store_dwordx4 v12, v[8:11], s[38:39] offset:1024 sc1")
        a("s_mov_b32 exec_hi, 0"); a("global_store_dwordx4 v12, v[8:11], s[38:39] offset:2048 sc1"); a("s_mov_b64 exec, -1")
        a.label("L_clrdone")
    if not lateclr: clears()
    a("s_barrier")
    a("s_waitcnt lgkmcnt(0)")
    a("s_add_u32 s15, s15, 1")
    a("s_cmp_eq_u32 s3, 4"); a("s_cbranch_scc1 L_down")
    a("s_cmp_eq_u32 s3, 5"); a("s_cbranch_scc1 L_roles")
    a(f"s_mul_i32 s11, s2, {MB}"); a("v_add_u32 v7, s11, v1")
    a("s_sub_u32 s7, s3, 6")
    a("s_cmp_eq_u32 s7, 0"); a("s_cbranch_scc1 L_stats")
    c("helper 7 (the publisher at the end) takes its w_up rows now")
    a(f"s_cmp_ge_u32 s52, {NFFN}"); a("s_cbranch_scc1 L_stats")
    gu_setup(2, 3)
    for t in range(10):
        if t >= 2: a("s_waitcnt vmcnt(1)")
        gu_load(t, 2)
    c("---- helpers 6, 7: softmax of head A, B ----")
    a.label("L_stats")
    lds_wait(14, F_QGOT, 4, 8, 8)
    a(f"ds_read_b32 v8, v14 offset:{F_SAME}"); a("s_waitcnt lgkmcnt(0)"); a("v_readfirstlane_b32 s66, v8")
    a("s_lshr_b32 s66, s66, 2")
    if lateclr: clears()
    if not oclr0:
        a("s_cmp_lg_u32 s7, 0"); a("s_cbranch_scc1 L_noclrO")
        for r in range(8, 12): a(f"v_mov_b32 v{r}, -1")
        pub2(f"global_store_dwordx4 v7, v[8:11], s[38:39] offset:{MB_O}")
        a.label("L_noclrO")
    a("s_lshl_b32 s12, s7, 2"); a("v_mov_b32 v13, s12")
    a("v_and_b32 v20, 3, v0"); a("v_lshlrev_b32 v20, 8, v20"); a("v_and_b32 v21, 60, v0"); a("v_lshl_add_u32 v20, v21, 2, v20")
    a("s_lshl_b32 s12, s7, 14"); a(f"s_add_u32 s12, s12, {L_SC}"); a("v_add_u32 v20, s12, v20")
    a("s_lshl_b32 s12, s7, 13"); a(f"s_add_u32 s12, s12, {L_PP}"); a("v_lshlrev_b32 v21, 3, v0"); a("v_add_u32 v21, s12, v21")
    a(f"s_mul_i32 s12, s4, {16*MB}"); a("s_lshl_b32 s13, s7, 7"); a("s_add_u32 s12, s12, s13")
    a("v_and_b32 v22, 15, v0"); a(f"v_mul_u32_u24 v22, {MB}, v22"); a("v_add_u32 v22, s12, v22")
    a(f"s_mul_i32 s13, s6, {MB}"); a("s_add_u32 s12, s12, s13"); a("v_mov_b32 v23, s12")
    a(f"s_mov_b32 s14, {LOG2E:#x}")
    lds_wait(13, F_KDONE, 4, 8, 4)
    S = list(range(32, 48))
    for i in range(16):
        if i % 8 == 0:
            for u in range(8): a(f"ds_read_b128 v[{104+4*u}:{107+4*u}], v20 offset:{1024*(i+u)}")
        b = 104 + 4 * (i % 8)
        a(f"s_waitcnt lgkmcnt({7-i%8})")
        a(f"v_add_f32 v{b}, v{b}, v{b+1}"); a(f"v_add_f32 v{b+2}, v{b+2}, v{b+3}"); a(f"v_add_f32 v{S[i]}, v{b}, v{b+2}")
        if probe < 2: rbf(S[i], S[i])
        a(f"v_mul_f32 v{S[i]}, {SCALE:#x}, v{S[i]}")
        if probe < 2: rbf(S[i], S[i])
    a(f"v_max_f32 v28, v{S[0]}, v{S[1]}")
    for i in range(2, 16, 2): a(f"v_max3_f32 v28, v28, v{S[i]}, v{S[i+1]}")
    allred("v_max_f32", 28, 30)
    for i in range(16):
        a(f"v_sub_f32 v{104+i}, v{S[i]}, v28"); a(f"v_mul_f32 v{104+i}, s14, v{104+i}"); a(f"v_exp_f32 v{104+i}, v{104+i}")
    for st in (8, 4, 2):
        for i in range(st): a(f"v_add_f32 v{104+i}, v{104+i}, v{104+i+st}")
    a("v_add_f32 v29, v104, v105")
    allred("v_add_f32", 29, 30)
    a("v_mov_b32 v24, v28"); a("v_mov_b32 v25, s15"); a("v_mov_b32 v26, v29"); a("v_mov_b32 v27, s15")
    c("helper 6: all its empty marks have landed before this tagged word goes out")
    a("s_waitcnt vmcnt(0)")
    a("s_mov_b64 exec, 1"); pub2(f"global_store_dwordx4 v23, v[24:27], s[38:39] offset:{MB_ST}"); a("s_mov_b64 exec, -1")
    a(f"s_mov_b32 s60, {SPIN}")
    a.label("L_stpoll")
    a(f"global_load_dwordx4 v[16:19], v22, s[38:39] offset:{MB_ST} sc1")
    a("s_waitcnt vmcnt(0)")
    a("v_xor_b32 v17, s15, v17"); a("v_xor_b32 v19, s15, v19"); a("v_or_b32 v17, v17, v19")
    a("v_cmp_ne_u32 vcc, 0, v17"); a("s_cbranch_vccz L_stpolled")
    a("s_sleep 4")
    a("s_sub_u32 s60, s60, 1"); a("s_cbranch_scc0 L_stpoll")
    a.label("L_stpolled")
    c("max and sum of the whole row, then p = bf16(exp(s - max) / sum) in both halves of a dword pair")
    a("v_mov_b32 v28, v16")
    rowred("v_max_f32", 28)
    a("v_sub_f32 v24, v16, v28"); a("v_mul_f32 v24, s14, v24"); a("v_exp_f32 v24, v24"); a("v_mul_f32 v29, v24, v18")
    rowred("v_add_f32", 29)
    a("v_rcp_f32 v29, v29")
    if probe == 1: a("v_mul_f32 v29, 0x3f802000, v29")
    for i in range(16):
        a(f"v_sub_f32 v{S[i]}, v{S[i]}, v28"); a(f"v_mul_f32 v{S[i]}, s14, v{S[i]}"); a(f"v_exp_f32 v{S[i]}, v{S[i]}")
    for i in range(16):
        a(f"v_mul_f32 v{S[i]}, v{S[i]}, v29")
        a(f"v_cvt_pk_bf16_f32 v{104+2*i}, v{S[i]}, 0"); a(f"v_cvt_pk_bf16_f32 v{105+2*i}, 0, v{S[i]}")
        a(f"ds_write_b64 v21, v[{104+2*i}:{105+2*i}] offset:{512*i}")
    lds_signal(13, F_PRDY, 15)
    a("s_cmp_lg_u32 s3, 6"); a("s_cbranch_scc1 L_h7m")
    c("member 0 has seen the head-A words of its 16 workgroups: one device-wide mark for all of them")
    a("s_cmp_lg_u32 s6, 0"); a("s_cbranch_scc1 L_roles")
    a("v_cmp_ne_u32 vcc, 0, v17"); a("s_cbranch_vccnz L_roles")
    a("v_mov_b32 v12, s15")
    lane0(f"global_store_dword v7, v12, s[38:39] offset:{MB_MK} sc1")
    a("s_branch L_roles")
    a.label("L_h7m")
    a(f"s_cmp_ge_u32 s52, {NFFN}"); a("s_cbranch_scc1 L_roles")
    c("ffn workgroups: every producer of YP / FP has put its empty marks in place")
    a("v_and_b32 v16, 15, v0"); a(f"v_mul_u32_u24 v16, {16*MB}, v16")
    a(f"s_mov_b32 s60, {SPIN}")
    a.label("L_marks")
    a(f"global_load_dword v20, v16, s[38:39] offset:{MB_MK} sc1"); a("s_waitcnt vmcnt(0)")
    a("v_xor_b32 v20, s15, v20")
    a("v_cmp_ne_u32 vcc, 0, v20"); a("s_cbranch_vccz L_marked")
    a("s_sleep 32")
    a("s_sub_u32 s60, s60, 1"); a("s_cbranch_scc0 L_marks")
    a.label("L_marked")
    lds_signal(14, F_MARK, 15)
    a("s_branch L_roles")

    c("---- helpers 0-4 of the ffn workgroups: w_down rows, one load at a time ----")
    a.label("L_down")
    a(f"s_cmp_ge_u32 s52, {NFFN}"); a("s_cbranch_scc1 L_roles")
    a("s_mov_b32 s44, s32"); a("s_mov_b32 s45, s33"); a(f"s_mov_b32 s46, {1728*1280}"); a("s_mov_b32 s47, 0x20000")
    a(f"s_mul_i32 s50, s52, {32*1280}"); a("s_lshl_b32 s51, s3, 8"); a("s_add_u32 s50, s50, s51")
    a("v_lshrrev_b32 v2, 4, v0"); a(f"v_mul_u32_u24 v2, {8*1280}, v2"); a("v_and_b32 v3, 15, v0"); a("v_lshl_add_u32 v2, v3, 4, v2")
    for t in range(8):
        if t == 4: a(f"s_add_u32 s50, s50, {4*1280}")
        if t: a("s_waitcnt vmcnt(0)")
        a(f"buffer_load_dwordx4 v[{W0+40+4*t}:{W0+43+4*t}], v2, s[44:47], s50 offen offset:{(t%4)*1280} nt")

    c("================= roles =================")
    a.label("L_roles")
    a(f"s_add_u32 s76, s38, {WS_YP}"); a("s_addc_u32 s77, s39, 0")
    a(f"s_add_u32 s78, s38, {WS_FP}"); a("s_addc_u32 s79, s39, 0")
    a("v_lshlrev_b32 v138, 3, v0"); a(f"s_mul_i32 s11, s2, {MB}"); a("v_add_u32 v139, s11, v138")
    a("s_waitcnt vmcnt(0)")
    c("walk this wave's tail code once with EXEC = 0 (every memory access, wait and barrier is branched over) to have it in the I-cache")
    a("s_mov_b64 exec, 0")
    a(f"s_cmp_lt_u32 s67, {NWO}"); a("s_cbranch_scc1 L_wo_go")
    a(f"s_cmp_lt_u32 s52, {NFFN}"); a("s_cbranch_scc1 L_ffn_go")
    a("s_branch L_none_go")
    a.label("L_warmed")
    a("s_mov_b64 exec, -1")
    def osum(head, d):
        for w in range(4): a(f"ds_read_b64 v[{142+2*w}:{143+2*w}], v138 offset:{L_OL+2048*head+512*w}")
        a("s_waitcnt lgkmcnt(0)")
        a("v_pk_add_f32 v[142:143], v[142:143], v[144:145]"); a("v_pk_add_f32 v[146:147], v[146:147], v[148:149]")
        a(f"v_pk_add_f32 v[{d}:{d+1}], v[142:143], v[146:147]")
        guard([d, d + 1])
    c("helper 5: compare this workgroup's progress with its XCD neighbours' and set the streamers' prefetch depth (a hint only)")
    a("s_cmp_lg_u32 s3, 5"); a("s_cbranch_scc1 L_nogov")
    lds_wait(14, F_QGOT, 4, 8, 8)
    a(f"ds_read_b32 v8, v14 offset:{F_SAME}"); a("s_waitcnt lgkmcnt(0)"); a("v_readfirstlane_b32 s12, v8")
    a("s_cmp_lg_u32 s12, 4"); a("s_cbranch_scc1 L_nogov")
    a("s_lshr_b32 s12, s2, 5"); a("s_lshl_b32 s12, s12, 8"); a(f"s_add_u32 s12, s12, {WS_PG}")
    a("v_and_b32 v16, 31, v0"); a("v_lshlrev_b32 v16, 2, v16"); a("v_add_u32 v16, s12, v16")
    a("s_and_b32 s64, s2, 31"); a("s_lshl_b32 s13, s64, 2"); a("s_add_u32 s12, s12, s13"); a("v_mov_b32 v17, s12")
    a("s_lshl_b32 s13, s15, 10")
    a(f"s_cmp_lt_u32 s52, {NFFN}"); a(f"s_cselect_b32 s65, 0, {gbias}"); a("s_add_u32 s65, s65, s13")
    a("s_mov_b32 s61, 4000")
    a.label("L_gov")
    a(f"ds_read_b32 v20, v14 offset:{F_TICK}"); a("s_waitcnt lgkmcnt(0)")
    a("v_add_u32 v19, s65, v20")
    lane0("global_store_dword v17, v19, s[38:39]")
    a("global_load_dword v18, v16, s[38:39] sc1")
    a("v_readfirstlane_b32 s62, v20")
    a("s_waitcnt vmcnt(0)")
    a(f"s_cmp_ge_u32 s62, {4*(T0+26)}"); a("s_cbranch_scc1 L_nogov")
    a("v_subrev_u32 v18, s13, v18")
    a("v_cmp_le_u32 vcc, 0x400, v18"); a("s_cbranch_vccnz L_gov_next")
    a("v_readlane_b32 s62, v18, s64")
    rowred("v_add_u32", 18)
    a("s_lshl_b32 s62, s62, 5")
    a("v_readlane_b32 s63, v18, 0"); a("v_readlane_b32 s12, v18, 16")
    a("s_add_u32 s63, s63, s12"); a("s_sub_i32 s62, s62, s63")
    a("s_mov_b32 s63, 2")
    a(f"s_cmp_gt_i32 s62, {32*gov[1]}"); a("s_cselect_b32 s63, 1, s63")
    a(f"s_cmp_lt_i32 s62, {32*gov[0]}"); a("s_cselect_b32 s63, 3, s63")
    a("v_mov_b32 v18, s63"); a(f"ds_write_b32 v14, v18 offset:{F_MODE}")
    a.label("L_gov_next")
    a(f"s_sleep {gsleep}")
    a("s_sub_u32 s61, s61, 1"); a("s_cbranch_scc0 L_gov")
    a.label("L_nogov")
    c("helper 7: this workgroup's o of head A")
    a("s_cmp_lg_u32 s3, 7"); a("s_cbranch_scc1 L_noA")
    lds_wait(14, F_OA, 4, 8, 8)
    osum(0, 140)
    a("s_cmp_eq_u32 s66, 0"); a("s_cbranch_scc1 L_noAloc")
    a(f"global_store_dwordx2 v139, v[140:141], s[38:39] offset:{MB_O}")
    a.label("L_noAloc")
    a("s_setprio 3")
    a.label("L_noA")
    def opub():
        with live(): lds_wait(14, F_OB, 4, 150, 1)
        osum(1, 142)
        with live():
            gl, dn = L("oglob"), L("odone")
            a("s_cmp_eq_u32 s66, 0"); a(f"s_cbranch_scc1 {gl}")
            a(f"global_store_dwordx2 v139, v[142:143], s[38:39] offset:{MB_O+512}")
            a(f"s_branch {dn}")
            a.label(gl)
            a(f"global_store_dwordx2 v139, v[142:143], s[38:39] offset:{MB_O+512} sc1")
            a(f"global_store_dwordx2 v139, v[140:141], s[38:39] offset:{MB_O} sc1")
            a.label(dn)
            a("v_mov_b32 v150, 1"); a(f"ds_write_b32 v14, v150 offset:{F_PUB}")
            a(f"s_setprio {hprio}")
        stamp("tail")
    a(f"s_cmp_lt_u32 s67, {NWO}"); a("s_cbranch_scc1 L_wo")
    a(f"s_cmp_lt_u32 s52, {NFFN}"); a("s_cbranch_scc1 L_ffn")
    a.label("L_none_go")
    a("s_cmp_lg_u32 s3, 7"); a("s_cbranch_scc1 L_tend")
    with live(): lds_wait(14, F_TICK, 4 * (T0 + 27), 150, 24)
    opub()
    a("s_branch L_tend")

    c("---- wo role: 256 rows (this pair's heads) x 64 columns ----")
    a.label("L_wo")
    a(f"s_mul_i32 s12, s4, {16*MB}"); a("s_lshl_b32 s13, s3, 7"); a("s_add_u32 s12, s12, s13")
    a("v_and_b32 v3, 7, v0"); a(f"v_mul_u32_u24 v2, {2*MB}, v3"); a("v_lshrrev_b32 v4, 3, v0"); a("v_lshl_add_u32 v2, v4, 4, v2"); a("v_add_u32 v2, s12, v2")
    a(f"v_add_u32 v8, {MB}, v2")
    a("v_lshrrev_b32 v5, 4, v0"); a("v_lshlrev_b32 v5, 3, v5"); a("v_lshl_add_u32 v5, v3, 5, v5")
    a("s_lshl_b32 s13, s3, 8"); a("v_add_u32 v5, s13, v5")
    a("s_mul_i32 s12, s4, 2560"); a("s_lshl_b32 s13, s6, 8"); a("s_add_u32 s12, s12, s13"); a("v_add_u32 v7, s12, v6")
    a(f"v_add_u32 v6, {L_YL}, v6")
    for j in range(8): a(f"v_mov_b32 v{40+j}, 0")
    a("s_mov_b32 s44, s24"); a("s_mov_b32 s45, s25"); a(f"s_mov_b32 s46, {4096*1280}"); a("s_mov_b32 s47, 0x20000")
    a("s_lshl_b32 s50, s4, 3"); a("s_add_u32 s50, s50, s3"); a(f"s_mul_i32 s50, s50, {32*1280}")
    a("s_lshl_b32 s51, s6, 7"); a("s_add_u32 s50, s50, s51")
    a(f"v_mul_u32_u24 v9, {4*1280}, v4"); a("v_lshl_add_u32 v9, v3, 4, v9")
    def io(v, d): return (lambda: a(f"global_load_dwordx4 v[{d}:{d+3}], v{v}, s[38:39] offset:{MB_O} sc1"), range(d, d + 4))
    if preA:
        a("s_cmp_ge_u32 s3, 4"); a("s_cbranch_scc1 L_nopreA")
        lds_wait(14, F_TICK, 4 * (T0 + preA), 150, 24)
        for g, _ in (io(2, 24), io(8, 28)): g(); a("s_waitcnt vmcnt(0)")
        a.label("L_nopreA")
    lds_wait(14, F_TICK, 4 * (T0 + wo_at - 3), 150, 24)
    if preA and touchB:
        a("s_cmp_lg_u32 s3, 4"); a("s_cbranch_scc1 L_notouch")
        a("v_lshrrev_b32 v10, 2, v0"); a(f"v_mul_u32_u24 v10, {MB}, v10"); a("v_and_b32 v11, 3, v0"); a("v_lshl_add_u32 v10, v11, 7, v10")
        a(f"s_mul_i32 s12, s4, {16*MB}"); a("v_add_u32 v10, s12, v10")
        a(f"global_load_dword v11, v10, s[38:39] offset:{MB_O+512} sc1")
        a.label("L_notouch")
    a.label("L_wo_go")
    c("the weights are fetched once the streamers' last loads are out")
    G1 = [io(2, 24), io(8, 28)]
    if preA: pre1, early1 = False, True
    with live():
        if pre1:
            for g, _ in G1: g()
        lds_wait(14, F_TICK, 4 * (T0 + wo_at), 150, 2)
        for t in range(4): a(f"buffer_load_dwordx4 v[{W0+4*t}:{W0+4*t+3}], v9, s[44:47], s50 offen offset:{t*1280} nt")
    a("s_cmp_lg_u32 s3, 7"); a("s_cbranch_scc1 L_wo_np")
    opub()
    a("s_branch L_wo_p")
    a.label("L_wo_np")
    with live(): lds_wait(14, F_PUB, 1, 150, 1)
    a.label("L_wo_p")
    def so():
        for j in range(4): a(f"v_add_f32 v{16+j}, v{24+j}, v{28+j}")
    if early1:
        a("s_cmp_lt_u32 s3, 4"); a("s_cbranch_scc1 L_wo_a")
        with live():
            for g, _ in G1: g()
        a("s_waitcnt vmcnt(2)"); a("s_branch L_wo_b")
        a.label("L_wo_a")
    a("s_waitcnt vmcnt(0)")
    a.label("L_wo_b")
    PW = pair_perm([[W0 + 4 * t + j for j in range(4)] for t in range(4)], 136)
    with live(): spoll(G1, so, range(16, 20), 14, issued=(pre1 or bool(preA)))
    stamp("e1")
    for pat in ("quad_perm:[1,0,3,2]", "quad_perm:[2,3,0,1]", "row_half_mirror"):
        for j in range(4): a(f"v_add_f32_dpp v{16+j}, v{16+j}, v{16+j} {pat} {FULL}")
    for i in range(2): a(f"v_cvt_pk_bf16_f32 v{32+i}, v{16+2*i}, v{17+2*i}")
    for i in range(2):
        for j in range(8): a(f"v_dot2c_f32_bf16 v{40+j}, v{32+i}, v{PW[i][j]}")
    red_g8(list(range(40, 48)), 48)
    a(f"v_add_f32_dpp v48, v48, v48 row_ror:8 {FULL}"); a(f"v_add_f32_dpp v49, v49, v49 row_ror:8 {FULL}")
    a(f"ds_write_b64 v5, v[48:49] offset:{L_YL}")
    a("s_waitcnt lgkmcnt(0)")
    with live(): a("s_barrier")
    a("s_cmp_lg_u32 s3, 0"); a("s_cbranch_scc1 L_tend")
    for w in range(4): a(f"ds_read2st64_b32 v[{16+2*w}:{17+2*w}], v6 offset0:{2*w} offset1:{2*w+1}")
    a("s_waitcnt lgkmcnt(0)")
    a("v_pk_add_f32 v[16:17], v[16:17], v[18:19]"); a("v_pk_add_f32 v[20:21], v[20:21], v[22:23]"); a("v_pk_add_f32 v[16:17], v[16:17], v[20:21]")
    a("v_add_f32 v16, v16, v17")
    guard([16])
    with live(): a("global_store_dword v7, v16, s[76:77] sc1")
    stamp("y_pub")
    a("s_branch L_tend")

    c("---- ffn role: 32 columns of w_gate / w_up, 32 rows of w_down ----")
    a.label("L_ffn")
    a("v_lshrrev_b32 v2, 4, v0"); a("v_and_b32 v3, 15, v0")
    a("s_min_u32 s12, s3, 4"); a("s_lshl_b32 s12, s12, 8")
    a("v_lshrrev_b32 v5, 1, v2"); a("v_lshlrev_b32 v5, 7, v5"); a("v_lshl_add_u32 v5, v3, 3, v5")
    a("v_and_b32 v4, 1, v2"); a("v_lshl_add_u32 v5, v4, 2, v5"); a("v_add_u32 v5, s12, v5")
    a("global_load_dword v11, v5, s[16:17]")
    a("s_lshl_b32 s12, s3, 9")
    a("v_mul_u32_u24 v4, 10240, v2"); a("v_lshl_add_u32 v4, v3, 4, v4"); a("v_add_u32 v4, s12, v4"); a("v_add_u32 v62, 5120, v4")
    if fold:
        a("v_mov_b32 v63, 0"); a("v_mov_b32 v6, 0x3f803f80")
        a("v_lshrrev_b32 v7, 2, v0"); a("v_mul_u32_u24 v7, 20, v7"); a("s_and_b32 s13, s3, 3"); a("s_mul_i32 s13, s13, 320"); a(f"s_add_u32 s13, s13, {L_H}"); a("v_add_u32 v7, s13, v7")
    else:
        a("v_lshlrev_b32 v5, 1, v5")
        a("s_lshl_b32 s13, s3, 3"); a("v_mov_b32 v6, s13"); a("v_mov_b32 v63, 0")
        a("v_lshrrev_b32 v7, 2, v0"); a("v_mul_u32_u24 v7, 40, v7"); a("s_and_b32 s13, s3, 3"); a("s_mul_i32 s13, s13, 640"); a("v_add_u32 v7, s13, v7")
    a("v_and_b32 v8, 3, v0"); a("v_lshlrev_b32 v8, 5, v8"); a("v_lshl_add_u32 v8, v2, 3, v8"); a("s_lshl_b32 s13, s53, 7"); a("v_add_u32 v8, s13, v8")
    a("v_and_b32 v9, 7, v0"); a("v_lshl_add_u32 v9, v2, 3, v9"); a("v_lshlrev_b32 v9, 2, v9"); a(f"v_add_u32 v9, {L_GU}, v9")
    a("s_mul_i32 s13, s52, 2560"); a("s_add_u32 s13, s13, s12"); a("v_lshlrev_b32 v10, 3, v0"); a("v_add_u32 v10, s13, v10")
    if fold: a(f"v_add_u32 v3, {L_T-L_GU}, v9")
    for j in range(8): a(f"v_mov_b32 v{52+j}, 0")
    a(f"s_mov_b32 s14, {LOG2E:#x}")
    PD = pair_perm([[W0 + 40 + 4 * t + j for j in range(4)] for t in range(8)], 137)
    gu_setup(15, 1)
    lds_wait(14, F_MARK, 1, 150, 8)
    a("s_waitcnt vmcnt(0)")
    a("v_and_b32 v13, 0xffff0000, v11"); a("v_lshlrev_b32 v12, 16, v11")
    lds_wait(14, F_TICK, 4 * (T0 + 27), 150, 24)
    YI = [140, 148, 156, 24]
    HV = 40
    def iy(u):
        v, o = (4, 62)[u // 2], 2560 * (u % 2)
        return (lambda: (a(f"global_load_dwordx4 v[{YI[u]}:{YI[u]+3}], v{v}, s[76:77] offset:{o} sc1"),
                         a(f"global_load_dwordx4 v[{YI[u]+4}:{YI[u]+7}], v{v}, s[76:77] offset:{o+256} sc1")), range(YI[u], YI[u] + 8))
    G2 = [iy(u) for u in range(4)]
    a.label("L_ffn_go")
    a("s_cmp_eq_u32 s3, 7"); a("s_cbranch_scc1 L_ffn_pub")
    with live(): lds_wait(14, F_TICK, 4 * (T0 + ffn_at), 150, 2)
    for t0 in (0, 4, 8):
        with live():
            for t in range(t0, min(t0 + 4, 10)): gu_load(t, 15)
    a("s_branch L_ffn_w0")
    a.label("L_ffn_pub")
    opub()
    a.label("L_ffn_w0")
    a.label("L_ffn_have")
    def dots(i, src, cols):
        for j in range(8):
            if i == 0: a(f"v_dot2_f32_bf16 v{40+j}, v{src}, v{cols[j]}, 0")
            else: a(f"v_dot2c_f32_bf16 v{40+j}, v{src}, v{cols[j]}")
    def gred():
        red_g8(list(range(40, 48)), 48)
        for r in (8, 4):
            a(f"v_add_f32_dpp v48, v48, v48 row_ror:{r} {FULL}"); a(f"v_add_f32_dpp v49, v49, v49 row_ror:{r} {FULL}")
    def gemv(src):
        for i in range(5): dots(i, src(i), PG[i])
        gred()
    def landed(i):
        a(f"s_waitcnt vmcnt({8-2*i})")
        if i == 4:
            stamp("x1")
            a("s_cmp_ge_u32 s3, 5"); a("s_cbranch_scc1 L_nopoll")
            with live():
                for g, _ in G2: g()
            a.label("L_nopoll")
    if fold: c("as the rows land: pair them up and sum the columns, LN(h) @ W = (h @ W - mean * colsum(W)) / std")
    PG = pair_perm([[W0 + 4 * t + j for j in range(4)] for t in range(10)], 136, landed, (lambda i, cols: dots(i, 6, cols)) if fold else None)
    if fold:
        gred()
        a(f"ds_write_b64 v8, v[48:49] offset:{L_CS}")
        a("s_waitcnt lgkmcnt(0)")
    a("s_cmp_ge_u32 s3, 5"); a("s_cbranch_scc1 L_h_wait")
    def sy():
        for j in range(0, 8, 2):
            a(f"v_pk_add_f32 v[{16+j}:{17+j}], v[{YI[0]+j}:{YI[0]+j+1}], v[{YI[1]+j}:{YI[1]+j+1}]")
            a(f"v_pk_add_f32 v[{32+j}:{33+j}], v[{YI[2]+j}:{YI[2]+j+1}], v[{YI[3]+j}:{YI[3]+j+1}]")
        for j in range(0, 8, 2): a(f"v_pk_add_f32 v[{16+j}:{17+j}], v[{16+j}:{17+j}], v[{32+j}:{33+j}]")
    with live(): spoll(G2, sy, range(16, 24), 14, issued=True, pw=pw2)
    stamp("e2")
    c("h = bf16(x + bf16(attention output))")
    red_g8(list(range(16, 24)), 32)
    a("v_cvt_pk_bf16_f32 v34, v32, v33"); a("v_lshlrev_b32 v32, 16, v34"); a("v_and_b32 v33, 0xffff0000, v34")
    a("v_pk_add_f32 v[32:33], v[32:33], v[12:13]")
    if fold:
        a("v_cvt_pk_bf16_f32 v34, v32, v33")
        a(f"ds_write_b32 v5, v34 offset:{L_H}")
        a("s_waitcnt lgkmcnt(0)")
        a.label("L_h_wait")
        with live(): a("s_barrier")
        a("ds_read2_b32 v[16:17], v7 offset0:0 offset1:1"); a("ds_read2_b32 v[18:19], v7 offset0:2 offset1:3"); a("ds_read_b32 v20, v7 offset:16")
        a("s_waitcnt lgkmcnt(0)")
    else:
        a("v_cvt_pk_bf16_f32 v34, v32, v33"); a("v_lshlrev_b32 v32, 16, v34"); a("v_and_b32 v33, 0xffff0000, v34")
        a(f"ds_write_b64 v5, v[32:33] offset:{L_H}")
        a("v_readfirstlane_b32 s12, v32")
        a("v_subrev_f32 v34, s12, v32"); a("v_subrev_f32 v35, s12, v33")
        a("v_add_f32 v36, v34, v35"); a("v_mul_f32 v37, v34, v34"); a("v_fmac_f32 v37, v35, v35")
        for r in (8, 4, 2, 1):
            a(f"v_add_f32_dpp v36, v36, v36 row_ror:{r} {FULL}"); a(f"v_add_f32_dpp v37, v37, v37 row_ror:{r} {FULL}")
        a("v_permlane16_swap_b32 v36, v37"); a("v_add_f32 v36, v36, v37")
        a("v_mov_b32 v37, v36"); a("v_permlane32_swap_b32 v36, v37"); a("v_add_f32 v36, v36, v37")
        a("v_mov_b32 v37, v36"); a("v_permlane16_swap_b32 v36, v37")
        a("v_mul_f32 v38, 0x3c000000, v36")
        a("v_fma_f32 v39, -v38, v36, v37"); a("v_add_f32 v38, s12, v38")
        a(f"ds_write_b64 v6, v[38:39] offset:{L_ST}")
        a("s_waitcnt lgkmcnt(0)")
        a.label("L_h_wait")
        with live(): a("s_barrier")
        c("combine the five (mean, M2) pairs, normalise this lane's 10 rows, gate / up dot products")
        a(f"ds_read_b128 v[32:35], v63 offset:{L_ST}"); a(f"ds_read_b128 v[36:39], v63 offset:{L_ST+16}"); a(f"ds_read_b64 v[22:23], v63 offset:{L_ST+32}")
        for i in range(5): a(f"ds_read_b64 v[{HV+2*i}:{HV+1+2*i}], v7 offset:{L_H+8*i}")
        a("s_waitcnt lgkmcnt(5)")
        a("v_pk_add_f32 v[50:51], v[32:33], v[34:35]"); a("v_pk_add_f32 v[60:61], v[36:37], v[38:39]")
        a("v_pk_add_f32 v[50:51], v[50:51], v[22:23]"); a("v_pk_add_f32 v[50:51], v[50:51], v[60:61]")
        a("v_mul_f32 v50, 0x3e4ccccd, v50")
        for r in (32, 34, 36, 38, 22): a(f"v_sub_f32 v{r}, v{r}, v50")
        rbf(50, 50)
        var = ["v_mul_f32 v60, v32, v32"] + [f"v_fmac_f32 v60, v{r}, v{r}" for r in (34, 36, 38, 22)] + [
            "v_fmac_f32 v51, 0x43000000, v60", f"v_mul_f32 v61, {INV640:#x}, v51",
            "v_cvt_pk_bf16_f32 v61, v61, v61", "v_and_b32 v61, 0xffff0000, v61", f"v_add_f32 v61, {EPS:#x}, v61",
            "v_cvt_pk_bf16_f32 v61, v61, v61", "v_and_b32 v61, 0xffff0000, v61", "v_sqrt_f32 v61, v61",
            "v_cvt_pk_bf16_f32 v61, v61, v61", "v_and_b32 v61, 0xffff0000, v61", "v_rcp_f32 v61, v61"]
        cen = [f"v_pk_add_f32 v[{HV+2*i}:{HV+1+2*i}], v[{HV+2*i}:{HV+1+2*i}], v[50:51] op_sel_hi:[1,0] neg_lo:[0,1] neg_hi:[0,1]" for i in range(5)]
        cen += [f"v_cvt_pk_bf16_f32 v{16+i}, v{HV+2*i}, v{HV+1+2*i}" for i in range(5)]
        for i in range(5): cen += [f"v_lshlrev_b32 v{HV+2*i}, 16, v{16+i}", f"v_and_b32 v{HV+1+2*i}, 0xffff0000, v{16+i}"]
        a("s_waitcnt lgkmcnt(0)")
        while var or cen:
            if var: a(var.pop(0))
            if cen: a(cen.pop(0))
        for i in range(5): a(f"v_pk_mul_f32 v[{HV+2*i}:{HV+1+2*i}], v[{HV+2*i}:{HV+1+2*i}], v[60:61] op_sel:[0,1] op_sel_hi:[1,1]")
        for i in range(5): a(f"v_cvt_pk_bf16_f32 v{16+i}, v{HV+2*i}, v{HV+1+2*i}")
    gemv(lambda i: 16 + i)
    a(f"ds_write_b64 v8, v[48:49] offset:{L_GU}")
    a("s_waitcnt lgkmcnt(0)")
    with live(): a("s_barrier")
    stamp("gu")
    a("s_cmp_ge_u32 s3, 5"); a("s_cbranch_scc1 L_final")
    c("act = bf16(bf16(silu(g)) * u), then this workgroup's 32 rows of w_down")
    for w in range(4): a(f"ds_read2_b32 v[{16+2*w}:{17+2*w}], v9 offset0:{32*w} offset1:{32*w+128}")
    if fold: a(f"ds_read2_b32 v[32:33], v3 offset0:0 offset1:32"); a(f"ds_read_b32 v34, v63 offset:{L_T+256}")
    a("s_waitcnt lgkmcnt(0)")
    a("v_pk_add_f32 v[16:17], v[16:17], v[18:19]"); a("v_pk_add_f32 v[20:21], v[20:21], v[22:23]")
    if fold: a("v_pk_add_f32 v[16:17], v[16:17], v[32:33] neg_lo:[0,1] neg_hi:[0,1]")
    a("v_pk_add_f32 v[16:17], v[16:17], v[20:21]")
    if fold: a("v_pk_mul_f32 v[16:17], v[16:17], v[34:35] op_sel_hi:[1,0]")
    a("v_cvt_pk_bf16_f32 v20, v16, v17"); a("v_lshlrev_b32 v16, 16, v20"); a("v_mul_f32 v17, s14, v16"); a("v_exp_f32 v17, -v17")
    a("v_and_b32 v20, 0xffff0000, v20"); a("v_add_f32 v17, 1.0, v17"); a("v_rcp_f32 v17, v17")
    a("v_mul_f32 v16, v16, v17"); rbf(16, 16)
    a("v_mul_f32 v16, v16, v20")
    a(f"v_mov_b32_dpp v17, v16 quad_perm:[1,0,3,2] {FULL}")
    a("v_cvt_pk_bf16_f32 v16, v16, v17")
    for i in range(4):
        for j in range(8): a(f"v_dot2c_f32_bf16_dpp v{52+j}, v16, v{PD[i][j]} row_newbcast:{2*i} {FULL}")
    red_g8(list(range(52, 60)), 60)
    guard([60, 61])
    with live():
        a("global_store_dwordx2 v10, v[60:61], s[78:79] sc1")
        if e3ack: a("v_mov_b32 v16, 1"); a("s_waitcnt vmcnt(0)"); a(f"ds_write_b32 v63, v16 offset:{F_FACK}")
    stamp("f_pub")
    a("s_branch L_tend")
    c("---- final sum: helper 5 of the first 20 ffn workgroups, 32 outputs each ----")
    a.label("L_final")
    if fold:
        a("s_cmp_lg_u32 s3, 6"); a("s_cbranch_scc1 L_final5"); a("s_cbranch_execz L_lnstat"); a("s_branch L_fin")
        c("---- streamer 0 of an ffn workgroup: mean and 1/std of h next to the dot products ----")
        a.label("L_lnstat")
        a("v_lshlrev_b32 v24, 2, v0"); a(f"v_add_u32 v25, {L_H}, v24")
        a("v_lshrrev_b32 v26, 5, v0"); a("v_mul_u32_u24 v26, 384, v26"); a("v_add_u32 v26, v26, v24"); a(f"v_add_u32 v26, {L_CS}, v26")
        with live(): a(f"s_setprio {sprio}"); a("s_barrier")
        a("ds_read2st64_b32 v[16:17], v25 offset0:0 offset1:1"); a("ds_read2st64_b32 v[18:19], v25 offset0:2 offset1:3"); a("ds_read_b32 v20, v25 offset:1024")
        a("ds_read2_b32 v[28:29], v26 offset0:0 offset1:32"); a("ds_read2_b32 v[30:31], v26 offset0:64 offset1:96")
        a("s_waitcnt lgkmcnt(2)")
        a("v_readfirstlane_b32 s12, v16")
        for i in range(5): a(f"v_lshlrev_b32 v{40+2*i}, 16, v{16+i}"); a(f"v_and_b32 v{41+2*i}, 0xffff0000, v{16+i}")
        a("s_lshl_b32 s12, s12, 16"); a("s_mov_b32 s13, s12")
        for i in range(5): a(f"v_pk_add_f32 v[{40+2*i}:{41+2*i}], v[{40+2*i}:{41+2*i}], s[12:13] neg_lo:[0,1] neg_hi:[0,1]")
        a("v_pk_add_f32 v[32:33], v[40:41], v[42:43]"); a("v_pk_mul_f32 v[34:35], v[40:41], v[40:41]")
        a("v_pk_add_f32 v[36:37], v[44:45], v[46:47]"); a("v_pk_fma_f32 v[34:35], v[42:43], v[42:43], v[34:35]")
        a("v_pk_add_f32 v[32:33], v[32:33], v[48:49]"); a("v_pk_fma_f32 v[34:35], v[44:45], v[44:45], v[34:35]")
        a("v_pk_add_f32 v[32:33], v[32:33], v[36:37]"); a("v_pk_fma_f32 v[34:35], v[46:47], v[46:47], v[34:35]")
        a("v_add_f32 v36, v32, v33"); a("v_pk_fma_f32 v[34:35], v[48:49], v[48:49], v[34:35]")
        a("s_waitcnt lgkmcnt(0)")
        a("v_pk_add_f32 v[28:29], v[28:29], v[30:31]"); a("v_add_f32 v37, v34, v35"); a("v_add_f32 v28, v28, v29")
        for r in (8, 4, 2, 1):
            a(f"v_add_f32_dpp v36, v36, v36 row_ror:{r} {FULL}"); a(f"v_add_f32_dpp v37, v37, v37 row_ror:{r} {FULL}")
        a("v_permlane16_swap_b32 v36, v37"); a("v_add_f32 v36, v36, v37")
        a("v_mov_b32 v37, v36"); a("v_permlane32_swap_b32 v36, v37"); a("v_add_f32 v36, v36, v37")
        a("v_mov_b32 v37, v36"); a("v_permlane16_swap_b32 v36, v37")
        a(f"v_mul_f32 v38, {INV640:#x}, v36")
        a("v_fma_f32 v39, -v38, v36, v37"); a("v_add_f32 v38, s12, v38"); a(f"v_mul_f32 v39, {INV640:#x}, v39")
        a("v_cvt_pk_bf16_f32 v39, v38, v39"); a("v_lshlrev_b32 v38, 16, v39"); a("v_and_b32 v39, 0xffff0000, v39")
        a("v_mul_f32 v28, v28, v38"); a(f"v_add_f32 v39, {EPS:#x}, v39")
        a(f"ds_write_b32 v24, v28 offset:{L_T}")
        rbf(39, 39); a("v_sqrt_f32 v39, v39"); a("v_mov_b32 v27, 0"); rbf(39, 39); a("v_rcp_f32 v39, v39")
        a("s_nop 0")
        a(f"ds_write_b32 v27, v39 offset:{L_T+256}")
        a("s_waitcnt lgkmcnt(0)")
        with live(): a("s_barrier")
        a("s_branch L_tend")
        a.label("L_final5")
    a("s_cmp_lg_u32 s3, 5"); a("s_cbranch_scc1 L_tend")
    a(f"s_cmp_ge_u32 s52, {NFIN}"); a("s_cbranch_scc1 L_tend")
    a("s_mov_b32 s44, s78"); a("s_mov_b32 s45, s79"); a(f"s_mov_b32 s46, {NFFN*2560}"); a("s_mov_b32 s47, 0x20000")
    a("v_lshrrev_b32 v4, 3, v0"); a("v_mul_u32_u24 v4, 2560, v4"); a("v_and_b32 v5, 7, v0"); a("v_lshl_add_u32 v4, v5, 4, v4")
    a("s_lshl_b32 s12, s52, 7"); a("v_add_u32 v4, s12, v4")
    a("v_lshl_add_u32 v5, v5, 2, v2"); a("v_and_b32 v6, 1, v5"); a("v_lshrrev_b32 v5, 1, v5"); a("v_lshl_add_u32 v5, v5, 3, v6")
    a("s_lshr_b32 s12, s52, 2"); a("s_lshl_b32 s12, s12, 7"); a("s_and_b32 s13, s52, 3"); a("s_lshl_b32 s13, s13, 1"); a("s_add_u32 s12, s12, s13")
    a("v_add_u32 v5, s12, v5")
    a("v_lshlrev_b32 v6, 2, v5"); a("v_lshlrev_b32 v5, 1, v5")
    if fold: a(f"ds_read_u16 v7, v5 offset:{L_H}")
    else: a(f"ds_read_b32 v7, v6 offset:{L_H}")
    for i in range(1, 7): a(f"s_mov_b32 s{80+i}, {8*2560*i}")
    a("s_mov_b32 s12, 0x00ff00ff"); a("s_mov_b32 s13, 0x00ff00ff")
    a("s_waitcnt lgkmcnt(0)")
    if fold: a("v_lshlrev_b32 v7, 16, v7")
    def i3(i):
        return (lambda: a(f"buffer_load_dwordx4 v[{104+4*i}:{107+4*i}], v4, s[44:47], " + ("0" if i == 0 else f"s{80+i}") + " offen sc1"), range(104 + 4 * i, 108 + 4 * i))
    def s3():
        for j in (0, 2):
            a(f"v_pk_add_f32 v[{16+j}:{17+j}], v[{104+j}:{105+j}], v[{108+j}:{109+j}]")
            a(f"v_pk_add_f32 v[{20+j}:{21+j}], v[{112+j}:{113+j}], v[{116+j}:{117+j}]")
            a(f"v_pk_add_f32 v[{24+j}:{25+j}], v[{120+j}:{121+j}], v[{124+j}:{125+j}]")
        for j in (0, 2):
            a(f"v_pk_add_f32 v[{16+j}:{17+j}], v[{16+j}:{17+j}], v[{20+j}:{21+j}]")
            a(f"v_pk_add_f32 v[{24+j}:{25+j}], v[{24+j}:{25+j}], v[{128+j}:{129+j}]")
        for j in (0, 2): a(f"v_pk_add_f32 v[{16+j}:{17+j}], v[{16+j}:{17+j}], v[{24+j}:{25+j}]")
    with live():
        if e3ack:
            c("first look once a store of this workgroup has been acknowledged: lines nobody has cached yet are written faster")
            lds_wait(63, F_FACK, 1, 150, 0)
        spoll([i3(i) for i in range(7)], s3, range(16, 20), 14, pw=pw3)
    stamp("e3")
    red_g4([16, 17, 18, 19], 20)
    a(f"v_add_f32_dpp v20, v20, v20 row_ror:8 {FULL}")
    rbf(20, 20)
    a("v_add_f32 v20, v20, v7"); a("v_cvt_pk_bf16_f32 v20, v20, v20")
    a("s_cbranch_execz L_warmed")
    a("s_mov_b64 exec, s[12:13]")
    a("global_store_short v5, v20, s[34:35]")
    a("s_cmp_lg_u32 s52, 0"); a("s_cbranch_scc1 L_noep")
    c("every workgroup has long read the epoch word: leave this launch's tag there")
    a("s_mov_b64 exec, 1")
    a(f"v_mov_b32 v5, {WS_EP:#x}"); a("v_mov_b32 v6, s15")
    a("global_store_dword v5, v6, s[38:39]")
    if dbl:
        a("s_memrealtime s[90:91]"); a("s_waitcnt lgkmcnt(0)")
        a("s_sub_u32 s92, s90, s88"); a(f"s_mul_i32 s92, s92, {dbl}"); a("s_add_u32 s92, s92, s90"); a("s_mov_b32 s60, 100000")
        a.label("L_dbl")
        a("s_memrealtime s[90:91]"); a("s_waitcnt lgkmcnt(0)"); a("s_sub_u32 s93, s90, s92"); a("s_cmp_ge_i32 s93, 0"); a("s_cbranch_scc1 L_noep")
        a("s_sub_u32 s60, s60, 1"); a("s_cbranch_scc0 L_dbl")
    a.label("L_noep")
    a("s_mov_b64 exec, -1")
    stamp("out")
    a.label("L_tend")
    a("s_cbranch_execz L_warmed")
    a.label("L_fin")
    if diag:
        a("s_add_u32 s90, s38, 0x10000000"); a("s_addc_u32 s91, s39, 0")
        a(f"s_mul_i32 s92, s2, {NWAVE}"); a("s_add_u32 s92, s92, s93"); a("s_lshl_b32 s92, s92, 8")
        a(f"v_lshlrev_b32 v{SV+1}, 2, v0"); a(f"v_add_u32 v{SV+1}, s92, v{SV+1}")
        a(f"global_store_dword v{SV+1}, v{SV}, s[90:91]")
    a.label("L_exit")
    a("s_endpgm")
    nv = 168
    a.raw('.section .rodata,"a"'); a.raw(".p2align 6"); a.raw(f".amdhsa_kernel {KN}")
    a.raw(f"  .amdhsa_next_free_vgpr {nv}"); a.raw("  .amdhsa_next_free_sgpr 96"); a.raw(f"  .amdhsa_accum_offset {nv}")
    a.raw("  .amdhsa_group_segment_fixed_size 0"); a.raw("  .amdhsa_kernarg_size 96"); a.raw("  .amdhsa_user_sgpr_count 2")
    a.raw("  .amdhsa_user_sgpr_kernarg_segment_ptr 1"); a.raw("  .amdhsa_system_sgpr_workgroup_id_x 1")
    a.raw("  .amdhsa_float_denorm_mode_32 3")
    a.raw(".end_amdhsa_kernel")
    return a.text(), stampn

if __name__ == "__main__":
    out = sys.argv[1]
    kw = eval("dict(%s)" % sys.argv[2]) if len(sys.argv) > 2 else {}
    t, st = gen(**kw)
    open(out, "w").write(t)
    print("wrote", out, len(t.splitlines()), "lines", st)
```
